```python
import torch

def _softmax(x, axis=-1):
    return torch.softmax(x, dim=axis)

def _gelu(x):
    return torch.nn.functional.gelu(x, approximate='tanh')

def _silu(x):
    return torch.nn.functional.silu(x)

def _sigmoid(x):
    return torch.sigmoid(x)

def _layernorm(x, axis=-1, eps=1e-05):
    m = x.mean(dim=axis, keepdim=True)
    v = x.var(dim=axis, keepdim=True, unbiased=False)
    return (x - m) / torch.sqrt(v + eps)

def _scatter_add(tgt, idx, src, axis=0):
    return tgt.clone().index_add_(axis, idx, src)

def _segment_sum(src, seg, n):
    out = torch.zeros((n,) + src.shape[1:], dtype=src.dtype)
    return out.index_add_(0, seg, src)

def _pad(x, pw):
    flat = tuple((v for pair in reversed(pw) for v in pair))
    return torch.nn.functional.pad(x, flat)
kernel_name = 'adaLN_cond__sliding_block__glu_gated_geglu__prompt'

def setup_inputs():

    _w = lambda a: (lambda t: t.to(torch.bfloat16) if t.is_floating_point() else t)(torch.as_tensor(a))

    def _A_setup():
        B, S, D = (1, 2048, 640)
        return {'x': _w((lambda *s: torch.randn(*s, dtype=torch.bfloat16) * 0.05)(B, S, D)), 'wqkv': _w((lambda *s: torch.randn(*s, dtype=torch.bfloat16) * 0.05)(D, 3 * D)), 'wo': _w((lambda *s: torch.randn(*s, dtype=torch.bfloat16) * 0.05)(D, D))}
    _A_in = _A_setup()

    def _B_setup():
        B, S, Dm, Df = (1, 2048, 640, 1536)
        return {'x': _w((lambda *s: torch.randn(*s, dtype=torch.bfloat16) * 0.05)(B, S, Dm)), 'w_gate': _w((lambda *s: torch.randn(*s, dtype=torch.bfloat16) * 0.8)(Dm, Df) * Dm ** (-0.5)), 'w_up': _w((lambda *s: torch.randn(*s, dtype=torch.bfloat16) * 0.8)(Dm, Df) * Dm ** (-0.5)), 'w_down': _w((lambda *s: torch.randn(*s, dtype=torch.bfloat16) * 0.8)(Df, Dm) * Df ** (-0.5))}
    _B_in = _B_setup()
    return {'A_x': _A_in['x'], 'A_wqkv': _A_in['wqkv'], 'A_wo': _A_in['wo'], 'B_x': _B_in['x'], 'B_w_gate': _B_in['w_gate'], 'B_w_up': _B_in['w_up'], 'B_w_down': _B_in['w_down'], 'c': _w((lambda *s: torch.randn(*s, dtype=torch.bfloat16) * 0.2)(1, 640) * 8.0), 'w_mod': _w((lambda *s: torch.randn(*s, dtype=torch.bfloat16) * 0.2)(640, 6 * 640) * 640 ** (-0.5) * 8.0)}

def reference(A_x, A_wqkv, A_wo, B_x, B_w_gate, B_w_up, B_w_down, c, w_mod):

    def _A_ref(x, wqkv, wo):
        B, S, D = x.shape
        H = 32
        Dh = D // H
        W = 256
        qkv = (lambda x, *d: x.permute(*d))((x @ wqkv).reshape(B, S, 3, H, Dh), 2, 0, 3, 1, 4)
        q, k, v = (qkv[0], qkv[1], qkv[2])
        scores = torch.einsum('bhqd,bhkd->bhqk', q, k) * Dh ** (-0.5)
        idx = torch.arange(S)
        mask = (idx[:, None] - idx[None, :] >= 0) & (idx[:, None] - idx[None, :] < W)
        scores = torch.where(mask[None, None], scores, -1000000000.0)
        p = _softmax(scores, axis=-1)
        o = torch.einsum('bhqk,bhkd->bhqd', p, v)
        return (lambda x, *d: x.permute(*d))(o, 0, 2, 1, 3).reshape(B, S, D) @ wo

    def _B_ref(x, w_gate, w_up, w_down):
        g = torch.einsum('bsd,df->bsf', x, w_gate)
        u = torch.einsum('bsd,df->bsf', x, w_up)
        h = _gelu(g) * u
        return torch.einsum('bsf,fd->bsd', h, w_down)
    x = A_x
    mod = (_silu(c) @ w_mod).reshape(c.shape[0], 6, 1, -1)
    sa, ca, ga, sb, cb, gb = (mod[:, 0].clone(), mod[:, 1].clone(), mod[:, 2].clone(), mod[:, 3].clone(), mod[:, 4].clone(), mod[:, 5].clone())
    h = _layernorm(x, axis=-1) * (1 + ca) + sa
    x = x + ga * _A_ref(h, A_wqkv, A_wo)
    h = _layernorm(x, axis=-1) * (1 + cb) + sb
    x = x + gb * _B_ref(h, B_w_gate, B_w_up, B_w_down)
    return x
```

```python
import re

A0 = 256
S0 = 1000
VCC = (1106, 1107)
EXEC = (1126, 1127)
M0 = 1124

TRANS = ('v_exp_f32', 'v_log_f32', 'v_rcp_f32', 'v_rsq_f32', 'v_sqrt_f32', 'v_sin_f32', 'v_cos_f32', 'v_rcp_iflag_f32')
RMW_VALU = ('v_fmac_f32', 'v_dot2c_f32_bf16', 'v_pk_fmac_f16', 'v_writelane_b32')

_reg_re = re.compile(r'^(-|\|)?(?:abs\()?([vas])(?:(\d+)|\[(\d+):(\d+)\])\)?\|?$')


def regs_of(op):
    op = op.strip()
    if op == 'vcc':
        return set(VCC)
    if op == 'vcc_lo':
        return {VCC[0]}
    if op == 'vcc_hi':
        return {VCC[1]}
    if op == 'exec':
        return set(EXEC)
    if op == 'exec_lo':
        return {EXEC[0]}
    if op == 'exec_hi':
        return {EXEC[1]}
    if op == 'm0':
        return {M0}
    m = _reg_re.match(op)
    if not m:
        return set()
    base = {'v': 0, 'a': A0, 's': S0}[m.group(2)]
    if m.group(3) is not None:
        return {base + int(m.group(3))}
    lo, hi = int(m.group(4)), int(m.group(5))
    return set(range(base + lo, base + hi + 1))


def split_ops(s):
    out, depth, cur = [], 0, ''
    for ch in s:
        if ch in '[(':
            depth += 1
        if ch in '])':
            depth -= 1
        if ch == ',' and depth == 0:
            out.append(cur.strip())
            cur = ''
        else:
            cur += ch
    if cur.strip():
        out.append(cur.strip())
    return out


class Ins:
    __slots__ = ('text', 'mn', 'ops', 'mods', 'kind', 'rd', 'wr', 'tag', 'passes', 'A', 'B', 'C', 'D', 'sdata', 'dpp', 'meta')

    def __init__(self, text, tag=None):
        self.text = text
        self.tag = tag
        self.meta = None
        t = text.split(';')[0].strip()
        parts = t.split(None, 1)
        self.mn = mn = parts[0]
        rest = parts[1] if len(parts) > 1 else ''
        ops = split_ops(rest)
        mods = ''
        if ops:
            last = ops[-1]
            m = re.match(r'^(\S+(?:\([^)]*\))?)\s+(.*)$', last)
            if m and not last.startswith('hwreg'):
                ops[-1] = m.group(1)
                mods = m.group(2)
        self.ops, self.mods = ops, mods
        self.rd, self.wr = set(), set()
        self.passes = 0
        self.A = self.B = self.C = self.D = None
        self.sdata = set()
        self.dpp = ('quad_perm' in mods or 'row_' in mods or 'wave_' in mods or mn.endswith('_dpp'))
        R = [regs_of(o) for o in ops]
        base = mn
        for suf in ('_e32', '_e64', '_dpp', '_sdwa'):
            if base.endswith(suf):
                base = base[:-len(suf)]
        if mn.startswith('v_mfma'):
            self.kind = 'mfma'
            self.D, self.A, self.B, self.C = R[0], R[1], R[2], R[3]
            self.wr = set(R[0])
            self.rd = R[1] | R[2] | R[3]
            self.passes = 8 if '32x32' in mn else 4
        elif mn.startswith('v_'):
            self.kind = 'trans' if base in TRANS else 'valu'
            if base.startswith('v_cmpx'):
                self.wr = R[0] | set(EXEC)
                self.rd = set().union(*R[1:])
            elif base in ('v_permlane16_swap_b32', 'v_permlane32_swap_b32', 'v_swap_b32'):
                self.wr = R[0] | R[1]
                self.rd = R[0] | R[1]
            elif base in ('v_add_co_u32', 'v_sub_co_u32', 'v_addc_co_u32', 'v_subb_co_u32', 'v_mad_u64_u32'):
                self.wr = R[0] | R[1]
                self.rd = set().union(*R[2:])
            elif base == 'v_nop':
                pass
            else:
                self.wr = set(R[0])
                self.rd = set().union(*R[1:]) if len(R) > 1 else set()
                if base in RMW_VALU or self.dpp:
                    self.rd |= R[0]
                if base == 'v_cndmask_b32' and len(ops) == 3:
                    self.rd |= set(VCC)
        elif mn.startswith('ds_'):
            self.kind = 'ds'
            if mn.startswith('ds_read') or mn.startswith('ds_bpermute') or mn.startswith('ds_permute') or mn.startswith('ds_swizzle') or '_rtn' in mn:
                self.wr = set(R[0])
                self.rd = set().union(*R[1:])
            else:
                self.rd = set().union(*R)
        elif mn.startswith('buffer_wbl2') or mn.startswith('buffer_inv'):
            self.kind = 'vmem'
        elif mn.startswith('buffer_') or mn.startswith('global_'):
            self.kind = 'vmem'
            lds = bool(re.search(r'\blds\b', mods)) or '_lds_' in mn
            if lds:
                self.rd = set().union(*R) | {M0}
                self.meta = 'dma'
            elif '_load' in mn:
                self.wr = set(R[0])
                self.rd = set().union(*R[1:])
            elif '_store' in mn:
                self.rd = set().union(*R)
                data = R[0] if mn.startswith('buffer_') else R[1]
                if len(data) >= 3:
                    self.sdata = set(data)
            elif '_atomic' in mn:
                self.rd = set().union(*R)
                if 'sc0' in mods:
                    self.wr = set(R[0])
            else:
                raise ValueError(text)
        elif mn.startswith('s_load') or mn.startswith('s_buffer_load') or mn in ('s_memtime', 's_memrealtime') or mn.startswith('s_atomic'):
            self.kind = 'smem'
            self.wr = set(R[0])
            self.rd = set().union(*R[1:]) if len(R) > 1 else set()
            if mn.startswith('s_atomic'):
                self.rd |= R[0]
        elif mn in ('s_waitcnt', 's_nop', 's_barrier', 's_endpgm', 's_sleep', 's_setprio', 's_branch') or mn.startswith('s_cbranch'):
            self.kind = 'ctl'
        elif mn.startswith('s_cmp') or mn.startswith('s_bitcmp'):
            self.kind = 'salu'
            self.rd = set().union(*R)
        elif mn in ('s_setpc_b64',):
            self.kind = 'ctl'
            self.rd = set(R[0])
        elif mn.startswith('s_'):
            self.kind = 'salu'
            self.wr = set(R[0])
            self.rd = set().union(*R[1:]) if len(R) > 1 else set()
            if 'saveexec' in mn:
                self.wr |= set(EXEC)
            if mn in ('s_addk_i32', 's_mulk_i32', 's_cmov_b32', 's_cmov_b64'):
                self.rd |= R[0]
        else:
            raise ValueError('unknown instruction: ' + text)


class Pseudo:
    def __init__(self, what, arg=None):
        self.what, self.arg = what, arg


class Builder:
    def __init__(self):
        self.items = []
        self._stack = []
        self._lab = 0

    def __call__(self, text, tag=None):
        for line in text.split('\n'):
            line = line.strip()
            if not line or line.startswith(';'):
                continue
            self.items.append(Ins(line, tag))

    def newlabel(self, stem='L'):
        self._lab += 1
        return f'.L{stem}_{self._lab}'

    def label(self, name):
        self.items.append(Pseudo('label', name))

    def comment(self, s):
        self.items.append(Pseudo('comment', s))

    def wait_vm(self, tag):
        self.items.append(Pseudo('wait_vm', tag))

    def wait_vm_all(self):
        self.items.append(Pseudo('wait_vm', None))

    def wait_lgkm_all(self):
        self.items.append(Pseudo('wait_lgkm', None))

    def wait_lgkm(self, tag):
        self.items.append(Pseudo('wait_lgkm', tag))

    def barrier(self):
        self.wait_lgkm_all()
        self('s_barrier')

    def cond_begin(self):
        self.items.append(Pseudo('cond_begin'))

    def cond_end(self):
        self.items.append(Pseudo('cond_end'))

    def fence_hazards(self):
        self.items.append(Pseudo('fence'))

    def assume_vm_empty(self):
        self.items.append(Pseudo('vm_empty'))

    def raw(self, s):
        self.items.append(Pseudo('raw', s))

    def begin(self):
        self._stack.append(self.items)
        self.items = []

    def end(self):
        out = self.items
        self.items = self._stack.pop()
        return out

    def put(self, items):
        self.items.extend(items)

    def finalize(self):
        out = []
        vmq, lgq = [], []
        cond_stack = []
        hist = []
        pos = [0]
        stats = dict(nops=0, waits=0)

        def emit(text, states=1, ins=None):
            out.append('    ' + text)
            if ins is not None:
                hist.append((ins, pos[0]))
                hist[:] = [(p, pp) for (p, pp) in hist if pos[0] - pp <= 24]
            pos[0] += states

        def do_wait(vm=None, lg=None):
            parts = []
            if vm is not None:
                parts.append(f'vmcnt({vm})')
            if lg is not None:
                parts.append(f'lgkmcnt({lg})')
            if parts:
                emit('s_waitcnt ' + ' '.join(parts))
                stats['waits'] += 1

        def need_count(q, idx, cap):
            n = sum(1 for e in q[idx + 1:] if e['certain'])
            return min(n, cap)

        def retire(q, n):
            keep, c = [], 0
            for e in reversed(q):
                if c >= n:
                    break
                keep.append(e)
                if e['certain']:
                    c += 1
            q[:] = list(reversed(keep))

        def hazard_need(ins):
            need = 0
            cur = pos[0]
            isvalu = ins.kind in ('valu', 'trans')
            base = ins.mn
            for p, ppos in hist:
                dist = cur - ppos - 1
                req = 0
                pv = p.kind in ('valu', 'trans')
                if p.kind == 'mfma':
                    big = {4: 8, 8: 12}[p.passes]
                    if ins.kind == 'mfma':
                        if p.D & (ins.A | ins.B):
                            req = max(req, big)
                        if p.D & ins.C:
                            if not (p.D == ins.C and p.passes == ins.passes):
                                req = max(req, {4: 6, 8: 10}[p.passes])
                        elif p.D & ins.D:
                            req = max(req, {4: 6, 8: 10}[p.passes])
                    elif isvalu or ins.kind in ('vmem', 'ds'):
                        if p.D & (ins.rd | ins.wr):
                            req = max(req, big)
                        if isvalu and (p.C & ins.wr):
                            req = max(req, {4: 3, 8: 7}[p.passes])
                if pv:
                    vw = {r for r in p.wr if r < S0}
                    sw = {r for r in p.wr if r >= S0}
                    if ins.kind == 'mfma' and (vw & ins.rd):
                        req = max(req, 2)
                    if ins.kind == 'mfma' and (set(EXEC) & sw):
                        req = max(req, 4)
                    if isvalu:
                        if p.kind == 'trans' and ins.kind != 'trans' and (vw & (ins.rd | ins.wr)):
                            req = max(req, 1)
                        if base.startswith('v_permlane') and (vw & ins.rd):
                            req = max(req, 2)
                        if ins.dpp and (vw & ins.rd):
                            req = max(req, 2)
                        if (base.startswith('v_readlane') or base.startswith('v_readfirstlane')) and (vw & ins.rd):
                            req = max(req, 1)
                        if sw & ins.rd:
                            req = max(req, 4 if (base.startswith('v_readlane') or base.startswith('v_writelane')) else 2)
                        if set(EXEC) & sw:
                            req = max(req, 5)
                        if ('op_sel' in p.mods or 'dst_sel' in p.mods) and not p.mn.startswith('v_pk') and (vw & (ins.rd | ins.wr)):
                            req = max(req, 1)
                    if p.kind == 'trans' and ins.kind in ('vmem', 'ds') and (vw & ins.rd):
                        req = max(req, 1)
                    if ins.kind == 'vmem' and (sw & ins.rd):
                        req = max(req, 5)
                    if ins.kind in ('salu', 'smem', 'ctl') and (sw & ins.rd):
                        req = max(req, 1)
                if p.kind == 'salu' and M0 in p.wr and ins.meta == 'dma':
                    req = max(req, 1)
                if p.kind == 'vmem' and p.sdata and (p.sdata & ins.wr):
                    req = max(req, 2 if (isvalu or ins.kind == 'mfma') else 1)
                if p.kind == 'ds' and not p.wr and len(p.rd) >= 4 and isvalu and (p.rd & ins.wr):
                    req = max(req, 1)
                if req > dist:
                    need = max(need, req - dist)
            return need

        def pad(n):
            while n > 0:
                k = min(n, 16)
                emit(f's_nop {k - 1}', states=k)
                stats['nops'] += 1
                n -= k

        for it in self.items:
            if isinstance(it, Pseudo):
                if it.what == 'label':
                    out.append(it.arg + ':')
                elif it.what == 'comment':
                    out.append('    ; ' + it.arg)
                elif it.what == 'raw':
                    out.append(it.arg)
                elif it.what == 'wait_vm':
                    idxs = [i for i, e in enumerate(vmq) if it.arg is None or e['tag'] == it.arg]
                    if idxs:
                        n = need_count(vmq, idxs[-1], 63)
                        do_wait(vm=n)
                        retire(vmq, n)
                elif it.what == 'wait_lgkm':
                    idxs = [i for i, e in enumerate(lgq) if it.arg is None or e['tag'] == it.arg]
                    if idxs:
                        n = 0 if any(e['smem'] for e in lgq) else need_count(lgq, idxs[-1], 15)
                        do_wait(lg=n)
                        retire(lgq, n)
                elif it.what == 'vm_empty':
                    vmq[:] = []
                elif it.what == 'cond_begin':
                    cond_stack.append((list(vmq), list(lgq), list(hist), pos[0]))
                elif it.what == 'cond_end':
                    v0, l0, h0, p0 = cond_stack.pop()
                    delta = pos[0] - p0
                    inner = [(p, pp) for (p, pp) in hist if pp >= p0]
                    hist[:] = [(p, pp + delta) for (p, pp) in h0] + inner
                    for q, q0 in ((vmq, v0), (lgq, l0)):
                        new = [e for e in q if not any(e is x for x in q0)]
                        for e in new:
                            e['certain'] = False
                        q[:] = q0 + new
                elif it.what == 'fence':
                    need = 0
                    for p, ppos in hist:
                        dist = pos[0] - ppos - 1
                        req = 0
                        if p.kind == 'mfma':
                            req = {4: 8, 8: 12}[p.passes]
                        elif p.kind in ('valu', 'trans'):
                            req = 5 if any(r >= S0 for r in p.wr) else 2
                        elif p.kind == 'vmem' and p.sdata:
                            req = 2
                        elif p.kind == 'salu' and M0 in p.wr:
                            req = 1
                        need = max(need, req - dist)
                    pad(need)
                continue
            ins = it
            touch = ins.rd | ins.wr
            vm = lg = None
            idxs = [i for i, e in enumerate(vmq) if e['wr'] & touch]
            if idxs:
                vm = need_count(vmq, idxs[-1], 63)
            idxs = [i for i, e in enumerate(lgq) if e['wr'] & touch]
            if idxs:
                lg = 0 if any(e['smem'] for e in lgq) else need_count(lgq, idxs[-1], 15)
            do_wait(vm, lg)
            if vm is not None:
                retire(vmq, vm)
            if lg is not None:
                retire(lgq, lg)
            if ins.mn == 's_waitcnt':
                m = re.search(r'vmcnt\((\d+)\)', ins.text)
                if m:
                    retire(vmq, int(m.group(1)))
                m = re.search(r'lgkmcnt\((\d+)\)', ins.text)
                if m and (int(m.group(1)) == 0 or not any(e['smem'] for e in lgq)):
                    retire(lgq, int(m.group(1)))
            pad(hazard_need(ins))
            states = 1
            if ins.mn == 's_nop':
                states = int(ins.ops[0], 0) + 1
            emit(ins.text, states=states, ins=ins)
            if ins.kind == 'vmem':
                vmq.append(dict(wr=set(ins.wr), tag=ins.tag, certain=True, smem=False))
            elif ins.kind == 'ds':
                lgq.append(dict(wr=set(ins.wr), tag=ins.tag, certain=True, smem=False))
            elif ins.kind == 'smem':
                lgq.append(dict(wr=set(ins.wr), tag=ins.tag, certain=True, smem=True))
        self.stats = stats
        return '\n'.join(out)


def interleave(main, fill, start=0, every=1, per=1):
    out, fi, n = [], 0, 0
    for it in main:
        out.append(it)
        if isinstance(it, Ins) and it.kind == 'mfma':
            if n >= start and (n - start) % every == 0:
                c = 0
                while fi < len(fill) and c < per:
                    f = fill[fi]
                    out.append(f)
                    fi += 1
                    if isinstance(f, Ins):
                        c += 2 if f.kind == 'trans' else 1
            n += 1
    out.extend(fill[fi:])
    return out
```

```python
import sys, struct, argparse
sys.path.insert(0, 'dev')
from asmb import Builder, interleave, Ins

NAME = 'adaLN_cond__sliding_block__glu_gated_geglu__prompt'

WS_EPOCH = 0
WS_HELLO = 0x400
WS_PALL = 0x1000
WS_FLAG = 0x2000
WS_MODG = 0x10000
WS_ST = 0x20000
WS_WQ = 0x100000
WS_WO = 0x380000
WS_WGU = 0x480000
WS_WD = 0x840000
WS_H = 0xA40000
WS_O = 0xCC0000
WS_Z = 0xF40000
WS_KV = 0x11C0000
WS_HH = 0x1740000
WS_DBG = 0x1D40000
WS_SIZE = 0x1E00000
OOB = 0x40000000
PH_H, PH_KV, PH_O, PH_Z, PH_HH = range(5)

KVB = 5632
L_C = 0
L_KVOWN = 8 * KVB
L_Q = 12 * KVB
L_P = L_Q + 10240
L_A = 81920
L_B = 122880
LDS_BYTES = 163840
L_MOD = 0
L_WQS = 20480
L_SC = 32768
L_STAT = 33280
L_GUS = L_A
L_ODS = L_A + 16384
L_MV = L_B
P_SB = L_P
P_G2 = L_P + 1280
P_GA = L_P + 2560
P_GB = L_P + 2720
P_DUMMY = L_P + 3072
L_RED = 0

sW = 's3'
WS = 's[4:7]'; XS = 's[8:11]'; WQS = 's[12:15]'; ODS = 's[16:19]'; WGS = 's[20:23]'; WUS = 's[24:27]'
CS = 's[28:31]'; WMS = 's[32:35]'; OUTS = 's[36:39]'
sCL, sJ, sTAG, sFAST = 's40', 's41', 's42', 's43'
sJC, sTH = 's46', 's47'

QSCALE = 20 ** -0.5 * 1.4426950408889634
NEG = -1.0e30


def f2u(x):
    return struct.unpack('<I', struct.pack('<f', x))[0]


def vr(a, n=1, t='v'):
    return f'{t}{a}' if n == 1 else f'{t}[{a}:{a + n - 1}]'


def ur(a, n=4):
    return vr(a, n, 'v') if a < 256 else vr(a - 256, n, 'a')


class Gen:
    def __init__(self, opt):
        self.o = opt
        self.k = Builder()
        self.nstamp = 0
        self.stampnames = []

    def stamp(self, name):
        if not self.o.stamps:
            return
        k = self.k
        n = self.nstamp
        assert n < 16
        self.nstamp += 1
        self.stampnames.append(name)
        k('s_memrealtime s[100:101]')
        k(f's_mov_b32 s{84 + n}, s100')

    def dma(self, srd, voff, soff, lds, imm=0, tag=None, sc1=False):
        k = self.k
        k(f's_mov_b32 m0, {lds}')
        k(f'buffer_load_dwordx4 {voff}, {srd}, {soff} offen offset:{imm}{" sc1" if sc1 else ""} lds', tag)

    def bf16_round_keep(self, regs, tmp):
        k = self.k
        for i in range(0, len(regs), 2):
            k(f'v_cvt_pk_bf16_f32 v{tmp}, v{regs[i]}, v{regs[i + 1]}')
            k(f'v_lshlrev_b32 v{regs[i]}, 16, v{tmp}')
            k(f'v_and_b32 v{regs[i + 1]}, 0xffff0000, v{tmp}')

    def flag_off(self, sdst, phase, scl=sCL):
        k = self.k
        k(f's_lshl_b32 {sdst}, {scl}, 8')
        k(f's_add_u32 {sdst}, {sdst}, {WS_FLAG + phase * 0x1000}')

    def publish(self, phase, tag, local):
        k = self.k
        self.flag_off('s72', phase)
        k.wait_vm(tag)
        if local:
            lab, done = k.newlabel('pubslow'), k.newlabel('pubdone')
            k(f's_cmp_eq_u32 {sFAST}, 0')
            k(f's_cbranch_scc1 {lab}')
            k.cond_begin()
            k(f'buffer_store_dword v5, v4, {WS}, s72 offen')
            k(f's_branch {done}')
            k.cond_end()
            k.label(lab)
            k.cond_begin()
            k('buffer_wbl2 sc1')
            k('s_waitcnt vmcnt(0)')
            k(f'buffer_store_dword v5, v4, {WS}, s72 offen sc1')
            k.cond_end()
            k.label(done)
        else:
            k(f'buffer_store_dword v5, v4, {WS}, s72 offen sc1')

    def poll(self, voff, soff, vt, local, sleep=0):
        k = self.k
        lab, out = k.newlabel('poll'), k.newlabel('pollx')
        k('s_mov_b32 s73, 0')
        k.fence_hazards()
        k.label(lab)
        k(f'buffer_load_dword v{vt}, {voff}, {WS}, {soff} offen sc1')
        k('s_add_u32 s73, s73, 1')
        k('s_waitcnt vmcnt(0)')
        k(f'v_cmp_ne_u32 vcc, {sTAG}, v{vt}')
        k(f's_cmp_ge_u32 s73, {self.o.spin}')
        k(f's_cbranch_scc1 {out}')
        if sleep:
            k(f's_cmp_eq_u64 vcc, 0')
            k(f's_cbranch_scc1 {out}')
            k(f's_sleep {sleep}')
            k(f's_branch {lab}')
        else:
            k(f's_cmp_lg_u64 vcc, 0')
            k(f's_cbranch_scc1 {lab}')
        k.label(out)
        if local:
            skip = k.newlabel('acq')
            k(f's_cmp_lg_u32 {sFAST}, 0')
            k(f's_cbranch_scc1 {skip}')
            k('buffer_inv sc1')
            k('s_waitcnt vmcnt(0)')
            k.label(skip)
        k.assume_vm_empty()

    def startup(self):
        k = self.k
        o = self.o
        k('s_load_dwordx8 s[64:71], s[0:1], 64')
        k('s_load_dwordx16 s[48:63], s[0:1], 0')
        k('s_cmp_ge_u32 s2, 256')
        k('s_cbranch_scc1 .Lend')
        if o.stamps:
            k('s_memrealtime s[100:101]')
        k('s_getpc_b64 s[44:45]')
        k.label('.Lpc0')
        k('s_bfe_u32 s72, s2, 0x30003')
        k('v_lshrrev_b32 v2, 2, v0')
        k('v_lshl_add_u32 v2, s72, 6, v2')
        k('v_lshlrev_b32 v2, 7, v2')
        k('v_min_u32 v2, .Lcode_end-.Lpc0-4, v2')
        k('v_and_b32 v2, -4, v2')
        k('global_load_dword v95, v2, s[44:45]')
        k('v_lshrrev_b32 v2, 6, v0')
        k('v_and_b32 v3, 63, v0')
        k('v_readfirstlane_b32 s3, v2')
        k('v_lshlrev_b32 v1, 4, v3')
        k('v_lshrrev_b32 v2, 5, v0')
        k('v_lshlrev_b32 v2, 4, v2')
        k('v_add_u32 v2, .Ltab_qkv-.Lpc0, v2')
        k('global_load_dwordx4 v[20:23], v2, s[44:45]')
        for srd, size in ((4, WS_SIZE), (8, 2621440), (12, 2457600), (20, 1966080), (24, 1966080), (28, 1280), (32, 4915200), (36, 2621440)):
            k(f's_mov_b32 s{srd + 2}, {size}')
            k(f's_mov_b32 s{srd + 3}, 0x20000')
        k('s_mov_b32 s19, 0x20000')
        k('s_and_b32 s72, s2, 7')
        k('s_lshr_b32 s73, s2, 3')
        k(f's_and_b32 {sJ}, s73, 15')
        k('s_lshr_b32 s73, s73, 4')
        k(f's_lshl1_add_u32 {sCL}, s72, s73')
        k(f's_and_b32 {sJC}, {sJ}, 7')
        k(f's_lshr_b32 {sTH}, {sJ}, 3')
        k('s_sub_u32 s74, s2, 16')
        k('s_cmp_lt_u32 s2, 240')
        k('s_cselect_b32 s74, s2, s74')
        k('s_lshr_b32 s75, s74, 2')
        k('s_and_b32 s76, s74, 3')
        k('v_lshrrev_b32 v6, 3, v3')
        k('v_and_b32 v7, 7, v3')
        k('v_lshlrev_b32 v7, 4, v7')
        k('s_movk_i32 s72, 7680')
        k('v_mad_u32_u24 v8, v6, s72, v7')
        k('s_mul_i32 s77, s76, 160')
        k(f's_lshl3_add_u32 s77, {sW}, s77')
        k('s_mul_i32 s77, s77, 7680')
        k('s_lshl_b32 s72, s75, 7')
        k('s_add_u32 s77, s77, s72')
        k(f's_lshl_b32 s78, {sW}, 10')
        k('v_min_u32 v9, 79, v0')
        k('v_lshlrev_b32 v9, 2, v9')
        k('s_mul_i32 s79, s76, 320')
        k.wait_lgkm_all()
        if o.stamps:
            k('s_mov_b32 s68, s100')
        k('s_mov_b64 s[32:33], s[64:65]')
        k('s_mov_b64 s[28:29], s[62:63]')
        k('s_load_dword s42, s[70:71], 0')
        for t in range(5):
            self.dma(WMS, 'v8', 's77', 's78', tag='mod')
            if t < 4:
                k(f's_add_u32 s77, s77, {32 * 7680}')
                k('s_add_u32 s78, s78, 4096')
        k(f'buffer_load_dword v10, v9, {CS}, s79 offen')
        k('s_mov_b64 s[4:5], s[70:71]')
        k('s_mov_b64 s[8:9], s[48:49]')
        k('s_mov_b64 s[12:13], s[50:51]')
        k('s_mov_b64 s[20:21], s[56:57]')
        k('s_mov_b64 s[24:25], s[58:59]')
        k('s_mov_b64 s[36:37], s[66:67]')
        k('v_and_b32 v11, 7, v3')
        k('v_mul_u32_u24 v11, 1280, v11')
        k('v_lshl_add_u32 v11, v6, 4, v11')
        k('v_cmp_gt_u32 vcc, 32, v3')
        k(f'v_mov_b32 v2, {OOB}')
        k('v_cndmask_b32 v12, v2, v11, vcc')
        k(f's_lshl_b32 s72, {sCL}, 4')
        k(f's_add_u32 s72, s72, {sJ}')
        k('s_mul_i32 s72, s72, 10240')
        k(f's_mul_i32 s73, {sW}, 320')
        k('s_add_u32 s72, s72, s73')
        k(f'buffer_load_dwordx4 v[24:27], v11, {XS}, s72 offen')
        k(f'buffer_load_dwordx4 v[28:31], v11, {XS}, s72 offen offset:128')
        k(f'buffer_load_dwordx4 v[32:35], v12, {XS}, s72 offen offset:256')
        k('s_mul_i32 s80, s74, 171')
        k('s_lshr_b32 s80, s80, 9')
        k('s_mul_i32 s81, s80, 3')
        k('s_sub_u32 s81, s74, s81')
        k('s_movk_i32 s72, 3840')
        k('v_mad_u32_u24 v8, v6, s72, v7')
        k('s_mul_i32 s77, s80, 30720')
        k('s_mul_i32 s72, s81, 1280')
        k('s_add_u32 s77, s77, s72')
        k(f's_mul_i32 s78, {sW}, 3072')
        k(f's_add_u32 s78, s78, {L_WQS}')
        k(f's_add_u32 s82, {sW}, 8')
        k('s_min_u32 s82, s82, 9')
        k(f's_lshl_b32 s72, {sW}, 7')
        k('s_add_u32 s72, s72, s77')
        self.dma(WQS, 'v8', 's72', 's78', tag='wq')
        k('s_add_u32 s72, s72, 512')
        k('s_add_u32 s78, s78, 1024')
        self.dma(WQS, 'v8', 's72', 's78', tag='wq')
        k('s_lshl_b32 s72, s82, 7')
        k('s_add_u32 s72, s72, s77')
        k('s_add_u32 s78, s78, 1024')
        self.dma(WQS, 'v8', 's72', 's78', tag='wq')
        self.od_issue('s2', 0)
        k('s_movk_i32 s72, 3072')
        k('v_mad_u32_u24 v8, v6, s72, v7')
        k('s_mul_i32 s77, s80, 24576')
        k('s_lshl_b32 s72, s81, 10')
        k('s_add_u32 s77, s77, s72')
        k(f's_lshl_b32 s72, {sW}, 7')
        k('s_add_u32 s77, s77, s72')
        k(f's_lshl_b32 s78, {sW}, 12')
        k(f's_add_u32 s78, s78, {L_GUS}')
        for t in range(2):
            self.dma(WGS, 'v8', 's77', 's78', tag='gu')
            k('s_add_u32 s78, s78, 1024')
            self.dma(WUS, 'v8', 's77', 's78', tag='gu')
            if t == 0:
                k('s_add_u32 s78, s78, 1024')
                k('s_add_u32 s77, s77, 512')
        lab = k.newlabel('od2')
        k('s_cmp_lt_u32 s2, 240')
        k(f's_cbranch_scc1 {lab}')
        k.cond_begin()
        k('s_add_u32 s48, s2, 16')
        self.od_issue('s48', 1)
        k.cond_end()
        k.label(lab)
        k('s_getreg_b32 s49, hwreg(HW_REG_XCC_ID, 0, 3)')
        k('s_mul_i32 s42, s42, 0x9e3779b1')
        k('s_add_u32 s42, s42, 0x7f4a7c15')
        k('s_mov_b32 s50, s42')
        k('s_and_b32 s42, s42, -8')
        k('s_or_b32 s51, s42, s49')
        k(f's_lshl2_add_u32 s72, {sJ}, {sW}')
        k('s_lshl_b32 s72, s72, 2')
        k('v_mov_b32 v4, s72')
        k('v_cmp_eq_u32 vcc, 0, v3')
        k('v_cndmask_b32 v4, v2, v4, vcc')
        k('v_mov_b32 v5, s42')
        k(f's_lshl_b32 s72, {sJ}, 2')
        k('v_mov_b32 v13, s72')
        k('v_cmp_eq_u32 vcc, 0, v0')
        k('v_cndmask_b32 v13, v2, v13, vcc')
        k('v_mov_b32 v14, s51')
        k(f's_lshl_b32 s72, {sCL}, 7')
        k(f'buffer_store_dword v14, v13, {WS}, s72 offen offset:{WS_HELLO} sc1')
        k('v_and_b32 v13, 31, v0')
        k('v_mul_u32_u24 v13, 48, v13')
        k('v_bfe_u32 v14, v0, 5, 1')
        k('s_movk_i32 s72, 1536')
        k('v_mad_u32_u24 v13, v14, s72, v13')
        k(f's_mul_i32 s72, {sW}, {KVB}')
        k('v_add_u32 v13, s72, v13')
        k('v_mov_b32 v14, 0x3f80')
        k('v_mov_b32 v15, 0')
        k(f'ds_write_b64 v13, v[14:15] offset:{L_KVOWN + 2560 + 40}')
        k('v_lshlrev_b32 v14, 16, v10')
        k('v_and_b32 v15, 0xffff0000, v10')
        for r in (14, 15):
            k(f'v_mul_f32 v{r + 2}, {f2u(-1.4426950408889634):#x}, v{r}')
        for r in (14, 15):
            k(f'v_exp_f32 v{r + 2}, v{r + 2}')
        for r in (14, 15):
            k(f'v_add_f32 v{r + 2}, 1.0, v{r + 2}')
        for r in (14, 15):
            k(f'v_rcp_f32 v{r + 2}, v{r + 2}')
        for r in (14, 15):
            k(f'v_mul_f32 v{r}, v{r}, v{r + 2}')
        k('v_cvt_pk_bf16_f32 v14, v14, v15')
        k(f'ds_write_b32 v9, v14 offset:{L_SC}')
        k('v_bfe_u32 v13, v3, 2, 2')
        k('v_lshlrev_b32 v13, 7, v13')
        k('v_and_b32 v14, 3, v3')
        k('v_lshl_add_u32 v15, v14, 3, v13')
        k('v_lshrrev_b32 v16, 4, v3')
        k('v_lshl_add_u32 v17, v16, 10, v15')
        k(f's_lshl_b32 s72, {sW}, 5')
        k('v_add_u32 v17, s72, v17')
        k('v_lshlrev_b32 v18, 4, v16')
        k('v_lshl_add_u32 v19, v16, 5, v15')
        k.wait_vm('mod')
        k.barrier()
        self.stamp('modld')
        for s in range(5):
            k(f'ds_read_b64_tr_b16 v[{40 + 4 * s}:{41 + 4 * s}], v17 offset:{L_MOD + 4096 * s}')
            k(f'ds_read_b64_tr_b16 v[{42 + 4 * s}:{43 + 4 * s}], v17 offset:{L_MOD + 4096 * s + 512}')
            k(f'ds_read_b128 v[{60 + 4 * s}:{63 + 4 * s}], v18 offset:{L_SC + 64 * s}')
        k('v_lshlrev_b32 v36, 6, v16')
        k('v_and_b32 v37, 15, v3')
        k('v_cmp_eq_u32 vcc, 0, v37')
        k('v_cndmask_b32 v36, v2, v36, vcc')
        k(f's_lshl2_add_u32 s72, s75, {sW}')
        k('s_lshl_b32 s72, s72, 8')
        k('s_lshl4_add_u32 s72, s76, s72')
        k(f's_add_u32 s72, s72, {WS_MODG}')
        k('s_mov_b32 s73, 0x07060503')
        k('s_mov_b32 s77, 0x07060502')
        k('s_mov_b32 s78, 0x07060501')
        for s in range(5):
            k(f'v_mfma_f32_16x16x32_bf16 v[80:83], v[{40 + 4 * s}:{43 + 4 * s}], v[{60 + 4 * s}:{63 + 4 * s}], {"0" if s == 0 else "v[80:83]"}')
        k('v_perm_b32 v80, v80, v83, s73')
        k('v_perm_b32 v81, v81, v83, s77')
        k('v_perm_b32 v82, v82, v83, s78')
        k('v_mov_b32 v83, s42')
        k(f'buffer_store_dwordx4 v[80:83], v36, {WS}, s72 offen sc1')
        self.stamp('modpub')
        k(f's_mul_i32 s72, {sW}, 3072')
        k('v_add_u32 v36, s72, v19')
        k.wait_vm('wq')
        for t in range(3):
            k(f'ds_read_b64_tr_b16 v[{40 + 4 * t}:{41 + 4 * t}], v36 offset:{L_WQS + 1024 * t}')
            k(f'ds_read_b64_tr_b16 v[{42 + 4 * t}:{43 + 4 * t}], v36 offset:{L_WQS + 1024 * t + 512}')
        k('s_lshl_b32 s77, s80, 9')
        k(f's_add_u32 s77, s77, {WS_WQ}')
        k('s_mul_i32 s78, s81, 40')
        k(f's_mov_b32 s79, 163840')
        k(f's_mov_b32 s73, 40960')
        for t in range(3):
            if t < 2:
                k(f's_lshl_b32 s72, {sW}, 6')
                if t:
                    k('s_add_u32 s72, s72, 256')
            else:
                k('s_lshl_b32 s72, s82, 6')
            k('v_add_u32 v60, s72, v3')
            k('v_mul_u32_u24 v61, 205, v60')
            k('v_lshrrev_b32 v61, 13, v61')
            k('v_mul_u32_u24 v62, 40, v61')
            k('v_sub_u32 v60, v60, v62')
            k('v_add_u32 v60, s78, v60')
            k('v_lshrrev_b32 v62, 5, v60')
            k('v_and_b32 v60, 31, v60')
            k('v_lshlrev_b32 v60, 4, v60')
            k('v_mad_u32_u24 v60, v62, s73, v60')
            k(f'v_mad_u32_u24 v{64 + t}, v61, s79, v60')
            k(f'buffer_store_dwordx4 v[{40 + 4 * t}:{43 + 4 * t}], v{64 + t}, {WS}, s77 offen sc1', 'pre')
        self.od_process(0)
        k('v_lshrrev_b32 v36, 1, v14')
        k('v_lshl_add_u32 v36, v36, 3, v13')
        k('v_and_b32 v37, 1, v14')
        k('v_lshl_add_u32 v36, v37, 10, v36')
        k('v_add_u32 v36, v36, v18')
        k(f's_lshl_b32 s72, {sW}, 12')
        k(f's_add_u32 s72, s72, {L_GUS}')
        k('v_add_u32 v36, s72, v36')
        k.wait_vm('gu')
        for t in range(2):
            for hf in range(2):
                b = 40 + 8 * t + 4 * hf
                k(f'ds_read_b64_tr_b16 v[{b}:{b + 1}], v36 offset:{2048 * t + 64 * hf}')
                k(f'ds_read_b64_tr_b16 v[{b + 2}:{b + 3}], v36 offset:{2048 * t + 64 * hf + 512}')
        k('v_and_b32 v60, 9, v3')
        k('v_bfe_u32 v61, v3, 1, 1')
        k('v_lshl_add_u32 v60, v61, 2, v60')
        k('v_bfe_u32 v61, v3, 2, 1')
        k('v_lshl_add_u32 v60, v61, 1, v60')
        k('v_lshlrev_b32 v60, 4, v60')
        k('s_lshr_b32 s77, s80, 2')
        k('s_mul_i32 s77, s77, 3072')
        k('s_and_b32 s72, s80, 3')
        k('s_lshl_b32 s72, s72, 8')
        k('s_add_u32 s77, s77, s72')
        k(f's_add_u32 s77, s77, {WS_WGU}')
        k('s_lshl_b32 s78, s81, 6')
        k(f's_lshl3_add_u32 s78, {sW}, s78')
        k(f's_mov_b32 s79, {61440 - 3072}')
        for t in range(2):
            for hf in range(2):
                b = 40 + 8 * t + 4 * hf
                d = 64 + 2 * t + hf
                k(f's_add_u32 s72, s78, {32 * t + 4 * hf}')
                k('v_add_u32 v61, s72, v16')
                k('v_mul_u32_u24 v62, 171, v61')
                k('v_lshrrev_b32 v62, 9, v62')
                k('v_lshl_add_u32 v61, v61, 10, v60')
                k(f'v_mad_u32_u24 v{d}, v62, s79, v61')
                k(f'buffer_store_dwordx4 v[{b}:{b + 3}], v{d}, {WS}, s77 offen sc1', 'pre')
        lab = k.newlabel('od2p')
        k('s_cmp_lt_u32 s2, 240')
        k(f's_cbranch_scc1 {lab}')
        k.cond_begin()
        self.od_process(1)
        k.cond_end()
        k.label(lab)
        X = list(range(40, 64))
        for i in range(12):
            k(f'v_lshlrev_b32 v{40 + 2 * i}, 16, v{24 + i}')
            k(f'v_and_b32 v{41 + 2 * i}, 0xffff0000, v{24 + i}')
        k('v_pk_add_f32 v[64:65], v[40:41], v[42:43]')
        k('v_pk_mul_f32 v[66:67], v[40:41], v[40:41]')
        k('v_pk_fma_f32 v[66:67], v[42:43], v[42:43], v[66:67]')
        for i in range(2, 12):
            k(f'v_pk_add_f32 v[64:65], v[64:65], v[{40 + 2 * i}:{41 + 2 * i}]')
            k(f'v_pk_fma_f32 v[66:67], v[{40 + 2 * i}:{41 + 2 * i}], v[{40 + 2 * i}:{41 + 2 * i}], v[66:67]')
        k('v_add_f32 v64, v64, v65')
        k('v_add_f32 v65, v66, v67')
        k('v_add_f32_dpp v64, v64, v64 row_ror:8 row_mask:0xf bank_mask:0xf')
        k('v_add_f32_dpp v65, v65, v65 row_ror:8 row_mask:0xf bank_mask:0xf')
        self.rowsum(64, 66)
        self.rowsum(65, 67)
        k('v_and_b32 v66, 7, v3')
        k('v_lshlrev_b32 v66, 5, v66')
        k(f's_lshl_b32 s72, {sW}, 3')
        k('v_add_u32 v67, s72, v66')
        k(f'ds_write_b64 v67, v[64:65] offset:{L_STAT}')
        k.barrier()
        k(f'ds_read_b128 v[68:71], v66 offset:{L_STAT}')
        k(f'ds_read_b128 v[72:75], v66 offset:{L_STAT + 16}')
        k('v_pk_add_f32 v[68:69], v[68:69], v[70:71]')
        k('v_pk_add_f32 v[72:73], v[72:73], v[74:75]')
        k('v_pk_add_f32 v[68:69], v[68:69], v[72:73]')
        k(f'v_mul_f32 v68, {f2u(1 / 640):#x}, v68')
        k(f'v_mul_f32 v69, {f2u(1 / 640):#x}, v69')
        k('v_fma_f32 v69, -v68, v68, v69')
        k('v_max_f32 v69, 0, v69')
        self.bf16_round_keep([68, 69], 70)
        k(f'v_add_f32 v69, {f2u(1e-5):#x}, v69')
        self.bf16_round_keep([68, 69], 70)
        k('v_sqrt_f32 v69, v69')
        self.bf16_round_keep([68, 69], 70)
        k('v_rcp_f32 v69, v69')
        for i in range(12):
            k(f'v_pk_add_f32 v[{40 + 2 * i}:{41 + 2 * i}], v[{40 + 2 * i}:{41 + 2 * i}], v[68:69] op_sel_hi:[1,0] neg_lo:[0,1] neg_hi:[0,1]')
        self.bf16_round_keep(X, 70)
        for i in range(12):
            k(f'v_pk_mul_f32 v[{40 + 2 * i}:{41 + 2 * i}], v[{40 + 2 * i}:{41 + 2 * i}], v[68:69] op_sel:[0,1]')
        self.bf16_round_keep(X, 70)
        k.wait_vm_all()
        k.barrier()
        k('s_lshl_b32 s72, s2, 2')
        k('v_mov_b32 v13, s72')
        k('v_cmp_eq_u32 vcc, 0, v0')
        k('v_cndmask_b32 v13, v2, v13, vcc')
        k(f's_movk_i32 s72, {WS_PALL}')
        k(f'buffer_store_dword v5, v13, {WS}, s72 offen sc1')
        self.stamp('prepub')

    def rowsum(self, r, t):
        k = self.k
        k(f'v_mov_b32 v{t}, v{r}')
        k(f'v_permlane16_swap_b32 v{r}, v{t}')
        k(f'v_add_f32 v{r}, v{r}, v{t}')
        k(f'v_mov_b32 v{t}, v{r}')
        k(f'v_permlane32_swap_b32 v{r}, v{t}')
        k(f'v_add_f32 v{r}, v{r}, v{t}')

    def od_issue(self, sn, which):
        k = self.k
        sB, sJS = (f's{54 + 2 * which}', f's{55 + 2 * which}')
        k('s_mov_b32 s18, 819200')
        k(f's_mov_b32 {sJS}, {20 * 5120}')
        k(f's_mov_b32 {sB}, {WS_WO}')
        k(f's_cmp_lt_u32 {sn}, 192')
        k('s_cselect_b64 s[16:17], s[60:61], s[52:53]')
        k('s_cmov_b32 s18, 1966080')
        k(f's_cmov_b32 {sJS}, {48 * 5120}')
        k(f's_cmov_b32 {sB}, {WS_WD}')
        k(f's_cselect_b32 s72, 0, 192')
        k(f's_sub_u32 s77, {sn}, s72')
        k('s_lshr_b32 s72, s77, 2')
        k('s_mul_i32 s72, s72, 5120')
        k(f's_add_u32 {sB}, {sB}, s72')
        k('s_and_b32 s72, s77, 3')
        k('s_lshl_b32 s72, s72, 8')
        k(f's_add_u32 {sB}, {sB}, s72')
        k('s_mul_i32 s72, s77, 205')
        k('s_lshr_b32 s72, s72, 10')
        k('s_mul_i32 s73, s72, 5')
        k('s_sub_u32 s73, s77, s73')
        k('s_mul_i32 s72, s72, 40')
        k('s_lshr_b32 s78, s73, 1')
        k('s_mul_i32 s78, s78, 20')
        k('s_and_b32 s79, s73, 1')
        k('s_lshl2_add_u32 s78, s79, s78')
        k('s_cmp_eq_u32 s73, 4')
        k('s_cselect_b32 s78, 16, s78')
        k('s_cselect_b32 s79, 20, 8')
        k('s_add_u32 s72, s72, s78')
        k('s_lshl_b32 s77, s77, 3')
        k(f's_cmp_lt_u32 {sn}, 192')
        k('s_cselect_b32 s77, s77, s72')
        k('s_cselect_b32 s79, 4, s79')
        k('s_mul_i32 s77, s77, 1280')
        k('v_lshrrev_b32 v8, 5, v3')
        k('v_and_b32 v13, 3, v6')
        k('v_mad_u32_u24 v8, v8, s79, v13')
        k('s_movk_i32 s72, 1280')
        k('v_mad_u32_u24 v8, v8, s72, v7')
        k(f's_sub_u32 s83, 11, {sW}')
        k('s_min_u32 s83, s83, 9')
        k(f's_mul_i32 s78, {sW}, 3072')
        k(f's_add_u32 s78, s78, {L_ODS + 12288 * which}')
        k(f's_sub_u32 s72, 3, {sW}')
        k('s_lshl_b32 s72, s72, 7')
        k('s_add_u32 s72, s72, s77')
        self.dma(ODS, 'v8', 's72', 's78', tag=f'od{which}')
        k('s_add_u32 s72, s72, 512')
        k('s_add_u32 s78, s78, 1024')
        self.dma(ODS, 'v8', 's72', 's78', tag=f'od{which}')
        k('s_lshl_b32 s72, s83, 7')
        k('s_add_u32 s72, s72, s77')
        k('s_add_u32 s78, s78, 1024')
        self.dma(ODS, 'v8', 's72', 's78', tag=f'od{which}')

    def od_process(self, which):
        k = self.k
        sB, sJS = (f's{54 + 2 * which}', f's{55 + 2 * which}')
        k(f's_mul_i32 s72, {sW}, 3072')
        k(f's_add_u32 s72, s72, {L_ODS + 12288 * which}')
        k('v_add_u32 v36, s72, v19')
        k.wait_vm(f'od{which}')
        for t in range(3):
            k(f'ds_read_b64_tr_b16 v[{68 + 4 * t}:{69 + 4 * t}], v36 offset:{1024 * t}')
            k(f'ds_read_b64_tr_b16 v[{70 + 4 * t}:{71 + 4 * t}], v36 offset:{1024 * t + 512}')
        for t in range(3):
            if t < 2:
                k(f's_sub_u32 s72, {3 + 4 * t}, {sW}')
                k('s_lshl_b32 s72, s72, 6')
            else:
                k('s_lshl_b32 s72, s83, 6')
            k('v_add_u32 v60, s72, v3')
            k('v_mul_u32_u24 v61, 205, v60')
            k('v_lshrrev_b32 v61, 14, v61')
            k('v_mul_u32_u24 v62, 80, v61')
            k('v_sub_u32 v60, v60, v62')
            k('v_bfe_u32 v62, v60, 3, 2')
            k('v_and_b32 v63, 3, v60')
            k('v_lshl_add_u32 v62, v62, 2, v63')
            k('v_bfe_u32 v63, v60, 2, 1')
            k('v_lshl_add_u32 v62, v63, 6, v62')
            k('v_and_b32 v63, 15, v60')
            k('v_cmp_gt_u32 vcc, 64, v60')
            k('v_lshrrev_b32 v60, 5, v60')
            k('v_cndmask_b32 v62, v63, v62, vcc')
            k('v_lshl_add_u32 v62, v60, 7, v62')
            k('v_lshlrev_b32 v62, 4, v62')
            k(f'v_mad_u32_u24 v{84 + t}, v61, {sJS}, v62')
            k(f'buffer_store_dwordx4 v[{68 + 4 * t}:{71 + 4 * t}], v{84 + t}, {WS}, {sB} offen sc1', 'pre')

    def mod_pass(self, second):
        k = self.k
        G = 64
        vecA = 3 if second else 0
        n = 6 if second else 5
        k(f's_mul_i32 s74, {sW}, 2560')
        k(f's_add_u32 s74, s74, {WS_MODG + vecA * 10240}')
        k(f's_add_u32 s75, s74, {7680 + 3072}')
        k('v_cmp_gt_u32 vcc, 32, v3')
        k('v_add_u32 v13, 7680, v1')
        k('v_cndmask_b32 v13, v13, v1, vcc')
        k('v_mov_b32 v14, 1.0')
        k('v_cndmask_b32 v14, v14, 0, vcc')
        if second:
            k('v_min_u32 v15, 639, v1')
            k('v_and_b32 v15, -16, v15')
            k(f's_lshr_b32 s76, {sW}, 1')
            k('s_mul_i32 s76, s76, 30720')
            k(f's_and_b32 s72, {sW}, 1')
            k(f's_lshl1_add_u32 s72, {sJC}, s72')
            k('s_mul_i32 s72, s72, 640')
            k('s_add_u32 s76, s76, s72')
            k(f's_add_u32 s76, s76, {WS_MODG + 2 * 10240}')
        else:
            k(f's_lshl_b32 s76, {sCL}, 7')
            k('v_and_b32 v15, 15, v3')
            k('v_lshlrev_b32 v15, 2, v15')
        k('s_mov_b32 s77, 0x04000c0c')
        k('s_mov_b32 s78, 0x0706000c')
        lab, out = k.newlabel('mpoll'), k.newlabel('mpollx')
        k('s_mov_b32 s73, 0')
        k.fence_hazards()
        k.label(lab)
        k(f'buffer_load_dwordx4 v[{G}:{G + 3}], v1, {WS}, s74 offen sc1')
        k(f'buffer_load_dwordx4 v[{G + 4}:{G + 7}], v1, {WS}, s74 offen offset:1024 sc1')
        k(f'buffer_load_dwordx4 v[{G + 8}:{G + 11}], v13, {WS}, s74 offen offset:2048 sc1')
        k(f'buffer_load_dwordx4 v[{G + 12}:{G + 15}], v1, {WS}, s75 offen sc1')
        k(f'buffer_load_dwordx4 v[{G + 16}:{G + 19}], v1, {WS}, s75 offen offset:1024 sc1')
        if second:
            k(f'buffer_load_dwordx4 v[{G + 20}:{G + 23}], v15, {WS}, s76 offen sc1')
        else:
            k(f'buffer_load_dword v{G + 22}, v15, {WS}, s76 offen offset:{WS_HELLO} sc1')
        k('s_add_u32 s73, s73, 1')
        k('s_waitcnt vmcnt(0)')
        if not second:
            k(f'v_and_b32 v{G + 23}, -8, v{G + 22}')
        k(f'v_xor_b32 v88, {sTAG}, v{G + 3}')
        k(f'v_xor_b32 v89, {sTAG}, v{G + 7}')
        k(f'v_xor_b32 v90, {sTAG}, v{G + 11}')
        k('v_or3_b32 v88, v88, v89, v90')
        k(f'v_xor_b32 v89, {sTAG}, v{G + 15}')
        k(f'v_xor_b32 v90, {sTAG}, v{G + 19}')
        k('v_or3_b32 v88, v88, v89, v90')
        k(f'v_xor_b32 v89, {sTAG}, v{G + 23}')
        k('v_or_b32 v88, v88, v89')
        k('v_cmp_ne_u32 vcc, 0, v88')
        k(f's_cmp_ge_u32 s73, {self.o.spin}')
        k(f's_cbranch_scc1 {out}')
        k('s_cmp_lg_u64 vcc, 0')
        k(f's_cbranch_scc1 {lab}')
        k.label(out)
        k.assume_vm_empty()
        if not second:
            k(f'v_cmp_ne_u32 vcc, s51, v{G + 22}')
            k('s_cmp_eq_u64 vcc, 0')
            k(f's_cselect_b32 {sFAST}, {0 if self.o.force_slow else 1}, 0')
        for i in range(n):
            b = G + 4 * i
            k(f'v_perm_b32 v{b + 3}, v{b}, v{b + 1}, s77')
        for i in range(n):
            b = G + 4 * i
            k(f'v_perm_b32 v{b + 3}, v{b + 3}, v{b + 2}, s78')
        for qp in ('[1,0,3,2]', '[2,3,0,1]'):
            for r in range(G, G + 4 * n):
                k(f'v_add_f32_dpp v{r}, v{r}, v{r} quad_perm:{qp} row_mask:0xf bank_mask:0xf')
        k('v_lshrrev_b32 v88, 2, v3')
        if not second:
            k('v_lshlrev_b32 v88, 4, v88')
            k(f's_mul_i32 s72, {sW}, 1280')
            k(f's_add_u32 s72, s72, {L_MV}')
            k('v_add_u32 v88, s72, v88')
            for i in range(5):
                b = G + 4 * i
                self.bf16_round_keep([b, b + 1, b + 2, b + 3], 89)
                if i >= 2:
                    for r in range(b, b + 4):
                        k(f'v_add_f32 v{r}, {"v14" if i == 2 else "1.0"}, v{r}')
                    self.bf16_round_keep([b, b + 1, b + 2, b + 3], 89)
                k(f'ds_write_b128 v88, v[{b}:{b + 3}] offset:{256 * i}')
        else:
            k('v_lshlrev_b32 v88, 3, v88')
            k(f's_mul_i32 s72, {sW}, 80')
            k(f's_add_u32 s72, s72, {P_GA}')
            k('v_add_u32 v91, s72, v88')
            k(f'v_mov_b32 v92, {P_DUMMY}')
            k('v_cmp_gt_u32 vcc, 40, v3')
            k('v_cndmask_b32 v91, v92, v91, vcc')
            k(f's_mul_i32 s72, {sW}, 320')
            k(f's_add_u32 s72, s72, {L_P}')
            k('v_add_u32 v88, s72, v88')
            k('v_add_u32 v90, 960, v88')
            k('v_cmp_gt_u32 vcc, 32, v3')
            k('v_cndmask_b32 v90, v90, v88, vcc')
            for i in range(6):
                b = G + 4 * i
                if 2 <= i < 5:
                    self.bf16_round_keep([b, b + 1, b + 2, b + 3], 89)
                    for r in range(b, b + 4):
                        k(f'v_add_f32 v{r}, {"v14" if i == 2 else "1.0"}, v{r}')
                k(f'v_cvt_pk_bf16_f32 v{b}, v{b}, v{b + 1}')
                k(f'v_cvt_pk_bf16_f32 v{b + 1}, v{b + 2}, v{b + 3}')
                if i < 2:
                    k(f'ds_write_b64 v88, v[{b}:{b + 1}] offset:{128 * i}')
                elif i == 2:
                    k(f'ds_write_b64 v90, v[{b}:{b + 1}] offset:256')
                elif i < 5:
                    k(f'ds_write_b64 v88, v[{b}:{b + 1}] offset:{128 * i + 960}')
                else:
                    k(f'ds_write_b64 v91, v[{b}:{b + 1}]')

    def make_h(self):
        k = self.k
        k('v_lshlrev_b32 v88, 5, v6')
        k(f's_mul_i32 s72, {sW}, 1280')
        k(f's_add_u32 s72, s72, {L_MV}')
        k('v_add_u32 v88, s72, v88')
        k('v_lshl_add_u32 v90, v6, 9, v7')
        k('v_cmp_gt_u32 vcc, 32, v3')
        k('v_cndmask_b32 v91, v2, v90, vcc')
        k(f's_mul_i32 s74, {sCL}, 163840')
        k(f's_lshr_b32 s72, {sJ}, 2')
        k('s_mul_i32 s72, s72, 40960')
        k('s_add_u32 s74, s74, s72')
        k(f's_and_b32 s72, {sJ}, 3')
        k('s_lshl_b32 s72, s72, 7')
        k('s_add_u32 s74, s74, s72')
        k(f's_mul_i32 s72, {sW}, 10240')
        k('s_add_u32 s74, s74, s72')
        k(f's_add_u32 s74, s74, {WS_H}')
        k.wait_lgkm_all()
        for i in range(3):
            for h in range(2):
                k(f'ds_read_b128 v[{96 + 16 * i + 4 * h}:{99 + 16 * i + 4 * h}], v88 offset:{256 * i + 16 * h + 640}')
            for h in range(2):
                k(f'ds_read_b128 v[{104 + 16 * i + 4 * h}:{107 + 16 * i + 4 * h}], v88 offset:{256 * i + 16 * h}')
        for i in range(3):
            xs = [40 + 8 * i + e for e in range(8)]
            for e in range(0, 8, 2):
                k(f'v_pk_mul_f32 v[{xs[e]}:{xs[e] + 1}], v[{xs[e]}:{xs[e] + 1}], v[{96 + 16 * i + e}:{97 + 16 * i + e}]')
            self.bf16_round_keep(xs, 89)
            for e in range(0, 8, 2):
                k(f'v_pk_add_f32 v[{xs[e]}:{xs[e] + 1}], v[{xs[e]}:{xs[e] + 1}], v[{104 + 16 * i + e}:{105 + 16 * i + e}]')
            for e in range(0, 8, 2):
                k(f'v_cvt_pk_bf16_f32 v{24 + 4 * i + e // 2}, v{xs[e]}, v{xs[e] + 1}')
            k(f'buffer_store_dwordx4 v[{24 + 4 * i}:{27 + 4 * i}], {"v90" if i < 2 else "v91"}, {WS}, s74 offen', 'h')
            if i < 2:
                k('s_add_u32 s74, s74, 4096')
        self.publish(PH_H, 'h', True)

    def wait_pall(self):
        k = self.k
        lab, out = k.newlabel('ppoll'), k.newlabel('ppollx')
        k(f's_movk_i32 s72, {WS_PALL}')
        k('s_mov_b32 s73, 0')
        k.fence_hazards()
        k.label(lab)
        k(f'buffer_load_dwordx4 v[64:67], v1, {WS}, s72 offen sc1')
        k('s_add_u32 s73, s73, 1')
        k('s_waitcnt vmcnt(0)')
        k(f'v_xor_b32 v64, {sTAG}, v64')
        k(f'v_xor_b32 v65, {sTAG}, v65')
        k(f'v_xor_b32 v66, {sTAG}, v66')
        k(f'v_xor_b32 v67, {sTAG}, v67')
        k('v_or3_b32 v64, v64, v65, v66')
        k('v_or_b32 v64, v64, v67')
        k('v_cmp_ne_u32 vcc, 0, v64')
        k(f's_cmp_ge_u32 s73, {self.o.spin}')
        k(f's_cbranch_scc1 {out}')
        k('s_cmp_lg_u64 vcc, 0')
        k(f's_cbranch_scc1 {lab}')
        k.label(out)
        k.assume_vm_empty()
        lab = k.newlabel('ep')
        k(f's_or_b32 s72, s2, {sW}')
        k('s_cmp_lg_u32 s72, 0')
        k(f's_cbranch_scc1 {lab}')
        k.cond_begin()
        k('v_mov_b32 v64, s50')
        k(f'buffer_store_dword v64, v4, {WS}, 0 offen sc1')
        k.cond_end()
        k.label(lab)

    def load_frags(self, regs, sbase, voff='v1', tag=None):
        k = self.k
        for i, r in enumerate(regs):
            if i and i % 4 == 0:
                k(f's_add_u32 {sbase}, {sbase}, 4096')
            k(f'buffer_load_dwordx4 {ur(r)}, {voff}, {WS}, {sbase} offen offset:{1024 * (i % 4)} sc1', tag)

    def dma_linear(self, ssrc, ldsbase, n, tag, voff='v1', clamp=None):
        k = self.k
        c = (n + 3) // 4
        k(f's_mul_i32 s72, {sW}, {c}')
        if c * 4 != n:
            k(f's_min_u32 s72, s72, {n - c}')
        k('s_lshl_b32 s72, s72, 10')
        k(f's_add_u32 s78, {ssrc}, s72')
        k(f's_add_u32 s79, s72, {ldsbase}')
        for i in range(c):
            if i % 4 == 0:
                if i:
                    k('s_add_u32 s78, s78, 4096')
                    k('s_add_u32 s79, s79, 4096')
                k('s_mov_b32 m0, s79')
            k(f'buffer_load_dwordx4 {voff}, {WS}, s78 offen offset:{1024 * (i % 4)} sc1 lds', tag)

    def qkv(self):
        k = self.k
        WQ = 96
        k('v_and_b32 v64, 31, v3')
        k(f's_cmp_eq_u32 {sW}, 3')
        k('s_cselect_b32 s72, 23, 31')
        k('v_min_u32 v64, s72, v64')
        k('v_and_b32 v65, 32, v3')
        k('v_add_lshl_u32 v64, v64, v65, 4')
        k(f's_lshl2_add_u32 s74, {sJ}, {sW}')
        k('s_mul_i32 s74, s74, 40960')
        k(f's_add_u32 s74, s74, {WS_WQ}')
        self.load_frags([WQ + 4 * i for i in range(40)], 's74', voff='v64', tag='wq')
        k('v_and_b32 v64, 31, v3')
        k(f'v_mov_b32 v66, {f2u(QSCALE):#x}')
        for a in range(4):
            k(f'v_and_b32 v{24 + a}, 0x3ffff, v{20 + a}')
            k(f'v_bfe_u32 v65, v{20 + a}, 18, 6')
            k(f'v_mad_u32_u24 v{24 + a}, v64, v65, v{24 + a}')
            k(f'v_bfe_u32 v{28 + a}, v{20 + a}, 24, 4')
            k(f'v_lshlrev_b32 v{28 + a}, 9, v{28 + a}')
            k(f'v_cmp_gt_i32 vcc, 0, v{20 + a}')
            k(f'v_cndmask_b32 v{16 + a}, 1.0, v66, vcc')
        k(f'v_add_u32 v8, {L_A}, v1')
        k(f'v_add_u32 v9, {L_B}, v1')
        k('v_lshlrev_b32 v10, 2, v3')
        self.flag_off('s74', PH_H)
        self.poll('v10', 's74', 64, True)
        self.stamp('hflag')
        k.barrier()
        k(f's_mul_i32 s74, {sCL}, 163840')
        k(f's_add_u32 s74, s74, {WS_H}')
        slots = [L_A, L_C, L_B, L_A]
        addr = ['v8', 'v1', 'v9', 'v8']
        for q in range(3):
            self.dma_linear('s74', slots[q], 40, f'h{q}')
            k('s_add_u32 s74, s74, 40960')
        acc = [32, 48]
        FR = 64
        epi = []
        for q in range(4):
            k.wait_vm(f'h{q}')
            k.barrier()
            if q == 1:
                self.dma_linear('s74', slots[3], 40, 'h3')
            k.begin()
            a = acc[q & 1]
            D = 6
            for s in range(D):
                k(f'ds_read_b128 v[{FR + 4 * (s % 8)}:{FR + 4 * (s % 8) + 3}], {addr[q]} offset:{1024 * s}')
            for s in range(40):
                if s + D < 40:
                    t = s + D
                    k(f'ds_read_b128 v[{FR + 4 * (t % 8)}:{FR + 4 * (t % 8) + 3}], {addr[q]} offset:{1024 * t}')
                k(f'v_mfma_f32_32x32x16_bf16 v[{a}:{a + 15}], v[{WQ + 4 * s}:{WQ + 4 * s + 3}], v[{FR + 4 * (s % 8)}:{FR + 4 * (s % 8) + 3}], {"0" if s == 0 else f"v[{a}:{a + 15}]"}')
            main = k.end()
            k.put(interleave(main, epi, start=2, every=1, per=2))
            k.begin()
            for aa in range(4):
                for b in range(4):
                    r = a + 4 * aa + b
                    k(f'v_mul_f32 v{r}, v{16 + aa}, v{r}')
                k(f'v_cvt_pk_bf16_f32 v{a + 4 * aa}, v{a + 4 * aa}, v{a + 4 * aa + 1}')
                k(f'v_cvt_pk_bf16_f32 v{a + 4 * aa + 1}, v{a + 4 * aa + 2}, v{a + 4 * aa + 3}')
                k(f'ds_write_b64 v{24 + aa}, v[{a + 4 * aa}:{a + 4 * aa + 1}]')
                if q < 3:
                    k(f'v_add_u32 v{24 + aa}, v{24 + aa}, v{28 + aa}')
            epi = k.end()
        k.put(epi)
        k.barrier()
        self.stamp('qkv')
        k(f's_mul_i32 s72, {sW}, 6')
        k('s_min_u32 s72, s72, 16')
        k('s_lshl_b32 s72, s72, 10')
        k('v_add_u32 v8, s72, v1')
        k(f's_lshl4_add_u32 s74, {sCL}, {sJ}')
        k(f's_mul_i32 s74, s74, {4 * KVB}')
        k(f's_add_u32 s74, s74, {WS_KV}')
        k('s_add_u32 s75, s74, s72')
        for t in range(6):
            k(f'ds_read_b128 v[{64 + 4 * t}:{67 + 4 * t}], v8 offset:{L_KVOWN + 1024 * t}')
        for t in range(6):
            if t == 4:
                k('s_add_u32 s75, s75, 4096')
            k(f'buffer_store_dwordx4 v[{64 + 4 * t}:{67 + 4 * t}], v1, {WS}, s75 offen offset:{1024 * (t % 4)} sc1', 'kv')
        self.publish(PH_KV, 'kv', False)

    def halo(self):
        k = self.k
        k(f's_max_u32 s75, {sCL}, 2')
        k('s_sub_u32 s75, s75, 2')
        k(f's_cmp_ge_u32 {sCL}, 1')
        k('s_cselect_b32 s76, 1, 0')
        k(f's_sub_u32 s76, {sCL}, s76')
        k('s_sub_u32 s76, s76, s75')
        k('s_lshl_b32 s76, s76, 8')
        k('v_and_b32 v64, 3, v3')
        k(f'v_lshl_add_u32 v64, {sJ}, 2, v64')
        k('v_lshlrev_b32 v64, 2, v64')
        k('v_bfe_u32 v65, v3, 2, 1')
        k('v_mad_u32_u24 v64, v65, s76, v64')
        self.flag_off('s77', PH_KV, 's75')
        self.poll('v64', 's77', 65, False)
        self.stamp('kvflag')
        for d in (2, 1):
            k(f's_cmp_ge_u32 {sCL}, {d}')
            k(f's_cselect_b32 s72, 0, {OOB}')
            k(f's_cselect_b32 s75, {d * 16 * 4 * KVB}, 0')
            k('v_add_u32 v64, s72, v1')
            k('s_sub_u32 s75, s74, s75')
            self.dma_linear('s75', L_C + (2 - d) * 4 * KVB, 22, 'halo', voff='v64')

    def attn_setup(self):
        k = self.k
        k('v_and_b32 v64, 31, v3')
        k('v_lshrrev_b32 v65, 5, v3')
        k('v_lshlrev_b32 v66, 2, v65')
        k('v_sub_u32 v66, v64, v66')
        k(f'v_mov_b32 v67, {f2u(NEG):#x}')
        for i in range(16):
            kj = 8 * (i >> 2) + (i & 3)
            k(f'v_cmp_le_i32 vcc, {kj}, v66')
            k(f'v_cndmask_b32 v{32 + i}, v67, 0, vcc')
            k(f'v_cndmask_b32 v{48 + i}, 0, v67, vcc')
        k('v_lshlrev_b32 v17, 3, v64')
        k('v_add_u32 v17, 2048, v17')
        k('v_mul_u32_u24 v68, 48, v64')
        k('v_add_u32 v68, 2600, v68')
        k('v_cmp_gt_u32 vcc, 32, v3')
        k('v_cndmask_b32 v17, v68, v17, vcc')
        k('v_mov_b32 v19, 1536')
        k('v_mov_b32 v68, 256')
        k('v_cndmask_b32 v19, v19, v68, vcc')
        k('v_bfe_u32 v68, v3, 2, 2')
        k('v_lshl_add_u32 v68, v65, 2, v68')
        k('v_mul_u32_u24 v18, 48, v68')
        k('v_and_b32 v68, 3, v3')
        k('v_min_u32 v69, 1, v68')
        k('v_add_u32 v69, 4, v69')
        k('v_and_b32 v70, 16, v3')
        k('v_cmp_eq_u32 vcc, 0, v70')
        k('v_cndmask_b32 v68, v69, v68, vcc')
        k('v_lshl_add_u32 v18, v68, 3, v18')
        k('v_add_u32 v18, 2560, v18')
        k('v_bfe_u32 v68, v3, 4, 1')
        k('v_mul_u32_u24 v68, 20480, v68')
        k('v_and_b32 v69, 15, v3')
        k('v_lshl_add_u32 v68, v69, 4, v68')
        k('v_lshl_add_u32 v20, v65, 8, v68')
        k('v_cmp_gt_u32 vcc, 32, v3')
        k('v_cndmask_b32 v21, v2, v68, vcc')
        k(f's_mul_i32 s80, {sCL}, 163840')
        k(f's_mul_i32 s72, {sW}, 40960')
        k('s_add_u32 s80, s80, s72')
        k(f's_mul_i32 s72, {sJ}, 1280')
        k('s_add_u32 s80, s80, s72')
        k(f's_add_u32 s80, s80, {WS_O}')
        k(f's_lshl2_add_u32 s81, {sCL}, {sW}')
        k('s_min_u32 s82, s81, 7')

    def score(self, C):
        k = self.k
        k('ds_read_b128 v[72:75], v24')
        k('ds_read_b64 v[76:77], v25')
        k(f'v_mfma_f32_32x32x16_bf16 v[96:111], v[72:75], v[64:67], {C}')
        k('v_mfma_f32_32x32x8_bf16 v[96:111], v[76:77], v[68:69], v[96:111]')

    def attn_pass(self, body):
        k = self.k
        k(f's_add_u32 s72, {sW}, 8')
        k(f's_mul_i32 s72, s72, {KVB}')
        k('v_add_u32 v24, s72, v28')
        k('v_add_u32 v25, s72, v29')
        k('v_add_u32 v26, s72, v30')

        def step():
            for r in (24, 25, 26):
                k(f'v_add_u32 v{r}, {-KVB & 0xffffffff:#x}, v{r}')
        body('v[32:47]')
        step()
        lab, out, done = k.newlabel('al'), k.newlabel('alx'), k.newlabel('ald')
        k('s_mov_b32 s83, s82')
        k('s_cmp_eq_u32 s83, 0')
        k.wait_lgkm_all()
        k.fence_hazards()
        k(f's_cbranch_scc1 {out}')
        k.label(lab)
        body('0')
        step()
        k('s_sub_u32 s83, s83, 1')
        k('s_cmp_lg_u32 s83, 0')
        k.wait_lgkm_all()
        k.fence_hazards()
        k(f's_cbranch_scc1 {lab}')
        k.label(out)
        k('s_cmp_lt_u32 s81, 8')
        k(f's_cbranch_scc1 {done}')
        body('v[48:63]')
        k.wait_lgkm_all()
        k.fence_hazards()
        k.label(done)

    def attn_unit(self, head):
        k = self.k
        k(f'v_add_u32 v28, {1024 * head}, v1')
        if head:
            k('v_add_u32 v29, v17, v19')
        else:
            k('v_mov_b32 v29, v17')
        k(f'v_add_u32 v30, {1536 * head}, v18')
        k(f's_mul_i32 s72, {sW}, 2560')
        k(f's_add_u32 s72, s72, {L_Q}')
        k('v_add_u32 v70, s72, v28')
        k('ds_read_b128 v[64:67], v70')
        k('v_and_b32 v70, 31, v3')
        k('v_lshlrev_b32 v70, 3, v70')
        k('v_add_u32 v70, s72, v70')
        k(f'ds_read_b64 v[68:69], v70 offset:{2048 + 256 * head}')
        k('v_cmp_gt_u32 s[48:49], 32, v3')
        k('v_cndmask_b32 v68, 0, v68, s[48:49]')
        k('v_cndmask_b32 v69, 0, v69, s[48:49]')
        k(f'v_mov_b32 v71, {f2u(-3.0e38):#x}')

        def p1(C):
            self.score(C)
            for i in range(0, 16, 2):
                k(f'v_max3_f32 v71, v71, v{96 + i}, v{97 + i}')
        self.attn_pass(p1)
        k('v_mov_b32 v70, v71')
        k('v_permlane32_swap_b32 v71, v70')
        k('v_max_f32 v71, v71, v70')
        k('v_cvt_pk_bf16_f32 v70, -v71, 0')
        k('v_cndmask_b32 v68, v70, v68, s[48:49]')
        for i in range(16):
            k(f'v_mov_b32 v{112 + i}, 0')

        def p2(C):
            self.score(C)
            for t in range(4):
                k(f'ds_read_b64_tr_b16 v[{80 + 2 * t}:{81 + 2 * t}], v26 offset:{384 * t}')
            for i in range(16):
                k(f'v_exp_f32 v{96 + i}, v{96 + i}')
            for i in range(8):
                k(f'v_cvt_pk_bf16_f32 v{88 + i}, v{96 + 2 * i}, v{97 + 2 * i}')
            k('v_mfma_f32_32x32x16_bf16 v[112:127], v[80:83], v[88:91], v[112:127]')
            k('v_mfma_f32_32x32x16_bf16 v[112:127], v[84:87], v[92:95], v[112:127]')
        self.attn_pass(p2)
        k('v_rcp_f32 v70, v124')
        for i in range(12):
            k(f'v_mul_f32 v{112 + i}, v{112 + i}, v70')
        for i in range(4):
            k(f'v_cvt_pk_bf16_f32 v{88 + i}, v{112 + 2 * i}, v{113 + 2 * i}')
        for i in range(2):
            k(f'v_cvt_pk_bf16_f32 v{12 + 2 * head + i}, v{120 + 2 * i}, v{121 + 2 * i}')
        k(f'buffer_store_dwordx4 v[88:91], v20, {WS}, s80 offen offset:{512 * head}', 'o')
        if head:
            k(f'buffer_store_dwordx4 v[12:15], v21, {WS}, s80 offen offset:1024', 'o')

    def ksplit(self, NS, wregs, bring, sbase, tstride, acc, red, pre_items=None):
        k = self.k
        nb = len(bring)

        def issue(t):
            k(f's_add_u32 s72, {sW}, {t + 1}')
            k('s_and_b32 s72, s72, 3')
            k(f's_mul_i32 s75, s72, {2 * tstride}')
            k(f's_add_u32 s75, s75, {sbase}')
            self.load_frags(bring[t % nb], 's75')
        for t in range(min(nb, 4)):
            issue(t)
        k(f's_mul_i32 s76, {sW}, 15360')
        k('v_add_u32 v9, s76, v1')
        pend = []
        for t in range(4):
            a = acc[t & 1]
            k.begin()
            for s in range(NS):
                for ft in range(5):
                    d = a + 4 * ft
                    k(f'v_mfma_f32_16x16x32_bf16 v[{d}:{d + 3}], {ur(wregs[s * 5 + ft])}, {ur(bring[t % nb][s])}, {"0" if s == 0 else f"v[{d}:{d + 3}]"}')
            main = k.end()
            k.put(interleave(main, pend, start=6, every=2, per=1))
            k.begin()
            if t + nb < 4:
                issue(t + nb)
            if t < 3:
                k(f's_add_u32 s72, {sW}, {t + 1}')
                k('s_and_b32 s72, s72, 3')
                k('s_mul_i32 s72, s72, 15360')
                k(f'v_add_u32 v8, s72, v1')
                for ft in range(5):
                    k(f'ds_write_b128 v8, v[{a + 4 * ft}:{a + 4 * ft + 3}] offset:{L_RED + t * 5120 + ft * 1024}')
            pend = k.end()
        k.barrier()
        a = acc[1]
        for t in range(3):
            for ft in range(5):
                r = red + 20 * t + 4 * ft
                k(f'ds_read_b128 v[{r}:{r + 3}], v9 offset:{L_RED + t * 5120 + ft * 1024}')
        for t in range(3):
            for i in range(0, 20, 2):
                k(f'v_pk_add_f32 v[{a + i}:{a + i + 1}], v[{a + i}:{a + i + 1}], v[{red + 20 * t + i}:{red + 20 * t + i + 1}]')

    def unpack10(self, src, dst):
        k = self.k
        for i in range(10):
            k(f'v_lshlrev_b32 v{dst + 2 * i}, 16, v{src + i}')
            k(f'v_and_b32 v{dst + 2 * i + 1}, 0xffff0000, v{src + i}')

    def lds_cols(self, base, dst, vA, vB):
        k = self.k
        k(f'ds_read_b128 v[{dst}:{dst + 3}], {vA} offset:{base}')
        k(f'ds_read_b128 v[{dst + 4}:{dst + 7}], {vA} offset:{base + 64}')
        k(f'ds_read_b64 v[{dst + 8}:{dst + 9}], {vB} offset:{base + 128}')

    WO_W = [156 + 4 * i for i in range(25)]
    X1 = 22

    def load_wo_wgu(self):
        k = self.k
        k(f's_mul_i32 s75, {sJC}, {20 * 5120}')
        k(f's_mul_i32 s72, {sW}, {25 * 1024}')
        k('s_add_u32 s75, s75, s72')
        k(f's_add_u32 s75, s75, {WS_WO}')
        self.load_frags(self.WO_W, 's75', tag='wo')
        k(f's_lshl2_add_u32 s75, {sJ}, {sW}')
        k('s_mul_i32 s75, s75, 61440')
        k(f's_add_u32 s75, s75, {WS_WGU}')
        self.load_frags([256 + 4 * i for i in range(60)], 's75', tag='wgu')

    CSB = 128

    def csbias(self):
        k = self.k
        k('v_and_b32 v64, 1, v3')
        k('v_mul_u32_u24 v64, 1280, v64')
        k('v_lshrrev_b32 v65, 4, v3')
        k('v_lshlrev_b32 v65, 4, v65')
        k(f'v_add_u32 v65, {P_G2}, v65')
        k('v_sub_u32 v64, v65, v64')
        for s in range(20):
            b = 68 + 4 * (s % 8)
            if s == 0:
                for t in range(6):
                    k(f'ds_read_b128 v[{68 + 4 * t}:{71 + 4 * t}], v64 offset:{64 * t}')
            if s + 6 < 20:
                t = s + 6
                k(f'ds_read_b128 v[{68 + 4 * (t % 8)}:{71 + 4 * (t % 8)}], v64 offset:{64 * t}')
            for ft in range(3):
                d = 104 + 4 * ft
                k(f'v_mfma_f32_16x16x32_bf16 v[{d}:{d + 3}], {ur(256 + 12 * s + 4 * ft)}, v[{b}:{b + 3}], {"0" if s == 0 else f"v[{d}:{d + 3}]"}')
        for i in range(12):
            k(f'v_mov_b32_dpp v{self.CSB + i}, v{104 + i} quad_perm:[0,0,2,2] row_mask:0xf bank_mask:0xf')
            k(f'v_mov_b32_dpp v{self.CSB + 12 + i}, v{104 + i} quad_perm:[1,1,3,3] row_mask:0xf bank_mask:0xf')

    def rowmajor_offsets(self):
        k = self.k
        k('v_and_b32 v16, 15, v3')
        k('v_mul_u32_u24 v16, 1280, v16')
        k('v_lshrrev_b32 v19, 4, v3')
        k('v_lshlrev_b32 v18, 4, v19')
        k('v_lshlrev_b32 v19, 3, v19')
        k('v_add_u32 v17, v16, v19')
        k('v_add_u32 v16, v16, v18')
        k(f'v_add_u32 v18, {L_P}, v18')
        k(f'v_add_u32 v19, {L_P}, v19')
        k(f's_lshl2_add_u32 s80, {sCL}, {sW}')
        k(f's_lshl1_add_u32 s81, s80, {sTH}')
        k('s_mul_i32 s80, s81, 20480')
        k(f's_mul_i32 s72, {sJC}, 160')
        k('s_add_u32 s80, s80, s72')

    def wo(self):
        k = self.k
        X1 = self.X1
        self.rowmajor_offsets()
        k(f'buffer_load_dwordx4 v[{X1}:{X1 + 3}], v16, {XS}, s80 offen')
        k(f'buffer_load_dwordx4 v[{X1 + 4}:{X1 + 7}], v16, {XS}, s80 offen offset:64')
        k(f'buffer_load_dwordx2 v[{X1 + 8}:{X1 + 9}], v17, {XS}, s80 offen offset:128')
        self.csbias()
        self.stamp('csb')
        self.flag_off('s74', PH_O)
        self.poll('v10', 's74', 64, True)
        self.stamp('oflag')
        k.barrier()
        k(f's_mul_i32 s74, {sCL}, 163840')
        k(f's_mul_i32 s72, {sTH}, 20480')
        k('s_add_u32 s74, s74, s72')
        k(f's_mul_i32 s72, {sW}, 5120')
        k('s_add_u32 s74, s74, s72')
        k(f's_add_u32 s74, s74, {WS_O}')
        quads = [72 + 4 * i for i in range(14)] + [496, 500, 504, 508, 152, 12]
        bring = [quads[5 * t:5 * t + 5] for t in range(4)]
        self.ksplit(5, self.WO_W, bring, 's74', 20480, [32, 52], 156)
        a = 52
        k(f's_mul_i32 s72, {sJC}, 160')
        k('v_add_u32 v20, s72, v18')
        k('v_add_u32 v21, s72, v19')
        self.lds_cols(P_GA - L_P, 72, 'v18', 'v19')
        self.lds_cols(P_G2 - L_P, 84, 'v20', 'v21')
        self.unpack10(X1, 160)
        self.unpack10(72, 180)
        for i in range(0, 20, 2):
            k(f'v_pk_fma_f32 v[{a + i}:{a + i + 1}], v[{a + i}:{a + i + 1}], v[{180 + i}:{181 + i}], v[{160 + i}:{161 + i}]')
        for i in range(10):
            k(f'v_cvt_pk_bf16_f32 v{X1 + i}, v{a + 2 * i}, v{a + 2 * i + 1}')
        self.unpack10(X1, 160)
        self.unpack10(84, 180)
        for i in range(0, 20, 2):
            k(f'v_pk_mul_f32 v[{180 + i}:{181 + i}], v[{180 + i}:{181 + i}], v[{160 + i}:{161 + i}]')
        for i in range(10):
            k(f'v_cvt_pk_bf16_f32 v{72 + i}, v{180 + 2 * i}, v{181 + 2 * i}')
        k('s_mul_i32 s74, s81, 20480')
        k(f's_mul_i32 s72, {sJC}, 2560')
        k('s_add_u32 s74, s74, s72')
        k(f's_add_u32 s74, s74, {WS_Z}')
        k('v_and_b32 v20, 15, v3')
        k('v_lshlrev_b32 v20, 4, v20')
        k('v_bfe_u32 v21, v3, 4, 1')
        k('v_lshl_add_u32 v21, v21, 3, v20')
        k('v_lshrrev_b32 v64, 5, v3')
        k('v_lshl_add_u32 v21, v64, 8, v21')
        k(f'buffer_store_dwordx4 v[72:75], v1, {WS}, s74 offen', 'z')
        k(f'buffer_store_dwordx4 v[76:79], v1, {WS}, s74 offen offset:1024', 'z')
        k(f'buffer_store_dwordx2 v[80:81], v21, {WS}, s74 offen offset:2048', 'z')
        k('v_pk_add_f32 v[64:65], v[160:161], v[162:163]')
        k('v_pk_mul_f32 v[66:67], v[160:161], v[160:161]')
        k('v_pk_fma_f32 v[66:67], v[162:163], v[162:163], v[66:67]')
        for i in range(4, 20, 2):
            k(f'v_pk_add_f32 v[64:65], v[64:65], v[{160 + i}:{161 + i}]')
            k(f'v_pk_fma_f32 v[66:67], v[{160 + i}:{161 + i}], v[{160 + i}:{161 + i}], v[66:67]')
        k('v_add_f32 v64, v64, v65')
        k('v_add_f32 v65, v66, v67')
        self.rowsum(64, 66)
        self.rowsum(65, 67)
        k('v_cmp_gt_u32 vcc, 16, v3')
        k('v_cndmask_b32 v20, v2, v20, vcc')
        k('s_lshl_b32 s74, s81, 10')
        k(f's_lshr_b32 s72, {sJC}, 1')
        k('s_lshl_b32 s72, s72, 8')
        k('s_add_u32 s74, s74, s72')
        k(f's_and_b32 s72, {sJC}, 1')
        k('s_lshl3_add_u32 s74, s72, s74')
        k(f's_add_u32 s74, s74, {WS_ST}')
        k(f'buffer_store_dwordx2 v[64:65], v20, {WS}, s74 offen', 'z')
        self.publish(PH_Z, 'z', True)
        self.stamp('wo')

    WD_EARLY = [152 + 4 * i for i in range(26)] + [496, 500, 504, 508]
    WD_LATE = [256 + 4 * i for i in range(30)]
    HH_B = [[256 + 120 + 4 * i for i in range(12)], [256 + 168 + 4 * i for i in range(12)]]

    def gu(self):
        k = self.k
        CS_, BI = self.CSB, self.CSB + 12
        slots = [L_A, L_B, 0, L_A]
        self.flag_off('s74', PH_Z)
        self.poll('v10', 's74', 64, True)
        self.stamp('zflag')
        k.barrier()
        k(f's_mul_i32 s74, {sCL}, 163840')
        k(f's_add_u32 s74, s74, {WS_Z}')
        self.dma_linear('s74', slots[0], 40, 'z0')
        k('s_add_u32 s74, s74, 40960')
        k(f's_lshl_b32 s76, {sCL}, 13')
        k(f's_add_u32 s76, s76, {WS_ST}')
        self.load_frags([96 + 4 * i for i in range(8)], 's76')
        for q in (1, 2):
            self.dma_linear('s74', slots[q], 40, f'z{q}')
            k('s_add_u32 s74, s74, 40960')
        k(f'v_add_u32 v8, {L_A}, v1')
        k(f'v_add_u32 v9, {L_B}, v1')
        addr = ['v8', 'v9', 'v1', 'v8']
        k('v_and_b32 v20, 15, v3')
        k('v_lshlrev_b32 v20, 4, v20')
        k('v_lshrrev_b32 v12, 5, v3')
        k('v_bfe_u32 v13, v3, 4, 1')
        k('s_mov_b32 s72, 49152')
        k('v_mad_u32_u24 v21, v13, s72, v20')
        k('v_lshl_add_u32 v21, v12, 3, v21')
        k('v_mad_u32_u24 v20, v12, s72, v20')
        k('v_lshl_add_u32 v20, v13, 8, v20')
        k(f's_mul_i32 s82, {sCL}, 393216')
        k(f's_lshl2_add_u32 s72, {sJ}, {sW}')
        k('s_mul_i32 s72, s72, 768')
        k('s_add_u32 s82, s82, s72')
        k(f's_add_u32 s82, s82, {WS_HH}')
        k(f's_mul_i32 s83, {sJC}, {48 * 5120}')
        k(f's_mul_i32 s72, {sW}, 61440')
        k('s_add_u32 s83, s83, s72')
        k(f's_add_u32 s83, s83, {WS_WD}')
        k(f's_mov_b32 s48, {f2u(-2.0 * 0.7978845608028654 * 1.4426950408889634 * 0.044715):#x}')
        k(f's_mov_b32 s49, s48')
        k(f'v_mov_b32 v14, {f2u(-2.0 * 0.7978845608028654 * 1.4426950408889634):#x}')
        k(f'v_mov_b32 v15, 1.0')
        k.begin()
        for T in range(8):
            b = 96 + 4 * T
            k(f'v_pk_add_f32 v[{b}:{b + 1}], v[{b}:{b + 1}], v[{b + 2}:{b + 3}]')
            self.rowsum(b, b + 2)
            self.rowsum(b + 1, b + 3)
            k(f'v_mul_f32 v{b + 2}, {f2u(1 / 640):#x}, v{b}')
            k(f'v_mul_f32 v{b + 1}, {f2u(1 / 640):#x}, v{b + 1}')
            k(f'v_fma_f32 v{b + 1}, -v{b + 2}, v{b + 2}, v{b + 1}')
            k(f'v_max_f32 v{b + 1}, 0, v{b + 1}')
            k(f'v_add_f32 v{b + 1}, {f2u(1e-5):#x}, v{b + 1}')
            k(f'v_rsq_f32 v{b}, v{b + 1}')
            k(f'v_mul_f32 v{b + 1}, -v{b + 2}, v{b}')
        epi = k.end()
        acc = [32, 56]
        FR = 80
        wdl = list(self.WD_EARLY) + list(self.WD_LATE)

        def wd_load(i):
            if i and i % 4 == 0:
                k('s_add_u32 s83, s83, 4096')
            k(f'buffer_load_dwordx4 {ur(wdl[i])}, v1, {WS}, s83 offen offset:{1024 * (i % 4)} sc1', 'wd')
        for q in range(4):
            k.wait_vm(f'z{q}')
            k.barrier()
            if q == 1:
                self.dma_linear('s74', slots[3], 40, 'z3')
            a = acc[q & 1]
            k.begin()
            seq = [(s, tt) for s in range(20) for tt in range(2)]

            def rd(i):
                s, tt = seq[i]
                k(f'ds_read_b128 v[{FR + 4 * (i % 4)}:{FR + 4 * (i % 4) + 3}], {addr[q]} offset:{20480 * tt + 1024 * s}')
            for i in range(3):
                rd(i)
            for i, (s, tt) in enumerate(seq):
                for ft in range(3):
                    d = a + 12 * tt + 4 * ft
                    k(f'v_mfma_f32_16x16x32_bf16 v[{d}:{d + 3}], {ur(256 + 12 * s + 4 * ft)}, v[{FR + 4 * (i % 4)}:{FR + 4 * (i % 4) + 3}], {"0" if s == 0 else f"v[{d}:{d + 3}]"}')
                    if ft == 0 and i + 3 < 40:
                        rd(i + 3)
                if tt == 1:
                    if q in (1, 2) and s < 15:
                        wd_load(15 * (q - 1) + s)
                    if q == 3 and 1 <= s <= 10:
                        for e in range(3):
                            wd_load(30 + 3 * (s - 1) + e)
            main = k.end()
            k.put(interleave(main, epi, start=3, every=1, per=1 if q else 2))
            k.begin()
            for tt in range(2):
                st = 96 + 4 * (2 * q + tt)
                tmp = st + 2
                for ft in range(3):
                    d = a + 12 * tt + 4 * ft
                    for hf in range(2):
                        c, bi, dd = CS_ + 4 * ft + 2 * hf, BI + 4 * ft + 2 * hf, d + 2 * hf
                        k(f'v_pk_fma_f32 v[{tmp}:{tmp + 1}], v[{c}:{c + 1}], v[{st}:{st + 1}], v[{bi}:{bi + 1}] op_sel:[0,1,0]')
                        k(f'v_pk_fma_f32 v[{dd}:{dd + 1}], v[{dd}:{dd + 1}], v[{st}:{st + 1}], v[{tmp}:{tmp + 1}] op_sel_hi:[1,0,1]')
                    k(f'v_pk_mul_f32 v[{tmp}:{tmp + 1}], v[{d}:{d + 1}], v[{d}:{d + 1}]')
                    k(f'v_pk_fma_f32 v[{tmp}:{tmp + 1}], v[{tmp}:{tmp + 1}], s[48:49], v[14:15] op_sel_hi:[1,1,0]')
                    k(f'v_pk_mul_f32 v[{tmp}:{tmp + 1}], v[{tmp}:{tmp + 1}], v[{d}:{d + 1}]')
                    k(f'v_pk_mul_f32 v[{d}:{d + 1}], v[{d}:{d + 1}], v[{d + 2}:{d + 3}]')
                    k(f'v_exp_f32 v{tmp}, v{tmp}')
                    k(f'v_exp_f32 v{tmp + 1}, v{tmp + 1}')
                    k(f'v_pk_add_f32 v[{tmp}:{tmp + 1}], v[{tmp}:{tmp + 1}], v[14:15] op_sel:[0,1]')
                    k(f'v_rcp_f32 v{tmp}, v{tmp}')
                    k(f'v_rcp_f32 v{tmp + 1}, v{tmp + 1}')
                    k(f'v_pk_mul_f32 v[{d}:{d + 1}], v[{d}:{d + 1}], v[{tmp}:{tmp + 1}]')
                    dst = (16 + 2 * tt + ft) if ft < 2 else (6 + tt)
                    k(f'v_cvt_pk_bf16_f32 v{dst}, v{d}, v{d + 1}')
            k('v_permlane32_swap_b32 v16, v18')
            k('v_permlane32_swap_b32 v17, v19')
            k('v_permlane16_swap_b32 v6, v7')
            k('v_permlane16_swap_b32 v16, v17')
            k('v_permlane16_swap_b32 v18, v19')
            k(f'buffer_store_dwordx2 v[6:7], v21, {WS}, s82 offen offset:512', 'hh')
            k(f'buffer_store_dwordx4 v[16:19], v20, {WS}, s82 offen', 'hh')
            if q < 3:
                k('s_add_u32 s82, s82, 98304')
            epi = k.end()
        k.put(epi)
        self.publish(PH_HH, 'hh', True)
        self.stamp('gu')

    def down(self):
        k = self.k
        X1 = self.X1
        self.rowmajor_offsets()
        self.flag_off('s74', PH_HH)
        self.poll('v10', 's74', 64, True)
        self.stamp('hhflag')
        k.barrier()
        k(f's_mul_i32 s74, {sCL}, 393216')
        k(f's_mul_i32 s72, {sTH}, 49152')
        k('s_add_u32 s74, s74, s72')
        k(f's_mul_i32 s72, {sW}, 12288')
        k('s_add_u32 s74, s74, s72')
        k(f's_add_u32 s74, s74, {WS_HH}')
        bring = self.HH_B + [[72 + 4 * i for i in range(12)]]
        self.ksplit(12, list(self.WD_EARLY) + list(self.WD_LATE), bring, 's74', 49152, [32, 52], 156)
        a = 52
        self.lds_cols(P_GB - L_P, 72, 'v18', 'v19')
        self.unpack10(X1, 160)
        self.unpack10(72, 180)
        for i in range(0, 20, 2):
            k(f'v_pk_fma_f32 v[{a + i}:{a + i + 1}], v[{a + i}:{a + i + 1}], v[{180 + i}:{181 + i}], v[{160 + i}:{161 + i}]')
        for i in range(10):
            k(f'v_cvt_pk_bf16_f32 v{72 + i}, v{a + 2 * i}, v{a + 2 * i + 1}')
        k(f'buffer_store_dwordx4 v[72:75], v16, {OUTS}, s80 offen')
        k(f'buffer_store_dwordx4 v[76:79], v16, {OUTS}, s80 offen offset:64')
        k(f'buffer_store_dwordx2 v[80:81], v17, {OUTS}, s80 offen offset:128')

    def finish(self):
        k = self.k
        if self.o.stamps:
            k.wait_vm_all()
            self.stamp('end')
            k.wait_lgkm_all()
            k(f's_lshl2_add_u32 s72, s2, {sW}')
            k('s_lshl_b32 s72, s72, 7')
            k(f's_add_u32 s72, s72, {WS_DBG}')
            k('v_mov_b32 v64, 0')
            k('v_mov_b32 v65, s68')
            k(f'buffer_store_dword v65, v64, {WS}, s72 offen')
            for n in range(self.nstamp):
                k(f'v_mov_b32 v65, s{84 + n}')
                k(f'buffer_store_dword v65, v64, {WS}, s72 offen offset:{4 + 4 * n}')
            k(f'v_mov_b32 v65, {sFAST}')
            k(f'buffer_store_dword v65, v64, {WS}, s72 offen offset:124')
        k.label('.Lend')
        k('s_endpgm')

    def qkv_table(self):
        words = []
        for w in range(4):
            for h in range(2):
                for a in range(4):
                    Qi = 8 * w + 2 * a + h
                    X, q10 = divmod(Qi, 10)
                    head, d4 = divmod(q10, 5)
                    if X == 3:
                        base, mult, stride, isq = P_DUMMY, 0, 0, 0
                    elif X == 2:
                        base, mult, stride, isq = L_KVOWN + 2560 + head * 1536 + d4 * 8, 48, 11, 0
                    else:
                        org = L_Q if X == 0 else L_KVOWN
                        if d4 < 4:
                            base, mult = org + head * 1024 + (d4 >> 1) * 512 + (d4 & 1) * 8, 16
                        else:
                            base, mult = org + 2048 + head * 256, 8
                        stride, isq = (5, 1) if X == 0 else (11, 0)
                    words.append(base | mult << 18 | stride << 24 | isq << 31)
        return words

    def build(self):
        o = self.o
        steps = [
            ('pre', self.startup),
            ('h', lambda: (self.mod_pass(False), self.stamp('modin'), self.make_h(), self.mod_pass(True), self.wait_pall(), self.stamp('pall'))),
            ('qkv', self.qkv),
            ('attn', lambda: (self.halo(), self.load_wo_wgu(), self.attn_setup(), self.k.wait_vm('halo'), self.k.barrier(),
                              self.attn_unit(0), self.attn_unit(1), self.publish(PH_O, 'o', True), self.stamp('attn'))),
            ('wo', self.wo),
            ('gu', self.gu),
            ('down', self.down),
        ]
        for name, fn in steps:
            self.k.comment(f'==================== {name}')
            fn()
            if o.stop == name:
                break
        self.finish()
        body = self.k.finalize()
        hdr = open('cdna_kernels/' + NAME + '.s.ref').read().split('\n')
        top = [l for l in hdr if l.startswith(';') and '@launch' not in l]
        tab = '\n'.join(f'    .long {w:#010x}' for w in self.qkv_table())
        txt = '\n'.join(top) + f'''
; @launch grid=(256,1,1) block=(256,1,1) lds={LDS_BYTES}
.amdgcn_target "amdgcn-amd-amdhsa--gfx950"
.text
.globl {NAME}_kernel
.p2align 8
.type {NAME}_kernel,@function
{NAME}_kernel:
{body}
.p2align 4
.type .Ltab_qkv,@object
.Ltab_qkv:
{tab}
.Lcode_end:
.section .rodata,"a"
.p2align 6
.amdhsa_kernel {NAME}_kernel
  .amdhsa_next_free_vgpr 512
  .amdhsa_next_free_sgpr 102
  .amdhsa_accum_offset 256
  .amdhsa_group_segment_fixed_size 0
  .amdhsa_kernarg_size 96
  .amdhsa_user_sgpr_count 2
  .amdhsa_user_sgpr_kernarg_segment_ptr 1
  .amdhsa_system_sgpr_workgroup_id_x 1
.end_amdhsa_kernel
'''
        return txt


if __name__ == '__main__':
    ap = argparse.ArgumentParser()
    ap.add_argument('-o', default='cdna_kernels/' + NAME + '.s')
    ap.add_argument('--stop', default=None)
    ap.add_argument('--stamps', action='store_true')
    ap.add_argument('--force-slow', dest='force_slow', action='store_true')
    ap.add_argument('--spin', type=int, default=20000)
    opt = ap.parse_args()
    g = Gen(opt)
    txt = g.build()
    open(opt.o, 'w').write(txt)
    if opt.stamps:
        open(opt.o + '.stamps', 'w').write(' '.join(g.stampnames))
    print('written', opt.o, 'lines', txt.count('\n'), g.k.stats, g.stampnames)
```

```python
import sys, struct, argparse
sys.path.insert(0, 'dev')
from asmb import Builder, interleave, Ins

NAME = 'adaLN_cond__sliding_block__glu_gated_geglu__prompt'

WS_EPOCH = 0
WS_HELLO = 0x400
WS_PALL = 0x1000
WS_FLAG = 0x2000
WS_MODG = 0x10000
WS_ST = 0x20000
WS_WQ = 0x100000
WS_WO = 0x380000
WS_WGU = 0x480000
WS_WD = 0x840000
WS_H = 0xA40000
WS_O = 0xCC0000
WS_Z = 0xF40000
WS_KV = 0x11C0000
WS_HH = 0x1740000
WS_DBG = 0x1D40000
WS_SIZE = 0x1E00000
OOB = 0x40000000
PH_H, PH_KV, PH_O, PH_Z, PH_HH = range(5)

KVB = 5632
L_C = 0
L_KVOWN = 8 * KVB
L_Q = 12 * KVB
L_P = L_Q + 10240
L_A = 81920
L_B = 122880
LDS_BYTES = 163840
L_MOD = 0
L_WQS = 20480
L_SC = 32768
L_STAT = 33280
L_GUS = L_A
L_ODS = L_A + 16384
L_MV = L_B
P_SB = L_P
P_G2 = L_P + 1280
P_GA = L_P + 2560
P_GB = L_P + 2720
P_DUMMY = L_P + 3072
L_RED = 0

sW = 's3'
WS = 's[4:7]'; XS = 's[8:11]'; WQS = 's[12:15]'; ODS = 's[16:19]'; WGS = 's[20:23]'; WUS = 's[24:27]'
CS = 's[28:31]'; WMS = 's[32:35]'; OUTS = 's[36:39]'
sCL, sJ, sTAG, sFAST = 's40', 's41', 's42', 's43'
sJC, sTH = 's46', 's47'

QSCALE = 20 ** -0.5 * 1.4426950408889634
NEG = -1.0e30


def f2u(x):
    return struct.unpack('<I', struct.pack('<f', x))[0]


def vr(a, n=1, t='v'):
    return f'{t}{a}' if n == 1 else f'{t}[{a}:{a + n - 1}]'


def ur(a, n=4):
    return vr(a, n, 'v') if a < 256 else vr(a - 256, n, 'a')


class Gen:
    def __init__(self, opt):
        self.o = opt
        self.k = Builder()
        self.nstamp = 0
        self.stampnames = []

    def stamp(self, name):
        if not self.o.stamps:
            return
        k = self.k
        n = self.nstamp
        assert n < 60
        self.nstamp += 1
        self.stampnames.append(name)
        k('s_memrealtime s[100:101]')
        k(f'v_writelane_b32 v11, s100, {n + 1}')

    def dma(self, srd, voff, soff, lds, imm=0, tag=None, sc1=False):
        k = self.k
        k(f's_mov_b32 m0, {lds}')
        k(f'buffer_load_dwordx4 {voff}, {srd}, {soff} offen offset:{imm}{" sc1" if sc1 else ""} lds', tag)

    def bf16_round_keep(self, regs, tmp):
        k = self.k
        for i in range(0, len(regs), 2):
            k(f'v_cvt_pk_bf16_f32 v{tmp}, v{regs[i]}, v{regs[i + 1]}')
            k(f'v_lshlrev_b32 v{regs[i]}, 16, v{tmp}')
            k(f'v_and_b32 v{regs[i + 1]}, 0xffff0000, v{tmp}')

    def flag_off(self, sdst, phase, scl=sCL):
        k = self.k
        k(f's_lshl_b32 {sdst}, {scl}, 8')
        k(f's_add_u32 {sdst}, {sdst}, {WS_FLAG + phase * 0x1000}')

    def publish(self, phase, tag, local):
        k = self.k
        self.flag_off('s72', phase)
        k.wait_vm(tag)
        if local:
            lab, done = k.newlabel('pubslow'), k.newlabel('pubdone')
            k(f's_cmp_eq_u32 {sFAST}, 0')
            k(f's_cbranch_scc1 {lab}')
            k.cond_begin()
            k(f'buffer_store_dword v5, v4, {WS}, s72 offen')
            k(f's_branch {done}')
            k.cond_end()
            k.label(lab)
            k.cond_begin()
            k('buffer_wbl2 sc1')
            k('s_waitcnt vmcnt(0)')
            k(f'buffer_store_dword v5, v4, {WS}, s72 offen sc1')
            k.cond_end()
            k.label(done)
        else:
            k(f'buffer_store_dword v5, v4, {WS}, s72 offen sc1')

    def poll(self, voff, soff, vt, local, sleep=0):
        k = self.k
        lab, out = k.newlabel('poll'), k.newlabel('pollx')
        k('s_mov_b32 s73, 0')
        k.fence_hazards()
        k.label(lab)
        k(f'buffer_load_dword v{vt}, {voff}, {WS}, {soff} offen sc1')
        k('s_add_u32 s73, s73, 1')
        k('s_waitcnt vmcnt(0)')
        k(f'v_cmp_ne_u32 vcc, {sTAG}, v{vt}')
        k(f's_cmp_ge_u32 s73, {self.o.spin}')
        k(f's_cbranch_scc1 {out}')
        if sleep:
            k(f's_cmp_eq_u64 vcc, 0')
            k(f's_cbranch_scc1 {out}')
            k(f's_sleep {sleep}')
            k(f's_branch {lab}')
        else:
            k(f's_cmp_lg_u64 vcc, 0')
            k(f's_cbranch_scc1 {lab}')
        k.label(out)
        if local:
            skip = k.newlabel('acq')
            k(f's_cmp_lg_u32 {sFAST}, 0')
            k(f's_cbranch_scc1 {skip}')
            k('buffer_inv sc1')
            k('s_waitcnt vmcnt(0)')
            k.label(skip)
        k.assume_vm_empty()

    def startup(self):
        k = self.k
        o = self.o
        k('s_load_dwordx8 s[64:71], s[0:1], 64')
        k('s_load_dwordx16 s[48:63], s[0:1], 0')
        k('s_cmp_ge_u32 s2, 256')
        k('s_cbranch_scc1 .Lend')
        if o.stamps:
            k('s_memrealtime s[100:101]')
            k('s_memtime s[98:99]')
        k('s_getpc_b64 s[44:45]')
        k.label('.Lpc0')
        k('s_bfe_u32 s72, s2, 0x30003')
        k('v_lshrrev_b32 v2, 2, v0')
        k('v_lshl_add_u32 v2, s72, 6, v2')
        k('v_lshlrev_b32 v2, 7, v2')
        k('v_min_u32 v2, .Lcode_end-.Lpc0-4, v2')
        k('v_and_b32 v2, -4, v2')
        k('global_load_dword v95, v2, s[44:45]')
        k('v_lshrrev_b32 v2, 6, v0')
        k('v_and_b32 v3, 63, v0')
        k('v_readfirstlane_b32 s3, v2')
        k('v_lshlrev_b32 v1, 4, v3')
        k('v_lshrrev_b32 v2, 5, v0')
        k('v_lshlrev_b32 v2, 4, v2')
        k('v_add_u32 v2, .Ltab_qkv-.Lpc0, v2')
        k('global_load_dwordx4 v[20:23], v2, s[44:45]')
        for srd, size in ((4, WS_SIZE), (8, 2621440), (12, 2457600), (20, 1966080), (24, 1966080), (28, 1280), (32, 4915200), (36, 2621440)):
            k(f's_mov_b32 s{srd + 2}, {size}')
            k(f's_mov_b32 s{srd + 3}, 0x20000')
        k('s_mov_b32 s19, 0x20000')
        k('s_and_b32 s72, s2, 7')
        k('s_lshr_b32 s73, s2, 3')
        k(f's_and_b32 {sJ}, s73, 15')
        k('s_lshr_b32 s73, s73, 4')
        k(f's_lshl1_add_u32 {sCL}, s72, s73')
        k(f's_and_b32 {sJC}, {sJ}, 7')
        k(f's_lshr_b32 {sTH}, {sJ}, 3')
        k('s_sub_u32 s74, s2, 16')
        k('s_cmp_lt_u32 s2, 240')
        k('s_cselect_b32 s74, s2, s74')
        k('s_lshr_b32 s75, s74, 2')
        k('s_and_b32 s76, s74, 3')
        k('v_lshrrev_b32 v6, 3, v3')
        k('v_and_b32 v7, 7, v3')
        k('v_lshlrev_b32 v7, 4, v7')
        k('s_movk_i32 s72, 7680')
        k('v_mad_u32_u24 v8, v6, s72, v7')
        k('s_mul_i32 s77, s76, 160')
        k(f's_lshl3_add_u32 s77, {sW}, s77')
        k('s_mul_i32 s77, s77, 7680')
        k('s_lshl_b32 s72, s75, 7')
        k('s_add_u32 s77, s77, s72')
        k(f's_lshl_b32 s78, {sW}, 10')
        k('v_min_u32 v9, 79, v0')
        k('v_lshlrev_b32 v9, 2, v9')
        k('s_mul_i32 s79, s76, 320')
        k.wait_lgkm_all()
        if o.stamps:
            k('v_mov_b32 v11, s100')
            k('v_writelane_b32 v11, s98, 61')
        self.stamp('karg')
        k('s_mov_b64 s[32:33], s[64:65]')
        k('s_mov_b64 s[28:29], s[62:63]')
        k('s_load_dword s42, s[70:71], 0')
        for t in range(5):
            self.dma(WMS, 'v8', 's77', 's78', tag='mod')
            if t < 4:
                k(f's_add_u32 s77, s77, {32 * 7680}')
                k('s_add_u32 s78, s78, 4096')
        k(f'buffer_load_dword v10, v9, {CS}, s79 offen')
        self.stamp('modiss')
        k('s_mov_b64 s[4:5], s[70:71]')
        k('s_mov_b64 s[8:9], s[48:49]')
        k('s_mov_b64 s[12:13], s[50:51]')
        k('s_mov_b64 s[20:21], s[56:57]')
        k('s_mov_b64 s[24:25], s[58:59]')
        k('s_mov_b64 s[36:37], s[66:67]')
        k('v_and_b32 v36, 7, v3')
        k('v_mul_u32_u24 v36, 1280, v36')
        k('v_lshl_add_u32 v36, v6, 4, v36')
        k('v_cmp_gt_u32 vcc, 32, v3')
        k(f'v_mov_b32 v2, {OOB}')
        k('v_cndmask_b32 v12, v2, v36, vcc')
        k(f's_lshl_b32 s72, {sCL}, 4')
        k(f's_add_u32 s72, s72, {sJ}')
        k('s_mul_i32 s72, s72, 10240')
        k(f's_mul_i32 s73, {sW}, 320')
        k('s_add_u32 s72, s72, s73')
        k(f'buffer_load_dwordx4 v[24:27], v36, {XS}, s72 offen')
        k(f'buffer_load_dwordx4 v[28:31], v36, {XS}, s72 offen offset:128')
        k(f'buffer_load_dwordx4 v[32:35], v12, {XS}, s72 offen offset:256')
        k('s_mul_i32 s80, s74, 171')
        k('s_lshr_b32 s80, s80, 9')
        k('s_mul_i32 s81, s80, 3')
        k('s_sub_u32 s81, s74, s81')
        k('s_movk_i32 s72, 3840')
        k('v_mad_u32_u24 v8, v6, s72, v7')
        k('s_mul_i32 s77, s80, 30720')
        k('s_mul_i32 s72, s81, 1280')
        k('s_add_u32 s77, s77, s72')
        k(f's_mul_i32 s78, {sW}, 3072')
        k(f's_add_u32 s78, s78, {L_WQS}')
        k(f's_add_u32 s82, {sW}, 8')
        k('s_min_u32 s82, s82, 9')
        k(f's_lshl_b32 s72, {sW}, 7')
        k('s_add_u32 s72, s72, s77')
        self.dma(WQS, 'v8', 's72', 's78', tag='wq')
        k('s_add_u32 s72, s72, 512')
        k('s_add_u32 s78, s78, 1024')
        self.dma(WQS, 'v8', 's72', 's78', tag='wq')
        k('s_lshl_b32 s72, s82, 7')
        k('s_add_u32 s72, s72, s77')
        k('s_add_u32 s78, s78, 1024')
        self.dma(WQS, 'v8', 's72', 's78', tag='wq')
        self.od_issue('s2', 0)
        k('s_movk_i32 s72, 3072')
        k('v_mad_u32_u24 v8, v6, s72, v7')
        k('s_mul_i32 s77, s80, 24576')
        k('s_lshl_b32 s72, s81, 10')
        k('s_add_u32 s77, s77, s72')
        k(f's_lshl_b32 s72, {sW}, 7')
        k('s_add_u32 s77, s77, s72')
        k(f's_lshl_b32 s78, {sW}, 12')
        k(f's_add_u32 s78, s78, {L_GUS}')
        for t in range(2):
            self.dma(WGS, 'v8', 's77', 's78', tag='gu')
            k('s_add_u32 s78, s78, 1024')
            self.dma(WUS, 'v8', 's77', 's78', tag='gu')
            if t == 0:
                k('s_add_u32 s78, s78, 1024')
                k('s_add_u32 s77, s77, 512')
        lab = k.newlabel('od2')
        k('s_cmp_lt_u32 s2, 240')
        k(f's_cbranch_scc1 {lab}')
        k.cond_begin()
        k('s_add_u32 s48, s2, 16')
        self.od_issue('s48', 1)
        k.cond_end()
        k.label(lab)
        self.stamp('alliss')
        k('s_getreg_b32 s49, hwreg(HW_REG_XCC_ID, 0, 3)')
        k('s_mul_i32 s42, s42, 0x9e3779b1')
        k('s_add_u32 s42, s42, 0x7f4a7c15')
        k('s_mov_b32 s50, s42')
        k('s_and_b32 s42, s42, -8')
        k('s_or_b32 s51, s42, s49')
        k(f's_lshl2_add_u32 s72, {sJ}, {sW}')
        k('s_lshl_b32 s72, s72, 2')
        k('v_mov_b32 v4, s72')
        k('v_cmp_eq_u32 vcc, 0, v3')
        k('v_cndmask_b32 v4, v2, v4, vcc')
        k('v_mov_b32 v5, s42')
        k(f's_lshl_b32 s72, {sJ}, 2')
        k('v_mov_b32 v13, s72')
        k('v_cmp_eq_u32 vcc, 0, v0')
        k('v_cndmask_b32 v13, v2, v13, vcc')
        k('v_mov_b32 v14, s51')
        k(f's_lshl_b32 s72, {sCL}, 7')
        k(f'buffer_store_dword v14, v13, {WS}, s72 offen offset:{WS_HELLO} sc1')
        k('v_and_b32 v13, 31, v0')
        k('v_mul_u32_u24 v13, 48, v13')
        k('v_bfe_u32 v14, v0, 5, 1')
        k('s_movk_i32 s72, 1536')
        k('v_mad_u32_u24 v13, v14, s72, v13')
        k(f's_mul_i32 s72, {sW}, {KVB}')
        k('v_add_u32 v13, s72, v13')
        k('v_mov_b32 v14, 0x3f80')
        k('v_mov_b32 v15, 0')
        k(f'ds_write_b64 v13, v[14:15] offset:{L_KVOWN + 2560 + 40}')
        k('v_lshlrev_b32 v14, 16, v10')
        k('v_and_b32 v15, 0xffff0000, v10')
        for r in (14, 15):
            k(f'v_mul_f32 v{r + 2}, {f2u(-1.4426950408889634):#x}, v{r}')
        for r in (14, 15):
            k(f'v_exp_f32 v{r + 2}, v{r + 2}')
        for r in (14, 15):
            k(f'v_add_f32 v{r + 2}, 1.0, v{r + 2}')
        for r in (14, 15):
            k(f'v_rcp_f32 v{r + 2}, v{r + 2}')
        for r in (14, 15):
            k(f'v_mul_f32 v{r}, v{r}, v{r + 2}')
        k('v_cvt_pk_bf16_f32 v14, v14, v15')
        k(f'ds_write_b32 v9, v14 offset:{L_SC}')
        k('v_bfe_u32 v13, v3, 2, 2')
        k('v_lshlrev_b32 v13, 7, v13')
        k('v_and_b32 v14, 3, v3')
        k('v_lshl_add_u32 v15, v14, 3, v13')
        k('v_lshrrev_b32 v16, 4, v3')
        k('v_lshl_add_u32 v17, v16, 10, v15')
        k(f's_lshl_b32 s72, {sW}, 5')
        k('v_add_u32 v17, s72, v17')
        k('v_lshlrev_b32 v18, 4, v16')
        k('v_lshl_add_u32 v19, v16, 5, v15')
        self.stamp('silu')
        k.wait_vm('mod')
        self.stamp('modw')
        k.barrier()
        self.stamp('modld')
        for s in range(5):
            k(f'ds_read_b64_tr_b16 v[{40 + 4 * s}:{41 + 4 * s}], v17 offset:{L_MOD + 4096 * s}')
            k(f'ds_read_b64_tr_b16 v[{42 + 4 * s}:{43 + 4 * s}], v17 offset:{L_MOD + 4096 * s + 512}')
            k(f'ds_read_b128 v[{60 + 4 * s}:{63 + 4 * s}], v18 offset:{L_SC + 64 * s}')
        k('v_lshlrev_b32 v36, 6, v16')
        k('v_and_b32 v37, 15, v3')
        k('v_cmp_eq_u32 vcc, 0, v37')
        k('v_cndmask_b32 v36, v2, v36, vcc')
        k(f's_lshl2_add_u32 s72, s75, {sW}')
        k('s_lshl_b32 s72, s72, 8')
        k('s_lshl4_add_u32 s72, s76, s72')
        k(f's_add_u32 s72, s72, {WS_MODG}')
        k('s_mov_b32 s73, 0x07060503')
        k('s_mov_b32 s77, 0x07060502')
        k('s_mov_b32 s78, 0x07060501')
        for s in range(5):
            k(f'v_mfma_f32_16x16x32_bf16 v[80:83], v[{40 + 4 * s}:{43 + 4 * s}], v[{60 + 4 * s}:{63 + 4 * s}], {"0" if s == 0 else "v[80:83]"}')
        k('v_perm_b32 v80, v80, v83, s73')
        k('v_perm_b32 v81, v81, v83, s77')
        k('v_perm_b32 v82, v82, v83, s78')
        k('v_mov_b32 v83, s42')
        k(f'buffer_store_dwordx4 v[80:83], v36, {WS}, s72 offen sc1')
        self.stamp('modpub')
        k(f's_mul_i32 s72, {sW}, 3072')
        k('v_add_u32 v36, s72, v19')
        k.wait_vm('wq')
        self.stamp('wqw')
        for t in range(3):
            k(f'ds_read_b64_tr_b16 v[{40 + 4 * t}:{41 + 4 * t}], v36 offset:{L_WQS + 1024 * t}')
            k(f'ds_read_b64_tr_b16 v[{42 + 4 * t}:{43 + 4 * t}], v36 offset:{L_WQS + 1024 * t + 512}')
        k('s_lshl_b32 s77, s80, 9')
        k(f's_add_u32 s77, s77, {WS_WQ}')
        k('s_mul_i32 s78, s81, 40')
        k(f's_mov_b32 s79, 163840')
        k(f's_mov_b32 s73, 40960')
        for t in range(3):
            if t < 2:
                k(f's_lshl_b32 s72, {sW}, 6')
                if t:
                    k('s_add_u32 s72, s72, 256')
            else:
                k('s_lshl_b32 s72, s82, 6')
            k('v_add_u32 v60, s72, v3')
            k('v_mul_u32_u24 v61, 205, v60')
            k('v_lshrrev_b32 v61, 13, v61')
            k('v_mul_u32_u24 v62, 40, v61')
            k('v_sub_u32 v60, v60, v62')
            k('v_add_u32 v60, s78, v60')
            k('v_lshrrev_b32 v62, 5, v60')
            k('v_and_b32 v60, 31, v60')
            k('v_lshlrev_b32 v60, 4, v60')
            k('v_mad_u32_u24 v60, v62, s73, v60')
            k(f'v_mad_u32_u24 v{64 + t}, v61, s79, v60')
            k(f'buffer_store_dwordx4 v[{40 + 4 * t}:{43 + 4 * t}], v{64 + t}, {WS}, s77 offen sc1', 'pre')
        self.od_process(0)
        k('v_lshrrev_b32 v36, 1, v14')
        k('v_lshl_add_u32 v36, v36, 3, v13')
        k('v_and_b32 v37, 1, v14')
        k('v_lshl_add_u32 v36, v37, 10, v36')
        k('v_add_u32 v36, v36, v18')
        k(f's_lshl_b32 s72, {sW}, 12')
        k(f's_add_u32 s72, s72, {L_GUS}')
        k('v_add_u32 v36, s72, v36')
        self.stamp('odst')
        k.wait_vm('gu')
        self.stamp('guw')
        for t in range(2):
            for hf in range(2):
                b = 40 + 8 * t + 4 * hf
                k(f'ds_read_b64_tr_b16 v[{b}:{b + 1}], v36 offset:{2048 * t + 64 * hf}')
                k(f'ds_read_b64_tr_b16 v[{b + 2}:{b + 3}], v36 offset:{2048 * t + 64 * hf + 512}')
        k('v_and_b32 v60, 9, v3')
        k('v_bfe_u32 v61, v3, 1, 1')
        k('v_lshl_add_u32 v60, v61, 2, v60')
        k('v_bfe_u32 v61, v3, 2, 1')
        k('v_lshl_add_u32 v60, v61, 1, v60')
        k('v_lshlrev_b32 v60, 4, v60')
        k('s_lshr_b32 s77, s80, 2')
        k('s_mul_i32 s77, s77, 3072')
        k('s_and_b32 s72, s80, 3')
        k('s_lshl_b32 s72, s72, 8')
        k('s_add_u32 s77, s77, s72')
        k(f's_add_u32 s77, s77, {WS_WGU}')
        k('s_lshl_b32 s78, s81, 6')
        k(f's_lshl3_add_u32 s78, {sW}, s78')
        k(f's_mov_b32 s79, {61440 - 3072}')
        for t in range(2):
            for hf in range(2):
                b = 40 + 8 * t + 4 * hf
                d = 64 + 2 * t + hf
                k(f's_add_u32 s72, s78, {32 * t + 4 * hf}')
                k('v_add_u32 v61, s72, v16')
                k('v_mul_u32_u24 v62, 171, v61')
                k('v_lshrrev_b32 v62, 9, v62')
                k('v_lshl_add_u32 v61, v61, 10, v60')
                k(f'v_mad_u32_u24 v{d}, v62, s79, v61')
                k(f'buffer_store_dwordx4 v[{b}:{b + 3}], v{d}, {WS}, s77 offen sc1', 'pre')
        lab = k.newlabel('od2p')
        k('s_cmp_lt_u32 s2, 240')
        k(f's_cbranch_scc1 {lab}')
        k.cond_begin()
        self.od_process(1)
        k.cond_end()
        k.label(lab)
        self.stamp('gust')
        X = list(range(40, 64))
        for i in range(12):
            k(f'v_lshlrev_b32 v{40 + 2 * i}, 16, v{24 + i}')
            k(f'v_and_b32 v{41 + 2 * i}, 0xffff0000, v{24 + i}')
        k('v_pk_add_f32 v[64:65], v[40:41], v[42:43]')
        k('v_pk_mul_f32 v[66:67], v[40:41], v[40:41]')
        k('v_pk_fma_f32 v[66:67], v[42:43], v[42:43], v[66:67]')
        for i in range(2, 12):
            k(f'v_pk_add_f32 v[64:65], v[64:65], v[{40 + 2 * i}:{41 + 2 * i}]')
            k(f'v_pk_fma_f32 v[66:67], v[{40 + 2 * i}:{41 + 2 * i}], v[{40 + 2 * i}:{41 + 2 * i}], v[66:67]')
        k('v_add_f32 v64, v64, v65')
        k('v_add_f32 v65, v66, v67')
        k('v_add_f32_dpp v64, v64, v64 row_ror:8 row_mask:0xf bank_mask:0xf')
        k('v_add_f32_dpp v65, v65, v65 row_ror:8 row_mask:0xf bank_mask:0xf')
        self.rowsum(64, 66)
        self.rowsum(65, 67)
        k('v_and_b32 v66, 7, v3')
        k('v_lshlrev_b32 v66, 5, v66')
        k(f's_lshl_b32 s72, {sW}, 3')
        k('v_add_u32 v67, s72, v66')
        k(f'ds_write_b64 v67, v[64:65] offset:{L_STAT}')
        k.barrier()
        k(f'ds_read_b128 v[68:71], v66 offset:{L_STAT}')
        k(f'ds_read_b128 v[72:75], v66 offset:{L_STAT + 16}')
        k('v_pk_add_f32 v[68:69], v[68:69], v[70:71]')
        k('v_pk_add_f32 v[72:73], v[72:73], v[74:75]')
        k('v_pk_add_f32 v[68:69], v[68:69], v[72:73]')
        k(f'v_mul_f32 v68, {f2u(1 / 640):#x}, v68')
        k(f'v_mul_f32 v69, {f2u(1 / 640):#x}, v69')
        k('v_fma_f32 v69, -v68, v68, v69')
        k('v_max_f32 v69, 0, v69')
        self.bf16_round_keep([68, 69], 70)
        k(f'v_add_f32 v69, {f2u(1e-5):#x}, v69')
        self.bf16_round_keep([68, 69], 70)
        k('v_sqrt_f32 v69, v69')
        self.bf16_round_keep([68, 69], 70)
        k('v_rcp_f32 v69, v69')
        for i in range(12):
            k(f'v_pk_add_f32 v[{40 + 2 * i}:{41 + 2 * i}], v[{40 + 2 * i}:{41 + 2 * i}], v[68:69] op_sel_hi:[1,0] neg_lo:[0,1] neg_hi:[0,1]')
        self.bf16_round_keep(X, 70)
        for i in range(12):
            k(f'v_pk_mul_f32 v[{40 + 2 * i}:{41 + 2 * i}], v[{40 + 2 * i}:{41 + 2 * i}], v[68:69] op_sel:[0,1]')
        self.bf16_round_keep(X, 70)
        self.stamp('norm')
        k.wait_vm_all()
        self.stamp('drain')
        k.barrier()
        k('s_lshl_b32 s72, s2, 2')
        k('v_mov_b32 v13, s72')
        k('v_cmp_eq_u32 vcc, 0, v0')
        k('v_cndmask_b32 v13, v2, v13, vcc')
        k(f's_movk_i32 s72, {WS_PALL}')
        k(f'buffer_store_dword v5, v13, {WS}, s72 offen sc1')
        self.stamp('prepub')

    def rowsum(self, r, t):
        k = self.k
        k(f'v_mov_b32 v{t}, v{r}')
        k(f'v_permlane16_swap_b32 v{r}, v{t}')
        k(f'v_add_f32 v{r}, v{r}, v{t}')
        k(f'v_mov_b32 v{t}, v{r}')
        k(f'v_permlane32_swap_b32 v{r}, v{t}')
        k(f'v_add_f32 v{r}, v{r}, v{t}')

    def od_issue(self, sn, which):
        k = self.k
        sB, sJS = (f's{54 + 2 * which}', f's{55 + 2 * which}')
        k('s_mov_b32 s18, 819200')
        k(f's_mov_b32 {sJS}, {20 * 5120}')
        k(f's_mov_b32 {sB}, {WS_WO}')
        k(f's_cmp_lt_u32 {sn}, 192')
        k('s_cselect_b64 s[16:17], s[60:61], s[52:53]')
        k('s_cmov_b32 s18, 1966080')
        k(f's_cmov_b32 {sJS}, {48 * 5120}')
        k(f's_cmov_b32 {sB}, {WS_WD}')
        k(f's_cselect_b32 s72, 0, 192')
        k(f's_sub_u32 s77, {sn}, s72')
        k('s_lshr_b32 s72, s77, 2')
        k('s_mul_i32 s72, s72, 5120')
        k(f's_add_u32 {sB}, {sB}, s72')
        k('s_and_b32 s72, s77, 3')
        k('s_lshl_b32 s72, s72, 8')
        k(f's_add_u32 {sB}, {sB}, s72')
        k('s_mul_i32 s72, s77, 205')
        k('s_lshr_b32 s72, s72, 10')
        k('s_mul_i32 s73, s72, 5')
        k('s_sub_u32 s73, s77, s73')
        k('s_mul_i32 s72, s72, 40')
        k('s_lshr_b32 s78, s73, 1')
        k('s_mul_i32 s78, s78, 20')
        k('s_and_b32 s79, s73, 1')
        k('s_lshl2_add_u32 s78, s79, s78')
        k('s_cmp_eq_u32 s73, 4')
        k('s_cselect_b32 s78, 16, s78')
        k('s_cselect_b32 s79, 20, 8')
        k('s_add_u32 s72, s72, s78')
        k('s_lshl_b32 s77, s77, 3')
        k(f's_cmp_lt_u32 {sn}, 192')
        k('s_cselect_b32 s77, s77, s72')
        k('s_cselect_b32 s79, 4, s79')
        k('s_mul_i32 s77, s77, 1280')
        k('v_lshrrev_b32 v8, 5, v3')
        k('v_and_b32 v13, 3, v6')
        k('v_mad_u32_u24 v8, v8, s79, v13')
        k('s_movk_i32 s72, 1280')
        k('v_mad_u32_u24 v8, v8, s72, v7')
        k(f's_sub_u32 s83, 11, {sW}')
        k('s_min_u32 s83, s83, 9')
        k(f's_mul_i32 s78, {sW}, 3072')
        k(f's_add_u32 s78, s78, {L_ODS + 12288 * which}')
        k(f's_sub_u32 s72, 3, {sW}')
        k('s_lshl_b32 s72, s72, 7')
        k('s_add_u32 s72, s72, s77')
        self.dma(ODS, 'v8', 's72', 's78', tag=f'od{which}')
        k('s_add_u32 s72, s72, 512')
        k('s_add_u32 s78, s78, 1024')
        self.dma(ODS, 'v8', 's72', 's78', tag=f'od{which}')
        k('s_lshl_b32 s72, s83, 7')
        k('s_add_u32 s72, s72, s77')
        k('s_add_u32 s78, s78, 1024')
        self.dma(ODS, 'v8', 's72', 's78', tag=f'od{which}')

    def od_process(self, which):
        k = self.k
        sB, sJS = (f's{54 + 2 * which}', f's{55 + 2 * which}')
        k(f's_mul_i32 s72, {sW}, 3072')
        k(f's_add_u32 s72, s72, {L_ODS + 12288 * which}')
        k('v_add_u32 v36, s72, v19')
        k.wait_vm(f'od{which}')
        for t in range(3):
            k(f'ds_read_b64_tr_b16 v[{68 + 4 * t}:{69 + 4 * t}], v36 offset:{1024 * t}')
            k(f'ds_read_b64_tr_b16 v[{70 + 4 * t}:{71 + 4 * t}], v36 offset:{1024 * t + 512}')
        for t in range(3):
            if t < 2:
                k(f's_sub_u32 s72, {3 + 4 * t}, {sW}')
                k('s_lshl_b32 s72, s72, 6')
            else:
                k('s_lshl_b32 s72, s83, 6')
            k('v_add_u32 v60, s72, v3')
            k('v_mul_u32_u24 v61, 205, v60')
            k('v_lshrrev_b32 v61, 14, v61')
            k('v_mul_u32_u24 v62, 80, v61')
            k('v_sub_u32 v60, v60, v62')
            k('v_bfe_u32 v62, v60, 3, 2')
            k('v_and_b32 v63, 3, v60')
            k('v_lshl_add_u32 v62, v62, 2, v63')
            k('v_bfe_u32 v63, v60, 2, 1')
            k('v_lshl_add_u32 v62, v63, 6, v62')
            k('v_and_b32 v63, 15, v60')
            k('v_cmp_gt_u32 vcc, 64, v60')
            k('v_lshrrev_b32 v60, 5, v60')
            k('v_cndmask_b32 v62, v63, v62, vcc')
            k('v_lshl_add_u32 v62, v60, 7, v62')
            k('v_lshlrev_b32 v62, 4, v62')
            k(f'v_mad_u32_u24 v{84 + t}, v61, {sJS}, v62')
            k(f'buffer_store_dwordx4 v[{68 + 4 * t}:{71 + 4 * t}], v{84 + t}, {WS}, {sB} offen sc1', 'pre')

    def mod_pass(self, second):
        k = self.k
        G = 64
        vecA = 3 if second else 0
        n = 6 if second else 5
        k(f's_mul_i32 s74, {sW}, 2560')
        k(f's_add_u32 s74, s74, {WS_MODG + vecA * 10240}')
        k(f's_add_u32 s75, s74, {7680 + 3072}')
        k('v_cmp_gt_u32 vcc, 32, v3')
        k('v_add_u32 v13, 7680, v1')
        k('v_cndmask_b32 v13, v13, v1, vcc')
        k('v_mov_b32 v14, 1.0')
        k('v_cndmask_b32 v14, v14, 0, vcc')
        if second:
            k('v_min_u32 v15, 639, v1')
            k('v_and_b32 v15, -16, v15')
            k(f's_lshr_b32 s76, {sW}, 1')
            k('s_mul_i32 s76, s76, 30720')
            k(f's_and_b32 s72, {sW}, 1')
            k(f's_lshl1_add_u32 s72, {sJC}, s72')
            k('s_mul_i32 s72, s72, 640')
            k('s_add_u32 s76, s76, s72')
            k(f's_add_u32 s76, s76, {WS_MODG + 2 * 10240}')
        else:
            k(f's_lshl_b32 s76, {sCL}, 7')
            k('v_and_b32 v15, 15, v3')
            k('v_lshlrev_b32 v15, 2, v15')
        k('s_mov_b32 s77, 0x04000c0c')
        k('s_mov_b32 s78, 0x0706000c')
        lab, out = k.newlabel('mpoll'), k.newlabel('mpollx')
        k('s_mov_b32 s73, 0')
        k.fence_hazards()
        k.label(lab)
        k(f'buffer_load_dwordx4 v[{G}:{G + 3}], v1, {WS}, s74 offen sc1')
        k(f'buffer_load_dwordx4 v[{G + 4}:{G + 7}], v1, {WS}, s74 offen offset:1024 sc1')
        k(f'buffer_load_dwordx4 v[{G + 8}:{G + 11}], v13, {WS}, s74 offen offset:2048 sc1')
        k(f'buffer_load_dwordx4 v[{G + 12}:{G + 15}], v1, {WS}, s75 offen sc1')
        k(f'buffer_load_dwordx4 v[{G + 16}:{G + 19}], v1, {WS}, s75 offen offset:1024 sc1')
        if second:
            k(f'buffer_load_dwordx4 v[{G + 20}:{G + 23}], v15, {WS}, s76 offen sc1')
        else:
            k(f'buffer_load_dword v{G + 22}, v15, {WS}, s76 offen offset:{WS_HELLO} sc1')
        k('s_add_u32 s73, s73, 1')
        k('s_waitcnt vmcnt(0)')
        if not second:
            k(f'v_and_b32 v{G + 23}, -8, v{G + 22}')
        k(f'v_xor_b32 v88, {sTAG}, v{G + 3}')
        k(f'v_xor_b32 v89, {sTAG}, v{G + 7}')
        k(f'v_xor_b32 v90, {sTAG}, v{G + 11}')
        k('v_or3_b32 v88, v88, v89, v90')
        k(f'v_xor_b32 v89, {sTAG}, v{G + 15}')
        k(f'v_xor_b32 v90, {sTAG}, v{G + 19}')
        k('v_or3_b32 v88, v88, v89, v90')
        k(f'v_xor_b32 v89, {sTAG}, v{G + 23}')
        k('v_or_b32 v88, v88, v89')
        k('v_cmp_ne_u32 vcc, 0, v88')
        k(f's_cmp_ge_u32 s73, {self.o.spin}')
        k(f's_cbranch_scc1 {out}')
        k('s_cmp_lg_u64 vcc, 0')
        k(f's_cbranch_scc1 {lab}')
        k.label(out)
        k.assume_vm_empty()
        if not second:
            k(f'v_cmp_ne_u32 vcc, s51, v{G + 22}')
            k('s_cmp_eq_u64 vcc, 0')
            k(f's_cselect_b32 {sFAST}, {0 if self.o.force_slow else 1}, 0')
        for i in range(n):
            b = G + 4 * i
            k(f'v_perm_b32 v{b + 3}, v{b}, v{b + 1}, s77')
        for i in range(n):
            b = G + 4 * i
            k(f'v_perm_b32 v{b + 3}, v{b + 3}, v{b + 2}, s78')
        for qp in ('[1,0,3,2]', '[2,3,0,1]'):
            for r in range(G, G + 4 * n):
                k(f'v_add_f32_dpp v{r}, v{r}, v{r} quad_perm:{qp} row_mask:0xf bank_mask:0xf')
        k('v_lshrrev_b32 v88, 2, v3')
        if not second:
            k('v_lshlrev_b32 v88, 4, v88')
            k(f's_mul_i32 s72, {sW}, 1280')
            k(f's_add_u32 s72, s72, {L_MV}')
            k('v_add_u32 v88, s72, v88')
            for i in range(5):
                b = G + 4 * i
                self.bf16_round_keep([b, b + 1, b + 2, b + 3], 89)
                if i >= 2:
                    for r in range(b, b + 4):
                        k(f'v_add_f32 v{r}, {"v14" if i == 2 else "1.0"}, v{r}')
                    self.bf16_round_keep([b, b + 1, b + 2, b + 3], 89)
                k(f'ds_write_b128 v88, v[{b}:{b + 3}] offset:{256 * i}')
        else:
            k('v_lshlrev_b32 v88, 3, v88')
            k(f's_mul_i32 s72, {sW}, 80')
            k(f's_add_u32 s72, s72, {P_GA}')
            k('v_add_u32 v91, s72, v88')
            k(f'v_mov_b32 v92, {P_DUMMY}')
            k('v_cmp_gt_u32 vcc, 40, v3')
            k('v_cndmask_b32 v91, v92, v91, vcc')
            k(f's_mul_i32 s72, {sW}, 320')
            k(f's_add_u32 s72, s72, {L_P}')
            k('v_add_u32 v88, s72, v88')
            k('v_add_u32 v90, 960, v88')
            k('v_cmp_gt_u32 vcc, 32, v3')
            k('v_cndmask_b32 v90, v90, v88, vcc')
            for i in range(6):
                b = G + 4 * i
                if 2 <= i < 5:
                    self.bf16_round_keep([b, b + 1, b + 2, b + 3], 89)
                    for r in range(b, b + 4):
                        k(f'v_add_f32 v{r}, {"v14" if i == 2 else "1.0"}, v{r}')
                k(f'v_cvt_pk_bf16_f32 v{b}, v{b}, v{b + 1}')
                k(f'v_cvt_pk_bf16_f32 v{b + 1}, v{b + 2}, v{b + 3}')
                if i < 2:
                    k(f'ds_write_b64 v88, v[{b}:{b + 1}] offset:{128 * i}')
                elif i == 2:
                    k(f'ds_write_b64 v90, v[{b}:{b + 1}] offset:256')
                elif i < 5:
                    k(f'ds_write_b64 v88, v[{b}:{b + 1}] offset:{128 * i + 960}')
                else:
                    k(f'ds_write_b64 v91, v[{b}:{b + 1}]')

    def make_h(self):
        k = self.k
        k('v_lshlrev_b32 v88, 5, v6')
        k(f's_mul_i32 s72, {sW}, 1280')
        k(f's_add_u32 s72, s72, {L_MV}')
        k('v_add_u32 v88, s72, v88')
        k('v_lshl_add_u32 v90, v6, 9, v7')
        k('v_cmp_gt_u32 vcc, 32, v3')
        k('v_cndmask_b32 v91, v2, v90, vcc')
        k(f's_mul_i32 s74, {sCL}, 163840')
        k(f's_lshr_b32 s72, {sJ}, 2')
        k('s_mul_i32 s72, s72, 40960')
        k('s_add_u32 s74, s74, s72')
        k(f's_and_b32 s72, {sJ}, 3')
        k('s_lshl_b32 s72, s72, 7')
        k('s_add_u32 s74, s74, s72')
        k(f's_mul_i32 s72, {sW}, 10240')
        k('s_add_u32 s74, s74, s72')
        k(f's_add_u32 s74, s74, {WS_H}')
        k.wait_lgkm_all()
        for i in range(3):
            for h in range(2):
                k(f'ds_read_b128 v[{96 + 16 * i + 4 * h}:{99 + 16 * i + 4 * h}], v88 offset:{256 * i + 16 * h + 640}')
            for h in range(2):
                k(f'ds_read_b128 v[{104 + 16 * i + 4 * h}:{107 + 16 * i + 4 * h}], v88 offset:{256 * i + 16 * h}')
        for i in range(3):
            xs = [40 + 8 * i + e for e in range(8)]
            for e in range(0, 8, 2):
                k(f'v_pk_mul_f32 v[{xs[e]}:{xs[e] + 1}], v[{xs[e]}:{xs[e] + 1}], v[{96 + 16 * i + e}:{97 + 16 * i + e}]')
            self.bf16_round_keep(xs, 89)
            for e in range(0, 8, 2):
                k(f'v_pk_add_f32 v[{xs[e]}:{xs[e] + 1}], v[{xs[e]}:{xs[e] + 1}], v[{104 + 16 * i + e}:{105 + 16 * i + e}]')
            for e in range(0, 8, 2):
                k(f'v_cvt_pk_bf16_f32 v{24 + 4 * i + e // 2}, v{xs[e]}, v{xs[e] + 1}')
            k(f'buffer_store_dwordx4 v[{24 + 4 * i}:{27 + 4 * i}], {"v90" if i < 2 else "v91"}, {WS}, s74 offen', 'h')
            if i < 2:
                k('s_add_u32 s74, s74, 4096')
        self.publish(PH_H, 'h', True)

    def wait_pall(self):
        k = self.k
        lab, out = k.newlabel('ppoll'), k.newlabel('ppollx')
        k(f's_movk_i32 s72, {WS_PALL}')
        k('s_mov_b32 s73, 0')
        k.fence_hazards()
        k.label(lab)
        k(f'buffer_load_dwordx4 v[64:67], v1, {WS}, s72 offen sc1')
        k('s_add_u32 s73, s73, 1')
        k('s_waitcnt vmcnt(0)')
        k(f'v_xor_b32 v64, {sTAG}, v64')
        k(f'v_xor_b32 v65, {sTAG}, v65')
        k(f'v_xor_b32 v66, {sTAG}, v66')
        k(f'v_xor_b32 v67, {sTAG}, v67')
        k('v_or3_b32 v64, v64, v65, v66')
        k('v_or_b32 v64, v64, v67')
        k('v_cmp_ne_u32 vcc, 0, v64')
        k(f's_cmp_ge_u32 s73, {self.o.spin}')
        k(f's_cbranch_scc1 {out}')
        k('s_cmp_lg_u64 vcc, 0')
        k(f's_cbranch_scc1 {lab}')
        k.label(out)
        k.assume_vm_empty()
        lab = k.newlabel('ep')
        k(f's_or_b32 s72, s2, {sW}')
        k('s_cmp_lg_u32 s72, 0')
        k(f's_cbranch_scc1 {lab}')
        k.cond_begin()
        k('v_mov_b32 v64, s50')
        k(f'buffer_store_dword v64, v4, {WS}, 0 offen sc1')
        k.cond_end()
        k.label(lab)

    def load_frags(self, regs, sbase, voff='v1', tag=None):
        k = self.k
        for i, r in enumerate(regs):
            if i and i % 4 == 0:
                k(f's_add_u32 {sbase}, {sbase}, 4096')
            k(f'buffer_load_dwordx4 {ur(r)}, {voff}, {WS}, {sbase} offen offset:{1024 * (i % 4)} sc1', tag)

    def dma_linear(self, ssrc, ldsbase, n, tag, voff='v1', clamp=None):
        k = self.k
        c = (n + 3) // 4
        k(f's_mul_i32 s72, {sW}, {c}')
        if c * 4 != n:
            k(f's_min_u32 s72, s72, {n - c}')
        k('s_lshl_b32 s72, s72, 10')
        k(f's_add_u32 s78, {ssrc}, s72')
        k(f's_add_u32 s79, s72, {ldsbase}')
        for i in range(c):
            if i % 4 == 0:
                if i:
                    k('s_add_u32 s78, s78, 4096')
                    k('s_add_u32 s79, s79, 4096')
                k('s_mov_b32 m0, s79')
            k(f'buffer_load_dwordx4 {voff}, {WS}, s78 offen offset:{1024 * (i % 4)} sc1 lds', tag)

    def qkv(self):
        k = self.k
        WQ = 96
        k('v_and_b32 v64, 31, v3')
        k(f's_cmp_eq_u32 {sW}, 3')
        k('s_cselect_b32 s72, 23, 31')
        k('v_min_u32 v64, s72, v64')
        k('v_and_b32 v65, 32, v3')
        k('v_add_lshl_u32 v64, v64, v65, 4')
        k(f's_lshl2_add_u32 s74, {sJ}, {sW}')
        k('s_mul_i32 s74, s74, 40960')
        k(f's_add_u32 s74, s74, {WS_WQ}')
        self.load_frags([WQ + 4 * i for i in range(40)], 's74', voff='v64', tag='wq')
        k('v_and_b32 v64, 31, v3')
        k(f'v_mov_b32 v66, {f2u(QSCALE):#x}')
        for a in range(4):
            k(f'v_and_b32 v{24 + a}, 0x3ffff, v{20 + a}')
            k(f'v_bfe_u32 v65, v{20 + a}, 18, 6')
            k(f'v_mad_u32_u24 v{24 + a}, v64, v65, v{24 + a}')
            k(f'v_bfe_u32 v{28 + a}, v{20 + a}, 24, 4')
            k(f'v_lshlrev_b32 v{28 + a}, 9, v{28 + a}')
            k(f'v_cmp_gt_i32 vcc, 0, v{20 + a}')
            k(f'v_cndmask_b32 v{16 + a}, 1.0, v66, vcc')
        k(f'v_add_u32 v8, {L_A}, v1')
        k(f'v_add_u32 v9, {L_B}, v1')
        k('v_lshlrev_b32 v10, 2, v3')
        self.flag_off('s74', PH_H)
        self.poll('v10', 's74', 64, True)
        self.stamp('hflag')
        k.barrier()
        k(f's_mul_i32 s74, {sCL}, 163840')
        k(f's_add_u32 s74, s74, {WS_H}')
        slots = [L_A, L_C, L_B, L_A]
        addr = ['v8', 'v1', 'v9', 'v8']
        for q in range(3):
            self.dma_linear('s74', slots[q], 40, f'h{q}')
            k('s_add_u32 s74, s74, 40960')
        acc = [32, 48]
        FR = 64
        epi = []
        for q in range(4):
            k.wait_vm(f'h{q}')
            k.barrier()
            self.stamp(f'q{q}')
            if q == 1:
                self.dma_linear('s74', slots[3], 40, 'h3')
            k.begin()
            a = acc[q & 1]
            D = 6
            for s in range(D):
                k(f'ds_read_b128 v[{FR + 4 * (s % 8)}:{FR + 4 * (s % 8) + 3}], {addr[q]} offset:{1024 * s}')
            for s in range(40):
                if s + D < 40:
                    t = s + D
                    k(f'ds_read_b128 v[{FR + 4 * (t % 8)}:{FR + 4 * (t % 8) + 3}], {addr[q]} offset:{1024 * t}')
                k(f'v_mfma_f32_32x32x16_bf16 v[{a}:{a + 15}], v[{WQ + 4 * s}:{WQ + 4 * s + 3}], v[{FR + 4 * (s % 8)}:{FR + 4 * (s % 8) + 3}], {"0" if s == 0 else f"v[{a}:{a + 15}]"}')
            main = k.end()
            k.put(interleave(main, epi, start=2, every=1, per=2))
            k.begin()
            for aa in range(4):
                for b in range(4):
                    r = a + 4 * aa + b
                    k(f'v_mul_f32 v{r}, v{16 + aa}, v{r}')
                k(f'v_cvt_pk_bf16_f32 v{a + 4 * aa}, v{a + 4 * aa}, v{a + 4 * aa + 1}')
                k(f'v_cvt_pk_bf16_f32 v{a + 4 * aa + 1}, v{a + 4 * aa + 2}, v{a + 4 * aa + 3}')
                k(f'ds_write_b64 v{24 + aa}, v[{a + 4 * aa}:{a + 4 * aa + 1}]')
                if q < 3:
                    k(f'v_add_u32 v{24 + aa}, v{24 + aa}, v{28 + aa}')
            epi = k.end()
        k.put(epi)
        k.barrier()
        self.stamp('qkv')
        k(f's_mul_i32 s72, {sW}, 6')
        k('s_min_u32 s72, s72, 16')
        k('s_lshl_b32 s72, s72, 10')
        k('v_add_u32 v8, s72, v1')
        k(f's_lshl4_add_u32 s74, {sCL}, {sJ}')
        k(f's_mul_i32 s74, s74, {4 * KVB}')
        k(f's_add_u32 s74, s74, {WS_KV}')
        k('s_add_u32 s75, s74, s72')
        for t in range(6):
            k(f'ds_read_b128 v[{64 + 4 * t}:{67 + 4 * t}], v8 offset:{L_KVOWN + 1024 * t}')
        for t in range(6):
            if t == 4:
                k('s_add_u32 s75, s75, 4096')
            k(f'buffer_store_dwordx4 v[{64 + 4 * t}:{67 + 4 * t}], v1, {WS}, s75 offen offset:{1024 * (t % 4)} sc1', 'kv')
        self.publish(PH_KV, 'kv', False)
        self.stamp('kvpub')

    def halo(self):
        k = self.k
        k(f's_max_u32 s75, {sCL}, 2')
        k('s_sub_u32 s75, s75, 2')
        k(f's_cmp_ge_u32 {sCL}, 1')
        k('s_cselect_b32 s76, 1, 0')
        k(f's_sub_u32 s76, {sCL}, s76')
        k('s_sub_u32 s76, s76, s75')
        k('s_lshl_b32 s76, s76, 8')
        k('v_and_b32 v64, 3, v3')
        k(f'v_lshl_add_u32 v64, {sJ}, 2, v64')
        k('v_lshlrev_b32 v64, 2, v64')
        k('v_bfe_u32 v65, v3, 2, 1')
        k('v_mad_u32_u24 v64, v65, s76, v64')
        self.flag_off('s77', PH_KV, 's75')
        self.poll('v64', 's77', 65, False)
        self.stamp('kvflag')
        for d in (2, 1):
            k(f's_cmp_ge_u32 {sCL}, {d}')
            k(f's_cselect_b32 s72, 0, {OOB}')
            k(f's_cselect_b32 s75, {d * 16 * 4 * KVB}, 0')
            k('v_add_u32 v64, s72, v1')
            k('s_sub_u32 s75, s74, s75')
            self.dma_linear('s75', L_C + (2 - d) * 4 * KVB, 22, 'halo', voff='v64')

    def attn_setup(self):
        k = self.k
        k('v_and_b32 v64, 31, v3')
        k('v_lshrrev_b32 v65, 5, v3')
        k('v_lshlrev_b32 v66, 2, v65')
        k('v_sub_u32 v66, v64, v66')
        k(f'v_mov_b32 v67, {f2u(NEG):#x}')
        for i in range(16):
            kj = 8 * (i >> 2) + (i & 3)
            k(f'v_cmp_le_i32 vcc, {kj}, v66')
            k(f'v_cndmask_b32 v{32 + i}, v67, 0, vcc')
            k(f'v_cndmask_b32 v{48 + i}, 0, v67, vcc')
        k('v_lshlrev_b32 v17, 3, v64')
        k('v_add_u32 v17, 2048, v17')
        k('v_mul_u32_u24 v68, 48, v64')
        k('v_add_u32 v68, 2600, v68')
        k('v_cmp_gt_u32 vcc, 32, v3')
        k('v_cndmask_b32 v17, v68, v17, vcc')
        k('v_mov_b32 v19, 1536')
        k('v_mov_b32 v68, 256')
        k('v_cndmask_b32 v19, v19, v68, vcc')
        k('v_bfe_u32 v68, v3, 2, 2')
        k('v_lshl_add_u32 v68, v65, 2, v68')
        k('v_mul_u32_u24 v18, 48, v68')
        k('v_and_b32 v68, 3, v3')
        k('v_min_u32 v69, 1, v68')
        k('v_add_u32 v69, 4, v69')
        k('v_and_b32 v70, 16, v3')
        k('v_cmp_eq_u32 vcc, 0, v70')
        k('v_cndmask_b32 v68, v69, v68, vcc')
        k('v_lshl_add_u32 v18, v68, 3, v18')
        k('v_add_u32 v18, 2560, v18')
        k('v_bfe_u32 v68, v3, 4, 1')
        k('v_mul_u32_u24 v68, 20480, v68')
        k('v_and_b32 v69, 15, v3')
        k('v_lshl_add_u32 v68, v69, 4, v68')
        k('v_lshl_add_u32 v20, v65, 8, v68')
        k('v_cmp_gt_u32 vcc, 32, v3')
        k('v_cndmask_b32 v21, v2, v68, vcc')
        k(f's_mul_i32 s80, {sCL}, 163840')
        k(f's_mul_i32 s72, {sW}, 40960')
        k('s_add_u32 s80, s80, s72')
        k(f's_mul_i32 s72, {sJ}, 1280')
        k('s_add_u32 s80, s80, s72')
        k(f's_add_u32 s80, s80, {WS_O}')
        k(f's_lshl2_add_u32 s81, {sCL}, {sW}')
        k('s_min_u32 s82, s81, 7')

    def score(self, C):
        k = self.k
        k('ds_read_b128 v[72:75], v24')
        k('ds_read_b64 v[76:77], v25')
        k(f'v_mfma_f32_32x32x16_bf16 v[96:111], v[72:75], v[64:67], {C}')
        k('v_mfma_f32_32x32x8_bf16 v[96:111], v[76:77], v[68:69], v[96:111]')

    def attn_pass(self, body):
        k = self.k
        k(f's_add_u32 s72, {sW}, 8')
        k(f's_mul_i32 s72, s72, {KVB}')
        k('v_add_u32 v24, s72, v28')
        k('v_add_u32 v25, s72, v29')
        k('v_add_u32 v26, s72, v30')

        def step():
            for r in (24, 25, 26):
                k(f'v_add_u32 v{r}, {-KVB & 0xffffffff:#x}, v{r}')
        body('v[32:47]')
        step()
        lab, out, done = k.newlabel('al'), k.newlabel('alx'), k.newlabel('ald')
        k('s_mov_b32 s83, s82')
        k('s_cmp_eq_u32 s83, 0')
        k.wait_lgkm_all()
        k.fence_hazards()
        k(f's_cbranch_scc1 {out}')
        k.label(lab)
        body('0')
        step()
        k('s_sub_u32 s83, s83, 1')
        k('s_cmp_lg_u32 s83, 0')
        k.wait_lgkm_all()
        k.fence_hazards()
        k(f's_cbranch_scc1 {lab}')
        k.label(out)
        k('s_cmp_lt_u32 s81, 8')
        k(f's_cbranch_scc1 {done}')
        body('v[48:63]')
        k.wait_lgkm_all()
        k.fence_hazards()
        k.label(done)

    def attn_unit(self, head):
        k = self.k
        k(f'v_add_u32 v28, {1024 * head}, v1')
        if head:
            k('v_add_u32 v29, v17, v19')
        else:
            k('v_mov_b32 v29, v17')
        k(f'v_add_u32 v30, {1536 * head}, v18')
        k(f's_mul_i32 s72, {sW}, 2560')
        k(f's_add_u32 s72, s72, {L_Q}')
        k('v_add_u32 v70, s72, v28')
        k('ds_read_b128 v[64:67], v70')
        k('v_and_b32 v70, 31, v3')
        k('v_lshlrev_b32 v70, 3, v70')
        k('v_add_u32 v70, s72, v70')
        k(f'ds_read_b64 v[68:69], v70 offset:{2048 + 256 * head}')
        k('v_cmp_gt_u32 s[48:49], 32, v3')
        k('v_cndmask_b32 v68, 0, v68, s[48:49]')
        k('v_cndmask_b32 v69, 0, v69, s[48:49]')
        k(f'v_mov_b32 v71, {f2u(-3.0e38):#x}')

        def p1(C):
            self.score(C)
            for i in range(0, 16, 2):
                k(f'v_max3_f32 v71, v71, v{96 + i}, v{97 + i}')
        self.attn_pass(p1)
        k('v_mov_b32 v70, v71')
        k('v_permlane32_swap_b32 v71, v70')
        k('v_max_f32 v71, v71, v70')
        k('v_cvt_pk_bf16_f32 v70, -v71, 0')
        k('v_cndmask_b32 v68, v70, v68, s[48:49]')
        for i in range(16):
            k(f'v_mov_b32 v{112 + i}, 0')

        def p2(C):
            self.score(C)
            for t in range(4):
                k(f'ds_read_b64_tr_b16 v[{80 + 2 * t}:{81 + 2 * t}], v26 offset:{384 * t}')
            for i in range(16):
                k(f'v_exp_f32 v{96 + i}, v{96 + i}')
            for i in range(8):
                k(f'v_cvt_pk_bf16_f32 v{88 + i}, v{96 + 2 * i}, v{97 + 2 * i}')
            k('v_mfma_f32_32x32x16_bf16 v[112:127], v[80:83], v[88:91], v[112:127]')
            k('v_mfma_f32_32x32x16_bf16 v[112:127], v[84:87], v[92:95], v[112:127]')
        self.attn_pass(p2)
        k('v_rcp_f32 v70, v124')
        for i in range(12):
            k(f'v_mul_f32 v{112 + i}, v{112 + i}, v70')
        for i in range(4):
            k(f'v_cvt_pk_bf16_f32 v{88 + i}, v{112 + 2 * i}, v{113 + 2 * i}')
        for i in range(2):
            k(f'v_cvt_pk_bf16_f32 v{12 + 2 * head + i}, v{120 + 2 * i}, v{121 + 2 * i}')
        k(f'buffer_store_dwordx4 v[88:91], v20, {WS}, s80 offen offset:{512 * head}', 'o')
        if head:
            k(f'buffer_store_dwordx4 v[12:15], v21, {WS}, s80 offen offset:1024', 'o')

    def ksplit(self, NS, wregs, bring, sbase, tstride, acc, red, pre_items=None):
        k = self.k
        nb = len(bring)

        def issue(t):
            k(f's_add_u32 s72, {sW}, {t + 1}')
            k('s_and_b32 s72, s72, 3')
            k(f's_mul_i32 s75, s72, {2 * tstride}')
            k(f's_add_u32 s75, s75, {sbase}')
            self.load_frags(bring[t % nb], 's75')
        for t in range(min(nb, 4)):
            issue(t)
        k(f's_mul_i32 s76, {sW}, 15360')
        k('v_add_u32 v9, s76, v1')
        pend = []
        for t in range(4):
            a = acc[t & 1]
            k.begin()
            for s in range(NS):
                for ft in range(5):
                    d = a + 4 * ft
                    k(f'v_mfma_f32_16x16x32_bf16 v[{d}:{d + 3}], {ur(wregs[s * 5 + ft])}, {ur(bring[t % nb][s])}, {"0" if s == 0 else f"v[{d}:{d + 3}]"}')
            main = k.end()
            k.put(interleave(main, pend, start=6, every=2, per=1))
            self.stamp(f'ks{t}')
            k.begin()
            if t + nb < 4:
                issue(t + nb)
            if t < 3:
                k(f's_add_u32 s72, {sW}, {t + 1}')
                k('s_and_b32 s72, s72, 3')
                k('s_mul_i32 s72, s72, 15360')
                k(f'v_add_u32 v8, s72, v1')
                for ft in range(5):
                    k(f'ds_write_b128 v8, v[{a + 4 * ft}:{a + 4 * ft + 3}] offset:{L_RED + t * 5120 + ft * 1024}')
            pend = k.end()
        k.barrier()
        a = acc[1]
        for t in range(3):
            for ft in range(5):
                r = red + 20 * t + 4 * ft
                k(f'ds_read_b128 v[{r}:{r + 3}], v9 offset:{L_RED + t * 5120 + ft * 1024}')
        for t in range(3):
            for i in range(0, 20, 2):
                k(f'v_pk_add_f32 v[{a + i}:{a + i + 1}], v[{a + i}:{a + i + 1}], v[{red + 20 * t + i}:{red + 20 * t + i + 1}]')

    def unpack10(self, src, dst):
        k = self.k
        for i in range(10):
            k(f'v_lshlrev_b32 v{dst + 2 * i}, 16, v{src + i}')
            k(f'v_and_b32 v{dst + 2 * i + 1}, 0xffff0000, v{src + i}')

    def lds_cols(self, base, dst, vA, vB):
        k = self.k
        k(f'ds_read_b128 v[{dst}:{dst + 3}], {vA} offset:{base}')
        k(f'ds_read_b128 v[{dst + 4}:{dst + 7}], {vA} offset:{base + 64}')
        k(f'ds_read_b64 v[{dst + 8}:{dst + 9}], {vB} offset:{base + 128}')

    WO_W = [156 + 4 * i for i in range(25)]
    X1 = 22

    def load_wo_wgu(self):
        k = self.k
        k(f's_mul_i32 s75, {sJC}, {20 * 5120}')
        k(f's_mul_i32 s72, {sW}, {25 * 1024}')
        k('s_add_u32 s75, s75, s72')
        k(f's_add_u32 s75, s75, {WS_WO}')
        self.load_frags(self.WO_W, 's75', tag='wo')
        k(f's_lshl2_add_u32 s75, {sJ}, {sW}')
        k('s_mul_i32 s75, s75, 61440')
        k(f's_add_u32 s75, s75, {WS_WGU}')
        self.load_frags([256 + 4 * i for i in range(60)], 's75', tag='wgu')

    CSB = 128

    def csbias(self):
        k = self.k
        k('v_and_b32 v64, 1, v3')
        k('v_mul_u32_u24 v64, 1280, v64')
        k('v_lshrrev_b32 v65, 4, v3')
        k('v_lshlrev_b32 v65, 4, v65')
        k(f'v_add_u32 v65, {P_G2}, v65')
        k('v_sub_u32 v64, v65, v64')
        for s in range(20):
            b = 68 + 4 * (s % 8)
            if s == 0:
                for t in range(6):
                    k(f'ds_read_b128 v[{68 + 4 * t}:{71 + 4 * t}], v64 offset:{64 * t}')
            if s + 6 < 20:
                t = s + 6
                k(f'ds_read_b128 v[{68 + 4 * (t % 8)}:{71 + 4 * (t % 8)}], v64 offset:{64 * t}')
            for ft in range(3):
                d = 104 + 4 * ft
                k(f'v_mfma_f32_16x16x32_bf16 v[{d}:{d + 3}], {ur(256 + 12 * s + 4 * ft)}, v[{b}:{b + 3}], {"0" if s == 0 else f"v[{d}:{d + 3}]"}')
        for i in range(12):
            k(f'v_mov_b32_dpp v{self.CSB + i}, v{104 + i} quad_perm:[0,0,2,2] row_mask:0xf bank_mask:0xf')
            k(f'v_mov_b32_dpp v{self.CSB + 12 + i}, v{104 + i} quad_perm:[1,1,3,3] row_mask:0xf bank_mask:0xf')

    def rowmajor_offsets(self):
        k = self.k
        k('v_and_b32 v16, 15, v3')
        k('v_mul_u32_u24 v16, 1280, v16')
        k('v_lshrrev_b32 v19, 4, v3')
        k('v_lshlrev_b32 v18, 4, v19')
        k('v_lshlrev_b32 v19, 3, v19')
        k('v_add_u32 v17, v16, v19')
        k('v_add_u32 v16, v16, v18')
        k(f'v_add_u32 v18, {L_P}, v18')
        k(f'v_add_u32 v19, {L_P}, v19')
        k(f's_lshl2_add_u32 s80, {sCL}, {sW}')
        k(f's_lshl1_add_u32 s81, s80, {sTH}')
        k('s_mul_i32 s80, s81, 20480')
        k(f's_mul_i32 s72, {sJC}, 160')
        k('s_add_u32 s80, s80, s72')

    def wo(self):
        k = self.k
        X1 = self.X1
        self.rowmajor_offsets()
        k(f'buffer_load_dwordx4 v[{X1}:{X1 + 3}], v16, {XS}, s80 offen')
        k(f'buffer_load_dwordx4 v[{X1 + 4}:{X1 + 7}], v16, {XS}, s80 offen offset:64')
        k(f'buffer_load_dwordx2 v[{X1 + 8}:{X1 + 9}], v17, {XS}, s80 offen offset:128')
        self.csbias()
        self.stamp('csb')
        self.flag_off('s74', PH_O)
        self.poll('v10', 's74', 64, True)
        self.stamp('oflag')
        k.barrier()
        k(f's_mul_i32 s74, {sCL}, 163840')
        k(f's_mul_i32 s72, {sTH}, 20480')
        k('s_add_u32 s74, s74, s72')
        k(f's_mul_i32 s72, {sW}, 5120')
        k('s_add_u32 s74, s74, s72')
        k(f's_add_u32 s74, s74, {WS_O}')
        quads = [72 + 4 * i for i in range(14)] + [496, 500, 504, 508, 152, 12]
        bring = [quads[5 * t:5 * t + 5] for t in range(4)]
        self.ksplit(5, self.WO_W, bring, 's74', 20480, [32, 52], 156)
        a = 52
        k(f's_mul_i32 s72, {sJC}, 160')
        k('v_add_u32 v20, s72, v18')
        k('v_add_u32 v21, s72, v19')
        self.lds_cols(P_GA - L_P, 72, 'v18', 'v19')
        self.lds_cols(P_G2 - L_P, 84, 'v20', 'v21')
        self.unpack10(X1, 160)
        self.unpack10(72, 180)
        for i in range(0, 20, 2):
            k(f'v_pk_fma_f32 v[{a + i}:{a + i + 1}], v[{a + i}:{a + i + 1}], v[{180 + i}:{181 + i}], v[{160 + i}:{161 + i}]')
        for i in range(10):
            k(f'v_cvt_pk_bf16_f32 v{X1 + i}, v{a + 2 * i}, v{a + 2 * i + 1}')
        self.unpack10(X1, 160)
        self.unpack10(84, 180)
        for i in range(0, 20, 2):
            k(f'v_pk_mul_f32 v[{180 + i}:{181 + i}], v[{180 + i}:{181 + i}], v[{160 + i}:{161 + i}]')
        for i in range(10):
            k(f'v_cvt_pk_bf16_f32 v{72 + i}, v{180 + 2 * i}, v{181 + 2 * i}')
        k('s_mul_i32 s74, s81, 20480')
        k(f's_mul_i32 s72, {sJC}, 2560')
        k('s_add_u32 s74, s74, s72')
        k(f's_add_u32 s74, s74, {WS_Z}')
        k('v_and_b32 v20, 15, v3')
        k('v_lshlrev_b32 v20, 4, v20')
        k('v_bfe_u32 v21, v3, 4, 1')
        k('v_lshl_add_u32 v21, v21, 3, v20')
        k('v_lshrrev_b32 v64, 5, v3')
        k('v_lshl_add_u32 v21, v64, 8, v21')
        k(f'buffer_store_dwordx4 v[72:75], v1, {WS}, s74 offen', 'z')
        k(f'buffer_store_dwordx4 v[76:79], v1, {WS}, s74 offen offset:1024', 'z')
        k(f'buffer_store_dwordx2 v[80:81], v21, {WS}, s74 offen offset:2048', 'z')
        k('v_pk_add_f32 v[64:65], v[160:161], v[162:163]')
        k('v_pk_mul_f32 v[66:67], v[160:161], v[160:161]')
        k('v_pk_fma_f32 v[66:67], v[162:163], v[162:163], v[66:67]')
        for i in range(4, 20, 2):
            k(f'v_pk_add_f32 v[64:65], v[64:65], v[{160 + i}:{161 + i}]')
            k(f'v_pk_fma_f32 v[66:67], v[{160 + i}:{161 + i}], v[{160 + i}:{161 + i}], v[66:67]')
        k('v_add_f32 v64, v64, v65')
        k('v_add_f32 v65, v66, v67')
        self.rowsum(64, 66)
        self.rowsum(65, 67)
        k('v_cmp_gt_u32 vcc, 16, v3')
        k('v_cndmask_b32 v20, v2, v20, vcc')
        k('s_lshl_b32 s74, s81, 10')
        k(f's_lshr_b32 s72, {sJC}, 1')
        k('s_lshl_b32 s72, s72, 8')
        k('s_add_u32 s74, s74, s72')
        k(f's_and_b32 s72, {sJC}, 1')
        k('s_lshl3_add_u32 s74, s72, s74')
        k(f's_add_u32 s74, s74, {WS_ST}')
        k(f'buffer_store_dwordx2 v[64:65], v20, {WS}, s74 offen', 'z')
        self.publish(PH_Z, 'z', True)
        self.stamp('wo')

    WD_EARLY = [152 + 4 * i for i in range(26)] + [496, 500, 504, 508]
    WD_LATE = [256 + 4 * i for i in range(30)]
    HH_B = [[256 + 120 + 4 * i for i in range(12)], [256 + 168 + 4 * i for i in range(12)]]

    def gu(self):
        k = self.k
        CS_, BI = self.CSB, self.CSB + 12
        slots = [L_A, L_B, 0, L_A]
        self.flag_off('s74', PH_Z)
        self.poll('v10', 's74', 64, True)
        self.stamp('zflag')
        k.barrier()
        k(f's_mul_i32 s74, {sCL}, 163840')
        k(f's_add_u32 s74, s74, {WS_Z}')
        self.dma_linear('s74', slots[0], 40, 'z0')
        k('s_add_u32 s74, s74, 40960')
        k(f's_lshl_b32 s76, {sCL}, 13')
        k(f's_add_u32 s76, s76, {WS_ST}')
        self.load_frags([96 + 4 * i for i in range(8)], 's76')
        for q in (1, 2):
            self.dma_linear('s74', slots[q], 40, f'z{q}')
            k('s_add_u32 s74, s74, 40960')
        k(f'v_add_u32 v8, {L_A}, v1')
        k(f'v_add_u32 v9, {L_B}, v1')
        addr = ['v8', 'v9', 'v1', 'v8']
        k('v_and_b32 v20, 15, v3')
        k('v_lshlrev_b32 v20, 4, v20')
        k('v_lshrrev_b32 v12, 5, v3')
        k('v_bfe_u32 v13, v3, 4, 1')
        k('s_mov_b32 s72, 49152')
        k('v_mad_u32_u24 v21, v13, s72, v20')
        k('v_lshl_add_u32 v21, v12, 3, v21')
        k('v_mad_u32_u24 v20, v12, s72, v20')
        k('v_lshl_add_u32 v20, v13, 8, v20')
        k(f's_mul_i32 s82, {sCL}, 393216')
        k(f's_lshl2_add_u32 s72, {sJ}, {sW}')
        k('s_mul_i32 s72, s72, 768')
        k('s_add_u32 s82, s82, s72')
        k(f's_add_u32 s82, s82, {WS_HH}')
        k(f's_mul_i32 s83, {sJC}, {48 * 5120}')
        k(f's_mul_i32 s72, {sW}, 61440')
        k('s_add_u32 s83, s83, s72')
        k(f's_add_u32 s83, s83, {WS_WD}')
        k(f's_mov_b32 s48, {f2u(-2.0 * 0.7978845608028654 * 1.4426950408889634 * 0.044715):#x}')
        k(f's_mov_b32 s49, s48')
        k(f'v_mov_b32 v14, {f2u(-2.0 * 0.7978845608028654 * 1.4426950408889634):#x}')
        k(f'v_mov_b32 v15, 1.0')
        k.begin()
        for T in range(8):
            b = 96 + 4 * T
            k(f'v_pk_add_f32 v[{b}:{b + 1}], v[{b}:{b + 1}], v[{b + 2}:{b + 3}]')
            self.rowsum(b, b + 2)
            self.rowsum(b + 1, b + 3)
            k(f'v_mul_f32 v{b + 2}, {f2u(1 / 640):#x}, v{b}')
            k(f'v_mul_f32 v{b + 1}, {f2u(1 / 640):#x}, v{b + 1}')
            k(f'v_fma_f32 v{b + 1}, -v{b + 2}, v{b + 2}, v{b + 1}')
            k(f'v_max_f32 v{b + 1}, 0, v{b + 1}')
            k(f'v_add_f32 v{b + 1}, {f2u(1e-5):#x}, v{b + 1}')
            k(f'v_rsq_f32 v{b}, v{b + 1}')
            k(f'v_mul_f32 v{b + 1}, -v{b + 2}, v{b}')
        epi = k.end()
        acc = [32, 56]
        FR = 80
        wdl = list(self.WD_EARLY) + list(self.WD_LATE)

        def wd_load(i):
            if i and i % 4 == 0:
                k('s_add_u32 s83, s83, 4096')
            k(f'buffer_load_dwordx4 {ur(wdl[i])}, v1, {WS}, s83 offen offset:{1024 * (i % 4)} sc1', 'wd')
        for q in range(4):
            k.wait_vm(f'z{q}')
            k.barrier()
            self.stamp(f'g{q}')
            if q == 1:
                self.dma_linear('s74', slots[3], 40, 'z3')
            a = acc[q & 1]
            k.begin()
            seq = [(s, tt) for s in range(20) for tt in range(2)]

            def rd(i):
                s, tt = seq[i]
                k(f'ds_read_b128 v[{FR + 4 * (i % 4)}:{FR + 4 * (i % 4) + 3}], {addr[q]} offset:{20480 * tt + 1024 * s}')
            for i in range(3):
                rd(i)
            for i, (s, tt) in enumerate(seq):
                for ft in range(3):
                    d = a + 12 * tt + 4 * ft
                    k(f'v_mfma_f32_16x16x32_bf16 v[{d}:{d + 3}], {ur(256 + 12 * s + 4 * ft)}, v[{FR + 4 * (i % 4)}:{FR + 4 * (i % 4) + 3}], {"0" if s == 0 else f"v[{d}:{d + 3}]"}')
                    if ft == 0 and i + 3 < 40:
                        rd(i + 3)
                if tt == 1:
                    if q in (1, 2) and s < 15:
                        wd_load(15 * (q - 1) + s)
                    if q == 3 and 1 <= s <= 10:
                        for e in range(3):
                            wd_load(30 + 3 * (s - 1) + e)
            main = k.end()
            k.put(interleave(main, epi, start=3, every=1, per=1 if q else 2))
            k.begin()
            for tt in range(2):
                st = 96 + 4 * (2 * q + tt)
                tmp = st + 2
                for ft in range(3):
                    d = a + 12 * tt + 4 * ft
                    for hf in range(2):
                        c, bi, dd = CS_ + 4 * ft + 2 * hf, BI + 4 * ft + 2 * hf, d + 2 * hf
                        k(f'v_pk_fma_f32 v[{tmp}:{tmp + 1}], v[{c}:{c + 1}], v[{st}:{st + 1}], v[{bi}:{bi + 1}] op_sel:[0,1,0]')
                        k(f'v_pk_fma_f32 v[{dd}:{dd + 1}], v[{dd}:{dd + 1}], v[{st}:{st + 1}], v[{tmp}:{tmp + 1}] op_sel_hi:[1,0,1]')
                    k(f'v_pk_mul_f32 v[{tmp}:{tmp + 1}], v[{d}:{d + 1}], v[{d}:{d + 1}]')
                    k(f'v_pk_fma_f32 v[{tmp}:{tmp + 1}], v[{tmp}:{tmp + 1}], s[48:49], v[14:15] op_sel_hi:[1,1,0]')
                    k(f'v_pk_mul_f32 v[{tmp}:{tmp + 1}], v[{tmp}:{tmp + 1}], v[{d}:{d + 1}]')
                    k(f'v_pk_mul_f32 v[{d}:{d + 1}], v[{d}:{d + 1}], v[{d + 2}:{d + 3}]')
                    k(f'v_exp_f32 v{tmp}, v{tmp}')
                    k(f'v_exp_f32 v{tmp + 1}, v{tmp + 1}')
                    k(f'v_pk_add_f32 v[{tmp}:{tmp + 1}], v[{tmp}:{tmp + 1}], v[14:15] op_sel:[0,1]')
                    k(f'v_rcp_f32 v{tmp}, v{tmp}')
                    k(f'v_rcp_f32 v{tmp + 1}, v{tmp + 1}')
                    k(f'v_pk_mul_f32 v[{d}:{d + 1}], v[{d}:{d + 1}], v[{tmp}:{tmp + 1}]')
                    dst = (16 + 2 * tt + ft) if ft < 2 else (6 + tt)
                    k(f'v_cvt_pk_bf16_f32 v{dst}, v{d}, v{d + 1}')
            k('v_permlane32_swap_b32 v16, v18')
            k('v_permlane32_swap_b32 v17, v19')
            k('v_permlane16_swap_b32 v6, v7')
            k('v_permlane16_swap_b32 v16, v17')
            k('v_permlane16_swap_b32 v18, v19')
            k(f'buffer_store_dwordx2 v[6:7], v21, {WS}, s82 offen offset:512', 'hh')
            k(f'buffer_store_dwordx4 v[16:19], v20, {WS}, s82 offen', 'hh')
            if q < 3:
                k('s_add_u32 s82, s82, 98304')
            epi = k.end()
        self.stamp('g4')
        k.put(epi)
        self.stamp('g5')
        self.publish(PH_HH, 'hh', True)
        self.stamp('gu')

    def down(self):
        k = self.k
        X1 = self.X1
        self.rowmajor_offsets()
        self.flag_off('s74', PH_HH)
        self.poll('v10', 's74', 64, True)
        self.stamp('hhflag')
        k.barrier()
        k(f's_mul_i32 s74, {sCL}, 393216')
        k(f's_mul_i32 s72, {sTH}, 49152')
        k('s_add_u32 s74, s74, s72')
        k(f's_mul_i32 s72, {sW}, 12288')
        k('s_add_u32 s74, s74, s72')
        k(f's_add_u32 s74, s74, {WS_HH}')
        bring = self.HH_B + [[72 + 4 * i for i in range(12)]]
        self.ksplit(12, list(self.WD_EARLY) + list(self.WD_LATE), bring, 's74', 49152, [32, 52], 156)
        a = 52
        self.lds_cols(P_GB - L_P, 72, 'v18', 'v19')
        self.unpack10(X1, 160)
        self.unpack10(72, 180)
        for i in range(0, 20, 2):
            k(f'v_pk_fma_f32 v[{a + i}:{a + i + 1}], v[{a + i}:{a + i + 1}], v[{180 + i}:{181 + i}], v[{160 + i}:{161 + i}]')
        for i in range(10):
            k(f'v_cvt_pk_bf16_f32 v{72 + i}, v{a + 2 * i}, v{a + 2 * i + 1}')
        k(f'buffer_store_dwordx4 v[72:75], v16, {OUTS}, s80 offen')
        k(f'buffer_store_dwordx4 v[76:79], v16, {OUTS}, s80 offen offset:64')
        k(f'buffer_store_dwordx2 v[80:81], v17, {OUTS}, s80 offen offset:128')

    def finish(self):
        k = self.k
        if self.o.stamps:
            k.wait_vm_all()
            self.stamp('end')
            k.wait_lgkm_all()
            k('s_memtime s[98:99]')
            k('v_writelane_b32 v11, s98, 62')
            k(f'v_writelane_b32 v11, {sFAST}, 63')
            k(f's_lshl2_add_u32 s72, s2, {sW}')
            k('s_lshl_b32 s72, s72, 8')
            k(f's_add_u32 s72, s72, {WS_DBG}')
            k('v_lshlrev_b32 v64, 2, v3')
            k(f'buffer_store_dword v11, v64, {WS}, s72 offen')
            if self.o.dbg:
                sel = [self.stampnames.index(n) + 1 for n in self.o.dbg.split(',')]
                k(f's_lshl2_add_u32 s72, s2, {sW}')
                k(f's_cmp_lg_u32 s72, {self.o.dbgwave}')
                k('s_cbranch_scc1 .Lend')
                k('s_mov_b64 s[28:29], s[68:69]')
                k('s_mov_b32 s30, 256')
                k('v_readlane_b32 s72, v11, 0')
                k('v_mov_b32 v64, 0')
                for i, n in enumerate(sel):
                    k(f'v_readlane_b32 s73, v11, {n}')
                    k('s_sub_u32 s73, s73, s72')
                    k('v_mov_b32 v65, s73')
                    k(f'buffer_store_dword v65, v64, {CS}, 0 offen offset:{4 * i}')
        k.label('.Lend')
        k('s_endpgm')

    def qkv_table(self):
        words = []
        for w in range(4):
            for h in range(2):
                for a in range(4):
                    Qi = 8 * w + 2 * a + h
                    X, q10 = divmod(Qi, 10)
                    head, d4 = divmod(q10, 5)
                    if X == 3:
                        base, mult, stride, isq = P_DUMMY, 0, 0, 0
                    elif X == 2:
                        base, mult, stride, isq = L_KVOWN + 2560 + head * 1536 + d4 * 8, 48, 11, 0
                    else:
                        org = L_Q if X == 0 else L_KVOWN
                        if d4 < 4:
                            base, mult = org + head * 1024 + (d4 >> 1) * 512 + (d4 & 1) * 8, 16
                        else:
                            base, mult = org + 2048 + head * 256, 8
                        stride, isq = (5, 1) if X == 0 else (11, 0)
                    words.append(base | mult << 18 | stride << 24 | isq << 31)
        return words

    def build(self):
        o = self.o
        steps = [
            ('pre', self.startup),
            ('h', lambda: (self.mod_pass(False), self.stamp('modin'), self.make_h(), self.stamp('hpub'), self.mod_pass(True), self.stamp('mod2'), self.wait_pall(), self.stamp('pall'))),
            ('qkv', self.qkv),
            ('attn', lambda: (self.halo(), self.load_wo_wgu(), self.stamp('wiss'), self.attn_setup(), self.k.wait_vm('halo'), self.k.barrier(), self.stamp('halo'),
                              self.attn_unit(0), self.stamp('u0'), self.attn_unit(1), self.stamp('u1'), self.publish(PH_O, 'o', True), self.stamp('attn'))),
            ('wo', self.wo),
            ('gu', self.gu),
            ('down', self.down),
        ]
        for name, fn in steps:
            self.k.comment(f'==================== {name}')
            fn()
            if o.stop == name:
                break
        self.finish()
        body = self.k.finalize()
        hdr = open('cdna_kernels/' + NAME + '.s.ref').read().split('\n')
        top = [l for l in hdr if l.startswith(';') and '@launch' not in l]
        tab = '\n'.join(f'    .long {w:#010x}' for w in self.qkv_table())
        txt = '\n'.join(top) + f'''
; @launch grid=(256,1,1) block=(256,1,1) lds={LDS_BYTES}
.amdgcn_target "amdgcn-amd-amdhsa--gfx950"
.text
.globl {NAME}_kernel
.p2align 8
.type {NAME}_kernel,@function
{NAME}_kernel:
{body}
.p2align 4
.type .Ltab_qkv,@object
.Ltab_qkv:
{tab}
.Lcode_end:
.section .rodata,"a"
.p2align 6
.amdhsa_kernel {NAME}_kernel
  .amdhsa_next_free_vgpr 512
  .amdhsa_next_free_sgpr 102
  .amdhsa_accum_offset 256
  .amdhsa_group_segment_fixed_size 0
  .amdhsa_kernarg_size 96
  .amdhsa_user_sgpr_count 2
  .amdhsa_user_sgpr_kernarg_segment_ptr 1
  .amdhsa_system_sgpr_workgroup_id_x 1
.end_amdhsa_kernel
'''
        return txt


if __name__ == '__main__':
    ap = argparse.ArgumentParser()
    ap.add_argument('-o', default='cdna_kernels/' + NAME + '.s')
    ap.add_argument('--stop', default=None)
    ap.add_argument('--stamps', action='store_true')
    ap.add_argument('--force-slow', dest='force_slow', action='store_true')
    ap.add_argument('--dbg', default=None)
    ap.add_argument('--dbgwave', type=int, default=401)
    ap.add_argument('--spin', type=int, default=20000)
    opt = ap.parse_args()
    g = Gen(opt)
    txt = g.build()
    open(opt.o, 'w').write(txt)
    if opt.stamps:
        open(opt.o + '.stamps', 'w').write(' '.join(g.stampnames))
    print('written', opt.o, 'lines', txt.count('\n'), g.k.stats, g.stampnames)
```

```python
import re

A0 = 256
S0 = 1000
VCC = (1106, 1107)
EXEC = (1126, 1127)
M0 = 1124

TRANS = ('v_exp_f32', 'v_log_f32', 'v_rcp_f32', 'v_rsq_f32', 'v_sqrt_f32', 'v_sin_f32', 'v_cos_f32', 'v_rcp_iflag_f32')
RMW_VALU = ('v_fmac_f32', 'v_dot2c_f32_bf16', 'v_pk_fmac_f16', 'v_writelane_b32')

_reg_re = re.compile(r'^(-|\|)?(?:abs\()?([vas])(?:(\d+)|\[(\d+):(\d+)\])\)?\|?$')


def regs_of(op):
    op = op.strip()
    if op == 'vcc':
        return set(VCC)
    if op == 'vcc_lo':
        return {VCC[0]}
    if op == 'vcc_hi':
        return {VCC[1]}
    if op == 'exec':
        return set(EXEC)
    if op == 'exec_lo':
        return {EXEC[0]}
    if op == 'exec_hi':
        return {EXEC[1]}
    if op == 'm0':
        return {M0}
    m = _reg_re.match(op)
    if not m:
        return set()
    base = {'v': 0, 'a': A0, 's': S0}[m.group(2)]
    if m.group(3) is not None:
        return {base + int(m.group(3))}
    lo, hi = int(m.group(4)), int(m.group(5))
    return set(range(base + lo, base + hi + 1))


def split_ops(s):
    out, depth, cur = [], 0, ''
    for ch in s:
        if ch in '[(':
            depth += 1
        if ch in '])':
            depth -= 1
        if ch == ',' and depth == 0:
            out.append(cur.strip())
            cur = ''
        else:
            cur += ch
    if cur.strip():
        out.append(cur.strip())
    return out


class Ins:
    __slots__ = ('text', 'mn', 'ops', 'mods', 'kind', 'rd', 'wr', 'tag', 'passes', 'A', 'B', 'C', 'D', 'sdata', 'dpp', 'meta')

    def __init__(self, text, tag=None):
        self.text = text
        self.tag = tag
        self.meta = None
        t = text.split(';')[0].strip()
        parts = t.split(None, 1)
        self.mn = mn = parts[0]
        rest = parts[1] if len(parts) > 1 else ''
        ops = split_ops(rest)
        mods = ''
        if ops:
            last = ops[-1]
            m = re.match(r'^(\S+(?:\([^)]*\))?)\s+(.*)$', last)
            if m and not last.startswith('hwreg'):
                ops[-1] = m.group(1)
                mods = m.group(2)
        self.ops, self.mods = ops, mods
        self.rd, self.wr = set(), set()
        self.passes = 0
        self.A = self.B = self.C = self.D = None
        self.sdata = set()
        self.dpp = ('quad_perm' in mods or 'row_' in mods or 'wave_' in mods or mn.endswith('_dpp'))
        R = [regs_of(o) for o in ops]
        base = mn
        for suf in ('_e32', '_e64', '_dpp', '_sdwa'):
            if base.endswith(suf):
                base = base[:-len(suf)]
        if mn.startswith('v_mfma'):
            self.kind = 'mfma'
            self.D, self.A, self.B, self.C = R[0], R[1], R[2], R[3]
            self.wr = set(R[0])
            self.rd = R[1] | R[2] | R[3]
            self.passes = 8 if '32x32' in mn else 4
        elif mn.startswith('v_'):
            self.kind = 'trans' if base in TRANS else 'valu'
            if base.startswith('v_cmpx'):
                self.wr = R[0] | set(EXEC)
                self.rd = set().union(*R[1:])
            elif base in ('v_permlane16_swap_b32', 'v_permlane32_swap_b32', 'v_swap_b32'):
                self.wr = R[0] | R[1]
                self.rd = R[0] | R[1]
            elif base in ('v_add_co_u32', 'v_sub_co_u32', 'v_addc_co_u32', 'v_subb_co_u32', 'v_mad_u64_u32'):
                self.wr = R[0] | R[1]
                self.rd = set().union(*R[2:])
            elif base == 'v_nop':
                pass
            else:
                self.wr = set(R[0])
                self.rd = set().union(*R[1:]) if len(R) > 1 else set()
                if base in RMW_VALU or self.dpp:
                    self.rd |= R[0]
                if base == 'v_cndmask_b32' and len(ops) == 3:
                    self.rd |= set(VCC)
        elif mn.startswith('ds_'):
            self.kind = 'ds'
            if mn.startswith('ds_read') or mn.startswith('ds_bpermute') or mn.startswith('ds_permute') or mn.startswith('ds_swizzle') or '_rtn' in mn:
                self.wr = set(R[0])
                self.rd = set().union(*R[1:])
            else:
                self.rd = set().union(*R)
        elif mn.startswith('buffer_wbl2') or mn.startswith('buffer_inv'):
            self.kind = 'vmem'
        elif mn.startswith('buffer_') or mn.startswith('global_'):
            self.kind = 'vmem'
            lds = bool(re.search(r'\blds\b', mods)) or '_lds_' in mn
            if lds:
                self.rd = set().union(*R) | {M0}
                self.meta = 'dma'
            elif '_load' in mn:
                self.wr = set(R[0])
                self.rd = set().union(*R[1:])
            elif '_store' in mn:
                self.rd = set().union(*R)
                data = R[0] if mn.startswith('buffer_') else R[1]
                if len(data) >= 3:
                    self.sdata = set(data)
            elif '_atomic' in mn:
                self.rd = set().union(*R)
                if 'sc0' in mods:
                    self.wr = set(R[0])
            else:
                raise ValueError(text)
        elif mn.startswith('s_load') or mn.startswith('s_buffer_load') or mn in ('s_memtime', 's_memrealtime') or mn.startswith('s_atomic'):
            self.kind = 'smem'
            self.wr = set(R[0])
            self.rd = set().union(*R[1:]) if len(R) > 1 else set()
            if mn.startswith('s_atomic'):
                self.rd |= R[0]
        elif mn in ('s_waitcnt', 's_nop', 's_barrier', 's_endpgm', 's_sleep', 's_setprio', 's_branch') or mn.startswith('s_cbranch'):
            self.kind = 'ctl'
        elif mn.startswith('s_cmp') or mn.startswith('s_bitcmp'):
            self.kind = 'salu'
            self.rd = set().union(*R)
        elif mn in ('s_setpc_b64',):
            self.kind = 'ctl'
            self.rd = set(R[0])
        elif mn.startswith('s_'):
            self.kind = 'salu'
            self.wr = set(R[0])
            self.rd = set().union(*R[1:]) if len(R) > 1 else set()
            if 'saveexec' in mn:
                self.wr |= set(EXEC)
            if mn in ('s_addk_i32', 's_mulk_i32', 's_cmov_b32', 's_cmov_b64'):
                self.rd |= R[0]
        else:
            raise ValueError('unknown instruction: ' + text)


class Pseudo:
    def __init__(self, what, arg=None):
        self.what, self.arg = what, arg


class Builder:
    def __init__(self):
        self.items = []
        self._stack = []
        self._lab = 0

    def __call__(self, text, tag=None):
        for line in text.split('\n'):
            line = line.strip()
            if not line or line.startswith(';'):
                continue
            self.items.append(Ins(line, tag))

    def newlabel(self, stem='L'):
        self._lab += 1
        return f'.L{stem}_{self._lab}'

    def label(self, name):
        self.items.append(Pseudo('label', name))

    def comment(self, s):
        self.items.append(Pseudo('comment', s))

    def wait_vm(self, tag):
        self.items.append(Pseudo('wait_vm', tag))

    def wait_vm_all(self):
        self.items.append(Pseudo('wait_vm', None))

    def wait_lgkm_all(self):
        self.items.append(Pseudo('wait_lgkm', None))

    def wait_lgkm(self, tag):
        self.items.append(Pseudo('wait_lgkm', tag))

    def barrier(self):
        self.wait_lgkm_all()
        self('s_barrier')

    def cond_begin(self):
        self.items.append(Pseudo('cond_begin'))

    def cond_end(self):
        self.items.append(Pseudo('cond_end'))

    def fence_hazards(self):
        self.items.append(Pseudo('fence'))

    def assume_vm_empty(self):
        self.items.append(Pseudo('vm_empty'))

    def raw(self, s):
        self.items.append(Pseudo('raw', s))

    def begin(self):
        self._stack.append(self.items)
        self.items = []

    def end(self):
        out = self.items
        self.items = self._stack.pop()
        return out

    def put(self, items):
        self.items.extend(items)

    def finalize(self):
        out = []
        vmq, lgq = [], []
        cond_stack = []
        hist = []
        pos = [0]
        stats = dict(nops=0, waits=0)

        def emit(text, states=1, ins=None):
            out.append('    ' + text)
            if ins is not None:
                hist.append((ins, pos[0]))
                hist[:] = [(p, pp) for (p, pp) in hist if pos[0] - pp <= 24]
            pos[0] += states

        def do_wait(vm=None, lg=None):
            parts = []
            if vm is not None:
                parts.append(f'vmcnt({vm})')
            if lg is not None:
                parts.append(f'lgkmcnt({lg})')
            if parts:
                emit('s_waitcnt ' + ' '.join(parts))
                stats['waits'] += 1

        def need_count(q, idx, cap):
            n = sum(1 for e in q[idx + 1:] if e['certain'])
            return min(n, cap)

        def retire(q, n):
            keep, c = [], 0
            for e in reversed(q):
                if c >= n:
                    break
                keep.append(e)
                if e['certain']:
                    c += 1
            q[:] = list(reversed(keep))

        def hazard_need(ins):
            need = 0
            cur = pos[0]
            isvalu = ins.kind in ('valu', 'trans')
            base = ins.mn
            for p, ppos in hist:
                dist = cur - ppos - 1
                req = 0
                pv = p.kind in ('valu', 'trans')
                if p.kind == 'mfma':
                    big = {4: 8, 8: 12}[p.passes]
                    if ins.kind == 'mfma':
                        if p.D & (ins.A | ins.B):
                            req = max(req, big)
                        if p.D & ins.C:
                            if not (p.D == ins.C and p.passes == ins.passes):
                                req = max(req, {4: 6, 8: 10}[p.passes])
                        elif p.D & ins.D:
                            req = max(req, {4: 6, 8: 10}[p.passes])
                    elif isvalu or ins.kind in ('vmem', 'ds'):
                        if p.D & (ins.rd | ins.wr):
                            req = max(req, big)
                        if isvalu and (p.C & ins.wr):
                            req = max(req, {4: 3, 8: 7}[p.passes])
                if pv:
                    vw = {r for r in p.wr if r < S0}
                    sw = {r for r in p.wr if r >= S0}
                    if ins.kind == 'mfma' and (vw & ins.rd):
                        req = max(req, 2)
                    if ins.kind == 'mfma' and (set(EXEC) & sw):
                        req = max(req, 4)
                    if isvalu:
                        if p.kind == 'trans' and ins.kind != 'trans' and (vw & (ins.rd | ins.wr)):
                            req = max(req, 1)
                        if base.startswith('v_permlane') and (vw & ins.rd):
                            req = max(req, 2)
                        if ins.dpp and (vw & ins.rd):
                            req = max(req, 2)
                        if (base.startswith('v_readlane') or base.startswith('v_readfirstlane')) and (vw & ins.rd):
                            req = max(req, 1)
                        if sw & ins.rd:
                            req = max(req, 4 if (base.startswith('v_readlane') or base.startswith('v_writelane')) else 2)
                        if set(EXEC) & sw:
                            req = max(req, 5)
                        if ('op_sel' in p.mods or 'dst_sel' in p.mods) and not p.mn.startswith('v_pk') and (vw & (ins.rd | ins.wr)):
                            req = max(req, 1)
                    if p.kind == 'trans' and ins.kind in ('vmem', 'ds') and (vw & ins.rd):
                        req = max(req, 1)
                    if ins.kind == 'vmem' and (sw & ins.rd):
                        req = max(req, 5)
                    if ins.kind in ('salu', 'smem', 'ctl') and (sw & ins.rd):
                        req = max(req, 1)
                if p.kind == 'salu' and M0 in p.wr and ins.meta == 'dma':
                    req = max(req, 1)
                if p.kind == 'vmem' and p.sdata and (p.sdata & ins.wr):
                    req = max(req, 2 if (isvalu or ins.kind == 'mfma') else 1)
                if p.kind == 'ds' and not p.wr and len(p.rd) >= 4 and isvalu and (p.rd & ins.wr):
                    req = max(req, 1)
                if req > dist:
                    need = max(need, req - dist)
            return need

        def pad(n):
            while n > 0:
                k = min(n, 16)
                emit(f's_nop {k - 1}', states=k)
                stats['nops'] += 1
                n -= k

        for it in self.items:
            if isinstance(it, Pseudo):
                if it.what == 'label':
                    out.append(it.arg + ':')
                elif it.what == 'comment':
                    out.append('    ; ' + it.arg)
                elif it.what == 'raw':
                    out.append(it.arg)
                elif it.what == 'wait_vm':
                    idxs = [i for i, e in enumerate(vmq) if it.arg is None or e['tag'] == it.arg]
                    if idxs:
                        n = need_count(vmq, idxs[-1], 63)
                        do_wait(vm=n)
                        retire(vmq, n)
                elif it.what == 'wait_lgkm':
                    idxs = [i for i, e in enumerate(lgq) if it.arg is None or e['tag'] == it.arg]
                    if idxs:
                        n = 0 if any(e['smem'] for e in lgq) else need_count(lgq, idxs[-1], 15)
                        do_wait(lg=n)
                        retire(lgq, n)
                elif it.what == 'vm_empty':
                    vmq[:] = []
                elif it.what == 'cond_begin':
                    cond_stack.append((list(vmq), list(lgq), list(hist), pos[0]))
                elif it.what == 'cond_end':
                    v0, l0, h0, p0 = cond_stack.pop()
                    delta = pos[0] - p0
                    inner = [(p, pp) for (p, pp) in hist if pp >= p0]
                    hist[:] = [(p, pp + delta) for (p, pp) in h0] + inner
                    for q, q0 in ((vmq, v0), (lgq, l0)):
                        new = [e for e in q if not any(e is x for x in q0)]
                        for e in new:
                            e['certain'] = False
                        q[:] = q0 + new
                elif it.what == 'fence':
                    need = 0
                    for p, ppos in hist:
                        dist = pos[0] - ppos - 1
                        req = 0
                        if p.kind == 'mfma':
                            req = {4: 8, 8: 12}[p.passes]
                        elif p.kind in ('valu', 'trans'):
                            req = 5 if any(r >= S0 for r in p.wr) else 2
                        elif p.kind == 'vmem' and p.sdata:
                            req = 2
                        elif p.kind == 'salu' and M0 in p.wr:
                            req = 1
                        need = max(need, req - dist)
                    pad(need)
                continue
            ins = it
            touch = ins.rd | ins.wr
            vm = lg = None
            tv = ins.rd if ins.kind == 'vmem' else touch
            idxs = [i for i, e in enumerate(vmq) if e['wr'] & tv]
            if idxs:
                vm = need_count(vmq, idxs[-1], 63)
            tl = ins.rd if ins.kind == 'ds' else touch
            idxs = [i for i, e in enumerate(lgq) if e['wr'] & tl]
            if idxs:
                lg = 0 if any(e['smem'] for e in lgq) else need_count(lgq, idxs[-1], 15)
            do_wait(vm, lg)
            if vm is not None:
                retire(vmq, vm)
            if lg is not None:
                retire(lgq, lg)
            if ins.mn == 's_waitcnt':
                m = re.search(r'vmcnt\((\d+)\)', ins.text)
                if m:
                    retire(vmq, int(m.group(1)))
                m = re.search(r'lgkmcnt\((\d+)\)', ins.text)
                if m and (int(m.group(1)) == 0 or not any(e['smem'] for e in lgq)):
                    retire(lgq, int(m.group(1)))
            pad(hazard_need(ins))
            states = 1
            if ins.mn == 's_nop':
                states = int(ins.ops[0], 0) + 1
            emit(ins.text, states=states, ins=ins)
            if ins.kind == 'vmem':
                vmq.append(dict(wr=set(ins.wr), tag=ins.tag, certain=True, smem=False))
            elif ins.kind == 'ds':
                lgq.append(dict(wr=set(ins.wr), tag=ins.tag, certain=True, smem=False))
            elif ins.kind == 'smem':
                lgq.append(dict(wr=set(ins.wr), tag=ins.tag, certain=True, smem=True))
        self.stats = stats
        return '\n'.join(out)


def interleave(main, fill, start=0, every=1, per=1):
    out, fi, n = [], 0, 0
    for it in main:
        out.append(it)
        if isinstance(it, Ins) and it.kind == 'mfma':
            if n >= start and (n - start) % every == 0:
                c = 0
                while fi < len(fill) and c < per:
                    f = fill[fi]
                    out.append(f)
                    fi += 1
                    if isinstance(f, Ins):
                        c += 2 if f.kind == 'trans' else 1
            n += 1
    out.extend(fill[fi:])
    return out


def n_mfma(main):
    return sum(1 for it in main if isinstance(it, Ins) and it.kind == 'mfma')


class Weave:
    def __init__(self, main):
        self.main = main
        self.n = n_mfma(main)
        self.slots = [[] for _ in range(self.n)]
        self.tail = []

    def spread(self, units, first=0, last=None):
        if last is None:
            last = self.n - 1
        m = len(units)
        for i, u in enumerate(units):
            pos = first + (i * (last - first + 1)) // m
            self.slots[pos].extend(u)

    def at(self, pos, items):
        self.slots[pos].extend(items)

    def fill(self, items, first=0, budget=8):
        def cost(it):
            if not isinstance(it, Ins):
                return 0
            if it.kind == 'trans':
                return 8
            if it.kind == 'salu':
                return 1
            return 4
        fi, carry = 0, 0
        for pos in range(first, self.n):
            carry = min(carry + budget, budget + 4)
            while fi < len(items) and cost(items[fi]) <= carry:
                carry -= cost(items[fi])
                self.slots[pos].append(items[fi])
                fi += 1
        self.tail.extend(items[fi:])

    def result(self):
        out, n = [], 0
        for it in self.main:
            out.append(it)
            if isinstance(it, Ins) and it.kind == 'mfma':
                out.extend(self.slots[n])
                n += 1
        out.extend(self.tail)
        return out
```

```python
import sys, struct, argparse
sys.path.insert(0, 'dev')
from asmb import Builder, Weave, Ins

NAME = 'adaLN_cond__sliding_block__glu_gated_geglu__prompt'

WS_EPOCH = 0
WS_HELLO = 0x400
WS_PQ = 0x1000
WS_PR = 0x1400
WS_KVF = 0x8000
WS_FLAG = 0x2000
WS_MODG = 0x10000
WS_ST = 0x20000
WS_WQ = 0x100000
WS_WO = 0x380000
WS_WGU = 0x480000
WS_WD = 0x840000
WS_H = 0xA40000
WS_O = 0xCC0000
WS_Z = 0xF40000
WS_KV = 0x11C0000
WS_HH = 0x1740000
O_CL = 163840
WS_DBG = 0x1D40000
WS_SIZE = 0x1E00000
OOB = 0x40000000
PH_H, PH_KV, PH_O, PH_Z, PH_HH = range(5)

KVB = 5632
HB = 2816
L_C = 0
L_KVOWN = 8 * KVB
L_Q = 12 * KVB
L_P = L_Q + 10240
L_A = 81920
L_B = 122880
LDS_BYTES = 163840
L_MOD = 0
L_WQS = 20480
L_SC = 32768
L_STAT = 33280
L_MV = 34816
L_GUS = L_B
L_ODS = L_B + 16384
P_SB = L_P
P_G2 = L_P + 1280
P_GA = L_P + 2560
P_GB = L_P + 2720
P_DUMMY = L_P + 3072
L_RED = 0

sW = 's3'
WS = 's[4:7]'; XS = 's[8:11]'; WQS = 's[12:15]'; ODS = 's[16:19]'; WGS = 's[20:23]'; WUS = 's[24:27]'
CS = 's[28:31]'; WMS = 's[32:35]'; OUTS = 's[36:39]'
sCL, sJ, sTAG, sFAST = 's40', 's41', 's42', 's43'
sJC, sTH = 's46', 's47'

DUMMY = 0
QSCALE = 20 ** -0.5 * 1.4426950408889634
NEG = -1.0e30


def f2u(x):
    return struct.unpack('<I', struct.pack('<f', x))[0]


def vr(a, n=1, t='v'):
    return f'{t}{a}' if n == 1 else f'{t}[{a}:{a + n - 1}]'


def ur(a, n=4):
    return vr(a, n, 'v') if a < 256 else vr(a - 256, n, 'a')


class Gen:
    def __init__(self, opt):
        self.o = opt
        self.k = Builder()
        self.nstamp = 0
        self.stampnames = []

    def stamp(self, name):
        if not self.o.stamps:
            return
        k = self.k
        n = self.nstamp
        assert n < 60
        self.nstamp += 1
        self.stampnames.append(name)
        k('s_memtime s[100:101]' if self.o.cyc else 's_memrealtime s[100:101]')
        k(f'v_writelane_b32 v11, s100, {n + 1}')

    def dma(self, srd, voff, soff, lds, imm=0, tag=None, sc1=False):
        k = self.k
        k(f's_mov_b32 m0, {lds}')
        k(f'buffer_load_dwordx4 {voff}, {srd}, {soff} offen offset:{imm}{" sc1" if sc1 else ""} lds', tag)

    def bf16_round_keep(self, regs, tmp):
        k = self.k
        for i in range(0, len(regs), 2):
            k(f'v_cvt_pk_bf16_f32 v{tmp}, v{regs[i]}, v{regs[i + 1]}')
            k(f'v_lshlrev_b32 v{regs[i]}, 16, v{tmp}')
            k(f'v_and_b32 v{regs[i + 1]}, 0xffff0000, v{tmp}')

    def flag_off(self, sdst, phase, scl=sCL):
        k = self.k
        k(f's_lshl_b32 {sdst}, {scl}, 8')
        k(f's_add_u32 {sdst}, {sdst}, {WS_FLAG + phase * 0x1000}')

    def publish(self, phase, tag):
        k = self.k
        self.flag_off('s72', phase)
        k.wait_vm(tag)
        lab, done = k.newlabel('pubslow'), k.newlabel('pubdone')
        k(f's_cmp_eq_u32 {sFAST}, 0')
        k(f's_cbranch_scc1 {lab}')
        k.cond_begin()
        k(f'buffer_store_dword v5, v4, {WS}, s72 offen')
        k(f's_branch {done}')
        k.cond_end()
        k.label(lab)
        k.cond_begin()
        k('buffer_wbl2 sc1')
        k('s_waitcnt vmcnt(0)')
        k(f'buffer_store_dword v5, v4, {WS}, s72 offen sc1')
        k.cond_end()
        k.label(done)

    def acquire(self):
        k = self.k
        skip = k.newlabel('acq')
        k(f's_cmp_lg_u32 {sFAST}, 0')
        k(f's_cbranch_scc1 {skip}')
        k('buffer_inv sc1')
        k('s_waitcnt vmcnt(0)')
        k.label(skip)

    def spin(self, body):
        k = self.k
        lab, out = k.newlabel('poll'), k.newlabel('pollx')
        k('s_mov_b32 s73, 0')
        k.fence_hazards()
        k.label(lab)
        k('s_add_u32 s73, s73, 1')
        body()
        k(f's_cmp_ge_u32 s73, {self.o.spin}')
        k(f's_cbranch_scc1 {out}')
        k('s_cmp_lg_u64 vcc, 0')
        k(f's_cbranch_scc1 {lab}')
        k.label(out)
        k.assume_vm_empty()

    def allcheck(self, regs, t):
        k = self.k
        if len(regs) == 1:
            k(f'v_cmp_ne_u32 vcc, {sTAG}, v{regs[0]}')
            return
        k(f'v_xor_b32 v{t}, {sTAG}, v{regs[0]}')
        rest = regs[1:]
        while rest:
            k(f'v_xor_b32 v{t + 1}, {sTAG}, v{rest[0]}')
            if len(rest) > 1:
                k(f'v_xor_b32 v{t + 2}, {sTAG}, v{rest[1]}')
                k(f'v_or3_b32 v{t}, v{t}, v{t + 1}, v{t + 2}')
            else:
                k(f'v_or_b32 v{t}, v{t}, v{t + 1}')
            rest = rest[2:]
        k(f'v_cmp_ne_u32 vcc, 0, v{t}')

    def poll(self, voff, soff, vt, local):
        k = self.k

        def body():
            k(f'buffer_load_dword v{vt}, {voff}, {WS}, {soff} offen sc1')
            k('s_waitcnt vmcnt(0)')
            self.allcheck([vt], vt)
        self.spin(body)
        if local:
            self.acquire()

    def units_frags(self, regs, sbase, voff='v1', tag=None, first=0):
        k = self.k
        out = []
        for n, r in enumerate(regs):
            i = n + first
            k.begin()
            if i and i % 4 == 0:
                k(f's_add_u32 {sbase}, {sbase}, 4096')
            k(f'buffer_load_dwordx4 {ur(r)}, {voff}, {WS}, {sbase} offen offset:{1024 * (i % 4)} sc1', tag)
            out.append(k.end())
        return out

    def units_dma(self, ssrc, srcadd, ldsbase, n, tag, voff='v1'):
        k = self.k
        c = (n + 3) // 4
        out = []
        for i in range(c):
            k.begin()
            if i == 0:
                k(f's_mul_i32 s88, {sW}, {c}')
                if c * 4 != n:
                    k(f's_min_u32 s88, s88, {n - c}')
                k('s_lshl_b32 s88, s88, 10')
                k(f's_add_u32 s87, {ssrc}, s88')
                if srcadd:
                    k(f's_add_u32 s87, s87, {srcadd}')
                k(f's_add_u32 m0, s88, {ldsbase}')
            elif i % 4 == 0:
                k('s_add_u32 s87, s87, 4096')
                k('s_add_u32 m0, m0, 4096')
            k(f'buffer_load_dwordx4 {voff}, {WS}, s87 offen offset:{1024 * (i % 4)} sc1 lds', tag)
            out.append(k.end())
        return out

    def put_units(self, units):
        for u in units:
            self.k.put(u)

    def rowsum(self, r, t):
        k = self.k
        k(f'v_mov_b32 v{t}, v{r}')
        k(f'v_permlane16_swap_b32 v{r}, v{t}')
        k(f'v_add_f32 v{r}, v{r}, v{t}')
        k(f'v_mov_b32 v{t}, v{r}')
        k(f'v_permlane32_swap_b32 v{r}, v{t}')
        k(f'v_add_f32 v{r}, v{r}, v{t}')

    def touch(self, soff, per, n, stride, t):
        k = self.k
        if 'notouch' in self.o.x:
            return
        magic = (65536 + per - 1) // per
        assert all((l * magic) >> 16 == l // per for l in range(64))
        k(f'v_min_u32 v{t}, {n - 1}, v3')
        if per == 1:
            k(f'v_mul_u32_u24 v{t}, {stride}, v{t}')
        else:
            k(f'v_mul_u32_u24 v{t + 1}, {magic}, v{t}')
            k(f'v_lshrrev_b32 v{t + 1}, 16, v{t + 1}')
            k(f'v_mul_u32_u24 v{t + 1}, {stride - per * 128}, v{t + 1}')
            k(f'v_lshl_add_u32 v{t}, v{t}, 7, v{t + 1}')
        k(f'buffer_load_dword v{DUMMY}, v{t}, {WS}, {soff} offen sc1')


    def st_entry(self):
        k = self.k
        o = self.o
        k('s_load_dwordx8 s[64:71], s[0:1], 64')
        k('s_load_dwordx16 s[48:63], s[0:1], 0')
        k('s_cmp_ge_u32 s2, 256')
        k('s_cbranch_scc1 .Lend')
        if o.stamps:
            k('s_memrealtime s[100:101]')
            k('s_memtime s[98:99]')
        k('s_getpc_b64 s[44:45]')
        k.label('.Lpc0')
        k('v_mov_b32 v37, v0')
        k('s_bfe_u32 s72, s2, 0x30003')
        k('v_lshrrev_b32 v2, 2, v37')
        k('v_lshl_add_u32 v2, s72, 6, v2')
        k('v_lshlrev_b32 v2, 7, v2')
        k('v_min_u32 v2, .Lcode_end-.Lpc0-4, v2')
        k('global_load_dword v0, v2, s[44:45]')
        k('v_lshrrev_b32 v2, 6, v37')
        k('v_and_b32 v3, 63, v37')
        k('v_readfirstlane_b32 s3, v2')
        k('s_mov_b32 s34, 4915200')
        k('s_mov_b32 s35, 0x20000')
        k('s_movk_i32 s30, 1280')
        k('s_mov_b32 s31, 0x20000')
        k('s_sub_u32 s74, s2, 16')
        k('s_cmp_lt_u32 s2, 240')
        k('s_cselect_b32 s74, s2, s74')
        k('s_lshr_b32 s75, s74, 2')
        k('s_and_b32 s76, s74, 3')
        k('v_lshrrev_b32 v6, 3, v3')
        k('v_and_b32 v7, 7, v3')
        k('v_lshlrev_b32 v7, 4, v7')
        k('s_movk_i32 s72, 7680')
        k('v_mad_u32_u24 v8, v6, s72, v7')
        k('s_mul_i32 s77, s76, 160')
        k(f's_lshl3_add_u32 s77, {sW}, s77')
        k('s_mul_i32 s77, s77, 7680')
        k('s_lshl_b32 s72, s75, 7')
        k('s_add_u32 s77, s77, s72')
        k(f's_lshl_b32 m0, {sW}, 10')
        k('v_min_u32 v9, 79, v37')
        k('v_lshlrev_b32 v9, 2, v9')
        k('s_mul_i32 s79, s76, 320')
        k.wait_lgkm_all()
        if o.stamps:
            k('v_mov_b32 v11, s100')
            k('v_writelane_b32 v11, s98, 61')
        k('s_mov_b64 s[32:33], s[64:65]')
        k('s_mov_b64 s[28:29], s[62:63]')
        k('s_load_dword s42, s[70:71], 0')
        k(f'buffer_load_dword v10, v9, {CS}, s79 offen')
        for t in range(5):
            k(f'buffer_load_dwordx4 v8, {WMS}, s77 offen lds', 'mod')
            if t < 4:
                k(f's_add_u32 s77, s77, {32 * 7680}')
                k('s_add_u32 m0, m0, 4096')
        self.stamp('modiss')
        for srd, size, p in ((4, WS_SIZE, 70), (8, 2621440, 48), (12, 2457600, 50), (20, 1966080, 56), (24, 1966080, 58), (36, 2621440, 66)):
            k(f's_mov_b64 s[{srd}:{srd + 1}], s[{p}:{p + 1}]')
            k(f's_mov_b32 s{srd + 2}, {size}')
            k(f's_mov_b32 s{srd + 3}, 0x20000')
        k('s_mov_b32 s19, 0x20000')
        k('s_and_b32 s72, s2, 7')
        k('s_lshr_b32 s73, s2, 3')
        k(f's_and_b32 {sJ}, s73, 15')
        k('s_lshr_b32 s73, s73, 4')
        k(f's_lshl1_add_u32 {sCL}, s72, s73')
        k(f's_and_b32 {sJC}, {sJ}, 7')
        k(f's_lshr_b32 {sTH}, {sJ}, 3')
        k('v_lshlrev_b32 v1, 4, v3')
        k(f'v_mov_b32 v2, {OOB}')
        k('s_mul_i32 s80, s74, 171')
        k('s_lshr_b32 s80, s80, 9')
        k('s_mul_i32 s81, s80, 3')
        k('s_sub_u32 s81, s74, s81')

    def st_wq_issue(self):
        k = self.k
        k('s_movk_i32 s72, 3840')
        k('v_mad_u32_u24 v8, v6, s72, v7')
        k('s_mul_i32 s77, s80, 30720')
        k('s_mul_i32 s72, s81, 1280')
        k('s_add_u32 s77, s77, s72')
        k(f's_mul_i32 s78, {sW}, 3072')
        k(f's_add_u32 m0, s78, {L_WQS}')
        k(f's_add_u32 s82, {sW}, 8')
        k('s_min_u32 s82, s82, 9')
        k(f's_lshl_b32 s72, {sW}, 7')
        k('s_add_u32 s72, s72, s77')
        k(f'buffer_load_dwordx4 v8, {WQS}, s72 offen lds', 'wq')
        k('s_add_u32 s72, s72, 512')
        k('s_add_u32 m0, m0, 1024')
        k(f'buffer_load_dwordx4 v8, {WQS}, s72 offen lds', 'wq')
        k('s_lshl_b32 s72, s82, 7')
        k('s_add_u32 s72, s72, s77')
        k('s_add_u32 m0, m0, 1024')
        k(f'buffer_load_dwordx4 v8, {WQS}, s72 offen lds', 'wq')

    def st_x_issue(self):
        k = self.k
        k('v_mul_u32_u24 v36, 80, v7')
        k('v_lshl_add_u32 v36, v6, 4, v36')
        k('v_cmp_gt_u32 vcc, 32, v3')
        k('v_cndmask_b32 v38, v2, v36, vcc')
        k(f's_lshl4_add_u32 s72, {sCL}, {sJ}')
        k('s_mul_i32 s72, s72, 10240')
        k(f's_mul_i32 s73, {sW}, 320')
        k('s_add_u32 s72, s72, s73')
        k(f'buffer_load_dwordx4 v[24:27], v36, {XS}, s72 offen')
        k(f'buffer_load_dwordx4 v[28:31], v36, {XS}, s72 offen offset:128')
        k(f'buffer_load_dwordx4 v[32:35], v38, {XS}, s72 offen offset:256')
        k(f's_mul_i32 s86, {sCL}, 163840')
        k(f's_lshr_b32 s72, {sJ}, 2')
        k('s_mul_i32 s72, s72, 40960')
        k('s_add_u32 s86, s86, s72')
        k(f's_and_b32 s72, {sJ}, 3')
        k('s_lshl_b32 s72, s72, 7')
        k('s_add_u32 s86, s86, s72')
        k(f's_mul_i32 s72, {sW}, 10240')
        k('s_add_u32 s86, s86, s72')
        k(f's_add_u32 s86, s86, {WS_H}')
        self.touch('s86', 1, 20, 512, 38)
        k('v_lshrrev_b32 v38, 5, v37')
        k('v_lshlrev_b32 v38, 4, v38')
        k('v_add_u32 v38, .Ltab_qkv-.Lpc0, v38')
        k('global_load_dwordx4 v[20:23], v38, s[44:45]')

    def st_mod(self):
        k = self.k
        k('s_getreg_b32 s49, hwreg(HW_REG_XCC_ID, 0, 3)')
        k('s_mul_i32 s42, s42, 0x9e3779b1')
        k('s_add_u32 s42, s42, 0x7f4a7c15')
        k('s_mov_b32 s50, s42')
        k('s_and_b32 s42, s42, -8')
        k('s_or_b32 s51, s42, s49')
        k(f's_lshl2_add_u32 s72, {sJ}, {sW}')
        k('s_lshl_b32 s72, s72, 2')
        k('v_mov_b32 v4, s72')
        k('v_cmp_eq_u32 vcc, 0, v3')
        k('v_cndmask_b32 v4, v2, v4, vcc')
        k('v_mov_b32 v5, s42')
        k('v_cmp_eq_u32 vcc, 0, v37')
        k('v_cndmask_b32 v12, v2, 0, vcc')
        k('v_mov_b32 v14, s51')
        k(f's_lshl_b32 s72, {sCL}, 7')
        k(f's_lshl2_add_u32 s72, {sJ}, s72')
        k(f'buffer_store_dword v14, v12, {WS}, s72 offen offset:{WS_HELLO} sc1')
        k('v_lshlrev_b32 v14, 16, v10')
        k('v_and_b32 v15, 0xffff0000, v10')
        for r in (14, 15):
            k(f'v_mul_f32 v{r + 2}, {f2u(-1.4426950408889634):#x}, v{r}')
        for r in (14, 15):
            k(f'v_exp_f32 v{r + 2}, v{r + 2}')
        for r in (14, 15):
            k(f'v_add_f32 v{r + 2}, 1.0, v{r + 2}')
        for r in (14, 15):
            k(f'v_rcp_f32 v{r + 2}, v{r + 2}')
        for r in (14, 15):
            k(f'v_mul_f32 v{r}, v{r}, v{r + 2}')
        k('v_cvt_pk_bf16_f32 v14, v14, v15')
        k(f'ds_write_b32 v9, v14 offset:{L_SC}')
        k('v_bfe_u32 v13, v3, 2, 2')
        k('v_lshlrev_b32 v13, 7, v13')
        k('v_and_b32 v14, 3, v3')
        k('v_lshl_add_u32 v15, v14, 3, v13')
        k('v_lshrrev_b32 v16, 4, v3')
        k('v_lshl_add_u32 v17, v16, 10, v15')
        k(f's_lshl_b32 s72, {sW}, 5')
        k('v_add_u32 v17, s72, v17')
        k('v_lshlrev_b32 v18, 4, v16')
        k('v_lshl_add_u32 v19, v16, 5, v15')
        k('v_lshlrev_b32 v36, 6, v16')
        k('v_and_b32 v38, 15, v3')
        k('v_cmp_eq_u32 vcc, 0, v38')
        k('v_cndmask_b32 v36, v2, v36, vcc')
        k(f's_lshl2_add_u32 s72, s75, {sW}')
        k('s_lshl_b32 s72, s72, 8')
        k('s_lshl4_add_u32 s72, s76, s72')
        k(f's_add_u32 s72, s72, {WS_MODG}')
        k('s_mov_b32 s73, 0x07060503')
        k('s_mov_b32 s77, 0x07060502')
        k('s_mov_b32 s78, 0x07060501')
        k.wait_vm('mod')
        k.barrier()
        self.stamp('modld')
        for s in range(5):
            k(f'ds_read_b64_tr_b16 v[{96 + 4 * s}:{97 + 4 * s}], v17 offset:{L_MOD + 4096 * s}')
            k(f'ds_read_b64_tr_b16 v[{98 + 4 * s}:{99 + 4 * s}], v17 offset:{L_MOD + 4096 * s + 512}')
            k(f'ds_read_b128 v[{116 + 4 * s}:{119 + 4 * s}], v18 offset:{L_SC + 64 * s}')
        for s in range(5):
            k(f'v_mfma_f32_16x16x32_bf16 v[80:83], v[{96 + 4 * s}:{99 + 4 * s}], v[{116 + 4 * s}:{119 + 4 * s}], {"0" if s == 0 else "v[80:83]"}')
        k('v_perm_b32 v80, v80, v83, s73')
        k('v_perm_b32 v81, v81, v83, s77')
        k('v_perm_b32 v82, v82, v83, s78')
        k('v_mov_b32 v83, s42')
        k(f'buffer_store_dwordx4 v[80:83], v36, {WS}, s72 offen sc1')
        self.stamp('modpub')

    def st_wq_process(self):
        k = self.k
        k(f's_mul_i32 s72, {sW}, 3072')
        k('v_add_u32 v36, s72, v19')
        k('s_lshl_b32 s77, s80, 9')
        k(f's_add_u32 s77, s77, {WS_WQ}')
        k('s_mul_i32 s78, s81, 40')
        k(f's_mov_b32 s79, 163840')
        k(f's_mov_b32 s73, 40960')
        for t in range(3):
            if t < 2:
                k(f's_lshl_b32 s72, {sW}, 6')
                if t:
                    k('s_add_u32 s72, s72, 256')
            else:
                k('s_lshl_b32 s72, s82, 6')
            k('v_add_u32 v76, s72, v3')
            k('v_mul_u32_u24 v77, 205, v76')
            k('v_lshrrev_b32 v77, 13, v77')
            k('v_mul_u32_u24 v78, 40, v77')
            k('v_sub_u32 v76, v76, v78')
            k('v_add_u32 v76, s78, v76')
            k('v_lshrrev_b32 v78, 5, v76')
            k('v_and_b32 v76, 31, v76')
            k('v_lshlrev_b32 v76, 4, v76')
            k('v_mad_u32_u24 v76, v78, s73, v76')
            k(f'v_mad_u32_u24 v{84 + t}, v77, s79, v76')
        k.wait_vm('wq')
        for t in range(3):
            k(f'ds_read_b64_tr_b16 v[{64 + 4 * t}:{65 + 4 * t}], v36 offset:{L_WQS + 1024 * t}')
            k(f'ds_read_b64_tr_b16 v[{66 + 4 * t}:{67 + 4 * t}], v36 offset:{L_WQS + 1024 * t + 512}')
        for t in range(3):
            k(f'buffer_store_dwordx4 v[{64 + 4 * t}:{67 + 4 * t}], v{84 + t}, {WS}, s77 offen sc1', 'wqst')
        self.stamp('wqst')

    def st_ones(self):
        k = self.k
        k('v_and_b32 v76, 31, v3')
        k('v_mul_u32_u24 v76, 48, v76')
        k('v_lshrrev_b32 v77, 5, v3')
        k(f's_movk_i32 s72, {HB}')
        k('v_mad_u32_u24 v76, v77, s72, v76')
        k(f's_mul_i32 s72, {sW}, {KVB}')
        k('v_add_u32 v76, s72, v76')
        k('v_mov_b32 v78, 0x3f80')
        k('v_mov_b32 v79, 0')
        k(f'ds_write_b64 v76, v[78:79] offset:{L_KVOWN + 1280 + 40}')

    def st_norm(self):
        k = self.k
        X = list(range(40, 64))
        for i in range(12):
            k(f'v_lshlrev_b32 v{40 + 2 * i}, 16, v{24 + i}')
            k(f'v_and_b32 v{41 + 2 * i}, 0xffff0000, v{24 + i}')
        k('v_pk_add_f32 v[76:77], v[40:41], v[42:43]')
        k('v_pk_mul_f32 v[78:79], v[40:41], v[40:41]')
        k('v_pk_fma_f32 v[78:79], v[42:43], v[42:43], v[78:79]')
        for i in range(2, 12):
            k(f'v_pk_add_f32 v[76:77], v[76:77], v[{40 + 2 * i}:{41 + 2 * i}]')
            k(f'v_pk_fma_f32 v[78:79], v[{40 + 2 * i}:{41 + 2 * i}], v[{40 + 2 * i}:{41 + 2 * i}], v[78:79]')
        k('v_add_f32 v76, v76, v77')
        k('v_add_f32 v77, v78, v79')
        k('v_add_f32_dpp v76, v76, v76 row_ror:8 row_mask:0xf bank_mask:0xf')
        k('v_add_f32_dpp v77, v77, v77 row_ror:8 row_mask:0xf bank_mask:0xf')
        self.rowsum(76, 78)
        self.rowsum(77, 79)
        k('v_lshlrev_b32 v78, 1, v7')
        k(f's_lshl_b32 s72, {sW}, 3')
        k('v_add_u32 v79, s72, v78')
        k(f'ds_write_b64 v79, v[76:77] offset:{L_STAT}')
        k.barrier()
        k(f'ds_read_b128 v[88:91], v78 offset:{L_STAT}')
        k(f'ds_read_b128 v[92:95], v78 offset:{L_STAT + 16}')
        k('v_pk_add_f32 v[88:89], v[88:89], v[90:91]')
        k('v_pk_add_f32 v[92:93], v[92:93], v[94:95]')
        k('v_pk_add_f32 v[88:89], v[88:89], v[92:93]')
        k(f'v_mul_f32 v88, {f2u(1 / 640):#x}, v88')
        k(f'v_mul_f32 v89, {f2u(1 / 640):#x}, v89')
        k('v_fma_f32 v89, -v88, v88, v89')
        k('v_max_f32 v89, 0, v89')
        self.bf16_round_keep([88, 89], 90)
        k(f'v_add_f32 v89, {f2u(1e-5):#x}, v89')
        self.bf16_round_keep([88, 89], 90)
        k('v_sqrt_f32 v89, v89')
        self.bf16_round_keep([88, 89], 90)
        k('v_rcp_f32 v89, v89')
        for i in range(12):
            k(f'v_pk_add_f32 v[{40 + 2 * i}:{41 + 2 * i}], v[{40 + 2 * i}:{41 + 2 * i}], v[88:89] op_sel_hi:[1,0] neg_lo:[0,1] neg_hi:[0,1]')
        self.bf16_round_keep(X, 90)
        for i in range(12):
            k(f'v_pk_mul_f32 v[{40 + 2 * i}:{41 + 2 * i}], v[{40 + 2 * i}:{41 + 2 * i}], v[88:89] op_sel:[0,1]')
        self.bf16_round_keep(X, 90)

    def wg_flag(self, tag, base):
        k = self.k
        k.wait_vm(tag)
        k.barrier()
        k('s_lshl_b32 s72, s2, 2')
        k(f's_add_u32 s72, s72, {base}')
        k(f'buffer_store_dword v5, v12, {WS}, s72 offen sc1')

    def st_rest_issue(self):
        k = self.k
        k('s_movk_i32 s72, 3072')
        k('v_mad_u32_u24 v8, v6, s72, v7')
        k('s_mul_i32 s77, s80, 24576')
        k('s_lshl_b32 s72, s81, 10')
        k('s_add_u32 s77, s77, s72')
        k(f's_lshl_b32 s72, {sW}, 7')
        k('s_add_u32 s77, s77, s72')
        k(f's_lshl_b32 s78, {sW}, 12')
        k(f's_add_u32 m0, s78, {L_GUS}')
        for t in range(2):
            k(f'buffer_load_dwordx4 v8, {WGS}, s77 offen lds', 'gu')
            k('s_add_u32 m0, m0, 1024')
            k(f'buffer_load_dwordx4 v8, {WUS}, s77 offen lds', 'gu')
            if t == 0:
                k('s_add_u32 m0, m0, 1024')
                k('s_add_u32 s77, s77, 512')
        self.od_issue('s2', 0)
        lab = k.newlabel('od2')
        k('s_cmp_lt_u32 s2, 240')
        k(f's_cbranch_scc1 {lab}')
        k.cond_begin()
        k('s_add_u32 s48, s2, 16')
        self.od_issue('s48', 1)
        k.cond_end()
        k.label(lab)

    def st_rest_process(self):
        k = self.k
        k('v_lshrrev_b32 v36, 1, v14')
        k('v_lshl_add_u32 v36, v36, 3, v13')
        k('v_and_b32 v38, 1, v14')
        k('v_lshl_add_u32 v36, v38, 10, v36')
        k('v_add_u32 v36, v36, v18')
        k(f's_lshl_b32 s72, {sW}, 12')
        k(f's_add_u32 s72, s72, {L_GUS}')
        k('v_add_u32 v36, s72, v36')
        k('v_and_b32 v80, 9, v3')
        k('v_bfe_u32 v81, v3, 1, 1')
        k('v_lshl_add_u32 v80, v81, 2, v80')
        k('v_bfe_u32 v81, v3, 2, 1')
        k('v_lshl_add_u32 v80, v81, 1, v80')
        k('v_lshlrev_b32 v80, 4, v80')
        k('s_lshr_b32 s77, s80, 2')
        k('s_mul_i32 s77, s77, 3072')
        k('s_and_b32 s72, s80, 3')
        k('s_lshl_b32 s72, s72, 8')
        k('s_add_u32 s77, s77, s72')
        k(f's_add_u32 s77, s77, {WS_WGU}')
        k('s_lshl_b32 s78, s81, 6')
        k(f's_lshl3_add_u32 s78, {sW}, s78')
        k(f's_mov_b32 s79, {61440 - 3072}')
        for t in range(2):
            for hf in range(2):
                d = 84 + 2 * t + hf
                k(f's_add_u32 s72, s78, {32 * t + 4 * hf}')
                k('v_add_u32 v81, s72, v16')
                k('v_mul_u32_u24 v82, 171, v81')
                k('v_lshrrev_b32 v82, 9, v82')
                k('v_lshl_add_u32 v81, v81, 10, v80')
                k(f'v_mad_u32_u24 v{d}, v82, s79, v81')
        k.wait_vm('gu')
        for t in range(2):
            for hf in range(2):
                b = 64 + 8 * t + 4 * hf
                k(f'ds_read_b64_tr_b16 v[{b}:{b + 1}], v36 offset:{2048 * t + 64 * hf}')
                k(f'ds_read_b64_tr_b16 v[{b + 2}:{b + 3}], v36 offset:{2048 * t + 64 * hf + 512}')
        for t in range(2):
            for hf in range(2):
                b = 64 + 8 * t + 4 * hf
                k(f'buffer_store_dwordx4 v[{b}:{b + 3}], v{84 + 2 * t + hf}, {WS}, s77 offen sc1', 'pre')
        self.od_process(0)
        lab = k.newlabel('od2p')
        k('s_cmp_lt_u32 s2, 240')
        k(f's_cbranch_scc1 {lab}')
        k.cond_begin()
        self.od_process(1)
        k.cond_end()
        k.label(lab)
        self.stamp('restst')

    def od_issue(self, sn, which):
        k = self.k
        sB, sJS = (f's{54 + 2 * which}', f's{55 + 2 * which}')
        k('s_mov_b32 s18, 819200')
        k(f's_mov_b32 {sJS}, {20 * 5120}')
        k(f's_mov_b32 {sB}, {WS_WO}')
        k(f's_cmp_lt_u32 {sn}, 192')
        k('s_cselect_b64 s[16:17], s[60:61], s[52:53]')
        k('s_cmov_b32 s18, 1966080')
        k(f's_cmov_b32 {sJS}, {48 * 5120}')
        k(f's_cmov_b32 {sB}, {WS_WD}')
        k(f's_cselect_b32 s72, 0, 192')
        k(f's_sub_u32 s77, {sn}, s72')
        k('s_lshr_b32 s72, s77, 2')
        k('s_mul_i32 s72, s72, 5120')
        k(f's_add_u32 {sB}, {sB}, s72')
        k('s_and_b32 s72, s77, 3')
        k('s_lshl_b32 s72, s72, 8')
        k(f's_add_u32 {sB}, {sB}, s72')
        k('s_mul_i32 s72, s77, 205')
        k('s_lshr_b32 s72, s72, 10')
        k('s_mul_i32 s73, s72, 5')
        k('s_sub_u32 s73, s77, s73')
        k('s_mul_i32 s72, s72, 40')
        k('s_lshr_b32 s78, s73, 1')
        k('s_mul_i32 s78, s78, 20')
        k('s_and_b32 s79, s73, 1')
        k('s_lshl2_add_u32 s78, s79, s78')
        k('s_cmp_eq_u32 s73, 4')
        k('s_cselect_b32 s78, 16, s78')
        k('s_cselect_b32 s79, 20, 8')
        k('s_add_u32 s72, s72, s78')
        k('s_lshl_b32 s77, s77, 3')
        k(f's_cmp_lt_u32 {sn}, 192')
        k('s_cselect_b32 s77, s77, s72')
        k('s_cselect_b32 s79, 4, s79')
        k('s_mul_i32 s77, s77, 1280')
        k('v_lshrrev_b32 v8, 5, v3')
        k('v_and_b32 v38, 3, v6')
        k('v_mad_u32_u24 v8, v8, s79, v38')
        k('s_movk_i32 s72, 1280')
        k('v_mad_u32_u24 v8, v8, s72, v7')
        k(f's_sub_u32 s83, 11, {sW}')
        k('s_min_u32 s83, s83, 9')
        k(f's_mul_i32 s78, {sW}, 3072')
        k(f's_add_u32 m0, s78, {L_ODS + 12288 * which}')
        k(f's_sub_u32 s72, 3, {sW}')
        k('s_lshl_b32 s72, s72, 7')
        k('s_add_u32 s72, s72, s77')
        k(f'buffer_load_dwordx4 v8, {ODS}, s72 offen lds', f'od{which}')
        k('s_add_u32 s72, s72, 512')
        k('s_add_u32 m0, m0, 1024')
        k(f'buffer_load_dwordx4 v8, {ODS}, s72 offen lds', f'od{which}')
        k('s_lshl_b32 s72, s83, 7')
        k('s_add_u32 s72, s72, s77')
        k('s_add_u32 m0, m0, 1024')
        k(f'buffer_load_dwordx4 v8, {ODS}, s72 offen lds', f'od{which}')

    def od_process(self, which):
        k = self.k
        sB, sJS = (f's{54 + 2 * which}', f's{55 + 2 * which}')
        k(f's_mul_i32 s72, {sW}, 3072')
        k(f's_add_u32 s72, s72, {L_ODS + 12288 * which}')
        k('v_add_u32 v36, s72, v19')
        for t in range(3):
            if t < 2:
                k(f's_sub_u32 s72, {3 + 4 * t}, {sW}')
                k('s_lshl_b32 s72, s72, 6')
            else:
                k('s_lshl_b32 s72, s83, 6')
            k('v_add_u32 v80, s72, v3')
            k('v_mul_u32_u24 v81, 205, v80')
            k('v_lshrrev_b32 v81, 14, v81')
            k('v_mul_u32_u24 v82, 80, v81')
            k('v_sub_u32 v80, v80, v82')
            k('v_bfe_u32 v82, v80, 3, 2')
            k('v_and_b32 v83, 3, v80')
            k('v_lshl_add_u32 v82, v82, 2, v83')
            k('v_bfe_u32 v83, v80, 2, 1')
            k('v_lshl_add_u32 v82, v83, 6, v82')
            k('v_and_b32 v83, 15, v80')
            k('v_cmp_gt_u32 vcc, 64, v80')
            k('v_lshrrev_b32 v80, 5, v80')
            k('v_cndmask_b32 v82, v83, v82, vcc')
            k('v_lshl_add_u32 v82, v80, 7, v82')
            k('v_lshlrev_b32 v82, 4, v82')
            k(f'v_mad_u32_u24 v{88 + t}, v81, {sJS}, v82')
        k.wait_vm(f'od{which}')
        for t in range(3):
            k(f'ds_read_b64_tr_b16 v[{64 + 4 * t}:{65 + 4 * t}], v36 offset:{1024 * t}')
            k(f'ds_read_b64_tr_b16 v[{66 + 4 * t}:{67 + 4 * t}], v36 offset:{1024 * t + 512}')
        for t in range(3):
            k(f'buffer_store_dwordx4 v[{64 + 4 * t}:{67 + 4 * t}], v{88 + t}, {WS}, {sB} offen sc1', 'pre')

    def mod_pass(self, second):
        k = self.k
        G = 64
        vecA = 3 if second else 0
        n = 6 if second else 5
        k(f's_mul_i32 s74, {sW}, 2560')
        k(f's_add_u32 s74, s74, {WS_MODG + vecA * 10240}')
        k(f's_add_u32 s75, s74, {7680 + 3072}')
        k('v_cmp_gt_u32 vcc, 32, v3')
        k('v_add_u32 v93, 7680, v1')
        k('v_cndmask_b32 v93, v93, v1, vcc')
        k('v_cndmask_b32 v94, 1.0, 0, vcc')
        if second:
            k('v_min_u32 v95, 624, v1')
            k(f's_lshr_b32 s76, {sW}, 1')
            k('s_mul_i32 s76, s76, 30720')
            k(f's_and_b32 s72, {sW}, 1')
            k(f's_lshl1_add_u32 s72, {sJC}, s72')
            k('s_mul_i32 s72, s72, 640')
            k('s_add_u32 s76, s76, s72')
            k(f's_add_u32 s76, s76, {WS_MODG + 2 * 10240}')
        else:
            k(f's_lshl_b32 s76, {sCL}, 7')
            k('v_and_b32 v95, 15, v3')
            k('v_lshlrev_b32 v95, 2, v95')
        k('s_mov_b32 s77, 0x04000c0c')
        k('s_mov_b32 s78, 0x0706000c')

        def body():
            k(f'buffer_load_dwordx4 v[{G}:{G + 3}], v1, {WS}, s74 offen sc1')
            k(f'buffer_load_dwordx4 v[{G + 4}:{G + 7}], v1, {WS}, s74 offen offset:1024 sc1')
            k(f'buffer_load_dwordx4 v[{G + 8}:{G + 11}], v93, {WS}, s74 offen offset:2048 sc1')
            k(f'buffer_load_dwordx4 v[{G + 12}:{G + 15}], v1, {WS}, s75 offen sc1')
            k(f'buffer_load_dwordx4 v[{G + 16}:{G + 19}], v1, {WS}, s75 offen offset:1024 sc1')
            if second:
                k(f'buffer_load_dwordx4 v[{G + 20}:{G + 23}], v95, {WS}, s76 offen sc1')
            else:
                k(f'buffer_load_dword v{G + 22}, v95, {WS}, s76 offen offset:{WS_HELLO} sc1')
            k('s_waitcnt vmcnt(0)')
            if not second:
                k(f'v_and_b32 v{G + 23}, -8, v{G + 22}')
            self.allcheck([G + 4 * i + 3 for i in range(6)], 88)
        self.spin(body)
        if not second:
            self.stamp('modin')
            k(f'v_cmp_ne_u32 vcc, s51, v{G + 22}')
            k('s_cmp_eq_u64 vcc, 0')
            k(f's_cselect_b32 {sFAST}, {0 if self.o.force_slow else 1}, 0')
        for i in range(n):
            b = G + 4 * i
            k(f'v_perm_b32 v{b + 3}, v{b}, v{b + 1}, s77')
        for i in range(n):
            b = G + 4 * i
            k(f'v_perm_b32 v{b + 3}, v{b + 3}, v{b + 2}, s78')
        for qp in ('[1,0,3,2]', '[2,3,0,1]'):
            for r in range(G, G + 4 * n):
                k(f'v_add_f32_dpp v{r}, v{r}, v{r} quad_perm:{qp} row_mask:0xf bank_mask:0xf')
        k('v_lshrrev_b32 v88, 2, v3')
        if not second:
            k('v_lshlrev_b32 v88, 4, v88')
            k(f's_mul_i32 s72, {sW}, 1280')
            k('v_add_u32 v88, s72, v88')
            for i in range(5):
                b = G + 4 * i
                self.bf16_round_keep([b, b + 1, b + 2, b + 3], 89)
                if i >= 2:
                    for r in range(b, b + 4):
                        k(f'v_add_f32 v{r}, {"v94" if i == 2 else "1.0"}, v{r}')
                    self.bf16_round_keep([b, b + 1, b + 2, b + 3], 89)
                k(f'ds_write_b128 v88, v[{b}:{b + 3}] offset:{L_MV + 256 * i}')
        else:
            k('v_lshlrev_b32 v88, 3, v88')
            k(f's_mul_i32 s72, {sW}, 80')
            k(f's_add_u32 s72, s72, {P_GA}')
            k('v_add_u32 v91, s72, v88')
            k(f'v_mov_b32 v92, {P_DUMMY}')
            k('v_cmp_gt_u32 vcc, 40, v3')
            k('v_cndmask_b32 v91, v92, v91, vcc')
            k(f's_mul_i32 s72, {sW}, 320')
            k(f's_add_u32 s72, s72, {L_P}')
            k('v_add_u32 v88, s72, v88')
            k('v_add_u32 v90, 960, v88')
            k('v_cmp_gt_u32 vcc, 32, v3')
            k('v_cndmask_b32 v90, v90, v88, vcc')
            for i in range(6):
                b = G + 4 * i
                if 2 <= i < 5:
                    self.bf16_round_keep([b, b + 1, b + 2, b + 3], 89)
                    for r in range(b, b + 4):
                        k(f'v_add_f32 v{r}, {"v94" if i == 2 else "1.0"}, v{r}')
                k(f'v_cvt_pk_bf16_f32 v{b}, v{b}, v{b + 1}')
                k(f'v_cvt_pk_bf16_f32 v{b + 1}, v{b + 2}, v{b + 3}')
                if i < 2:
                    k(f'ds_write_b64 v88, v[{b}:{b + 1}] offset:{128 * i}')
                elif i == 2:
                    k(f'ds_write_b64 v90, v[{b}:{b + 1}] offset:256')
                elif i < 5:
                    k(f'ds_write_b64 v88, v[{b}:{b + 1}] offset:{128 * i + 960}')
                else:
                    k(f'ds_write_b64 v91, v[{b}:{b + 1}]')

    def make_h(self):
        k = self.k
        k('v_lshlrev_b32 v88, 5, v6')
        k(f's_mul_i32 s72, {sW}, 1280')
        k('v_add_u32 v88, s72, v88')
        k('v_lshl_add_u32 v90, v6, 9, v7')
        k('v_cmp_gt_u32 vcc, 32, v3')
        k('v_cndmask_b32 v91, v2, v90, vcc')
        k.wait_lgkm_all()
        for i in range(3):
            for h in range(2):
                k(f'ds_read_b128 v[{96 + 16 * i + 4 * h}:{99 + 16 * i + 4 * h}], v88 offset:{L_MV + 256 * i + 16 * h + 640}')
            for h in range(2):
                k(f'ds_read_b128 v[{104 + 16 * i + 4 * h}:{107 + 16 * i + 4 * h}], v88 offset:{L_MV + 256 * i + 16 * h}')
        for i in range(3):
            xs = [40 + 8 * i + e for e in range(8)]
            for e in range(0, 8, 2):
                k(f'v_pk_mul_f32 v[{xs[e]}:{xs[e] + 1}], v[{xs[e]}:{xs[e] + 1}], v[{96 + 16 * i + e}:{97 + 16 * i + e}]')
            self.bf16_round_keep(xs, 89)
            for e in range(0, 8, 2):
                k(f'v_pk_add_f32 v[{xs[e]}:{xs[e] + 1}], v[{xs[e]}:{xs[e] + 1}], v[{104 + 16 * i + e}:{105 + 16 * i + e}]')
            for e in range(0, 8, 2):
                k(f'v_cvt_pk_bf16_f32 v{24 + 4 * i + e // 2}, v{xs[e]}, v{xs[e] + 1}')
            k(f'buffer_store_dwordx4 v[{24 + 4 * i}:{27 + 4 * i}], {"v90" if i < 2 else "v91"}, {WS}, s86 offen', 'h')
            if i < 2:
                k('s_add_u32 s86, s86, 4096')
        self.publish(PH_H, 'h')
        self.stamp('hpub')

    WO_W = [156 + 4 * i for i in range(25)]
    WGU_W = [256 + 4 * i for i in range(60)]

    def qkv(self):
        k = self.k
        o = self.o
        WQ = 96
        k('v_and_b32 v64, 31, v3')
        k(f's_cmp_eq_u32 {sW}, 3')
        k('s_cselect_b32 s72, 23, 31')
        k('v_min_u32 v6, s72, v64')
        k('v_and_b32 v65, 32, v3')
        k('v_add_lshl_u32 v6, v6, v65, 4')
        k(f's_lshl2_add_u32 s84, {sJ}, {sW}')
        k('s_mul_i32 s89, s84, 40960')
        k(f's_add_u32 s89, s89, {WS_WQ}')
        k('s_mul_i32 s84, s84, 61440')
        k(f's_add_u32 s84, s84, {WS_WGU}')
        k(f's_mul_i32 s85, {sJC}, {20 * 5120}')
        k(f's_mul_i32 s72, {sW}, {25 * 1024}')
        k('s_add_u32 s85, s85, s72')
        k(f's_add_u32 s85, s85, {WS_WO}')
        k(f'v_mov_b32 v66, {f2u(QSCALE):#x}')
        for a in range(4):
            k(f'v_and_b32 v{24 + a}, 0x3ffff, v{20 + a}')
            k(f'v_bfe_u32 v65, v{20 + a}, 18, 6')
            k(f'v_mad_u32_u24 v{24 + a}, v64, v65, v{24 + a}')
            k(f'v_bfe_u32 v{28 + a}, v{20 + a}, 24, 4')
            k(f'v_lshlrev_b32 v{28 + a}, 9, v{28 + a}')
            k(f'v_cmp_gt_i32 vcc, 0, v{20 + a}')
            k(f'v_cndmask_b32 v{16 + a}, 1.0, v66, vcc')
        k(f'v_add_u32 v8, {L_A}, v1')
        k(f'v_add_u32 v9, {L_B}, v1')
        k('v_lshlrev_b32 v10, 2, v3')
        self.flag_off('s74', PH_H)
        k(f's_movk_i32 s75, {WS_PQ}')
        k(f's_mul_i32 s80, {sCL}, {O_CL}')
        k(f's_mul_i32 s72, {sW}, 40960')
        k('s_add_u32 s80, s80, s72')
        k(f's_mul_i32 s72, {sJ}, 1280')
        k('s_add_u32 s80, s80, s72')
        k(f's_add_u32 s80, s80, {WS_O}')

        def body():
            k(f'buffer_load_dwordx4 v[64:67], v1, {WS}, s75 offen sc1')
            k(f'buffer_load_dword v68, v10, {WS}, s74 offen sc1')
            k('s_waitcnt vmcnt(0)')
            self.allcheck([64, 65, 66, 67, 68], 69)
        self.spin(body)
        self.acquire()
        self.stamp('hflag')
        k.barrier()
        k(f's_mul_i32 s74, {sCL}, 163840')
        k(f's_add_u32 s74, s74, {WS_H}')
        slots = [L_A, L_C, L_B, L_A]
        addr = ['v8', 'v1', 'v9', 'v8']
        hd = [self.units_dma('s74', 40960 * q, slots[q], 40, f'h{q}') for q in range(4)]
        wq = self.units_frags([WQ + 4 * i for i in range(40)], 's89', voff='v6', tag='wq')
        wgu = self.units_frags(self.WGU_W, 's84', tag='wgu')
        LOOK = o.wqlook
        self.put_units(hd[0])
        k('s_lshl_b32 s72, s2, 2')
        k(f's_add_u32 s72, s72, {WS_PR}')
        k(f'buffer_store_dword v5, v12, {WS}, s72 offen sc1')
        lab = k.newlabel('ep')
        k('s_cmp_lg_u32 s2, 0')
        k(f's_cbranch_scc1 {lab}')
        k.cond_begin()
        k('v_mov_b32 v64, s50')
        k(f'buffer_store_dword v64, v12, {WS}, 0 offen sc1')
        k.cond_end()
        k.label(lab)
        self.put_units(wq[:LOOK])
        acc = [32, 48]
        FR = 64
        epi = []
        NG = o.wgu_q
        for q in range(4):
            k.wait_vm(f'h{q}')
            k.barrier()
            self.stamp(f'q{q}')
            if q == 1:
                ok = k.newlabel('prok')
                self.allcheck([12, 13, 14, 15], 20)
                k('s_cmp_eq_u64 vcc, 0')
                k(f's_cbranch_scc1 {ok}')
                k.cond_begin()

                def body2():
                    k(f'buffer_load_dwordx4 v[12:15], v1, {WS}, s75 offen offset:{WS_PR - WS_PQ} sc1')
                    k('s_waitcnt vmcnt(0)')
                    self.allcheck([12, 13, 14, 15], 20)
                self.spin(body2)
                k.cond_end()
                k.label(ok)
            k.begin()
            a = acc[q & 1]
            D = 6
            for s in range(D):
                k(f'ds_read_b128 v[{FR + 4 * (s % 8)}:{FR + 4 * (s % 8) + 3}], {addr[q]} offset:{1024 * s}')
            for s in range(40):
                if s + D < 40:
                    t = s + D
                    k(f'ds_read_b128 v[{FR + 4 * (t % 8)}:{FR + 4 * (t % 8) + 3}], {addr[q]} offset:{1024 * t}')
                k(f'v_mfma_f32_32x32x16_bf16 v[{a}:{a + 15}], v[{WQ + 4 * s}:{WQ + 4 * s + 3}], v[{FR + 4 * (s % 8)}:{FR + 4 * (s % 8) + 3}], {"0" if s == 0 else f"v[{a}:{a + 15}]"}')
            w = Weave(k.end())
            if q == 0:
                w.spread(wq[LOOK:], 0, 39 - LOOK)
                w.spread(hd[1], 8, 27)
                w.spread(hd[2], 28, 38)
                k.begin()
                k(f'buffer_load_dwordx4 v[12:15], v1, {WS}, s75 offen offset:{WS_PR - WS_PQ} sc1')
                w.at(27, k.end())
            else:
                if q == 1:
                    w.spread(hd[3], 0, 19)
                    k.begin()
                    self.touch('s80', 10, 20, 20480, 20)
                    w.at(20, k.end())
                w.spread(wgu[NG * (q - 1):NG * q], 0 if q > 1 else 10, 39 if q < 3 else 30)
            w.fill(epi, first=3, budget=12)
            k.put(w.result())
            k.begin()
            for aa in range(4):
                for b in range(4):
                    r = a + 4 * aa + b
                    k(f'v_mul_f32 v{r}, v{16 + aa}, v{r}')
                k(f'v_cvt_pk_bf16_f32 v{a + 4 * aa}, v{a + 4 * aa}, v{a + 4 * aa + 1}')
                k(f'v_cvt_pk_bf16_f32 v{a + 4 * aa + 1}, v{a + 4 * aa + 2}, v{a + 4 * aa + 3}')
                k(f'ds_write_b64 v{24 + aa}, v[{a + 4 * aa}:{a + 4 * aa + 1}]')
                if q < 3:
                    k(f'v_add_u32 v{24 + aa}, v{24 + aa}, v{28 + aa}')
            epi = k.end()
        self.wgu_rest = wgu[3 * NG:]
        k(f's_mul_i32 s72, {sW}, 6')
        k('s_min_u32 s72, s72, 16')
        k('s_lshl_b32 s72, s72, 10')
        k('v_add_u32 v8, s72, v1')
        k(f's_lshl4_add_u32 s76, {sCL}, {sJ}')
        k(f's_mul_i32 s74, s76, {4 * KVB}')
        k(f's_add_u32 s74, s74, {WS_KV}')
        k('s_add_u32 s75, s74, s72')
        k.put(epi)
        k.barrier()
        self.stamp('qkv')
        for t in range(6):
            k(f'ds_read_b128 v[{64 + 4 * t}:{67 + 4 * t}], v8 offset:{L_KVOWN + 1024 * t}')
        for t in range(6):
            if t == 4:
                k('s_add_u32 s75, s75, 4096')
            k(f'buffer_store_dwordx4 v[{64 + 4 * t}:{67 + 4 * t}], v1, {WS}, s75 offen offset:{1024 * (t % 4)} sc1', 'kv')

    def kv_flag(self):
        k = self.k
        k('s_lshl_b32 s72, s76, 7')
        k(f's_lshl_b32 s73, {sJ}, 4')
        k('s_sub_u32 s72, s72, s73')
        k(f's_add_u32 s72, s72, {WS_KVF}')
        k.wait_vm('kv')
        k(f'buffer_store_dword v5, v4, {WS}, s72 offen sc1')
        self.stamp('kvpub')

    def halo(self):
        k = self.k
        k(f's_min_u32 s75, {sCL}, 2')
        k('s_lshl_b32 s75, s75, 4')
        k('s_sub_u32 s75, s76, s75')
        k('s_lshl_b32 s75, s75, 7')
        k(f's_add_u32 s75, s75, {WS_KVF}')
        k(f's_cmp_ge_u32 {sCL}, 2')
        k('s_cselect_b32 s72, 2048, 0')
        k('v_and_b32 v6, 3, v3')
        k('v_lshlrev_b32 v6, 2, v6')
        k('v_bfe_u32 v7, v3, 2, 1')
        k('v_mad_u32_u24 v6, v7, s72, v6')
        self.poll('v6', 's75', 7, False)
        self.stamp('kvflag')
        for d in (1, 2):
            k(f's_cmp_ge_u32 {sCL}, {d}')
            k(f's_cselect_b32 s72, 0, {OOB}')
            k(f's_cselect_b32 s75, {d * 16 * 4 * KVB}, 0')
            k('v_add_u32 v6, s72, v1')
            k('s_sub_u32 s75, s74, s75')
            self.put_units(self.units_dma('s75', 0, L_C + (2 - d) * 4 * KVB, 22, 'halo', voff='v6'))

    QM = [16, 24]; QT = [20, 22]
    CD, CO = 32, 48
    SS = [64, 80]
    OO = [96, 112]
    PP = 128
    KM = [136, 142]; KT = [140, 146]
    VF = 148

    def attn_setup(self):
        k = self.k
        k('v_and_b32 v92, 31, v3')
        k('v_lshrrev_b32 v93, 5, v3')
        k(f's_mul_i32 s72, {sW}, 2560')
        k(f's_add_u32 s72, s72, {L_Q}')
        k('v_add_u32 v94, s72, v1')
        k('v_lshl_add_u32 v95, v92, 3, s72')
        for h in range(2):
            k(f'ds_read_b128 v[{self.QM[h]}:{self.QM[h] + 3}], v94 offset:{1280 * h}')
            k(f'ds_read_b64 v[{self.QT[h]}:{self.QT[h] + 1}], v95 offset:{1280 * h + 1024}')
        k(f's_mul_i32 s72, {sW}, {KVB}')
        k('v_add_u32 v28, s72, v1')
        k('v_lshlrev_b32 v29, 3, v92')
        k('v_add_u32 v29, 1024, v29')
        k('v_mul_u32_u24 v94, 48, v92')
        k('v_add_u32 v94, 1320, v94')
        k('v_cmp_gt_u32 s[48:49], 32, v3')
        k('v_cndmask_b32 v29, v94, v29, s[48:49]')
        k('v_add_u32 v29, s72, v29')
        for h in range(2):
            self.ld_k(h, 8, h)
        k('v_bfe_u32 v94, v3, 2, 2')
        k('v_lshl_add_u32 v94, v93, 2, v94')
        k('v_mul_u32_u24 v30, 48, v94')
        k('v_and_b32 v94, 3, v3')
        k('v_min_u32 v95, 1, v94')
        k('v_add_u32 v95, 4, v95')
        k('v_and_b32 v91, 16, v3')
        k('v_cmp_eq_u32 vcc, 0, v91')
        k('v_cndmask_b32 v94, v95, v94, vcc')
        k('v_lshl_add_u32 v30, v94, 3, v30')
        k('s_add_u32 s72, s72, 1280')
        k('v_add_u32 v30, s72, v30')
        k('v_bfe_u32 v94, v3, 4, 1')
        k('v_mul_u32_u24 v94, 20480, v94')
        k('v_and_b32 v95, 15, v3')
        k('v_lshl_add_u32 v94, v95, 4, v94')
        k('v_lshl_add_u32 v8, v93, 8, v94')
        k('v_cndmask_b32 v9, v2, v94, s[48:49]')
        for h in range(2):
            k(f'v_cndmask_b32 v{self.QT[h]}, 0, v{self.QT[h]}, s[48:49]')
            k(f'v_cndmask_b32 v{self.QT[h] + 1}, 0, v{self.QT[h] + 1}, s[48:49]')
        k('v_lshlrev_b32 v31, 2, v93')
        k('v_sub_u32 v31, v92, v31')
        k(f'v_mov_b32 v7, {f2u(NEG):#x}')

    def masks(self):
        k = self.k
        for i in range(16):
            kj = 8 * (i >> 2) + (i & 3)
            k(f'v_cmp_le_i32 vcc, {kj}, v31')
            k(f'v_cndmask_b32 v{self.CD + i}, v7, 0, vcc')
            k(f'v_cndmask_b32 v{self.CO + i}, 0, v7, vcc')

    def ld_k(self, kset, i, head):
        k = self.k
        off = i * KVB + head * HB
        k(f'ds_read_b128 v[{self.KM[kset]}:{self.KM[kset] + 3}], v28 offset:{off}')
        k(f'ds_read_b64 v[{self.KT[kset]}:{self.KT[kset] + 1}], v29 offset:{off}')

    def ld_v(self, half, i, head):
        k = self.k
        off = i * KVB + head * HB + 768 * half
        b = self.VF + 4 * half
        k(f'ds_read_b64_tr_b16 v[{b}:{b + 1}], v30 offset:{off}')
        k(f'ds_read_b64_tr_b16 v[{b + 2}:{b + 3}], v30 offset:{off + 384}')

    def m_sa(self, sset, kset, head, C):
        S = self.SS[sset]
        self.k(f'v_mfma_f32_32x32x16_bf16 v[{S}:{S + 15}], v[{self.KM[kset]}:{self.KM[kset] + 3}], v[{self.QM[head]}:{self.QM[head] + 3}], {C}')

    def m_sb(self, sset, kset, head):
        S = self.SS[sset]
        self.k(f'v_mfma_f32_32x32x8_bf16 v[{S}:{S + 15}], v[{self.KT[kset]}:{self.KT[kset] + 1}], v[{self.QT[head]}:{self.QT[head] + 1}], v[{S}:{S + 15}]')

    def m_pv(self, half, head, first):
        O = self.OO[head]
        b, p = self.VF + 4 * half, self.PP + 4 * half
        self.k(f'v_mfma_f32_32x32x16_bf16 v[{O}:{O + 15}], v[{b}:{b + 3}], v[{p}:{p + 3}], {"0" if first else f"v[{O}:{O + 15}]"}')

    def cmask(self, i):
        return f'v[{self.CD}:{self.CD + 15}]' if i == 8 else (f'v[{self.CO}:{self.CO + 15}]' if i == 0 else '0')

    def attn_steps(self, seq, firsts):
        k = self.k
        n = len(seq)
        self.ld_v(0, *seq[0])
        self.ld_v(1, *seq[0])
        self.m_sa(0, 0, seq[0][1], self.cmask(seq[0][0]))
        self.m_sb(0, 0, seq[0][1])
        for t in range(n):
            i, h = seq[t]
            S = self.SS[t & 1]

            def e(*xs):
                for x in xs:
                    k(f'v_exp_f32 v{S + x}, v{S + x}')

            def c(x):
                k(f'v_cvt_pk_bf16_f32 v{self.PP + x}, v{S + 2 * x}, v{S + 2 * x + 1}')
            nx = t + 1 < n
            if t:
                self.m_pv(1, seq[t - 1][1], False)
                self.ld_v(1, i, h)
            e(0, 1, 2, 3); c(0)
            if nx:
                self.m_sa((t + 1) & 1, (t + 1) & 1, seq[t + 1][1], self.cmask(seq[t + 1][0]))
            if t + 2 < n:
                self.ld_k(t & 1, *seq[t + 2])
            e(4, 5); c(1); e(6, 7); c(2)
            if nx:
                self.m_sb((t + 1) & 1, (t + 1) & 1, seq[t + 1][1])
            e(8); c(3); e(9, 10, 11); c(4)
            self.m_pv(0, h, firsts and t < 2)
            e(12, 13); c(5); e(14, 15); c(6); c(7)
            if nx:
                self.ld_v(0, *seq[t + 1])
        self.m_pv(1, seq[n - 1][1], False)

    def attention(self):
        k = self.k
        self.attn_setup()
        for h in range(2):
            self.m_sa(h, h, h, '0')
        for h in range(2):
            self.m_sb(h, h, h)
        self.masks()
        for h in range(2):
            S = self.SS[h]
            k(f'v_max3_f32 v{S}, v{S}, v{S + 1}, v{S + 2}')
            for i in range(3, 15, 2):
                k(f'v_max3_f32 v{S}, v{S}, v{S + i}, v{S + i + 1}')
            k(f'v_max_f32 v{S}, v{S}, v{S + 15}')
            k(f'v_mov_b32 v{S + 1}, v{S}')
        for h in range(2):
            S = self.SS[h]
            k(f'v_permlane32_swap_b32 v{S}, v{S + 1}')
        for h in range(2):
            S = self.SS[h]
            k(f'v_max_f32 v{S}, v{S}, v{S + 1}')
            k(f'v_cvt_pk_bf16_f32 v{S}, -v{S}, 0')
            k(f'v_cndmask_b32 v{self.QT[h]}, v{S}, v{self.QT[h]}, s[48:49]')
        self.kv_flag()
        self.attn_steps([(8, 0), (8, 1)], True)
        self.stamp('diag')
        self.halo()
        wo = self.units_frags(self.WO_W, 's85', tag='wo')
        bg = wo + self.wgu_rest
        nb = self.o.bg_pre
        self.put_units(bg[:nb])
        k.wait_vm('halo')
        k.barrier()
        self.stamp('halo')
        seq = [(i, h) for i in range(7, -1, -1) for h in range(2)]
        k.begin()
        self.ld_k(0, *seq[0])
        self.ld_k(1, *seq[1])
        self.attn_steps(seq, False)
        w = Weave(k.end())
        na = self.o.bg_attn
        w.spread(bg[nb:nb + na], 2, w.n - 8)
        self.bg_left = bg[nb + na:]
        k.put(w.result())
        self.stamp('steps')
        k(f's_mov_b32 s72, {f2u(2.0 ** -90):#x}')
        k(f's_mov_b32 s73, {f2u(2.0 ** 64):#x}')
        la, lb = self.OO[0] + 12, self.OO[1] + 12
        k(f'v_cmp_nlt_f32 vcc, s72, v{la}')
        k(f'v_cmp_nlt_f32 s[74:75], s72, v{lb}')
        k(f'v_cmp_ngt_f32 s[76:77], s73, v{la}')
        k(f'v_cmp_ngt_f32 s[78:79], s73, v{lb}')
        k('s_or_b64 vcc, vcc, s[74:75]')
        k('s_or_b64 s[76:77], s[76:77], s[78:79]')
        k('s_or_b64 vcc, vcc, s[76:77]')
        k.wait_lgkm_all()
        if self.o.force_fb:
            k('s_branch .Lfallback')
        else:
            k('s_cbranch_scc1 .Lfallback')
        k.label('.Lfb_ret')
        for h in range(2):
            k(f'v_rcp_f32 v{64 + h}, v{self.OO[h] + 12}')
        for h in range(2):
            O = self.OO[h]
            for i in range(0, 12, 2):
                k(f'v_pk_mul_f32 v[{O + i}:{O + i + 1}], v[{O + i}:{O + i + 1}], v[64:65] {"op_sel:[0,1]" if h else "op_sel_hi:[1,0]"}')
            for i in range(4):
                k(f'v_cvt_pk_bf16_f32 v{68 + 4 * h + i}, v{O + 2 * i}, v{O + 2 * i + 1}')
            for i in range(2):
                k(f'v_cvt_pk_bf16_f32 v{12 + 2 * h + i}, v{O + 8 + 2 * i}, v{O + 9 + 2 * i}')
            k(f'buffer_store_dwordx4 v[{68 + 4 * h}:{71 + 4 * h}], v8, {WS}, s80 offen offset:{512 * h}', 'o')
        k(f'buffer_store_dwordx4 v[12:15], v9, {WS}, s80 offen offset:1024', 'o')

    def fallback(self):
        k = self.k
        k.label('.Lfallback')
        k.fence_hazards()
        k('s_nop 15')
        k(f's_lshl2_add_u32 s74, {sCL}, {sW}')
        k('s_min_u32 s75, s74, 7')
        S = self.SS[0]

        def run(body):
            k(f'v_add_u32 v80, s76, v28')
            k(f'v_add_u32 v81, s76, v29')
            k(f'v_add_u32 v82, s76, v30')

            def step():
                for r in (80, 81, 82):
                    k(f'v_add_u32 v{r}, {-KVB & 0xffffffff:#x}, v{r}')
            body(self.cmask(8))
            step()
            lab, out, done = k.newlabel('al'), k.newlabel('alx'), k.newlabel('ald')
            k('s_mov_b32 s77, s75')
            k('s_cmp_eq_u32 s77, 0')
            k.wait_lgkm_all()
            k.fence_hazards()
            k(f's_cbranch_scc1 {out}')
            k.label(lab)
            body('0')
            step()
            k('s_sub_u32 s77, s77, 1')
            k('s_cmp_lg_u32 s77, 0')
            k.wait_lgkm_all()
            k.fence_hazards()
            k(f's_cbranch_scc1 {lab}')
            k.label(out)
            k('s_cmp_lt_u32 s74, 8')
            k(f's_cbranch_scc1 {done}')
            body(self.cmask(0))
            k.wait_lgkm_all()
            k.fence_hazards()
            k.label(done)
        for h in range(2):
            k(f's_mov_b32 s76, {8 * KVB + h * HB}')
            k(f'v_cndmask_b32 v{self.QT[h]}, 0, v{self.QT[h]}, s[48:49]')
            k(f'v_mov_b32 v83, {f2u(-3.0e38):#x}')

            def score(C):
                k(f'ds_read_b128 v[{self.KM[0]}:{self.KM[0] + 3}], v80')
                k(f'ds_read_b64 v[{self.KT[0]}:{self.KT[0] + 1}], v81')
                self.m_sa(0, 0, h, C)
                self.m_sb(0, 0, h)

            def p1(C):
                score(C)
                for i in range(0, 16, 2):
                    k(f'v_max3_f32 v83, v83, v{S + i}, v{S + i + 1}')
            run(p1)
            k('v_mov_b32 v84, v83')
            k('v_permlane32_swap_b32 v83, v84')
            k('v_max_f32 v83, v83, v84')
            k('v_cvt_pk_bf16_f32 v84, -v83, 0')
            k(f'v_cndmask_b32 v{self.QT[h]}, v84, v{self.QT[h]}, s[48:49]')
            for i in range(16):
                k(f'v_mov_b32 v{self.OO[h] + i}, 0')

            def p2(C):
                score(C)
                for t in range(4):
                    k(f'ds_read_b64_tr_b16 v[{self.VF + 2 * t}:{self.VF + 2 * t + 1}], v82 offset:{384 * t}')
                for i in range(16):
                    k(f'v_exp_f32 v{S + i}, v{S + i}')
                for i in range(8):
                    k(f'v_cvt_pk_bf16_f32 v{self.PP + i}, v{S + 2 * i}, v{S + 2 * i + 1}')
                self.m_pv(0, h, False)
                self.m_pv(1, h, False)
            run(p2)
        k('s_branch .Lfb_ret')

    def ksplit(self, NS, wregs, bring, sbase, tstride, acc, red, upfront, bg=()):
        k = self.k
        nb = len(bring)
        loads = []
        for t in range(4):
            k.begin()
            k(f's_add_u32 s75, {sW}, {t + 1}')
            k('s_and_b32 s75, s75, 3')
            k(f's_mul_i32 s75, s75, {2 * tstride}')
            k(f's_add_u32 s75, s75, {sbase}')
            pre = k.end()
            u = self.units_frags(bring[t % nb], 's75')
            u[0] = pre + u[0]
            loads += u
        self.put_units(loads[:upfront])
        nxt = upfront
        k(f's_mul_i32 s76, {sW}, 15360')
        k('v_add_u32 v9, s76, v1')
        pend = []
        bg = list(bg)
        for t in range(4):
            a = acc[t & 1]
            k.begin()
            for s in range(NS):
                for ft in range(5):
                    d = a + 4 * ft
                    k(f'v_mfma_f32_16x16x32_bf16 v[{d}:{d + 3}], {ur(wregs[s * 5 + ft])}, {ur(bring[t % nb][s])}, {"0" if s == 0 else f"v[{d}:{d + 3}]"}')
            w = Weave(k.end())
            for s in range(NS):
                if nxt < len(loads):
                    assert nxt - nb * NS <= t * NS + s
                    w.at(5 * s + 4, loads[nxt])
                    nxt += 1
            if bg:
                m = (len(bg) + 3 - t) // (4 - t)
                w.spread(bg[:m], 1, w.n - 1)
                bg = bg[m:]
            w.fill(pend, first=6, budget=3)
            k.put(w.result())
            self.stamp(f'ks{t}')
            k.begin()
            if t < 3:
                k(f's_add_u32 s72, {sW}, {t + 1}')
                k('s_and_b32 s72, s72, 3')
                k('s_mul_i32 s72, s72, 15360')
                k(f'v_add_u32 v8, s72, v1')
                for ft in range(5):
                    k(f'ds_write_b128 v8, v[{a + 4 * ft}:{a + 4 * ft + 3}] offset:{L_RED + t * 5120 + ft * 1024}')
            pend = k.end()
        k.barrier()
        a = acc[1]
        for t in range(3):
            for ft in range(5):
                r = red + 20 * t + 4 * ft
                k(f'ds_read_b128 v[{r}:{r + 3}], v9 offset:{L_RED + t * 5120 + ft * 1024}')
        for t in range(3):
            for i in range(0, 20, 2):
                k(f'v_pk_add_f32 v[{a + i}:{a + i + 1}], v[{a + i}:{a + i + 1}], v[{red + 20 * t + i}:{red + 20 * t + i + 1}]')

    def unpack10(self, src, dst):
        k = self.k
        for i in range(10):
            k(f'v_lshlrev_b32 v{dst + 2 * i}, 16, v{src + i}')
            k(f'v_and_b32 v{dst + 2 * i + 1}, 0xffff0000, v{src + i}')

    def lds_cols(self, base, dst, vA, vB):
        k = self.k
        k(f'ds_read_b128 v[{dst}:{dst + 3}], {vA} offset:{base}')
        k(f'ds_read_b128 v[{dst + 4}:{dst + 7}], {vA} offset:{base + 64}')
        k(f'ds_read_b64 v[{dst + 8}:{dst + 9}], {vB} offset:{base + 128}')

    X1 = 22
    CSB = 128

    def csbias(self):
        k = self.k
        k('v_and_b32 v64, 1, v3')
        k('v_mul_u32_u24 v64, 1280, v64')
        k('v_lshrrev_b32 v65, 4, v3')
        k('v_lshlrev_b32 v65, 4, v65')
        k(f'v_add_u32 v65, {P_G2}, v65')
        k('v_sub_u32 v64, v65, v64')
        for s in range(20):
            b = 68 + 4 * (s % 8)
            if s == 0:
                for t in range(6):
                    k(f'ds_read_b128 v[{68 + 4 * t}:{71 + 4 * t}], v64 offset:{64 * t}')
            if s + 6 < 20:
                t = s + 6
                k(f'ds_read_b128 v[{68 + 4 * (t % 8)}:{71 + 4 * (t % 8)}], v64 offset:{64 * t}')
            for ft in range(3):
                d = 104 + 4 * ft
                k(f'v_mfma_f32_16x16x32_bf16 v[{d}:{d + 3}], {ur(256 + 12 * s + 4 * ft)}, v[{b}:{b + 3}], {"0" if s == 0 else f"v[{d}:{d + 3}]"}')
        for i in range(12):
            k(f'v_mov_b32_dpp v{self.CSB + i}, v{104 + i} quad_perm:[0,0,2,2] row_mask:0xf bank_mask:0xf')
            k(f'v_mov_b32_dpp v{self.CSB + 12 + i}, v{104 + i} quad_perm:[1,1,3,3] row_mask:0xf bank_mask:0xf')

    def rowmajor_offsets(self):
        k = self.k
        k('v_and_b32 v16, 15, v3')
        k('v_mul_u32_u24 v16, 1280, v16')
        k('v_lshrrev_b32 v19, 4, v3')
        k('v_lshlrev_b32 v18, 4, v19')
        k('v_lshlrev_b32 v19, 3, v19')
        k('v_add_u32 v17, v16, v19')
        k('v_add_u32 v16, v16, v18')
        k(f'v_add_u32 v18, {L_P}, v18')
        k(f'v_add_u32 v19, {L_P}, v19')
        k(f's_lshl2_add_u32 s90, {sCL}, {sW}')
        k(f's_lshl1_add_u32 s91, s90, {sTH}')
        k('s_mul_i32 s90, s91, 20480')
        k(f's_mul_i32 s72, {sJC}, 160')
        k('s_add_u32 s90, s90, s72')

    def wo(self):
        k = self.k
        X1 = self.X1
        self.rowmajor_offsets()
        k('s_mul_i32 s92, s91, 20480')
        k(f's_mul_i32 s72, {sJC}, 2560')
        k('s_add_u32 s92, s92, s72')
        k(f's_add_u32 s92, s92, {WS_Z}')
        k('s_lshl_b32 s93, s91, 10')
        k(f's_lshr_b32 s72, {sJC}, 1')
        k('s_lshl_b32 s72, s72, 8')
        k('s_add_u32 s93, s93, s72')
        k(f's_add_u32 s93, s93, {WS_ST}')
        k(f's_mul_i32 s82, {sCL}, 393216')
        k(f's_lshl2_add_u32 s72, {sJ}, {sW}')
        k('s_mul_i32 s72, s72, 768')
        k('s_add_u32 s82, s82, s72')
        k(f's_add_u32 s82, s82, {WS_HH}')
        self.publish(PH_O, 'o')
        self.stamp('attn')
        k(f'buffer_load_dwordx4 v[{X1}:{X1 + 3}], v16, {XS}, s90 offen')
        k(f'buffer_load_dwordx4 v[{X1 + 4}:{X1 + 7}], v16, {XS}, s90 offen offset:64')
        k(f'buffer_load_dwordx2 v[{X1 + 8}:{X1 + 9}], v17, {XS}, s90 offen offset:128')
        self.touch('s92', 1, 20, 128, 64)
        self.touch('s93', 1, 2, 128, 64)
        k(f's_and_b32 s72, {sJC}, 1')
        k('s_lshl3_add_u32 s93, s72, s93')
        k(f's_mul_i32 s72, {sJC}, 160')
        k('v_add_u32 v20, s72, v18')
        k('v_add_u32 v21, s72, v19')
        self.lds_cols(P_GA - L_P, 128, 'v18', 'v19')
        self.lds_cols(P_G2 - L_P, 140, 'v20', 'v21')
        k(f's_mul_i32 s94, {sCL}, {O_CL}')
        k(f's_mul_i32 s72, {sTH}, 20480')
        k('s_add_u32 s94, s94, s72')
        k(f's_mul_i32 s72, {sW}, 5120')
        k('s_add_u32 s94, s94, s72')
        k(f's_add_u32 s94, s94, {WS_O}')
        k('v_and_b32 v20, 15, v3')
        k('v_lshlrev_b32 v20, 4, v20')
        k('v_bfe_u32 v21, v3, 4, 1')
        k('v_lshl_add_u32 v21, v21, 3, v20')
        k('v_lshrrev_b32 v64, 5, v3')
        k('v_lshl_add_u32 v21, v64, 8, v21')
        k('v_cmp_gt_u32 vcc, 16, v3')
        k('v_cndmask_b32 v20, v2, v20, vcc')
        self.flag_off('s74', PH_O)
        self.poll('v10', 's74', 64, True)
        self.stamp('oflag')
        quads = [72 + 4 * i for i in range(14)] + [496, 500, 504, 508, 152, 12]
        bring = [quads[5 * t:5 * t + 5] for t in range(4)]
        k.begin()
        self.touch('s82', 6, 48, 49152, 6)
        tch = k.end()
        self.ksplit(5, self.WO_W, bring, 's94', 20480, [32, 52], 156, 20, bg=[tch] + self.bg_left)
        a = 52
        self.unpack10(X1, 216)
        self.unpack10(128, 236)
        for i in range(0, 20, 2):
            k(f'v_pk_fma_f32 v[{a + i}:{a + i + 1}], v[{a + i}:{a + i + 1}], v[{236 + i}:{237 + i}], v[{216 + i}:{217 + i}]')
        for i in range(10):
            k(f'v_cvt_pk_bf16_f32 v{X1 + i}, v{a + 2 * i}, v{a + 2 * i + 1}')
        self.unpack10(X1, 160)
        self.unpack10(140, 180)
        for i in range(0, 20, 2):
            k(f'v_pk_mul_f32 v[{180 + i}:{181 + i}], v[{180 + i}:{181 + i}], v[{160 + i}:{161 + i}]')
        for i in range(10):
            k(f'v_cvt_pk_bf16_f32 v{72 + i}, v{180 + 2 * i}, v{181 + 2 * i}')
        k(f'buffer_store_dwordx4 v[72:75], v1, {WS}, s92 offen', 'z')
        k(f'buffer_store_dwordx4 v[76:79], v1, {WS}, s92 offen offset:1024', 'z')
        k(f'buffer_store_dwordx2 v[80:81], v21, {WS}, s92 offen offset:2048', 'z')
        k('v_pk_add_f32 v[64:65], v[160:161], v[162:163]')
        k('v_pk_mul_f32 v[66:67], v[160:161], v[160:161]')
        k('v_pk_fma_f32 v[66:67], v[162:163], v[162:163], v[66:67]')
        for i in range(4, 20, 2):
            k(f'v_pk_add_f32 v[64:65], v[64:65], v[{160 + i}:{161 + i}]')
            k(f'v_pk_fma_f32 v[66:67], v[{160 + i}:{161 + i}], v[{160 + i}:{161 + i}], v[66:67]')
        k('v_add_f32 v64, v64, v65')
        k('v_add_f32 v65, v66, v67')
        self.rowsum(64, 66)
        self.rowsum(65, 67)
        k(f'buffer_store_dwordx2 v[64:65], v20, {WS}, s93 offen', 'z')
        self.publish(PH_Z, 'z')
        self.stamp('wo')

    WD_EARLY = [152 + 4 * i for i in range(26)] + [496, 500, 504, 508]
    WD_LATE = [256 + 4 * i for i in range(30)]
    HH_B = [[256 + 120 + 4 * i for i in range(12)], [256 + 168 + 4 * i for i in range(12)]]

    def gu(self):
        k = self.k
        o = self.o
        CS_, BI = self.CSB, self.CSB + 12
        slots = [L_A, L_B, 0, L_A]
        self.csbias()
        self.stamp('csb')
        k(f'v_add_u32 v8, {L_A}, v1')
        k(f'v_add_u32 v9, {L_B}, v1')
        addr = ['v8', 'v9', 'v1', 'v8']
        k('v_and_b32 v20, 15, v3')
        k('v_lshlrev_b32 v20, 4, v20')
        k('v_lshrrev_b32 v12, 5, v3')
        k('v_bfe_u32 v13, v3, 4, 1')
        k('s_mov_b32 s72, 49152')
        k('v_mad_u32_u24 v21, v13, s72, v20')
        k('v_lshl_add_u32 v21, v12, 3, v21')
        k('v_mad_u32_u24 v20, v12, s72, v20')
        k('v_lshl_add_u32 v20, v13, 8, v20')
        k(f's_mul_i32 s86, {sJC}, {48 * 5120}')
        k(f's_mul_i32 s72, {sW}, 61440')
        k('s_add_u32 s86, s86, s72')
        k(f's_add_u32 s86, s86, {WS_WD}')
        k(f's_mov_b32 s48, {f2u(-2.0 * 0.7978845608028654 * 1.4426950408889634 * 0.044715):#x}')
        k(f'v_mov_b32 v14, {f2u(-2.0 * 0.7978845608028654 * 1.4426950408889634):#x}')
        k(f's_mul_i32 s94, {sCL}, 163840')
        k(f's_add_u32 s94, s94, {WS_Z}')
        k(f's_lshl_b32 s76, {sCL}, 13')
        k(f's_add_u32 s76, s76, {WS_ST}')
        self.flag_off('s74', PH_Z)
        self.poll('v10', 's74', 64, True)
        self.stamp('zflag')
        zd = [self.units_dma('s94', 40960 * q, slots[q], 40, f'z{q}') for q in range(4)]
        self.put_units(zd[0])
        stl = self.units_frags([96 + 4 * i for i in range(8)], 's76')
        wd = self.units_frags(list(self.WD_EARLY) + list(self.WD_LATE), 's86', tag='wd')
        k.begin()
        for T in range(8):
            b = 96 + 4 * T
            k(f'v_add_f32 v{b}, v{b}, v{b + 2}')
            k(f'v_add_f32 v{b + 1}, v{b + 1}, v{b + 3}')
            k(f'v_mov_b32 v{b + 2}, v{b}')
            k(f'v_mov_b32 v{b + 3}, v{b + 1}')
            k(f'v_permlane16_swap_b32 v{b}, v{b + 2}')
            k(f'v_permlane16_swap_b32 v{b + 1}, v{b + 3}')
            k(f'v_add_f32 v{b}, v{b}, v{b + 2}')
            k(f'v_add_f32 v{b + 1}, v{b + 1}, v{b + 3}')
            k(f'v_mov_b32 v{b + 2}, v{b}')
            k(f'v_mov_b32 v{b + 3}, v{b + 1}')
            k(f'v_permlane32_swap_b32 v{b}, v{b + 2}')
            k(f'v_permlane32_swap_b32 v{b + 1}, v{b + 3}')
            k(f'v_add_f32 v{b}, v{b}, v{b + 2}')
            k(f'v_add_f32 v{b + 1}, v{b + 1}, v{b + 3}')
            k(f'v_mul_f32 v{b + 2}, {f2u(1 / 640):#x}, v{b}')
            k(f'v_mul_f32 v{b + 1}, {f2u(1 / 640):#x}, v{b + 1}')
            k(f'v_fma_f32 v{b + 1}, -v{b + 2}, v{b + 2}, v{b + 1}')
            k(f'v_max_f32 v{b + 1}, 0, v{b + 1}')
            k(f'v_add_f32 v{b + 1}, {f2u(1e-5):#x}, v{b + 1}')
            k(f'v_rsq_f32 v{b}, v{b + 1}')
            k(f'v_mul_f32 v{b + 1}, -v{b + 2}, v{b}')
        epi = k.end()
        acc = [32, 56]
        FR = 80
        for q in range(4):
            k.wait_vm(f'z{q}')
            k.barrier()
            self.stamp(f'g{q}')
            a = acc[q & 1]
            k.begin()
            seq = [(s, tt) for s in range(20) for tt in range(2)]

            def rd(i):
                s, tt = seq[i]
                k(f'ds_read_b128 v[{FR + 4 * (i % 4)}:{FR + 4 * (i % 4) + 3}], {addr[q]} offset:{20480 * tt + 1024 * s}')
            for i in range(3):
                rd(i)
            for i, (s, tt) in enumerate(seq):
                for ft in range(3):
                    d = a + 12 * tt + 4 * ft
                    k(f'v_mfma_f32_16x16x32_bf16 v[{d}:{d + 3}], {ur(256 + 12 * s + 4 * ft)}, v[{FR + 4 * (i % 4)}:{FR + 4 * (i % 4) + 3}], {"0" if s == 0 else f"v[{d}:{d + 3}]"}')
                    if ft == 0 and i + 3 < 40:
                        rd(i + 3)
            w = Weave(k.end())
            if q == 0:
                w.spread(stl, 0, 15)
                w.spread(zd[1], 16, 55)
                w.spread(zd[2], 56, 110)
            elif q == 1:
                w.spread(zd[3], 0, 39)
                w.spread(wd[:12], 40, 119)
            elif q == 2:
                w.spread(wd[12:30], 0, 119)
            else:
                for i in range(30):
                    w.at(max(6 * (i // 3) + 8, 4 * i), wd[30 + i])
            w.fill(epi, first=3 if q else 30, budget=o.gubud)
            k.put(w.result())
            k.begin()
            last = q == 3
            for tt in range(2):
                st = 96 + 4 * (2 * q + tt)
                t0, t1 = st + 2, st + 3
                for ft in range(3):
                    d = a + 12 * tt + 4 * ft
                    for i in range(4):
                        t = t0 if i % 2 == 0 else t1
                        k(f'v_fma_f32 v{t}, v{CS_ + 4 * ft + i}, v{st + 1}, v{BI + 4 * ft + i}')
                        k(f'v_fma_f32 v{d + i}, v{d + i}, v{st}, v{t}')
                    k(f'v_mul_f32 v{t0}, v{d}, v{d}')
                    k(f'v_mul_f32 v{t1}, v{d + 1}, v{d + 1}')
                    k(f'v_fma_f32 v{t0}, v{t0}, s48, v14')
                    k(f'v_fma_f32 v{t1}, v{t1}, s48, v14')
                    k(f'v_mul_f32 v{t0}, v{t0}, v{d}')
                    k(f'v_mul_f32 v{t1}, v{t1}, v{d + 1}')
                    k(f'v_exp_f32 v{t0}, v{t0}')
                    k(f'v_exp_f32 v{t1}, v{t1}')
                    k(f'v_mul_f32 v{d}, v{d}, v{d + 2}')
                    k(f'v_add_f32 v{t0}, 1.0, v{t0}')
                    k(f'v_add_f32 v{t1}, 1.0, v{t1}')
                    k(f'v_rcp_f32 v{t0}, v{t0}')
                    k(f'v_rcp_f32 v{t1}, v{t1}')
                    k(f'v_mul_f32 v{d + 1}, v{d + 1}, v{d + 3}')
                    k(f'v_mul_f32 v{d}, v{d}, v{t0}')
                    k(f'v_mul_f32 v{d + 1}, v{d + 1}, v{t1}')
                    dst = (16 + 2 * tt + ft) if ft < 2 else (6 + tt)
                    k(f'v_cvt_pk_bf16_f32 v{dst}, v{d}, v{d + 1}')
            k('v_permlane32_swap_b32 v16, v18')
            k('v_permlane32_swap_b32 v17, v19')
            k('v_permlane16_swap_b32 v6, v7')
            k('v_permlane16_swap_b32 v16, v17')
            k('v_permlane16_swap_b32 v18, v19')
            k(f'buffer_store_dwordx2 v[6:7], v21, {WS}, s82 offen offset:512', 'hh')
            k(f'buffer_store_dwordx4 v[16:19], v20, {WS}, s82 offen', 'hh')
            if q < 3:
                k('s_add_u32 s82, s82, 98304')
            epi = k.end()
        self.stamp('g4')
        k.put(epi)
        self.stamp('g5')
        self.publish(PH_HH, 'hh')
        self.stamp('gu')

    def down(self):
        k = self.k
        X1 = self.X1
        self.rowmajor_offsets()
        self.lds_cols(P_GB - L_P, 120, 'v18', 'v19')
        k(f's_mul_i32 s94, {sCL}, 393216')
        k(f's_mul_i32 s72, {sTH}, 49152')
        k('s_add_u32 s94, s94, s72')
        k(f's_mul_i32 s72, {sW}, 12288')
        k('s_add_u32 s94, s94, s72')
        k(f's_add_u32 s94, s94, {WS_HH}')
        self.unpack10(120, 130)
        self.flag_off('s74', PH_HH)
        self.poll('v10', 's74', 64, True)
        self.stamp('hhflag')
        bring = self.HH_B + [[72 + 4 * i for i in range(12)]]
        self.ksplit(12, list(self.WD_EARLY) + list(self.WD_LATE), bring, 's94', 49152, [32, 52], 156, self.o.dnlook)
        a = 52
        self.unpack10(X1, 216)
        for i in range(0, 20, 2):
            k(f'v_pk_fma_f32 v[{a + i}:{a + i + 1}], v[{a + i}:{a + i + 1}], v[{130 + i}:{131 + i}], v[{216 + i}:{217 + i}]')
        for i in range(10):
            k(f'v_cvt_pk_bf16_f32 v{72 + i}, v{a + 2 * i}, v{a + 2 * i + 1}')
        k(f'buffer_store_dwordx4 v[72:75], v16, {OUTS}, s90 offen')
        k(f'buffer_store_dwordx4 v[76:79], v16, {OUTS}, s90 offen offset:64')
        k(f'buffer_store_dwordx2 v[80:81], v17, {OUTS}, s90 offen offset:128')

    def finish(self):
        k = self.k
        if self.o.stamps:
            k.wait_vm_all()
            self.stamp('end')
            k.wait_lgkm_all()
            k('s_memtime s[98:99]')
            k('v_writelane_b32 v11, s98, 62')
            k(f'v_writelane_b32 v11, {sFAST}, 63')
            k(f's_lshl2_add_u32 s72, s2, {sW}')
            k('s_lshl_b32 s72, s72, 8')
            k(f's_add_u32 s72, s72, {WS_DBG}')
            k('v_lshlrev_b32 v64, 2, v3')
            k(f'buffer_store_dword v11, v64, {WS}, s72 offen')
            if self.o.dbg:
                sel = [self.stampnames.index(n) + 1 for n in self.o.dbg.split(',')]
                k(f's_lshl2_add_u32 s72, s2, {sW}')
                k(f's_cmp_lg_u32 s72, {self.o.dbgwave}')
                k('s_cbranch_scc1 .Lend')
                k('s_mov_b64 s[28:29], s[68:69]')
                k('s_mov_b32 s30, 256')
                k('v_readlane_b32 s72, v11, 0')
                k('v_mov_b32 v64, 0')
                for i, n in enumerate(sel):
                    k(f'v_readlane_b32 s73, v11, {n}')
                    k('s_sub_u32 s73, s73, s72')
                    k('v_mov_b32 v65, s73')
                    k(f'buffer_store_dword v65, v64, {CS}, 0 offen offset:{4 * i}')
        k.label('.Lend')
        k('s_endpgm')

    def qkv_table(self):
        words = []
        for w in range(4):
            for h in range(2):
                for a in range(4):
                    Qi = 8 * w + 2 * a + h
                    X, q10 = divmod(Qi, 10)
                    head, d4 = divmod(q10, 5)
                    if X == 3:
                        base, mult, stride, isq = P_DUMMY, 0, 0, 0
                    elif X == 2:
                        base, mult, stride, isq = L_KVOWN + head * HB + 1280 + d4 * 8, 48, 11, 0
                    else:
                        org = L_Q + head * 1280 if X == 0 else L_KVOWN + head * HB
                        if d4 < 4:
                            base, mult = org + (d4 >> 1) * 512 + (d4 & 1) * 8, 16
                        else:
                            base, mult = org + 1024, 8
                        stride, isq = (5, 1) if X == 0 else (11, 0)
                    words.append(base | mult << 18 | stride << 24 | isq << 31)
        return words

    def build(self):
        o = self.o
        def pre():
            order = o.order.split(',')
            fns = dict(wqi=self.st_wq_issue, xi=self.st_x_issue, mod=self.st_mod, wqp=self.st_wq_process, ones=self.st_ones,
                       norm=self.st_norm, pq=lambda: (self.wg_flag('wqst', WS_PQ), self.stamp('pq')), ri=self.st_rest_issue,
                       rp=self.st_rest_process, m1=lambda: self.mod_pass(False), h=self.make_h,
                       m2=lambda: (self.mod_pass(True), self.stamp('mod2')))
            assert sorted(order) == sorted(fns)
            self.st_entry()
            for n in order:
                fns[n]()
        steps = [
            ('pre', pre),
            ('qkv', self.qkv),
            ('attn', self.attention),
            ('wo', self.wo),
            ('gu', self.gu),
            ('down', self.down),
        ]
        for name, fn in steps:
            self.k.comment(f'==================== {name}')
            fn()
            if o.stop == name:
                break
        self.finish()
        if o.stop not in ('pre', 'qkv'):
            self.k.assume_vm_empty()
            self.fallback()
        body = self.k.finalize()
        hdr = open('cdna_kernels/' + NAME + '.s.ref').read().split('\n')
        top = [l for l in hdr if l.startswith(';') and '@launch' not in l]
        tab = '\n'.join(f'    .long {w:#010x}' for w in self.qkv_table())
        txt = '\n'.join(top) + f'''
; @launch grid=(256,1,1) block=(256,1,1) lds={LDS_BYTES}
.amdgcn_target "amdgcn-amd-amdhsa--gfx950"
.text
.globl {NAME}_kernel
.p2align 8
.type {NAME}_kernel,@function
{NAME}_kernel:
{body}
.p2align 4
.type .Ltab_qkv,@object
.Ltab_qkv:
{tab}
.Lcode_end:
.section .rodata,"a"
.p2align 6
.amdhsa_kernel {NAME}_kernel
  .amdhsa_next_free_vgpr 512
  .amdhsa_next_free_sgpr 102
  .amdhsa_accum_offset 256
  .amdhsa_group_segment_fixed_size 0
  .amdhsa_kernarg_size 96
  .amdhsa_user_sgpr_count 2
  .amdhsa_user_sgpr_kernarg_segment_ptr 1
  .amdhsa_system_sgpr_workgroup_id_x 1
.end_amdhsa_kernel
'''
        return txt


if __name__ == '__main__':
    ap = argparse.ArgumentParser()
    ap.add_argument('-o', default='cdna_kernels/' + NAME + '.s')
    ap.add_argument('--stop', default=None)
    ap.add_argument('--stamps', action='store_true')
    ap.add_argument('--force-slow', dest='force_slow', action='store_true')
    ap.add_argument('--dbg', default=None)
    ap.add_argument('--dbgwave', type=int, default=401)
    ap.add_argument('--x', default='')
    ap.add_argument('--cyc', action='store_true')
    ap.add_argument('--order', default='wqi,xi,mod,wqp,ones,norm,pq,ri,m1,h,rp,m2')
    ap.add_argument('--wqlook', type=int, default=14)
    ap.add_argument('--wgu-q', dest='wgu_q', type=int, default=12)
    ap.add_argument('--bg-pre', dest='bg_pre', type=int, default=4)
    ap.add_argument('--bg-attn', dest='bg_attn', type=int, default=33)
    ap.add_argument('--gubud', type=int, default=8)
    ap.add_argument('--dnlook', type=int, default=16)
    ap.add_argument('--force-fb', dest='force_fb', action='store_true')
    ap.add_argument('--spin', type=int, default=20000)
    opt = ap.parse_args()
    g = Gen(opt)
    txt = g.build()
    open(opt.o, 'w').write(txt)
    if opt.stamps:
        open(opt.o + '.stamps', 'w').write(' '.join(g.stampnames))
    print('written', opt.o, 'lines', txt.count('\n'), g.k.stats, g.stampnames)
```

```python
import re

A0 = 256
S0 = 1000
VCC = (1106, 1107)
EXEC = (1126, 1127)
M0 = 1124

TRANS = ('v_exp_f32', 'v_log_f32', 'v_rcp_f32', 'v_rsq_f32', 'v_sqrt_f32', 'v_sin_f32', 'v_cos_f32', 'v_rcp_iflag_f32')
RMW_VALU = ('v_fmac_f32', 'v_dot2c_f32_bf16', 'v_pk_fmac_f16', 'v_writelane_b32')

_reg_re = re.compile(r'^(-|\|)?(?:abs\()?([vas])(?:(\d+)|\[(\d+):(\d+)\])\)?\|?$')


def regs_of(op):
    op = op.strip()
    if op == 'vcc':
        return set(VCC)
    if op == 'vcc_lo':
        return {VCC[0]}
    if op == 'vcc_hi':
        return {VCC[1]}
    if op == 'exec':
        return set(EXEC)
    if op == 'exec_lo':
        return {EXEC[0]}
    if op == 'exec_hi':
        return {EXEC[1]}
    if op == 'm0':
        return {M0}
    m = _reg_re.match(op)
    if not m:
        return set()
    base = {'v': 0, 'a': A0, 's': S0}[m.group(2)]
    if m.group(3) is not None:
        return {base + int(m.group(3))}
    lo, hi = int(m.group(4)), int(m.group(5))
    return set(range(base + lo, base + hi + 1))


def split_ops(s):
    out, depth, cur = [], 0, ''
    for ch in s:
        if ch in '[(':
            depth += 1
        if ch in '])':
            depth -= 1
        if ch == ',' and depth == 0:
            out.append(cur.strip())
            cur = ''
        else:
            cur += ch
    if cur.strip():
        out.append(cur.strip())
    return out


class Ins:
    __slots__ = ('text', 'mn', 'ops', 'mods', 'kind', 'rd', 'wr', 'tag', 'passes', 'A', 'B', 'C', 'D', 'sdata', 'dpp', 'meta')

    def __init__(self, text, tag=None):
        self.text = text
        self.tag = tag
        self.meta = None
        t = text.split(';')[0].strip()
        parts = t.split(None, 1)
        self.mn = mn = parts[0]
        rest = parts[1] if len(parts) > 1 else ''
        ops = split_ops(rest)
        mods = ''
        if ops:
            last = ops[-1]
            m = re.match(r'^(\S+(?:\([^)]*\))?)\s+(.*)$', last)
            if m and not last.startswith('hwreg'):
                ops[-1] = m.group(1)
                mods = m.group(2)
        self.ops, self.mods = ops, mods
        self.rd, self.wr = set(), set()
        self.passes = 0
        self.A = self.B = self.C = self.D = None
        self.sdata = set()
        self.dpp = ('quad_perm' in mods or 'row_' in mods or 'wave_' in mods or mn.endswith('_dpp'))
        R = [regs_of(o) for o in ops]
        base = mn
        for suf in ('_e32', '_e64', '_dpp', '_sdwa'):
            if base.endswith(suf):
                base = base[:-len(suf)]
        if mn.startswith('v_mfma'):
            self.kind = 'mfma'
            self.D, self.A, self.B, self.C = R[0], R[1], R[2], R[3]
            self.wr = set(R[0])
            self.rd = R[1] | R[2] | R[3]
            self.passes = 8 if '32x32' in mn else 4
        elif mn.startswith('v_'):
            self.kind = 'trans' if base in TRANS else 'valu'
            if base.startswith('v_cmpx'):
                self.wr = R[0] | set(EXEC)
                self.rd = set().union(*R[1:])
            elif base in ('v_permlane16_swap_b32', 'v_permlane32_swap_b32', 'v_swap_b32'):
                self.wr = R[0] | R[1]
                self.rd = R[0] | R[1]
            elif base in ('v_add_co_u32', 'v_sub_co_u32', 'v_addc_co_u32', 'v_subb_co_u32', 'v_mad_u64_u32'):
                self.wr = R[0] | R[1]
                self.rd = set().union(*R[2:])
            elif base == 'v_nop':
                pass
            else:
                self.wr = set(R[0])
                self.rd = set().union(*R[1:]) if len(R) > 1 else set()
                if base in RMW_VALU or self.dpp:
                    self.rd |= R[0]
                if base == 'v_cndmask_b32' and len(ops) == 3:
                    self.rd |= set(VCC)
        elif mn.startswith('ds_'):
            self.kind = 'ds'
            if mn.startswith('ds_read') or mn.startswith('ds_bpermute') or mn.startswith('ds_permute') or mn.startswith('ds_swizzle') or '_rtn' in mn:
                self.wr = set(R[0])
                self.rd = set().union(*R[1:])
            else:
                self.rd = set().union(*R)
        elif mn.startswith('buffer_wbl2') or mn.startswith('buffer_inv'):
            self.kind = 'vmem'
        elif mn.startswith('buffer_') or mn.startswith('global_'):
            self.kind = 'vmem'
            lds = bool(re.search(r'\blds\b', mods)) or '_lds_' in mn
            if lds:
                self.rd = set().union(*R) | {M0}
                self.meta = 'dma'
            elif '_load' in mn:
                self.wr = set(R[0])
                self.rd = set().union(*R[1:])
            elif '_store' in mn:
                self.rd = set().union(*R)
                data = R[0] if mn.startswith('buffer_') else R[1]
                if len(data) >= 3:
                    self.sdata = set(data)
            elif '_atomic' in mn:
                self.rd = set().union(*R)
                if 'sc0' in mods:
                    self.wr = set(R[0])
            else:
                raise ValueError(text)
        elif mn.startswith('s_load') or mn.startswith('s_buffer_load') or mn in ('s_memtime', 's_memrealtime') or mn.startswith('s_atomic'):
            self.kind = 'smem'
            self.wr = set(R[0])
            self.rd = set().union(*R[1:]) if len(R) > 1 else set()
            if mn.startswith('s_atomic'):
                self.rd |= R[0]
        elif mn in ('s_waitcnt', 's_nop', 's_barrier', 's_endpgm', 's_sleep', 's_setprio', 's_branch') or mn.startswith('s_cbranch'):
            self.kind = 'ctl'
        elif mn.startswith('s_cmp') or mn.startswith('s_bitcmp'):
            self.kind = 'salu'
            self.rd = set().union(*R)
        elif mn in ('s_setpc_b64',):
            self.kind = 'ctl'
            self.rd = set(R[0])
        elif mn.startswith('s_'):
            self.kind = 'salu'
            self.wr = set(R[0])
            self.rd = set().union(*R[1:]) if len(R) > 1 else set()
            if 'saveexec' in mn:
                self.wr |= set(EXEC)
            if mn in ('s_addk_i32', 's_mulk_i32', 's_cmov_b32', 's_cmov_b64'):
                self.rd |= R[0]
        else:
            raise ValueError('unknown instruction: ' + text)


class Pseudo:
    def __init__(self, what, arg=None):
        self.what, self.arg = what, arg


class Builder:
    def __init__(self):
        self.items = []
        self._stack = []
        self._lab = 0

    def __call__(self, text, tag=None):
        for line in text.split('\n'):
            line = line.strip()
            if not line or line.startswith(';'):
                continue
            self.items.append(Ins(line, tag))

    def newlabel(self, stem='L'):
        self._lab += 1
        return f'.L{stem}_{self._lab}'

    def label(self, name):
        self.items.append(Pseudo('label', name))

    def comment(self, s):
        self.items.append(Pseudo('comment', s))

    def wait_vm(self, tag):
        self.items.append(Pseudo('wait_vm', tag))

    def wait_vm_all(self):
        self.items.append(Pseudo('wait_vm', None))

    def wait_lgkm_all(self):
        self.items.append(Pseudo('wait_lgkm', None))

    def wait_lgkm(self, tag):
        self.items.append(Pseudo('wait_lgkm', tag))

    def barrier(self):
        self.wait_lgkm_all()
        self('s_barrier')

    def cond_begin(self):
        self.items.append(Pseudo('cond_begin'))

    def cond_end(self):
        self.items.append(Pseudo('cond_end'))

    def fence_hazards(self):
        self.items.append(Pseudo('fence'))

    def assume_vm_empty(self):
        self.items.append(Pseudo('vm_empty'))

    def raw(self, s):
        self.items.append(Pseudo('raw', s))

    def begin(self):
        self._stack.append(self.items)
        self.items = []

    def end(self):
        out = self.items
        self.items = self._stack.pop()
        return out

    def put(self, items):
        self.items.extend(items)

    def finalize(self):
        out = []
        vmq, lgq = [], []
        cond_stack = []
        hist = []
        pos = [0]
        stats = dict(nops=0, waits=0)

        def emit(text, states=1, ins=None):
            out.append('    ' + text)
            if ins is not None:
                hist.append((ins, pos[0]))
                hist[:] = [(p, pp) for (p, pp) in hist if pos[0] - pp <= 24]
            pos[0] += states

        def do_wait(vm=None, lg=None):
            parts = []
            if vm is not None:
                parts.append(f'vmcnt({vm})')
            if lg is not None:
                parts.append(f'lgkmcnt({lg})')
            if parts:
                emit('s_waitcnt ' + ' '.join(parts))
                stats['waits'] += 1

        def need_count(q, idx, cap):
            n = sum(1 for e in q[idx + 1:] if e['certain'])
            return min(n, cap)

        def retire(q, n):
            keep, c = [], 0
            for e in reversed(q):
                if c >= n:
                    break
                keep.append(e)
                if e['certain']:
                    c += 1
            q[:] = list(reversed(keep))

        def hazard_need(ins):
            need = 0
            cur = pos[0]
            isvalu = ins.kind in ('valu', 'trans')
            base = ins.mn
            for p, ppos in hist:
                dist = cur - ppos - 1
                req = 0
                pv = p.kind in ('valu', 'trans')
                if p.kind == 'mfma':
                    big = {4: 8, 8: 12}[p.passes]
                    if ins.kind == 'mfma':
                        if p.D & (ins.A | ins.B):
                            req = max(req, big)
                        if p.D & ins.C:
                            if not (p.D == ins.C and p.passes == ins.passes):
                                req = max(req, {4: 6, 8: 10}[p.passes])
                        elif p.D & ins.D:
                            req = max(req, {4: 6, 8: 10}[p.passes])
                    elif isvalu or ins.kind in ('vmem', 'ds'):
                        if p.D & (ins.rd | ins.wr):
                            req = max(req, big)
                        if isvalu and (p.C & ins.wr):
                            req = max(req, {4: 3, 8: 7}[p.passes])
                if pv:
                    vw = {r for r in p.wr if r < S0}
                    sw = {r for r in p.wr if r >= S0}
                    if ins.kind == 'mfma' and (vw & ins.rd):
                        req = max(req, 2)
                    if ins.kind == 'mfma' and (set(EXEC) & sw):
                        req = max(req, 4)
                    if isvalu:
                        if p.kind == 'trans' and ins.kind != 'trans' and (vw & (ins.rd | ins.wr)):
                            req = max(req, 1)
                        if base.startswith('v_permlane') and (vw & ins.rd):
                            req = max(req, 2)
                        if ins.dpp and (vw & ins.rd):
                            req = max(req, 2)
                        if (base.startswith('v_readlane') or base.startswith('v_readfirstlane')) and (vw & ins.rd):
                            req = max(req, 1)
                        if sw & ins.rd:
                            req = max(req, 4 if (base.startswith('v_readlane') or base.startswith('v_writelane')) else 2)
                        if set(EXEC) & sw:
                            req = max(req, 5)
                        if ('op_sel' in p.mods or 'dst_sel' in p.mods) and not p.mn.startswith('v_pk') and (vw & (ins.rd | ins.wr)):
                            req = max(req, 1)
                    if p.kind == 'trans' and ins.kind in ('vmem', 'ds') and (vw & ins.rd):
                        req = max(req, 1)
                    if ins.kind == 'vmem' and (sw & ins.rd):
                        req = max(req, 5)
                    if ins.kind in ('salu', 'smem', 'ctl') and (sw & ins.rd):
                        req = max(req, 1)
                if p.kind == 'salu' and M0 in p.wr and ins.meta == 'dma':
                    req = max(req, 1)
                if p.kind == 'vmem' and p.sdata and (p.sdata & ins.wr):
                    req = max(req, 2 if (isvalu or ins.kind == 'mfma') else 1)
                if p.kind == 'ds' and not p.wr and len(p.rd) >= 4 and isvalu and (p.rd & ins.wr):
                    req = max(req, 1)
                if req > dist:
                    need = max(need, req - dist)
            return need

        def pad(n):
            while n > 0:
                k = min(n, 16)
                emit(f's_nop {k - 1}', states=k)
                stats['nops'] += 1
                n -= k

        for it in self.items:
            if isinstance(it, Pseudo):
                if it.what == 'label':
                    out.append(it.arg + ':')
                elif it.what == 'comment':
                    out.append('    ; ' + it.arg)
                elif it.what == 'raw':
                    out.append(it.arg)
                elif it.what == 'wait_vm':
                    idxs = [i for i, e in enumerate(vmq) if it.arg is None or e['tag'] == it.arg]
                    if idxs:
                        n = need_count(vmq, idxs[-1], 63)
                        do_wait(vm=n)
                        retire(vmq, n)
                elif it.what == 'wait_lgkm':
                    idxs = [i for i, e in enumerate(lgq) if it.arg is None or e['tag'] == it.arg]
                    if idxs:
                        n = 0 if any(e['smem'] for e in lgq) else need_count(lgq, idxs[-1], 15)
                        do_wait(lg=n)
                        retire(lgq, n)
                elif it.what == 'need':
                    vm = lg = None
                    idxs = [i for i, e in enumerate(vmq) if e['wr'] & it.arg]
                    if idxs:
                        vm = need_count(vmq, idxs[-1], 63)
                    idxs = [i for i, e in enumerate(lgq) if e['wr'] & it.arg]
                    if idxs:
                        lg = 0 if any(e['smem'] for e in lgq) else need_count(lgq, idxs[-1], 15)
                    do_wait(vm, lg)
                    if vm is not None:
                        retire(vmq, vm)
                    if lg is not None:
                        retire(lgq, lg)
                elif it.what == 'vm_empty':
                    vmq[:] = []
                elif it.what == 'cond_begin':
                    cond_stack.append((list(vmq), list(lgq), list(hist), pos[0]))
                elif it.what == 'cond_end':
                    v0, l0, h0, p0 = cond_stack.pop()
                    delta = pos[0] - p0
                    inner = [(p, pp) for (p, pp) in hist if pp >= p0]
                    hist[:] = [(p, pp + delta) for (p, pp) in h0] + inner
                    for q, q0 in ((vmq, v0), (lgq, l0)):
                        new = [e for e in q if not any(e is x for x in q0)]
                        for e in new:
                            e['certain'] = False
                        q[:] = q0 + new
                elif it.what == 'fence':
                    need = 0
                    for p, ppos in hist:
                        dist = pos[0] - ppos - 1
                        req = 0
                        if p.kind == 'mfma':
                            req = {4: 8, 8: 12}[p.passes]
                        elif p.kind in ('valu', 'trans'):
                            req = 5 if any(r >= S0 for r in p.wr) else 2
                        elif p.kind == 'vmem' and p.sdata:
                            req = 2
                        elif p.kind == 'salu' and M0 in p.wr:
                            req = 1
                        need = max(need, req - dist)
                    pad(need)
                continue
            ins = it
            touch = ins.rd | ins.wr
            vm = lg = None
            tv = ins.rd if ins.kind == 'vmem' else touch
            idxs = [i for i, e in enumerate(vmq) if e['wr'] & tv]
            if idxs:
                vm = need_count(vmq, idxs[-1], 63)
            tl = ins.rd if ins.kind == 'ds' else touch
            idxs = [i for i, e in enumerate(lgq) if e['wr'] & tl]
            if idxs:
                lg = 0 if any(e['smem'] for e in lgq) else need_count(lgq, idxs[-1], 15)
            do_wait(vm, lg)
            if vm is not None:
                retire(vmq, vm)
            if lg is not None:
                retire(lgq, lg)
            if ins.mn == 's_waitcnt':
                m = re.search(r'vmcnt\((\d+)\)', ins.text)
                if m:
                    retire(vmq, int(m.group(1)))
                m = re.search(r'lgkmcnt\((\d+)\)', ins.text)
                if m and (int(m.group(1)) == 0 or not any(e['smem'] for e in lgq)):
                    retire(lgq, int(m.group(1)))
            pad(hazard_need(ins))
            states = 1
            if ins.mn == 's_nop':
                states = int(ins.ops[0], 0) + 1
            emit(ins.text, states=states, ins=ins)
            if ins.kind == 'vmem':
                vmq.append(dict(wr=set(ins.wr), tag=ins.tag, certain=True, smem=False))
            elif ins.kind == 'ds':
                lgq.append(dict(wr=set(ins.wr), tag=ins.tag, certain=True, smem=False))
            elif ins.kind == 'smem':
                lgq.append(dict(wr=set(ins.wr), tag=ins.tag, certain=True, smem=True))
        self.stats = stats
        return '\n'.join(out)


def interleave(main, fill, start=0, every=1, per=1):
    out, fi, n = [], 0, 0
    for it in main:
        out.append(it)
        if isinstance(it, Ins) and it.kind == 'mfma':
            if n >= start and (n - start) % every == 0:
                c = 0
                while fi < len(fill) and c < per:
                    f = fill[fi]
                    out.append(f)
                    fi += 1
                    if isinstance(f, Ins):
                        c += 2 if f.kind == 'trans' else 1
            n += 1
    out.extend(fill[fi:])
    return out


def n_mfma(main):
    return sum(1 for it in main if isinstance(it, Ins) and it.kind == 'mfma')


class Weave:
    def __init__(self, main):
        self.main = main
        self.n = n_mfma(main)
        self.slots = [[] for _ in range(self.n)]
        self.tail = []

    def spread(self, units, first=0, last=None):
        if last is None:
            last = self.n - 1
        m = len(units)
        for i, u in enumerate(units):
            pos = first + (i * (last - first + 1)) // m
            self.slots[pos].extend(u)

    def at(self, pos, items):
        self.slots[pos].extend(items)

    def fill(self, items, first=0, budget=8):
        def cost(it):
            if not isinstance(it, Ins):
                return 0
            if it.kind == 'trans':
                return 8
            if it.kind == 'salu':
                return 1
            return 4
        fi, carry = 0, 0
        for pos in range(first, self.n):
            carry = min(carry + budget, budget + 4)
            while fi < len(items) and cost(items[fi]) <= carry:
                carry -= cost(items[fi])
                self.slots[pos].append(items[fi])
                fi += 1
        self.tail.extend(items[fi:])

    def result(self):
        out, n = [], 0
        for it in self.main:
            out.append(it)
            if isinstance(it, Ins) and it.kind == 'mfma':
                out.extend(self.slots[n])
                n += 1
        out.extend(self.tail)
        return out


def slots_of(it):
    if not isinstance(it, Ins):
        return 0
    if it.kind == 'trans' or it.mn.startswith('v_permlane'):
        return 2
    if it.mn.startswith('ds_write_b128'):
        return 5
    if it.mn.startswith('ds_write_b64'):
        return 3
    if it.kind == 'vmem' and '_store' in it.mn:
        return 3
    return 1


def is_mem(it):
    return isinstance(it, Ins) and it.kind in ('ds', 'vmem')


class Sched:
    def __init__(self, main):
        self.head = []
        self.mf, self.mem, self.val = [], [], []
        for it in main:
            if isinstance(it, Ins) and it.kind == 'mfma':
                self.mf.append(it)
                self.mem.append([])
                self.val.append([])
            elif not self.mf:
                self.head.append(it)
            elif is_mem(it):
                self.mem[-1].append(it)
            else:
                self.val[-1].append(it)
        self.n = len(self.mf)
        self.tail = []

    def cap(self, g):
        return 6 if self.mf[g].passes == 8 else 2

    def used(self, g):
        u = sum(slots_of(i) for i in self.mem[g]) + sum(slots_of(i) for i in self.val[g])
        if self.mem[g] and isinstance(self.mem[g][0], Ins) and self.mem[g][0].kind == 'salu':
            u -= 1
        return u

    def at(self, g, unit):
        self.mem[g].extend(unit)

    def pre(self, g, unit):
        self.mem[g][0:0] = unit

    def post(self, g, unit):
        self.val[g].extend(unit)

    def spread(self, units, first=0, last=None, mod=None):
        if last is None:
            last = self.n - 1
        gaps = [g for g in range(first, last + 1) if mod is None or g % mod[0] == mod[1]]
        m = len(units)
        for i, u in enumerate(units):
            self.mem[gaps[(i * len(gaps)) // m]].extend(u)

    def fill(self, items, first=0, window=24, last=None):
        items = [it for it in items]
        assert all(isinstance(it, Ins) for it in items)
        n = len(items)
        SCC = 1200
        def rw(it):
            rd, wr = set(it.rd), set(it.wr)
            if it.kind == 'salu':
                rd.add(SCC); wr.add(SCC)
            return rd, wr
        RW = [rw(it) for it in items]
        preds = []
        for i in range(n):
            p = set()
            for j in range(i):
                if (RW[j][1] & (RW[i][0] | RW[i][1])) or (RW[j][0] & RW[i][1]) or (is_mem(items[i]) and is_mem(items[j])):
                    p.add(j)
            preds.append(p)
        where = [None] * n
        left = list(range(n))
        g = first
        end = self.n if last is None else last + 1
        while g < end and left:
            free = self.cap(g) - self.used(g)
            best = None
            for i in left[:window]:
                if any(where[j] is None for j in preds[i]):
                    continue
                it = items[i]
                c = slots_of(it)
                if is_mem(it):
                    if any(where[j] == (g, 'v') for j in preds[i]) or (c > free and self.used(g) > 0):
                        continue
                    score = 3
                else:
                    if c > free:
                        continue
                    if self.val[g]:
                        prev = self.val[g][-1]
                        if isinstance(prev, Ins) and (prev.wr & it.rd) and (prev.kind == 'trans' or it.mn.startswith('v_permlane')):
                            continue
                    score = 2 if c == 2 else 1
                if best is None or score > best[0]:
                    best = (score, i)
            if best is None:
                g += 1
                continue
            i = best[1]
            left.remove(i)
            if is_mem(items[i]):
                self.mem[g].append(items[i]); where[i] = (g, 'm')
            else:
                self.val[g].append(items[i]); where[i] = (g, 'v')
        (self.tail if last is None else self.val[last]).extend(items[i] for i in left)
        self.ntail = len(left)
        self.lastgap = g

    def result(self):
        out = list(self.head)
        for g in range(self.n):
            out.append(self.mf[g])
            if g + 1 < self.n:
                out.append(Pseudo('need', self.mf[g + 1].A | self.mf[g + 1].B))
            out.extend(self.mem[g])
            out.extend(self.val[g])
        out.extend(self.tail)
        return out
```

```python
import os, sys, struct, argparse
sys.path.insert(0, 'dev')
from asmb import Builder, Sched, Ins

NAME = 'adaLN_cond__sliding_block__glu_gated_geglu__prompt'

WS_EPOCH = 0
WS_HELLO = 0x400
WS_PQ = 0x1000
WS_PR = 0x1400
WS_KVF = 0x8000
WS_FLAG = 0x2000
WS_MODG = 0x10000
WS_ST = 0x20000
WS_WQ = 0x100000
WS_WO = 0x380000
WS_WGU = 0x480000
WS_WD = 0x840000
WS_H = 0xA40000
WS_O = 0xCC0000
WS_Z = 0xF40000
WS_KV = 0x11C0000
WS_HH = 0x1740000
O_CL = 163840
if 'NOARENA' not in os.environ:
    WS_Z = WS_H
    WS_O = WS_HH
    O_CL = 393216
WS_DBG = 0x1D40000
WS_SIZE = 0x1E00000
WS_BASE = int(os.environ.get('WSBASE', '0'), 0)
OOB = 0x40000000
PH_H, PH_KV, PH_O, PH_Z, PH_HH = range(5)

KVB = 5632
L_C = 0
L_KVOWN = 8 * KVB
L_Q = 12 * KVB
L_P = L_Q + 10240
L_A = 81920
L_B = 122880
LDS_BYTES = 163840
L_X = L_Q
L_MOD = L_C
L_WQS = L_C + 20480
L_MV = L_C + 36864
L_STAT = L_C + 43008
L_SC = L_C + 43520
L_GUS = L_KVOWN
L_ODS = [L_X, L_GUS]
KM_OFF = [0, 1024]
KT_OFF = 2048
V_OFF = [2560, 4096]
P_SB = L_P
P_G2 = L_P + 1280
P_GA = L_P + 2560
P_GB = L_P + 2720
P_DUMMY = L_P + 3072
L_RED = 0

sW = 's3'
WS = 's[4:7]'; XS = 's[8:11]'; WQS = 's[12:15]'; ODS = 's[16:19]'; WGS = 's[20:23]'; WUS = 's[24:27]'
CS = 's[28:31]'; WMS = 's[32:35]'; OUTS = 's[36:39]'
sCL, sJ, sTAG, sFAST = 's40', 's41', 's42', 's43'
sJC, sTH = 's46', 's47'

DUMMY = 0
QSCALE = 20 ** -0.5 * 1.4426950408889634
NEG = -1.0e30


def f2u(x):
    return struct.unpack('<I', struct.pack('<f', x))[0]


def vr(a, n=1, t='v'):
    return f'{t}{a}' if n == 1 else f'{t}[{a}:{a + n - 1}]'


def ur(a, n=4):
    return vr(a, n, 'v') if a < 256 else vr(a - 256, n, 'a')


def zipper(a, b, lead):
    out = list(a[:lead])
    a = a[lead:]
    for i in range(max(len(a), len(b))):
        out += a[i:i + 1] + b[i:i + 1]
    return out


class Gen:
    def __init__(self, opt):
        self.o = opt
        self.k = Builder()
        self.nstamp = 0
        self.stampnames = []
        self.ntx = ' nt' if 'ntx' in opt.x else ''
        self.nt = '' if 'nont' in opt.x else ' nt'

    def stamp(self, name):
        if not self.o.stamps:
            return
        k = self.k
        n = self.nstamp
        assert n < 60
        self.nstamp += 1
        self.stampnames.append(name)
        k('s_memtime s[100:101]' if self.o.cyc else 's_memrealtime s[100:101]')
        k(f'v_writelane_b32 v11, s100, {n + 1}')

    def dma(self, srd, voff, soff, lds, imm=0, tag=None, sc1=False):
        k = self.k
        k(f's_mov_b32 m0, {lds}')
        k(f'buffer_load_dwordx4 {voff}, {srd}, {soff} offen offset:{imm}{" sc1" if sc1 else ""} lds', tag)

    def bf16_round_keep(self, regs, tmp):
        k = self.k
        for i in range(0, len(regs), 2):
            k(f'v_cvt_pk_bf16_f32 v{tmp}, v{regs[i]}, v{regs[i + 1]}')
            k(f'v_lshlrev_b32 v{regs[i]}, 16, v{tmp}')
            k(f'v_and_b32 v{regs[i + 1]}, 0xffff0000, v{tmp}')

    def flag_off(self, sdst, phase, scl=sCL):
        k = self.k
        k(f's_lshl_b32 {sdst}, {scl}, 8')
        k(f's_add_u32 {sdst}, {sdst}, {WS_FLAG + phase * 0x1000}')

    def publish(self, phase, tag):
        k = self.k
        self.flag_off('s72', phase)
        k.wait_vm(tag)
        lab, done = k.newlabel('pubslow'), k.newlabel('pubdone')
        k(f's_cmp_eq_u32 {sFAST}, 0')
        k(f's_cbranch_scc1 {lab}')
        k.cond_begin()
        k(f'buffer_store_dword v5, v4, {WS}, s72 offen')
        k(f's_branch {done}')
        k.cond_end()
        k.label(lab)
        k.cond_begin()
        k('buffer_wbl2 sc1')
        k('s_waitcnt vmcnt(0)')
        k(f'buffer_store_dword v5, v4, {WS}, s72 offen sc1')
        k.cond_end()
        k.label(done)

    def acquire(self):
        k = self.k
        skip = k.newlabel('acq')
        k(f's_cmp_lg_u32 {sFAST}, 0')
        k(f's_cbranch_scc1 {skip}')
        k('buffer_inv sc1')
        k('s_waitcnt vmcnt(0)')
        k.label(skip)

    def spin(self, body):
        k = self.k
        lab, out = k.newlabel('poll'), k.newlabel('pollx')
        k('s_mov_b32 s73, 0')
        k.fence_hazards()
        k.label(lab)
        k('s_add_u32 s73, s73, 1')
        body()
        k(f's_cmp_ge_u32 s73, {self.o.spin}')
        k(f's_cbranch_scc1 {out}')
        k('s_cmp_lg_u64 vcc, 0')
        k(f's_cbranch_scc1 {lab}')
        k.label(out)
        k.assume_vm_empty()

    def allcheck(self, regs, t):
        k = self.k
        if len(regs) == 1:
            k(f'v_cmp_ne_u32 vcc, {sTAG}, v{regs[0]}')
            return
        k(f'v_xor_b32 v{t}, {sTAG}, v{regs[0]}')
        rest = regs[1:]
        while rest:
            k(f'v_xor_b32 v{t + 1}, {sTAG}, v{rest[0]}')
            if len(rest) > 1:
                k(f'v_xor_b32 v{t + 2}, {sTAG}, v{rest[1]}')
                k(f'v_or3_b32 v{t}, v{t}, v{t + 1}, v{t + 2}')
            else:
                k(f'v_or_b32 v{t}, v{t}, v{t + 1}')
            rest = rest[2:]
        k(f'v_cmp_ne_u32 vcc, 0, v{t}')

    def poll(self, voff, soff, vt, local):
        k = self.k

        def body():
            k(f'buffer_load_dword v{vt}, {voff}, {WS}, {soff} offen sc1')
            k('s_waitcnt vmcnt(0)')
            self.allcheck([vt], vt)
        self.spin(body)
        if local:
            self.acquire()

    def units_frags(self, regs, sbase, voff='v1', tag=None, first=0):
        k = self.k
        out = []
        for n, r in enumerate(regs):
            i = n + first
            k.begin()
            if i and i % 4 == 0:
                k(f's_add_u32 {sbase}, {sbase}, 4096')
            if not ('nobg' in self.o.x and tag in ('wgu', 'wo', 'wd')):
                k(f'buffer_load_dwordx4 {ur(r)}, {voff}, {WS}, {sbase} offen offset:{1024 * (i % 4)} sc1', tag)
            out.append(k.end())
        return out

    def units_dma(self, ssrc, srcadd, ldsbase, n, tag, voff='v1'):
        k = self.k
        c = (n + 3) // 4
        out = []
        for i in range(c):
            k.begin()
            if i == 0:
                k(f's_mul_i32 s88, {sW}, {c}')
                if c * 4 != n:
                    k(f's_min_u32 s88, s88, {n - c}')
                k('s_lshl_b32 s88, s88, 10')
                k(f's_add_u32 s87, {ssrc}, s88')
                if srcadd:
                    k(f's_add_u32 s87, s87, {srcadd}')
                k(f's_add_u32 m0, s88, {ldsbase}')
            elif i % 4 == 0:
                k('s_add_u32 s87, s87, 4096')
                k('s_add_u32 m0, m0, 4096')
            k(f'buffer_load_dwordx4 {voff}, {WS}, s87 offen offset:{1024 * (i % 4)} sc1 lds', tag)
            out.append(k.end())
        return out

    def take(self, n):
        out, self.bg = self.bg[:n], self.bg[n:]
        return out

    def put_units(self, units):
        for u in units:
            self.k.put(u)

    def rowsum(self, r, t):
        k = self.k
        k(f'v_mov_b32 v{t}, v{r}')
        k(f'v_permlane16_swap_b32 v{r}, v{t}')
        k(f'v_add_f32 v{r}, v{r}, v{t}')
        k(f'v_mov_b32 v{t}, v{r}')
        k(f'v_permlane32_swap_b32 v{r}, v{t}')
        k(f'v_add_f32 v{r}, v{r}, v{t}')

    def touch(self, soff, per, n, stride, t):
        k = self.k
        if 'notouch' in self.o.x:
            return
        magic = (65536 + per - 1) // per
        assert all((l * magic) >> 16 == l // per for l in range(64))
        if per == 1:
            k(f'v_mul_u32_u24 v{t}, {stride}, v3')
        else:
            k(f'v_mul_u32_u24 v{t}, {magic}, v3')
            k(f'v_lshrrev_b32 v{t}, 16, v{t}')
            k(f'v_mul_u32_u24 v{t}, {stride - per * 128}, v{t}')
            k(f'v_lshl_add_u32 v{t}, v3, 7, v{t}')
        k(f'v_sub_u32 v{t + 1}, {n - 1}, v3')
        k(f'v_and_b32 v{t + 1}, {OOB}, v{t + 1}')
        k(f'v_or_b32 v{t}, v{t}, v{t + 1}')
        k(f'buffer_load_dword v{DUMMY}, v{t}, {WS}, {soff} offen sc1')


    def st_entry(self):
        k = self.k
        o = self.o
        k('s_load_dwordx8 s[64:71], s[0:1], 64')
        k('s_load_dwordx16 s[48:63], s[0:1], 0')
        k('s_cmp_ge_u32 s2, 256')
        k('s_cbranch_scc1 .Lend')
        if o.stamps:
            k('s_memrealtime s[100:101]')
            k('s_memtime s[98:99]')
        k('s_getpc_b64 s[44:45]')
        k.label('.Lpc0')
        k('v_mov_b32 v37, v0')
        k('s_bfe_u32 s72, s2, 0x30003')
        k('v_lshrrev_b32 v2, 2, v37')
        k('v_lshl_add_u32 v2, s72, 6, v2')
        k('v_lshlrev_b32 v2, 7, v2')
        k('v_min_u32 v2, .Lcode_end-.Lpc0-4, v2')
        k('global_load_dword v0, v2, s[44:45]')
        k('v_lshrrev_b32 v2, 6, v37')
        k('v_and_b32 v3, 63, v37')
        k('v_readfirstlane_b32 s3, v2')
        k('s_mov_b32 s34, 4915200')
        k('s_mov_b32 s35, 0x20000')
        k('s_movk_i32 s30, 1280')
        k('s_mov_b32 s31, 0x20000')
        k('s_sub_u32 s74, s2, 16')
        k('s_cmp_lt_u32 s2, 240')
        k('s_cselect_b32 s74, s2, s74')
        k('s_lshr_b32 s75, s74, 2')
        k('s_and_b32 s76, s74, 3')
        k('v_lshrrev_b32 v6, 3, v3')
        k('v_and_b32 v7, 7, v3')
        k('v_lshlrev_b32 v7, 4, v7')
        k('s_movk_i32 s72, 7680')
        k('v_mad_u32_u24 v39, v6, s72, v7')
        k('s_mul_i32 s77, s76, 160')
        k(f's_lshl3_add_u32 s77, {sW}, s77')
        k('s_mul_i32 s77, s77, 7680')
        k('s_lshl_b32 s72, s75, 7')
        k('s_add_u32 s77, s77, s72')
        k('v_min_u32 v9, 79, v37')
        k('v_lshlrev_b32 v9, 2, v9')
        k('s_mul_i32 s79, s76, 320')
        k.wait_lgkm_all()
        if o.stamps:
            k('v_mov_b32 v11, s100')
            k('v_writelane_b32 v11, s98, 61')
        k('s_mov_b64 s[32:33], s[64:65]')
        k('s_mov_b64 s[28:29], s[62:63]')
        if WS_BASE:
            k(f's_add_u32 s70, s70, {WS_BASE}')
            k('s_addc_u32 s71, s71, 0')
        k('s_load_dword s42, s[70:71], 0')
        k(f'buffer_load_dword v10, v9, {CS}, s79 offen')
        k('s_mov_b32 s95, s77')
        lab = k.newlabel('me')
        k(f's_cmp_ge_u32 s2, {o.late}')
        k(f's_cbranch_scc1 {lab}')
        k.cond_begin()
        self.mod_issue('mod')
        k.cond_end()
        k.label(lab)
        self.stamp('modiss')
        for srd, size, p in ((4, WS_SIZE, 70), (8, 2621440, 48), (12, 2457600, 50), (20, 1966080, 56), (24, 1966080, 58), (36, 2621440, 66)):
            k(f's_mov_b64 s[{srd}:{srd + 1}], s[{p}:{p + 1}]')
            k(f's_mov_b32 s{srd + 2}, {size}')
            k(f's_mov_b32 s{srd + 3}, 0x20000')
        k('s_mov_b32 s19, 0x20000')
        k('s_and_b32 s72, s2, 7')
        k('s_lshr_b32 s73, s2, 3')
        k(f's_and_b32 {sJ}, s73, 15')
        k('s_lshr_b32 s73, s73, 4')
        k(f's_lshl1_add_u32 {sCL}, s72, s73')
        k(f's_and_b32 {sJC}, {sJ}, 7')
        k(f's_lshr_b32 {sTH}, {sJ}, 3')
        k('v_lshlrev_b32 v1, 4, v3')
        k(f'v_mov_b32 v2, {OOB}')
        k('s_mul_i32 s80, s74, 171')
        k('s_lshr_b32 s80, s80, 9')
        k('s_mul_i32 s81, s80, 3')
        k('s_sub_u32 s81, s74, s81')

    def mod_issue(self, tag):
        k = self.k
        k(f's_lshl_b32 s72, {sW}, 10')
        k(f's_add_u32 m0, s72, {L_MOD}')
        for t in range(5):
            k(f'buffer_load_dwordx4 v39, {WMS}, s95 offen{self.nt} lds', tag)
            if t < 4:
                k(f's_add_u32 s95, s95, {32 * 7680}')
                k('s_add_u32 m0, m0, 4096')

    def mod_core(self, tag):
        k = self.k
        k('s_mov_b32 s73, 0x07060503')
        k('s_mov_b32 s77, 0x07060502')
        k('s_mov_b32 s78, 0x07060501')
        k.wait_vm(tag)
        k.barrier()
        for s in range(5):
            k(f'ds_read_b64_tr_b16 v[{200 + 4 * s}:{201 + 4 * s}], v17 offset:{L_MOD + 4096 * s}')
            k(f'ds_read_b64_tr_b16 v[{202 + 4 * s}:{203 + 4 * s}], v17 offset:{L_MOD + 4096 * s + 512}')
            k(f'ds_read_b128 v[{220 + 4 * s}:{223 + 4 * s}], v18 offset:{L_SC + 64 * s}')
        for s in range(5):
            k(f'v_mfma_f32_16x16x32_bf16 v[80:83], v[{200 + 4 * s}:{203 + 4 * s}], v[{220 + 4 * s}:{223 + 4 * s}], {"0" if s == 0 else "v[80:83]"}')
        k('v_perm_b32 v80, v80, v83, s73')
        k('v_perm_b32 v81, v81, v83, s77')
        k('v_perm_b32 v82, v82, v83, s78')
        k('v_mov_b32 v83, s42')
        k(f'buffer_store_dwordx4 v[80:83], v15, {WS}, s96 offen sc1')
        k.fence_hazards()

    def st_wq_issue(self):
        k = self.k
        k('s_movk_i32 s72, 3840')
        k('v_mad_u32_u24 v8, v6, s72, v7')
        k('s_mul_i32 s77, s80, 30720')
        k('s_mul_i32 s72, s81, 1280')
        k('s_add_u32 s77, s77, s72')
        k(f's_mul_i32 s78, {sW}, 3072')
        k(f's_add_u32 m0, s78, {L_WQS}')
        k(f's_add_u32 s82, {sW}, 8')
        k('s_min_u32 s82, s82, 9')
        k(f's_lshl_b32 s72, {sW}, 7')
        k('s_add_u32 s72, s72, s77')
        k(f'buffer_load_dwordx4 v8, {WQS}, s72 offen{self.nt} lds', 'wq')
        k('s_add_u32 s72, s72, 512')
        k('s_add_u32 m0, m0, 1024')
        k(f'buffer_load_dwordx4 v8, {WQS}, s72 offen{self.nt} lds', 'wq')
        k('s_lshl_b32 s72, s82, 7')
        k('s_add_u32 s72, s72, s77')
        k('s_add_u32 m0, m0, 1024')
        k(f'buffer_load_dwordx4 v8, {WQS}, s72 offen{self.nt} lds', 'wq')

    def st_addr(self):
        k = self.k
        k('s_lshl_b32 s97, s80, 9')
        k(f's_add_u32 s97, s97, {WS_WQ}')
        k('s_mul_i32 s78, s81, 40')
        k('s_sub_u32 s78, s78, 40')
        k('s_cmp_eq_u32 s81, 0')
        k('s_cmov_b32 s78, 80')
        k(f's_mov_b32 s79, 163840')
        k(f's_mov_b32 s73, 40960')
        for t in range(3):
            if t < 2:
                k(f's_lshl_b32 s72, {sW}, 6')
                if t:
                    k('s_add_u32 s72, s72, 256')
            else:
                k('s_lshl_b32 s72, s82, 6')
            k('v_add_u32 v76, s72, v3')
            k('v_mul_u32_u24 v77, 205, v76')
            k('v_lshrrev_b32 v77, 13, v77')
            k('v_mul_u32_u24 v78, 40, v77')
            k('v_sub_u32 v76, v76, v78')
            k('v_add_u32 v76, s78, v76')
            k('v_lshrrev_b32 v78, 5, v76')
            k('v_and_b32 v76, 31, v76')
            k('v_lshlrev_b32 v76, 4, v76')
            k('v_mad_u32_u24 v76, v78, s73, v76')
            k(f'v_mad_u32_u24 v{20 + t}, v77, s79, v76')
        k(f's_cmp_ge_u32 {sW}, 2')
        k(f's_cselect_b32 s72, {OOB}, 0')
        k('v_or_b32 v22, s72, v22')
        k('s_cmp_ge_u32 s2, 240')
        k(f's_cselect_b32 s72, {OOB}, 0')
        for t in range(3):
            k(f'v_or_b32 v{20 + t}, s72, v{20 + t}')

    def st_wq_process(self):
        k = self.k
        k(f's_mul_i32 s72, {sW}, 3072')
        k('v_add_u32 v36, s72, v19')
        k.wait_vm('wq')
        for t in range(3):
            k(f'ds_read_b64_tr_b16 v[{64 + 4 * t}:{65 + 4 * t}], v36 offset:{L_WQS + 1024 * t}')
            k(f'ds_read_b64_tr_b16 v[{66 + 4 * t}:{67 + 4 * t}], v36 offset:{L_WQS + 1024 * t + 512}')
        for t in range(3):
            k(f'buffer_store_dwordx4 v[{64 + 4 * t}:{67 + 4 * t}], v{20 + t}, {WS}, s97 offen sc1', 'wqst')
        self.stamp('wqst')

    def st_x_issue(self):
        k = self.k
        k('v_mul_u32_u24 v36, 80, v7')
        k('v_lshl_add_u32 v36, v6, 4, v36')
        k('v_cmp_gt_u32 vcc, 32, v3')
        k('v_cndmask_b32 v38, v2, v36, vcc')
        k(f's_lshl4_add_u32 s72, {sCL}, {sJ}')
        k('s_mul_i32 s72, s72, 10240')
        k(f's_mul_i32 s73, {sW}, 320')
        k('s_add_u32 s72, s72, s73')
        k(f'buffer_load_dwordx4 v[24:27], v36, {XS}, s72 offen{self.ntx}')
        k(f'buffer_load_dwordx4 v[28:31], v36, {XS}, s72 offen offset:128{self.ntx}')
        k(f'buffer_load_dwordx4 v[32:35], v38, {XS}, s72 offen offset:256{self.ntx}')
        k(f's_mul_i32 s86, {sCL}, 163840')
        k(f's_lshr_b32 s72, {sJ}, 2')
        k('s_mul_i32 s72, s72, 40960')
        k('s_add_u32 s86, s86, s72')
        k(f's_and_b32 s72, {sJ}, 3')
        k('s_lshl_b32 s72, s72, 7')
        k('s_add_u32 s86, s86, s72')
        k(f's_mul_i32 s72, {sW}, 10240')
        k('s_add_u32 s86, s86, s72')
        k(f's_add_u32 s86, s86, {WS_H}')
        self.stamp('xiss')

    def st_mod(self):
        k = self.k
        k('s_getreg_b32 s49, hwreg(HW_REG_XCC_ID, 0, 3)')
        k('s_mul_i32 s42, s42, 0x9e3779b1')
        k('s_add_u32 s42, s42, 0x7f4a7c15')
        k('s_mov_b32 s50, s42')
        k('s_and_b32 s42, s42, -8')
        k('s_or_b32 s51, s42, s49')
        k(f's_lshl2_add_u32 s72, {sJ}, {sW}')
        k('s_lshl_b32 s72, s72, 2')
        k('v_mov_b32 v4, s72')
        k('v_cmp_eq_u32 vcc, 0, v3')
        k('v_cndmask_b32 v4, v2, v4, vcc')
        k('v_mov_b32 v5, s42')
        k('v_cmp_eq_u32 vcc, 0, v37')
        k('v_cndmask_b32 v12, v2, 0, vcc')
        k('v_mov_b32 v14, s51')
        k(f's_lshl_b32 s72, {sCL}, 7')
        k(f's_lshl2_add_u32 s72, {sJ}, s72')
        k(f'buffer_store_dword v14, v12, {WS}, s72 offen offset:{WS_HELLO} sc1')
        k('v_lshlrev_b32 v14, 16, v10')
        k('v_and_b32 v15, 0xffff0000, v10')
        for r in (14, 15):
            k(f'v_mul_f32 v{r + 2}, {f2u(-1.4426950408889634):#x}, v{r}')
        for r in (14, 15):
            k(f'v_exp_f32 v{r + 2}, v{r + 2}')
        for r in (14, 15):
            k(f'v_add_f32 v{r + 2}, 1.0, v{r + 2}')
        for r in (14, 15):
            k(f'v_rcp_f32 v{r + 2}, v{r + 2}')
        for r in (14, 15):
            k(f'v_mul_f32 v{r}, v{r}, v{r + 2}')
        k('v_cvt_pk_bf16_f32 v14, v14, v15')
        k(f'ds_write_b32 v9, v14 offset:{L_SC}')
        k('v_bfe_u32 v13, v3, 2, 2')
        k('v_lshlrev_b32 v13, 7, v13')
        k('v_and_b32 v14, 3, v3')
        k('v_lshl_add_u32 v15, v14, 3, v13')
        k('v_lshrrev_b32 v16, 4, v3')
        k('v_lshl_add_u32 v17, v16, 10, v15')
        k(f's_lshl_b32 s72, {sW}, 5')
        k('v_add_u32 v17, s72, v17')
        k('v_lshlrev_b32 v18, 4, v16')
        k('v_lshl_add_u32 v19, v16, 5, v15')
        k('v_lshlrev_b32 v15, 6, v16')
        k('v_and_b32 v38, 15, v3')
        k('v_cmp_eq_u32 vcc, 0, v38')
        k('v_cndmask_b32 v15, v2, v15, vcc')
        k(f's_lshl2_add_u32 s96, s75, {sW}')
        k('s_lshl_b32 s96, s96, 8')
        k('s_lshl4_add_u32 s96, s76, s96')
        k(f's_add_u32 s96, s96, {WS_MODG}')

    def st_modc(self):
        k = self.k
        lab = k.newlabel('mc')
        k(f's_cmp_ge_u32 s2, {self.o.late}')
        k(f's_cbranch_scc1 {lab}')
        k.cond_begin()
        self.mod_core('mod')
        k.cond_end()
        k.label(lab)
        self.stamp('modpub')

    def st_addr2(self):
        k = self.k
        k('s_cmp_ge_u32 s2, 240')
        k(f's_cselect_b32 s59, {OOB}, 0')
        k('v_lshrrev_b32 v90, 1, v14')
        k('v_lshl_add_u32 v90, v90, 3, v13')
        k('v_and_b32 v92, 1, v14')
        k('v_lshl_add_u32 v90, v92, 10, v90')
        k('v_add_u32 v90, v90, v18')
        k(f's_lshl_b32 s60, {sW}, 12')
        k(f's_add_u32 s60, s60, {L_GUS}')
        k('v_add_u32 v90, s60, v90')
        k(f's_sub_u32 s61, 3, {sW}')
        k('s_lshl_b32 s61, s61, 10')
        k(f's_add_u32 s61, s61, {L_GUS}')
        k('v_add_u32 v91, s61, v19')
        k('v_and_b32 v92, 9, v3')
        k('v_bfe_u32 v93, v3, 1, 1')
        k('v_lshl_add_u32 v92, v93, 2, v92')
        k('v_bfe_u32 v93, v3, 2, 1')
        k('v_lshl_add_u32 v92, v93, 1, v92')
        k('v_lshlrev_b32 v92, 4, v92')
        k('v_or_b32 v92, s59, v92')
        k(f's_mov_b32 s63, {61440 - 3072}')
        for t in range(2):
            for hf in range(2):
                d = 80 + 2 * t + hf
                k(f's_add_u32 s60, s64, {32 * t + 4 * hf}')
                k('v_add_u32 v93, s60, v16')
                k('v_mul_u32_u24 v94, 171, v93')
                k('v_lshrrev_b32 v94, 9, v94')
                k('v_lshl_add_u32 v93, v93, 10, v92')
                k(f'v_mad_u32_u24 v{d}, v94, s63, v93')
        k(f's_cmp_lt_u32 {sW}, 2')
        k(f's_cselect_b32 s62, {OOB}, 0')
        for t in range(3):
            k(f's_sub_u32 s61, {3 + 4 * t}, {sW}')
            k('s_lshl_b32 s61, s61, 6')
            k('v_add_u32 v92, s61, v3')
            k('v_mul_u32_u24 v93, 205, v92')
            k('v_lshrrev_b32 v93, 14, v93')
            k('v_mul_u32_u24 v94, 80, v93')
            k('v_sub_u32 v92, v92, v94')
            k('v_bfe_u32 v94, v92, 3, 2')
            k('v_and_b32 v95, 3, v92')
            k('v_lshl_add_u32 v94, v94, 2, v95')
            k('v_bfe_u32 v95, v92, 2, 1')
            k('v_lshl_add_u32 v94, v95, 6, v94')
            k('v_cmp_gt_u32 vcc, 64, v92')
            k('v_and_b32 v95, 15, v92')
            k('v_lshrrev_b32 v92, 5, v92')
            k('v_cndmask_b32 v94, v95, v94, vcc')
            k('v_lshl_add_u32 v94, v92, 7, v94')
            k('v_lshlrev_b32 v94, 4, v94')
            if t == 2:
                k('v_or_b32 v94, s62, v94')
            k(f'v_mad_u32_u24 v{84 + t}, v93, s55, v94')
            k(f'v_mad_u32_u24 v{87 + t}, v93, s57, v94')

    def st_ones(self):
        k = self.k
        k('v_and_b32 v92, 32, v3')
        k('v_add_u32 v92, v92, v21')
        k('v_mov_b32 v94, 0x3f80')
        k('v_mov_b32 v95, 0')
        k(f'ds_write_b64 v92, v[94:95] offset:{L_KVOWN + V_OFF[0] + 40}')

    def st_norm(self):
        k = self.k
        X = list(range(40, 64))
        for i in range(12):
            k(f'v_lshlrev_b32 v{40 + 2 * i}, 16, v{24 + i}')
            k(f'v_and_b32 v{41 + 2 * i}, 0xffff0000, v{24 + i}')
        self.stamp('xin')
        k('v_pk_add_f32 v[76:77], v[40:41], v[42:43]')
        k('v_pk_mul_f32 v[78:79], v[40:41], v[40:41]')
        k('v_pk_fma_f32 v[78:79], v[42:43], v[42:43], v[78:79]')
        for i in range(2, 12):
            k(f'v_pk_add_f32 v[76:77], v[76:77], v[{40 + 2 * i}:{41 + 2 * i}]')
            k(f'v_pk_fma_f32 v[78:79], v[{40 + 2 * i}:{41 + 2 * i}], v[{40 + 2 * i}:{41 + 2 * i}], v[78:79]')
        k('v_add_f32 v76, v76, v77')
        k('v_add_f32 v77, v78, v79')
        k('v_add_f32_dpp v76, v76, v76 row_ror:8 row_mask:0xf bank_mask:0xf')
        k('v_add_f32_dpp v77, v77, v77 row_ror:8 row_mask:0xf bank_mask:0xf')
        self.rowsum(76, 78)
        self.rowsum(77, 79)
        k('v_lshlrev_b32 v78, 1, v7')
        k(f'v_add_u32 v78, {L_STAT}, v78')
        k(f's_lshl_b32 s72, {sW}, 3')
        k('v_add_u32 v79, s72, v78')
        k(f'ds_write_b64 v79, v[76:77]')
        k.barrier()
        k(f'ds_read_b128 v[88:91], v78')
        k(f'ds_read_b128 v[92:95], v78 offset:16')
        k('v_pk_add_f32 v[88:89], v[88:89], v[90:91]')
        k('v_pk_add_f32 v[92:93], v[92:93], v[94:95]')
        k('v_pk_add_f32 v[88:89], v[88:89], v[92:93]')
        k(f'v_mul_f32 v88, {f2u(1 / 640):#x}, v88')
        k(f'v_mul_f32 v89, {f2u(1 / 640):#x}, v89')
        k('v_fma_f32 v89, -v88, v88, v89')
        k('v_max_f32 v89, 0, v89')
        self.bf16_round_keep([88, 89], 90)
        k(f'v_add_f32 v89, {f2u(1e-5):#x}, v89')
        self.bf16_round_keep([88, 89], 90)
        k('v_sqrt_f32 v89, v89')
        self.bf16_round_keep([88, 89], 90)
        k('v_rcp_f32 v89, v89')
        for i in range(12):
            k(f'v_pk_add_f32 v[{40 + 2 * i}:{41 + 2 * i}], v[{40 + 2 * i}:{41 + 2 * i}], v[88:89] op_sel_hi:[1,0] neg_lo:[0,1] neg_hi:[0,1]')
        self.bf16_round_keep(X, 90)
        for i in range(12):
            k(f'v_pk_mul_f32 v[{40 + 2 * i}:{41 + 2 * i}], v[{40 + 2 * i}:{41 + 2 * i}], v[88:89] op_sel:[0,1]')
        self.bf16_round_keep(X, 90)

    def wg_flag(self, tag, base):
        k = self.k
        self.stamp('norm')
        k.wait_vm(tag)
        self.stamp('ack')
        k.barrier()
        k('s_lshl_b32 s72, s2, 2')
        k(f's_add_u32 s72, s72, {base}')
        k(f'buffer_store_dword v5, v12, {WS}, s72 offen sc1')

    def late_mod(self, fn):
        k = self.k
        if self.o.late >= 240:
            return
        lab = k.newlabel('ml')
        k(f's_sub_u32 s72, s2, {self.o.late}')
        k(f's_cmp_ge_u32 s72, {240 - self.o.late}')
        k(f's_cbranch_scc1 {lab}')
        k.cond_begin()
        fn('modl')
        k.cond_end()
        k.label(lab)

    def st_rest_prep(self):
        k = self.k
        self.od_prep('s2', 0)
        k('s_add_u32 s48, s2, 16')
        self.od_prep('s48', 1)
        k('s_movk_i32 s72, 3072')
        k('v_mad_u32_u24 v36, v6, s72, v7')
        k('s_mul_i32 s65, s80, 24576')
        k('s_lshl_b32 s72, s81, 10')
        k('s_add_u32 s65, s65, s72')
        k(f's_lshl_b32 s72, {sW}, 7')
        k('s_add_u32 s65, s65, s72')

    def rest_units(self, vg, vo):
        k = self.k

        def od(which):
            so = f's{66 + which}'
            k(f's_sub_u32 s88, 3, {sW}')
            k('s_lshl_b32 s88, s88, 10')
            k(f's_add_u32 m0, s88, {L_ODS[which]}')
            k(f'buffer_load_dwordx4 v{vo + which}, {ODS}, {so} offen{self.nt} lds', 'rest')
            k(f's_add_u32 {so}, {so}, 512')
            k('s_add_u32 m0, m0, 4096')
            k(f'buffer_load_dwordx4 v{vo + which}, {ODS}, {so} offen{self.nt} lds', 'rest')
            lab = k.newlabel('od3')
            k(f's_cmp_lt_u32 {sW}, 2')
            k(f's_cbranch_scc1 {lab}')
            k.cond_begin()
            k(f's_add_u32 {so}, {so}, 512')
            k('s_add_u32 m0, m0, 4096')
            k(f'buffer_load_dwordx4 v{vo + which}, {ODS}, {so} offen{self.nt} lds', 'rest')
            k.cond_end()
            k.label(lab)
        k.begin()
        lab, done = k.newlabel('od2'), k.newlabel('rid')
        k('s_cmp_ge_u32 s2, 240')
        k(f's_cbranch_scc1 {lab}')
        k.cond_begin()
        k(f's_lshl_b32 s88, {sW}, 12')
        k(f's_add_u32 m0, s88, {L_GUS}')
        for t in range(2):
            k(f'buffer_load_dwordx4 v{vg}, {WGS}, s65 offen{self.nt} lds', 'rest')
            k('s_add_u32 m0, m0, 1024')
            k(f'buffer_load_dwordx4 v{vg}, {WUS}, s65 offen{self.nt} lds', 'rest')
            if t == 0:
                k('s_add_u32 m0, m0, 1024')
                k('s_add_u32 s65, s65, 512')
        k(f's_branch {done}')
        k.cond_end()
        k.label(lab)
        k.cond_begin()
        od(1)
        k.cond_end()
        k.label(done)
        u0 = k.end()
        k.begin()
        od(0)
        return [u0, k.end()]

    def rest_reads(self):
        k = self.k
        for t in range(2):
            for hf in range(2):
                b = 8 * t + 4 * hf
                k(f'ds_read_b64_tr_b16 a[{b}:{b + 1}], v90 offset:{2048 * t + 64 * hf}')
                k(f'ds_read_b64_tr_b16 a[{b + 2}:{b + 3}], v90 offset:{2048 * t + 64 * hf + 512}')
        for which in range(2):
            for t in range(3):
                b = 16 + 12 * which + 4 * t
                off = L_ODS[which] - L_GUS + 4096 * t
                k(f'ds_read_b64_tr_b16 a[{b}:{b + 1}], v91 offset:{off}')
                k(f'ds_read_b64_tr_b16 a[{b + 2}:{b + 3}], v91 offset:{off + 512}')

    def rest_stores(self):
        k = self.k
        us = []
        for i in range(4):
            k.begin()
            k(f'buffer_store_dwordx4 a[{4 * i}:{4 * i + 3}], v{80 + i}, {WS}, s58 offen sc1', 'pre')
            us.append(k.end())
        for t in range(3):
            k.begin()
            k(f'buffer_store_dwordx4 a[{16 + 4 * t}:{19 + 4 * t}], v{84 + t}, {WS}, s54 offen sc1', 'pre')
            us.append(k.end())
        k.begin()
        lab = k.newlabel('od2p')
        k('s_cmp_lt_u32 s2, 240')
        k(f's_cbranch_scc1 {lab}')
        k.cond_begin()
        for t in range(3):
            k(f'buffer_store_dwordx4 a[{28 + 4 * t}:{31 + 4 * t}], v{87 + t}, {WS}, s56 offen sc1', 'pre')
        k.cond_end()
        k.label(lab)
        us.append(k.end())
        return us

    def od_prep(self, sn, which):
        k = self.k
        sB, sJS = (f's{54 + 2 * which}', f's{55 + 2 * which}')
        if which == 0:
            k('s_mov_b32 s18, 819200')
        k(f's_mov_b32 {sJS}, {20 * 5120}')
        k(f's_mov_b32 {sB}, {WS_WO}')
        k(f's_cmp_lt_u32 {sn}, 192')
        if which == 0:
            k('s_cselect_b64 s[16:17], s[60:61], s[52:53]')
            k('s_cmov_b32 s18, 1966080')
        k(f's_cmov_b32 {sJS}, {48 * 5120}')
        k(f's_cmov_b32 {sB}, {WS_WD}')
        k(f's_cselect_b32 s72, 0, 192')
        k(f's_sub_u32 s77, {sn}, s72')
        k('s_lshr_b32 s72, s77, 2')
        k('s_mul_i32 s72, s72, 5120')
        k(f's_add_u32 {sB}, {sB}, s72')
        k('s_and_b32 s72, s77, 3')
        k('s_lshl_b32 s72, s72, 8')
        k(f's_add_u32 {sB}, {sB}, s72')
        k('s_mul_i32 s72, s77, 205')
        k('s_lshr_b32 s72, s72, 10')
        k('s_mul_i32 s73, s72, 5')
        k('s_sub_u32 s73, s77, s73')
        k('s_mul_i32 s72, s72, 40')
        k('s_lshr_b32 s78, s73, 1')
        k('s_mul_i32 s78, s78, 20')
        k('s_and_b32 s79, s73, 1')
        k('s_lshl2_add_u32 s78, s79, s78')
        k('s_cmp_eq_u32 s73, 4')
        k('s_cselect_b32 s78, 16, s78')
        k('s_cselect_b32 s79, 20, 8')
        k('s_add_u32 s72, s72, s78')
        k('s_lshl_b32 s77, s77, 3')
        k(f's_cmp_lt_u32 {sn}, 192')
        k('s_cselect_b32 s77, s77, s72')
        k('s_cselect_b32 s79, 4, s79')
        k('s_mul_i32 s77, s77, 1280')
        k('v_lshrrev_b32 v8, 5, v3')
        k('v_and_b32 v9, 3, v6')
        k('v_mad_u32_u24 v8, v8, s79, v9')
        k('s_movk_i32 s72, 1280')
        k(f'v_mad_u32_u24 v{38 + which}, v8, s72, v7')
        k(f's_sub_u32 s72, 3, {sW}')
        k('s_lshl_b32 s72, s72, 7')
        k(f's_add_u32 s{66 + which}, s72, s77')

    def mod_pass(self, second, between=None):
        k = self.k
        G = 64
        vecA = 3 if second else 0
        n = 6 if second else 5
        k(f's_mul_i32 s74, {sW}, 2560')
        k(f's_add_u32 s74, s74, {WS_MODG + vecA * 10240}')
        k(f's_add_u32 s75, s74, {7680 + 3072}')
        k('v_cmp_gt_u32 vcc, 32, v3')
        k('v_add_u32 v93, 7680, v1')
        k('v_cndmask_b32 v93, v93, v1, vcc')
        k('v_cndmask_b32 v94, 1.0, 0, vcc')
        if second:
            k('v_min_u32 v95, 624, v1')
            k(f's_lshr_b32 s76, {sW}, 1')
            k('s_mul_i32 s76, s76, 30720')
            k(f's_and_b32 s72, {sW}, 1')
            k(f's_lshl1_add_u32 s72, {sJC}, s72')
            k('s_mul_i32 s72, s72, 640')
            k('s_add_u32 s76, s76, s72')
            k(f's_add_u32 s76, s76, {WS_MODG + 2 * 10240}')
        else:
            k(f's_lshl_b32 s76, {sCL}, 7')
            k('v_and_b32 v95, 15, v3')
            k('v_lshlrev_b32 v95, 2, v95')
        k(f's_movk_i32 s79, {WS_PR}')
        k('s_mov_b32 s77, 0x04000c0c')
        k('s_mov_b32 s78, 0x0706000c')

        def body():
            k(f'buffer_load_dwordx4 v[{G}:{G + 3}], v1, {WS}, s74 offen sc1')
            k(f'buffer_load_dwordx4 v[{G + 4}:{G + 7}], v1, {WS}, s74 offen offset:1024 sc1')
            k(f'buffer_load_dwordx4 v[{G + 8}:{G + 11}], v93, {WS}, s74 offen offset:2048 sc1')
            k(f'buffer_load_dwordx4 v[{G + 12}:{G + 15}], v1, {WS}, s75 offen sc1')
            k(f'buffer_load_dwordx4 v[{G + 16}:{G + 19}], v1, {WS}, s75 offen offset:1024 sc1')
            if second:
                k(f'buffer_load_dwordx4 v[{G + 20}:{G + 23}], v95, {WS}, s76 offen sc1')
                if not self.early:
                    k(f'buffer_load_dwordx4 v[128:131], v1, {WS}, s79 offen sc1')
            else:
                k(f'buffer_load_dword v{G + 22}, v95, {WS}, s76 offen offset:{WS_HELLO} sc1')
            k('s_waitcnt vmcnt(0)')
            if not second:
                k(f'v_and_b32 v{G + 23}, -8, v{G + 22}')
            self.allcheck([G + 4 * i + 3 for i in range(6)] + ([128, 129, 130, 131] if second and not self.early else []), 88)
            if second:
                k('s_cbranch_vccz 1')
                k('s_sleep 8')
        self.spin(body)
        if between is not None:
            between()
        if not second:
            self.stamp('modin')
            k(f'v_cmp_ne_u32 vcc, s51, v{G + 22}')
            k('s_cmp_eq_u64 vcc, 0')
            k(f's_cselect_b32 {sFAST}, {0 if self.o.force_slow else 1}, 0')
        for i in range(n):
            b = G + 4 * i
            k(f'v_perm_b32 v{b + 3}, v{b}, v{b + 1}, s77')
        for i in range(n):
            b = G + 4 * i
            k(f'v_perm_b32 v{b + 3}, v{b + 3}, v{b + 2}, s78')
        for qp in ('[1,0,3,2]', '[2,3,0,1]'):
            for r in range(G, G + 4 * n):
                k(f'v_add_f32_dpp v{r}, v{r}, v{r} quad_perm:{qp} row_mask:0xf bank_mask:0xf')
        k('v_lshrrev_b32 v88, 2, v3')
        if not second:
            k('v_lshlrev_b32 v88, 4, v88')
            k(f's_mul_i32 s72, {sW}, 1280')
            k(f's_add_u32 s72, s72, {L_MV}')
            k('v_add_u32 v88, s72, v88')
            for i in range(5):
                b = G + 4 * i
                self.bf16_round_keep([b, b + 1, b + 2, b + 3], 89)
                if i >= 2:
                    for r in range(b, b + 4):
                        k(f'v_add_f32 v{r}, {"v94" if i == 2 else "1.0"}, v{r}')
                    self.bf16_round_keep([b, b + 1, b + 2, b + 3], 89)
                k(f'ds_write_b128 v88, v[{b}:{b + 3}] offset:{256 * i}')
        else:
            k('v_lshlrev_b32 v88, 3, v88')
            k(f's_mul_i32 s72, {sW}, 80')
            k(f's_add_u32 s72, s72, {P_GA}')
            k('v_add_u32 v91, s72, v88')
            k(f'v_mov_b32 v92, {P_DUMMY}')
            k('v_cmp_gt_u32 vcc, 40, v3')
            k('v_cndmask_b32 v91, v92, v91, vcc')
            k(f's_mul_i32 s72, {sW}, 320')
            k(f's_add_u32 s72, s72, {L_P}')
            k('v_add_u32 v88, s72, v88')
            k('v_add_u32 v90, 960, v88')
            k('v_cmp_gt_u32 vcc, 32, v3')
            k('v_cndmask_b32 v90, v90, v88, vcc')
            for i in range(6):
                b = G + 4 * i
                if 2 <= i < 5:
                    self.bf16_round_keep([b, b + 1, b + 2, b + 3], 89)
                    for r in range(b, b + 4):
                        k(f'v_add_f32 v{r}, {"v94" if i == 2 else "1.0"}, v{r}')
                k(f'v_cvt_pk_bf16_f32 v{b}, v{b}, v{b + 1}')
                k(f'v_cvt_pk_bf16_f32 v{b + 1}, v{b + 2}, v{b + 3}')
                if i < 2:
                    k(f'ds_write_b64 v88, v[{b}:{b + 1}] offset:{128 * i}')
                elif i == 2:
                    k(f'ds_write_b64 v90, v[{b}:{b + 1}] offset:256')
                elif i < 5:
                    k(f'ds_write_b64 v88, v[{b}:{b + 1}] offset:{128 * i + 960}')
                else:
                    k(f'ds_write_b64 v91, v[{b}:{b + 1}]')

    def make_h(self):
        k = self.k
        k('v_lshlrev_b32 v88, 5, v6')
        k(f's_mul_i32 s72, {sW}, 1280')
        k(f's_add_u32 s72, s72, {L_MV}')
        k('v_add_u32 v88, s72, v88')
        k('v_lshl_add_u32 v90, v6, 9, v7')
        k('v_cmp_gt_u32 vcc, 32, v3')
        k('v_cndmask_b32 v91, v2, v90, vcc')
        k.wait_lgkm_all()
        for i in range(3):
            for h in range(2):
                k(f'ds_read_b128 v[{96 + 16 * i + 4 * h}:{99 + 16 * i + 4 * h}], v88 offset:{256 * i + 16 * h + 640}')
            for h in range(2):
                k(f'ds_read_b128 v[{104 + 16 * i + 4 * h}:{107 + 16 * i + 4 * h}], v88 offset:{256 * i + 16 * h}')
        for i in range(3):
            xs = [40 + 8 * i + e for e in range(8)]
            for e in range(0, 8, 2):
                k(f'v_pk_mul_f32 v[{xs[e]}:{xs[e] + 1}], v[{xs[e]}:{xs[e] + 1}], v[{96 + 16 * i + e}:{97 + 16 * i + e}]')
            self.bf16_round_keep(xs, 89)
            for e in range(0, 8, 2):
                k(f'v_pk_add_f32 v[{xs[e]}:{xs[e] + 1}], v[{xs[e]}:{xs[e] + 1}], v[{104 + 16 * i + e}:{105 + 16 * i + e}]')
            for e in range(0, 8, 2):
                k(f'v_cvt_pk_bf16_f32 v{24 + 4 * i + e // 2}, v{xs[e]}, v{xs[e] + 1}')
            k(f'buffer_store_dwordx4 v[{24 + 4 * i}:{27 + 4 * i}], {"v90" if i < 2 else "v91"}, {WS}, s86 offen', 'h')
            if i < 2:
                k('s_add_u32 s86, s86, 4096')
        self.stamp('hst')

    WO_W = [160 + 4 * i for i in range(24)] + [508]
    WGU_W = [256 + 4 * i for i in range(60)]

    def qkv(self):
        k = self.k
        o = self.o
        HR = 96
        RING = 256 + 224
        k(f's_lshl2_add_u32 s84, {sJ}, {sW}')
        k('s_mul_i32 s84, s84, 61440')
        k(f's_add_u32 s84, s84, {WS_WGU}')
        k(f's_mul_i32 s85, {sJC}, {20 * 5120}')
        k(f's_mul_i32 s72, {sW}, {25 * 1024}')
        k('s_add_u32 s85, s85, s72')
        k(f's_add_u32 s85, s85, {WS_WO}')
        k(f's_lshl2_add_u32 s89, {sCL}, {sW}')
        k('s_mul_i32 s89, s89, 40960')
        k(f's_add_u32 s89, s89, {WS_H}')
        k('v_lshlrev_b32 v10, 2, v3')
        k('v_and_b32 v7, 60, v10')
        k(f's_mul_i32 s90, {sJ}, 163840')
        k(f's_add_u32 s90, s90, {WS_WQ}')
        k(f's_lshl_b32 s91, {sW}, 11')
        k('s_add_u32 s92, s90, s91')
        k(f'v_add_u32 v8, {L_A}, v1')
        k(f'v_add_u32 v9, {L_B}, v1')
        k('v_and_b32 v64, 31, v3')
        k('v_cmp_gt_u32 vcc, 24, v64')
        k('v_cndmask_b32 v6, v2, v1, vcc')
        self.publish(PH_H, 'h')
        self.stamp('hpub')
        self.flag_off('s74', PH_H)
        k(f's_lshl_b32 s72, {sW}, 6')
        k('s_add_u32 s74, s74, s72')
        k(f's_movk_i32 s75, {WS_PQ}')
        k('s_lshr_b32 s58, s80, 2')
        k('s_mul_i32 s58, s58, 3072')
        k('s_and_b32 s72, s80, 3')
        k('s_lshl_b32 s72, s72, 8')
        k('s_add_u32 s58, s58, s72')
        k(f's_add_u32 s58, s58, {WS_WGU}')
        k('s_lshl_b32 s64, s81, 6')
        k(f's_lshl3_add_u32 s64, {sW}, s64')
        k(f's_mul_i32 s80, {sCL}, {O_CL}')
        k(f's_mul_i32 s72, {sW}, 40960')
        k('s_add_u32 s80, s80, s72')
        k(f's_mul_i32 s72, {sJ}, 1280')
        k('s_add_u32 s80, s80, s72')
        k(f's_add_u32 s80, s80, {WS_O}')
        k(f's_lshl4_add_u32 s96, {sCL}, {sJ}')
        k(f's_mul_i32 s97, s96, {4 * KVB}')
        k(f's_add_u32 s97, s97, {WS_KV}')
        k(f's_mul_i32 s81, {sW}, {KVB}')
        k('s_add_u32 s82, s97, s81')
        k('s_add_u32 s83, s82, 2560')
        self.st_addr2()
        early = 'ri' in o.order.split(',')
        if early:
            k.wait_vm('rest')
            self.rest_reads()
        else:
            k('v_mov_b32 v92, v36')
            k('v_mov_b32 v93, v38')
            k('v_mov_b32 v94, v39')

        def body():
            k(f'buffer_load_dwordx4 v[64:67], v1, {WS}, s75 offen sc1')
            k(f'buffer_load_dword v68, v7, {WS}, s74 offen sc1')
            k('s_waitcnt vmcnt(0)')
            self.allcheck([64, 65, 66, 67, 68], 69)
        self.spin(body)
        self.acquire()
        self.stamp('hflag')
        k.barrier()
        slots = [L_A, L_C, L_B]
        addr = ['v8', 'v1', 'v9']
        t3 = [(L_A, 'v8', 0), (L_A + 8192, 'v8', 8192), (L_B, 'v9', 0), (L_B + 8192, 'v9', 8192), (L_C, 'v1', 0)]

        def pair(src, lds, voff, tag):
            k.begin()
            k(f's_add_u32 s87, s92, {src}')
            k(f's_add_u32 m0, s91, {lds}')
            k(f'buffer_load_dwordx4 {voff}, {WS}, s87 offen sc1 lds', tag)
            u0 = k.end()
            k.begin()
            k(f'buffer_load_dwordx4 {voff}, {WS}, s87 offen offset:1024 sc1 lds', tag)
            return [u0, k.end()]

        def chunk(c):
            return sum((pair(40960 * t + 8192 * c, slots[t] + 8192 * c, 'v1', f'w{c}') for t in range(3)), [])
        hl = self.units_frags([HR + 4 * i for i in range(40)], 's89')
        wgu = self.units_frags(self.WGU_W, 's84', tag='wgu')
        rs = self.rest_stores()
        allw = sum((chunk(c) for c in range(5)), [])
        lst = allw[:6] + hl[:4] + allw[6:12] + hl[4:8]
        if early:
            lst = lst[:o.rspos] + rs + lst[o.rspos:]
        self.put_units(lst)
        lab = k.newlabel('ep')
        k('s_cmp_lg_u32 s2, 0')
        k(f's_cbranch_scc1 {lab}')
        k.cond_begin()
        k('v_mov_b32 v13, s50')
        k(f'buffer_store_dword v13, v12, {WS}, 0 offen sc1')
        k.cond_end()
        k.label(lab)
        k('v_mov_b32 v23, v12')
        seq = [(t, s, 1024 * s, addr[t]) for s in range(40) for t in range(3)]
        seq += [(3, s, t3[s // 8][2] + 1024 * (s % 8), t3[s // 8][1]) for s in range(40)]
        D = 6
        k.wait_vm('w0')
        k.barrier()
        self.stamp('c0')
        k.begin()

        def rd(i):
            k(f'ds_read_b128 {ur(RING + 4 * (i % 8))}, {seq[i][3]} offset:{seq[i][2]}')
        for i in range(D):
            rd(i)
        for i, (t, s, _, _) in enumerate(seq):
            a = 32 + 16 * t
            k(f'v_mfma_f32_32x32x16_bf16 v[{a}:{a + 15}], {ur(RING + 4 * (i % 8))}, v[{HR + 4 * s}:{HR + 4 * s + 3}], {"0" if s == 0 else f"v[{a}:{a + 15}]"}')
            if i + D < len(seq):
                rd(i + D)
        w = Sched(k.end())
        bars = [(24 * c - D, f'w{c}') for c in range(1, 6)] + [(o.prflag, 'pre')]
        for gap, tag in sorted(bars):
            k.begin()
            k.wait_vm(tag)
            k('s_barrier')
            if o.fine:
                self.stamp(f'c{gap}')
            if tag == 'pre':
                k('s_lshl_b32 s72, s2, 2')
                k(f's_add_u32 s72, s72, {WS_PR}')
                k(f'buffer_store_dword v5, v23, {WS}, s72 offen sc1')
            w.pre(gap, k.end())
        w.spread(allw[12:], 0, o.wend)
        w.spread(hl[8:], 1, o.hend)
        w.spread(sum((pair(40960 * 3 + 8192 * i, t3[i][0], 'v6', 'w5') for i in range(5)), []), 67, o.t3end)
        if not early:
            w.spread(self.rest_units(92, 93), o.rigap, o.rigap + 3)
            k.begin()
            k.wait_vm('rest')
            w.pre(o.rsgap - 8, k.end())
            k.begin()
            self.rest_reads()
            w.fill(k.end(), first=o.rsgap - 8, last=o.rsgap - 1)
            w.spread(rs, o.rsgap, o.rsgap + 9)
        k.begin()
        k(f'buffer_load_dwordx4 v[24:27], v1, {WS}, s75 offen offset:{WS_PR - WS_PQ} sc1')
        prl = k.end()
        if early:
            w.at(o.prgap - 24, prl)
        k.begin()
        self.touch('s80', 10, 20, 20480, 20)
        k('v_and_b32 v20, 31, v3')
        k('v_lshrrev_b32 v21, 5, v3')
        k('v_mul_u32_u24 v20, 48, v20')
        k('v_add_u32 v20, s81, v20')
        k('v_lshl_add_u32 v22, v21, 3, v20')
        k('v_mul_u32_u24 v21, 1504, v21')
        k('v_add_u32 v21, v20, v21')
        k('v_add_u32 v28, s81, v1')
        k('v_lshlrev_b32 v7, 3, v3')
        k('v_add_u32 v29, s81, v7')
        w.fill(k.end(), first=82, last=112)
        k.begin()
        self.st_ones()
        w.fill(k.end(), first=115, last=119)
        k.begin()
        OWN = L_KVOWN

        def pack(dst, src, n):
            for i in range(n):
                k(f'v_cvt_pk_bf16_f32 v{dst + i}, v{src + 2 * i}, v{src + 2 * i + 1}')
        for h, r in ((0, 32), (1, 44)):
            pack(r, r, 4)
            k(f'buffer_store_dwordx4 v[{r}:{r + 3}], v1, {WS}, s82 offen offset:{KM_OFF[h]} sc1', 'kv')
        for r, ad, off in ((52, 22, V_OFF[0]), (56, 22, V_OFF[0] + 16), (60, 21, V_OFF[0] + 32), (64, 22, V_OFF[1] + 8), (68, 22, V_OFF[1] + 24)):
            pack(r, r, 2)
            k(f'ds_write_b64 v{ad}, v[{r}:{r + 1}] offset:{OWN + off}')
        for t in range(3):
            k(f'ds_read_b128 v[{52 + 4 * t}:{55 + 4 * t}], v28 offset:{OWN + 2560 + 1024 * t}')
        pack(40, 40, 2)
        k(f'buffer_store_dwordx2 v[40:41], v7, {WS}, s82 offen offset:{KT_OFF} sc1', 'kv')
        k(f'ds_write_b64 v29, v[40:41] offset:{OWN + KT_OFF}')
        for t in range(3):
            k(f'buffer_store_dwordx4 v[{52 + 4 * t}:{55 + 4 * t}], v1, {WS}, s83 offen offset:{1024 * t} sc1', 'kv')
        for h, r in ((0, 32), (1, 44)):
            k(f'ds_write_b128 v28, v[{r}:{r + 3}] offset:{OWN + KM_OFF[h]}')
        for i in range(8):
            k(f'v_mul_f32 v{72 + i}, {f2u(QSCALE):#x}, v{72 + i}')
        pack(self.QM[0], 72, 4)
        self.attn_setup()
        epi = k.end()
        k.begin()
        ok = k.newlabel('prok')
        self.allcheck([24, 25, 26, 27], 16)
        k('s_cmp_eq_u64 vcc, 0')
        k(f's_cbranch_scc1 {ok}')
        k.cond_begin()

        def body2():
            k('s_sleep 16')
            k(f'buffer_load_dwordx4 v[24:27], v1, {WS}, s75 offen offset:{WS_PR - WS_PQ} sc1')
            k('s_waitcnt vmcnt(0)')
            self.allcheck([24, 25, 26, 27], 16)
        self.spin(body2)
        k.cond_end()
        k.label(ok)
        chk = k.end()
        self.nbg = [int(x) for x in o.bg.split(',')]
        assert early
        w.post(o.prgap, chk)
        self.bg = wgu
        if self.nbg[0]:
            w.spread(self.take(self.nbg[0]), o.prgap + 1, 117)
        if self.nbg[1]:
            w.spread(self.take(self.nbg[1]), 138, 159)
        self.bg = self.units_frags(self.WO_W, 's85', tag='wo') + self.bg
        self.early = early
        w.fill(epi, first=120, window=12)
        print('qkv pass2 tail', w.ntail, 'last gap', w.lastgap)
        k.put(w.result())
        self.stamp('qkv')

    def kv_flag(self):
        k = self.k
        k('s_lshl_b32 s72, s96, 7')
        k(f's_lshl_b32 s73, {sJ}, 4')
        k('s_sub_u32 s72, s72, s73')
        k(f's_add_u32 s72, s72, {WS_KVF}')
        k.wait_vm('kv')
        k(f'buffer_store_dword v5, v4, {WS}, s72 offen sc1')
        self.stamp('kvpub')

    def halo(self):
        k = self.k
        k(f's_min_u32 s75, {sCL}, 2')
        k('s_lshl_b32 s75, s75, 4')
        k('s_sub_u32 s75, s96, s75')
        k('s_lshl_b32 s75, s75, 7')
        k(f's_add_u32 s75, s75, {WS_KVF}')
        k(f's_cmp_ge_u32 {sCL}, 2')
        k('s_cselect_b32 s72, 2048, 0')
        k('v_and_b32 v6, 3, v3')
        k('v_lshlrev_b32 v6, 2, v6')
        k('v_bfe_u32 v7, v3, 2, 1')
        k('v_mad_u32_u24 v6, v7, s72, v6')
        self.poll('v6', 's75', 7, False)
        k('s_barrier')
        self.stamp('kvflag')
        for d in (1, 2):
            k(f's_cmp_ge_u32 {sCL}, {d}')
            k(f's_cselect_b32 s72, 0, {OOB}')
            k(f's_cselect_b32 s75, {d * 16 * 4 * KVB}, 0')
            k('v_add_u32 v6, s72, v1')
            k('s_sub_u32 s75, s97, s75')
            self.put_units(self.units_dma('s75', 0, L_C + (2 - d) * 4 * KVB, 22, f'halo{d}', voff='v6'))

    QM = [12, 16]; Q2 = [20, 24]
    CD, CO = 32, 48
    SS = [64, 80]
    OO = [96, 112]
    PP = 128
    KM = [136, 140]; K2 = [144, 148]
    VF = 152

    def attn_setup(self):
        k = self.k
        k('v_and_b32 v64, 31, v3')
        k('v_lshrrev_b32 v65, 5, v3')
        k('v_bfe_u32 v66, v3, 2, 2')
        k('v_lshl_add_u32 v66, v65, 2, v66')
        k('v_mul_u32_u24 v30, 48, v66')
        k('v_and_b32 v66, 3, v3')
        k('v_min_u32 v67, 1, v66')
        k('v_add_u32 v67, 4, v67')
        k('v_and_b32 v68, 16, v3')
        k('v_cmp_eq_u32 vcc, 0, v68')
        k('v_cmp_gt_u32 s[48:49], 32, v3')
        k('v_cndmask_b32 v66, v67, v66, vcc')
        k('v_lshl_add_u32 v30, v66, 3, v30')
        k('v_add_u32 v30, s81, v30')
        k('v_lshlrev_b32 v31, 2, v65')
        k('v_sub_u32 v31, v64, v31')
        k(f'v_mov_b32 v69, {f2u(NEG):#x}')
        self.masks(True, True)

    def masks(self, diag, old):
        k = self.k
        for i0 in range(0, 16, 4):
            for i in range(i0, i0 + 4):
                k(f'v_cmp_le_i32 s[{60 + 2 * (i % 4)}:{61 + 2 * (i % 4)}], {8 * (i >> 2) + (i & 3)}, v31')
            for i in range(i0, i0 + 4):
                m = f's[{60 + 2 * (i % 4)}:{61 + 2 * (i % 4)}]'
                if diag:
                    k(f'v_cndmask_b32 v{self.CD + i}, v69, 0, {m}')
                if old:
                    k(f'v_cndmask_b32 v{self.CO + i}, 0, v69, {m}')

    def ld_k(self, kset, i, head):
        k = self.k
        k(f'ds_read_b128 v[{self.KM[kset]}:{self.KM[kset] + 3}], v28 offset:{i * KVB + KM_OFF[head]}')
        if head == 0:
            r = self.K2[i & 1]
            k(f'ds_read_b64 v[{r}:{r + 1}], v29 offset:{i * KVB + KT_OFF}')

    def ld_v(self, half, i, head):
        k = self.k
        off = i * KVB + V_OFF[head] + 768 * half
        b = self.VF + 4 * half
        k(f'ds_read_b64_tr_b16 v[{b}:{b + 1}], v30 offset:{off}')
        k(f'ds_read_b64_tr_b16 v[{b + 2}:{b + 3}], v30 offset:{off + 384}')

    def m_sa(self, sset, kset, head, C):
        S = self.SS[sset]
        self.k(f'v_mfma_f32_32x32x16_bf16 v[{S}:{S + 15}], v[{self.KM[kset]}:{self.KM[kset] + 3}], v[{self.QM[head]}:{self.QM[head] + 3}], {C}')

    def m_sb(self, sset, i, head):
        S = self.SS[sset]
        r = self.K2[i & 1]
        self.k(f'v_mfma_f32_32x32x16_bf16 v[{S}:{S + 15}], v[{r}:{r + 3}], v[{self.Q2[head]}:{self.Q2[head] + 3}], v[{S}:{S + 15}]')

    def m_pv(self, half, head, first):
        O = self.OO[head]
        b, p = self.VF + 4 * half, self.PP + 4 * half
        self.k(f'v_mfma_f32_32x32x16_bf16 v[{O}:{O + 15}], v[{b}:{b + 3}], v[{p}:{p + 3}], {"0" if first else f"v[{O}:{O + 15}]"}')

    def cmask(self, i):
        return f'v[{self.CD}:{self.CD + 15}]' if i == 8 else (f'v[{self.CO}:{self.CO + 15}]' if i == 0 else '0')

    def attn_steps(self, seq, firsts):
        k = self.k
        n = len(seq)
        self.ld_v(0, *seq[0])
        self.ld_v(1, *seq[0])
        self.m_sa(0, 0, seq[0][1], self.cmask(seq[0][0]))
        self.m_sb(0, *seq[0])
        for t in range(n):
            i, h = seq[t]
            S = self.SS[t & 1]

            def e(*xs):
                for x in xs:
                    k(f'v_exp_f32 v{S + x}, v{S + x}')

            def c(x):
                k(f'v_cvt_pk_bf16_f32 v{self.PP + x}, v{S + 2 * x}, v{S + 2 * x + 1}')
            nx = t + 1 < n
            if nx:
                self.m_sa((t + 1) & 1, (t + 1) & 1, seq[t + 1][1], self.cmask(seq[t + 1][0]))
            if t + 2 < n:
                self.ld_k(t & 1, *seq[t + 2])
            e(0, 1, 2, 3)
            if t:
                self.m_pv(1, seq[t - 1][1], False)
                self.ld_v(1, i, h)
            c(0); e(4, 5); c(1); e(6, 7)
            if nx:
                self.m_sb((t + 1) & 1, *seq[t + 1])
            c(2); c(3); e(8, 9, 10, 11)
            self.m_pv(0, h, firsts and t < 2)
            if nx:
                self.ld_v(0, *seq[t + 1])
            c(4); e(12, 13); c(5); e(14, 15); c(6); c(7)
        self.m_pv(1, seq[n - 1][1], False)

    def attention(self):
        k = self.k
        for h in range(2):
            self.ld_k(h, 8, h)
        for r in self.K2:
            k(f'v_mov_b32 v{r + 2}, 0x3f80')
            k(f'v_mov_b32 v{r + 3}, 0')
        for h in range(2):
            k(f'v_mov_b32 v{self.Q2[h] + 2}, 0')
            k(f'v_mov_b32 v{self.Q2[h] + 3}, 0')
        self.m_sa(0, 0, 0, '0')
        for i in range(12):
            k(f'v_mul_f32 v{80 + i}, {f2u(QSCALE):#x}, v{80 + i}')
        for i in range(4):
            k(f'v_cvt_pk_bf16_f32 v{self.QM[1] + i}, v{84 + 2 * i}, v{85 + 2 * i}')
        for i in range(2):
            k(f'v_cvt_pk_bf16_f32 v{92 + i}, v{80 + 2 * i}, v{81 + 2 * i}')
        for i in range(2):
            k(f'v_cndmask_b32 v{self.Q2[0] + i}, 0, v{92 + i}, s[48:49]')
            k(f'v_cndmask_b32 v{self.Q2[1] + i}, v{92 + i}, 0, s[48:49]')
        self.m_sb(0, 8, 0)
        self.m_sa(1, 1, 1, '0')
        self.m_sb(1, 8, 1)
        k('v_bfe_u32 v6, v3, 4, 1')
        k('v_mul_u32_u24 v6, 20480, v6')
        k('v_and_b32 v7, 15, v3')
        k('v_lshl_add_u32 v6, v7, 4, v6')
        k('v_lshrrev_b32 v7, 5, v3')
        k('v_lshl_add_u32 v8, v7, 8, v6')
        k('v_cndmask_b32 v9, v2, v6, s[48:49]')
        self.kv_flag()
        self.put_units(self.take(self.nbg[2]))
        for h in range(2):
            S = self.SS[h]
            k(f'v_max3_f32 v{S}, v{S}, v{S + 1}, v{S + 2}')
            for i in range(3, 15, 2):
                k(f'v_max3_f32 v{S}, v{S}, v{S + i}, v{S + i + 1}')
            k(f'v_max_f32 v{S}, v{S}, v{S + 15}')
            k(f'v_mov_b32 v{S + 1}, v{S}')
        for h in range(2):
            S = self.SS[h]
            k(f'v_permlane32_swap_b32 v{S}, v{S + 1}')
        for h in range(2):
            S = self.SS[h]
            k(f'v_max_f32 v{S}, v{S}, v{S + 1}')
            k(f'v_cvt_pk_bf16_f32 v{S}, -v{S}, 0')
            k(f'v_cndmask_b32 v{self.Q2[h] + 2}, 0, v{S}, s[48:49]')
        k.begin()
        self.attn_steps([(8, 0), (8, 1)], True)
        k.put(Sched(k.end()).result())
        self.stamp('diag')
        self.wo_prep()
        self.mod_pass(True, between=lambda: (self.halo(), self.put_units(self.early_units + self.take(self.nbg[3]))))
        self.stamp('mod2')
        k.wait_vm('halo1')
        k.barrier()
        self.stamp('halo')
        seq = [(i, h) for i in range(7, -1, -1) for h in range(2)]
        k.begin()
        self.ld_k(0, *seq[0])
        self.ld_k(1, *seq[1])
        self.attn_steps(seq, False)
        w = Sched(k.end())
        k.begin()
        k.wait_vm('halo2')
        k('s_barrier')
        w.pre(2 + 3 + 4 * 5, k.end())
        assert sum(self.nbg[2:5]) >= 25
        w.spread(self.take(self.nbg[4]), self.o.bg_start, w.n - self.o.bg_quiet)
        k.put(w.result())
        self.stamp('steps')
        k(f's_mov_b32 s72, {f2u(2.0 ** -90):#x}')
        k(f's_mov_b32 s73, {f2u(2.0 ** 64):#x}')
        la, lb = self.OO[0] + 12, self.OO[1] + 12
        k(f'v_cmp_nlt_f32 vcc, s72, v{la}')
        k(f'v_cmp_ngt_f32 s[76:77], s73, v{la}')
        k(f'v_cmp_nlt_f32 s[74:75], s72, v{lb}')
        k(f'v_cmp_ngt_f32 s[78:79], s73, v{lb}')
        k('s_or_b64 vcc, vcc, s[74:75]')
        k('s_or_b64 s[76:77], s[76:77], s[78:79]')
        k('s_or_b64 vcc, vcc, s[76:77]')
        k.wait_lgkm_all()
        if self.o.force_fb:
            k('s_branch .Lfallback')
        else:
            k('s_cbranch_scc1 .Lfallback')
        k.label('.Lfb_ret')
        for h in range(2):
            k(f'v_rcp_f32 v{64 + h}, v{self.OO[h] + 12}')
        for h in range(2):
            O = self.OO[h]
            for i in range(0, 12, 2):
                k(f'v_pk_mul_f32 v[{O + i}:{O + i + 1}], v[{O + i}:{O + i + 1}], v[64:65] {"op_sel:[0,1]" if h else "op_sel_hi:[1,0]"}')
            for i in range(4):
                k(f'v_cvt_pk_bf16_f32 v{68 + 4 * h + i}, v{O + 2 * i}, v{O + 2 * i + 1}')
            for i in range(2):
                k(f'v_cvt_pk_bf16_f32 v{76 + 2 * h + i}, v{O + 8 + 2 * i}, v{O + 9 + 2 * i}')
            k(f'buffer_store_dwordx4 v[{68 + 4 * h}:{71 + 4 * h}], v8, {WS}, s80 offen offset:{512 * h}', 'o')
        k(f'buffer_store_dwordx4 v[76:79], v9, {WS}, s80 offen offset:1024', 'o')

    def fallback(self):
        k = self.k
        k.label('.Lfallback')
        k.fence_hazards()
        k('s_nop 15')
        k(f's_lshl2_add_u32 s74, {sCL}, {sW}')
        k('s_min_u32 s75, s74, 7')
        k('s_waitcnt vmcnt(0)')
        for i in range(10):
            k(f'v_mov_b32 v{85 + i}, v{32 + i}')
        k(f'v_mov_b32 v69, {f2u(NEG):#x}')
        self.masks(True, False)
        S = self.SS[0]

        def run(body):
            k(f'v_add_u32 v80, {8 * KVB}, v28')
            k(f'v_add_u32 v81, {8 * KVB}, v29')
            k(f'v_add_u32 v82, {8 * KVB}, v30')

            def step():
                for r in (80, 81, 82):
                    k(f'v_add_u32 v{r}, {-KVB & 0xffffffff:#x}, v{r}')
            body(self.cmask(8))
            step()
            lab, out, done = k.newlabel('al'), k.newlabel('alx'), k.newlabel('ald')
            k('s_mov_b32 s77, s75')
            k('s_cmp_eq_u32 s77, 0')
            k.wait_lgkm_all()
            k.fence_hazards()
            k(f's_cbranch_scc1 {out}')
            k.label(lab)
            body('0')
            step()
            k('s_sub_u32 s77, s77, 1')
            k('s_cmp_lg_u32 s77, 0')
            k.wait_lgkm_all()
            k.fence_hazards()
            k(f's_cbranch_scc1 {lab}')
            k.label(out)
            k('s_cmp_lt_u32 s74, 8')
            k(f's_cbranch_scc1 {done}')
            body(self.cmask(0))
            k.wait_lgkm_all()
            k.fence_hazards()
            k.label(done)
        for h in range(2):
            k(f'v_mov_b32 v{self.Q2[h] + 2}, 0')
            k(f'v_mov_b32 v83, {f2u(-3.0e38):#x}')

            def score(C):
                k(f'ds_read_b128 v[{self.KM[0]}:{self.KM[0] + 3}], v80 offset:{KM_OFF[h]}')
                k(f'ds_read_b64 v[{self.K2[0]}:{self.K2[0] + 1}], v81 offset:{KT_OFF}')
                self.m_sa(0, 0, h, C)
                self.m_sb(0, 0, h)

            def p1(C):
                score(C)
                for i in range(0, 16, 2):
                    k(f'v_max3_f32 v83, v83, v{S + i}, v{S + i + 1}')
            run(p1)
            k('v_mov_b32 v84, v83')
            k('v_permlane32_swap_b32 v83, v84')
            k('v_max_f32 v83, v83, v84')
            k('v_cvt_pk_bf16_f32 v84, -v83, 0')
            k(f'v_cndmask_b32 v{self.Q2[h] + 2}, 0, v84, s[48:49]')
            for i in range(16):
                k(f'v_mov_b32 v{self.OO[h] + i}, 0')

            def p2(C):
                score(C)
                for t in range(4):
                    k(f'ds_read_b64_tr_b16 v[{self.VF + 2 * t}:{self.VF + 2 * t + 1}], v82 offset:{V_OFF[h] + 384 * t}')
                for i in range(16):
                    k(f'v_exp_f32 v{S + i}, v{S + i}')
                for i in range(8):
                    k(f'v_cvt_pk_bf16_f32 v{self.PP + i}, v{S + 2 * i}, v{S + 2 * i + 1}')
                self.m_pv(0, h, False)
                self.m_pv(1, h, False)
            run(p2)
        for i in range(10):
            k(f'v_mov_b32 v{32 + i}, v{85 + i}')
        k.fence_hazards()
        k('s_branch .Lfb_ret')

    def unpack10(self, src, dst):
        k = self.k
        for i in range(10):
            k(f'v_lshlrev_b32 v{dst + 2 * i}, 16, v{src + i}')
            k(f'v_and_b32 v{dst + 2 * i + 1}, 0xffff0000, v{src + i}')

    def lds_cols(self, base, dst, vA, vB):
        k = self.k
        k(f'ds_read_b128 v[{dst}:{dst + 3}], {vA} offset:{base}')
        k(f'ds_read_b128 v[{dst + 4}:{dst + 7}], {vA} offset:{base + 64}')
        k(f'ds_read_b64 v[{dst + 8}:{dst + 9}], {vB} offset:{base + 128}')

    X1 = 22
    CSB = 128

    def rowmajor(self, a, b):
        k = self.k
        k(f'v_and_b32 v{a}, 15, v3')
        k(f'v_mul_u32_u24 v{a}, 1280, v{a}')
        k(f'v_lshrrev_b32 v{b}, 4, v3')
        k(f'v_lshl_add_u32 v{a}, v{b}, 4, v{a}')
        k(f'v_lshlrev_b32 v{b}, 3, v{b}')
        k(f'v_sub_u32 v{b}, v{a}, v{b}')

    def vec_addr(self):
        k = self.k
        k('v_lshrrev_b32 v19, 4, v3')
        k('v_lshlrev_b32 v18, 4, v19')
        k('v_lshlrev_b32 v19, 3, v19')
        k(f'v_add_u32 v18, {L_P}, v18')
        k(f'v_add_u32 v19, {L_P}, v19')

    def wo_prep(self):
        k = self.k
        k(f's_lshl2_add_u32 s90, {sCL}, {sW}')
        k(f's_lshl1_add_u32 s91, s90, {sTH}')
        k('s_mul_i32 s92, s91, 20480')
        k(f's_mul_i32 s72, {sJC}, 160')
        k('s_add_u32 s90, s92, s72')
        k(f's_mul_i32 s72, {sJC}, 2560')
        k('s_add_u32 s92, s92, s72')
        k(f's_add_u32 s92, s92, {WS_Z}')
        k('s_lshl_b32 s93, s91, 10')
        k(f's_lshr_b32 s72, {sJC}, 1')
        k('s_lshl_b32 s72, s72, 8')
        k('s_add_u32 s93, s93, s72')
        k(f's_and_b32 s72, {sJC}, 1')
        k('s_lshl3_add_u32 s93, s72, s93')
        k(f's_add_u32 s93, s93, {WS_ST}')
        k(f's_mul_i32 s82, {sCL}, 393216')
        k(f's_lshl2_add_u32 s72, {sJ}, {sW}')
        k('s_mul_i32 s72, s72, 768')
        k('s_add_u32 s82, s82, s72')
        k(f's_add_u32 s82, s82, {WS_HH}')
        k(f's_mul_i32 s94, {sCL}, {O_CL}')
        k(f's_mul_i32 s72, {sTH}, 20480')
        k('s_add_u32 s94, s94, s72')
        k(f's_mul_i32 s72, {sW}, 5120')
        k('s_add_u32 s94, s94, s72')
        k(f's_add_u32 s94, s94, {WS_O}')
        self.rowmajor(42, 43)
        us = []
        for txt in (f'buffer_load_dwordx4 v[32:35], v42, {XS}, s90 offen', f'buffer_load_dwordx4 v[36:39], v42, {XS}, s90 offen offset:64',
                    f'buffer_load_dwordx2 v[40:41], v43, {XS}, s90 offen offset:128'):
            k.begin()
            if 'nox' not in self.o.x:
                k(txt)
            us.append(k.end())
        for so, per, n, stride, t in (('s92', 1, 20, 128, 44), ('s93', 1, 2, 128, 45), ('s82', 6, 48, 49152, 46)):
            k.begin()
            self.touch(so, per, n, stride, t)
            it = k.end()
            k.put(it[:-1])
            us.append(it[-1:])
        self.early_units = us

    def mm5(self, a, wregs, B, NS, chain):
        k = self.k
        order = [(s, ft) for ft in range(5) for s in range(NS)] if chain else [(s, ft) for s in range(NS) for ft in range(5)]
        for s, ft in order:
            d = a + 4 * ft
            k(f'v_mfma_f32_16x16x32_bf16 v[{d}:{d + 3}], {ur(wregs[s * 5 + ft])}, {ur(B[s])}, {"0" if s == 0 else f"v[{d}:{d + 3}]"}')

    def wo(self):
        k = self.k
        X1 = self.X1
        self.vec_addr()
        k(f's_mul_i32 s72, {sJC}, 160')
        k('v_add_u32 v20, s72, v18')
        k('v_add_u32 v21, s72, v19')
        self.lds_cols(P_GA - L_P, 84, 'v18', 'v19')
        self.lds_cols(P_G2 - L_P, X1, 'v20', 'v21')
        self.unpack10(32, 120)
        self.publish(PH_O, 'o')
        self.stamp('attn')
        self.unpack10(84, 140)
        k('v_and_b32 v20, 15, v3')
        k('v_lshlrev_b32 v20, 4, v20')
        k('v_bfe_u32 v21, v3, 4, 1')
        k('v_lshl_add_u32 v21, v21, 3, v20')
        k('v_lshrrev_b32 v64, 5, v3')
        k('v_lshl_add_u32 v21, v64, 8, v21')
        k('v_cmp_gt_u32 vcc, 16, v3')
        k('v_cndmask_b32 v20, v2, v20, vcc')
        k(f's_mul_i32 s76, {sW}, 15360')
        k('v_add_u32 v9, s76, v1')
        for t in range(4):
            k(f's_add_u32 s72, {sW}, {t + 1}')
            k('s_and_b32 s72, s72, 3')
            k(f's_mul_i32 s{60 + t}, s72, 40960')
            k(f's_add_u32 s{60 + t}, s{60 + t}, s94')
            if t < 3:
                k('s_mul_i32 s72, s72, 15360')
                k(f'v_add_u32 v{16 + t}, s72, v1')
        self.flag_off('s74', PH_O)
        self.poll('v10', 's74', 64, True)
        self.stamp('oflag')
        quads = [72 + 4 * i for i in range(12)] + [12] + [480 + 4 * i for i in range(7)]
        B = [quads[5 * t:5 * t + 5] for t in range(4)]
        for t in range(4):
            self.put_units(self.units_frags(B[t], f's{60 + t}'))
        acc = [32, 52]
        k.begin()
        for t in range(4):
            self.mm5(acc[t & 1], self.WO_W, B[t], 5, t > 0)
        w = Sched(k.end())
        for t in range(3):
            for ft in range(5):
                k.begin()
                a = acc[t & 1] + 4 * ft
                k(f'ds_write_b128 v{16 + t}, v[{a}:{a + 3}] offset:{L_RED + t * 5120 + ft * 1024}')
                w.at(25 * (t + 1) + 4 + 4 * ft, k.end())
        assert len(self.bg) - self.nbg[5] >= 4
        if self.nbg[5]:
            w.spread(self.take(self.nbg[5]), 4, self.o.wo_quiet, (2, 0))
        k.put(w.result())
        self.stamp('ks3')
        k.barrier()
        a, red = 52, 160
        for t in range(3):
            for ft in range(5):
                r = red + 20 * t + 4 * ft
                k(f'ds_read_b128 v[{r}:{r + 3}], v9 offset:{L_RED + t * 5120 + ft * 1024}')
        self.unpack10(X1, 220)
        for t in range(3):
            for i in range(0, 20, 2):
                k(f'v_pk_add_f32 v[{a + i}:{a + i + 1}], v[{a + i}:{a + i + 1}], v[{red + 20 * t + i}:{red + 20 * t + i + 1}]')
        for i in range(0, 20, 2):
            k(f'v_pk_fma_f32 v[{a + i}:{a + i + 1}], v[{a + i}:{a + i + 1}], v[{140 + i}:{141 + i}], v[{120 + i}:{121 + i}]')
        for i in range(10):
            k(f'v_cvt_pk_bf16_f32 v{X1 + i}, v{a + 2 * i}, v{a + 2 * i + 1}')
        self.unpack10(X1, 160)
        for i in range(0, 20, 2):
            k(f'v_pk_mul_f32 v[{220 + i}:{221 + i}], v[{220 + i}:{221 + i}], v[{160 + i}:{161 + i}]')
        for i in range(10):
            k(f'v_cvt_pk_bf16_f32 v{72 + i}, v{220 + 2 * i}, v{221 + 2 * i}')
        k(f'buffer_store_dwordx4 v[72:75], v1, {WS}, s92 offen', 'z')
        k(f'buffer_store_dwordx4 v[76:79], v1, {WS}, s92 offen offset:1024', 'z')
        k(f'buffer_store_dwordx2 v[80:81], v21, {WS}, s92 offen offset:2048', 'z')
        k('v_pk_add_f32 v[64:65], v[160:161], v[162:163]')
        k('v_pk_mul_f32 v[66:67], v[160:161], v[160:161]')
        k('v_pk_fma_f32 v[66:67], v[162:163], v[162:163], v[66:67]')
        for i in range(4, 20, 2):
            k(f'v_pk_add_f32 v[64:65], v[64:65], v[{160 + i}:{161 + i}]')
            k(f'v_pk_fma_f32 v[66:67], v[{160 + i}:{161 + i}], v[{160 + i}:{161 + i}], v[66:67]')
        k('v_add_f32 v64, v64, v65')
        k('v_add_f32 v65, v66, v67')
        k('v_mov_b32 v66, v64')
        k('v_mov_b32 v67, v65')
        k('v_permlane16_swap_b32 v64, v66')
        k('v_permlane16_swap_b32 v65, v67')
        k('v_pk_add_f32 v[64:65], v[64:65], v[66:67]')
        k('v_mov_b32 v66, v64')
        k('v_mov_b32 v67, v65')
        k('v_permlane32_swap_b32 v64, v66')
        k('v_permlane32_swap_b32 v65, v67')
        k('v_pk_add_f32 v[64:65], v[64:65], v[66:67]')
        k(f'buffer_store_dwordx2 v[64:65], v20, {WS}, s93 offen', 'z')

    def csbias(self):
        k = self.k
        k.begin()
        k('v_and_b32 v32, 1, v3')
        k('v_mul_u32_u24 v32, 1280, v32')
        k('v_lshrrev_b32 v33, 4, v3')
        k('v_lshlrev_b32 v33, 4, v33')
        k(f'v_add_u32 v33, {P_G2}, v33')
        k('v_sub_u32 v32, v33, v32')
        for s in range(20):
            k(f'ds_read_b128 v[{160 + 4 * s}:{163 + 4 * s}], v32 offset:{64 * s}')
        return k.end()

    def cs_mm(self, s):
        for ft in range(3):
            d = self.CSB + 12 + 4 * ft
            self.k(f'v_mfma_f32_16x16x32_bf16 v[{d}:{d + 3}], {ur(256 + 12 * s + 4 * ft)}, v[{160 + 4 * s}:{163 + 4 * s}], {"0" if s == 0 else f"v[{d}:{d + 3}]"}')

    def cs_fin(self):
        k = self.k
        k.begin()
        for i in range(12):
            r = self.CSB + 12 + i
            k(f'v_mov_b32_dpp v{self.CSB + i}, v{r} quad_perm:[0,0,2,2] row_mask:0xf bank_mask:0xf')
            k(f'v_mov_b32_dpp v{r}, v{r} quad_perm:[1,1,3,3] row_mask:0xf bank_mask:0xf')
        return k.end()

    WD_EARLY = [152 + 4 * i for i in range(26)] + [496, 500, 504, 508]
    WD_LATE = [256 + 44 + 4 * i for i in range(19)] + [256 + 4 * i for i in range(11)]
    HH_B = [[256 + 120 + 4 * i for i in range(12)], [256 + 168 + 4 * i for i in range(12)], [72 + 4 * i for i in range(12)]]

    def hh_publish(self, q):
        k = self.k
        k.begin()
        k('v_add_u32 v5, 1, v5')
        self.publish(PH_HH, f'hh{q}')
        return k.end()

    def hh_flagload(self):
        k = self.k
        k.begin()
        k(f'buffer_load_dword v12, v13, {WS}, s74 offen sc1')
        return k.end()

    def hh_check(self, need):
        k = self.k
        k.begin()
        ok = k.newlabel('hhok')
        k(f's_add_u32 s75, {sTAG}, {need}')

        def test():
            k('v_subrev_u32 v12, s75, v12')
            k(f'v_cmp_lt_u32 vcc, {7 - need}, v12')
        test()
        k('s_cmp_eq_u64 vcc, 0')
        k(f's_cbranch_scc1 {ok}')
        k.cond_begin()

        def body():
            k(f'buffer_load_dword v12, v13, {WS}, s74 offen sc1')
            k('s_waitcnt vmcnt(0)')
            test()
        self.spin(body)
        k.cond_end()
        k.label(ok)
        k.cond_begin()
        self.acquire()
        k.cond_end()
        return k.end()

    def gu_epilogue(self, q, a, packed):
        k = self.k
        CS_, BI = self.CSB, self.CSB + 12
        epi = []
        for tt in range(2):
            k.begin()
            st = 96 + 4 * (2 * q + tt)
            t0, t1 = st + 2, st + 3
            for ft in range(3):
                d = a + 12 * tt + 4 * ft
                if packed:
                    for hf in range(2):
                        c, bi, dd = CS_ + 4 * ft + 2 * hf, BI + 4 * ft + 2 * hf, d + 2 * hf
                        k(f'v_pk_fma_f32 v[{t0}:{t1}], v[{c}:{c + 1}], v[{st}:{st + 1}], v[{bi}:{bi + 1}] op_sel:[0,1,0]')
                        k(f'v_pk_fma_f32 v[{dd}:{dd + 1}], v[{dd}:{dd + 1}], v[{st}:{st + 1}], v[{t0}:{t1}] op_sel_hi:[1,0,1]')
                    k(f'v_pk_mul_f32 v[{t0}:{t1}], v[{d}:{d + 1}], v[{d}:{d + 1}]')
                    k(f'v_pk_fma_f32 v[{t0}:{t1}], v[{t0}:{t1}], s[48:49], v[14:15] op_sel_hi:[1,1,0]')
                    k(f'v_pk_mul_f32 v[{t0}:{t1}], v[{t0}:{t1}], v[{d}:{d + 1}]')
                    k(f'v_exp_f32 v{t0}, v{t0}')
                    k(f'v_exp_f32 v{t1}, v{t1}')
                    k(f'v_pk_mul_f32 v[{d}:{d + 1}], v[{d}:{d + 1}], v[{d + 2}:{d + 3}]')
                    k(f'v_pk_add_f32 v[{t0}:{t1}], v[{t0}:{t1}], v[14:15] op_sel:[0,1]')
                    k(f'v_rcp_f32 v{t0}, v{t0}')
                    k(f'v_rcp_f32 v{t1}, v{t1}')
                    k(f'v_pk_mul_f32 v[{d}:{d + 1}], v[{d}:{d + 1}], v[{t0}:{t1}]')
                else:
                    for i in range(4):
                        t = t0 if i % 2 == 0 else t1
                        k(f'v_fma_f32 v{t}, v{CS_ + 4 * ft + i}, v{st + 1}, v{BI + 4 * ft + i}')
                        k(f'v_fma_f32 v{d + i}, v{d + i}, v{st}, v{t}')
                    k(f'v_mul_f32 v{t0}, v{d}, v{d}')
                    k(f'v_mul_f32 v{t1}, v{d + 1}, v{d + 1}')
                    k(f'v_fma_f32 v{t0}, v{t0}, s48, v14')
                    k(f'v_fma_f32 v{t1}, v{t1}, s48, v14')
                    k(f'v_mul_f32 v{t0}, v{t0}, v{d}')
                    k(f'v_mul_f32 v{t1}, v{t1}, v{d + 1}')
                    k(f'v_exp_f32 v{t0}, v{t0}')
                    k(f'v_exp_f32 v{t1}, v{t1}')
                    k(f'v_mul_f32 v{d}, v{d}, v{d + 2}')
                    k(f'v_add_f32 v{t0}, 1.0, v{t0}')
                    k(f'v_add_f32 v{t1}, 1.0, v{t1}')
                    k(f'v_rcp_f32 v{t0}, v{t0}')
                    k(f'v_rcp_f32 v{t1}, v{t1}')
                    k(f'v_mul_f32 v{d + 1}, v{d + 1}, v{d + 3}')
                    k(f'v_mul_f32 v{d}, v{d}, v{t0}')
                    k(f'v_mul_f32 v{d + 1}, v{d + 1}, v{t1}')
                dst = (16 + 2 * tt + ft) if ft < 2 else (6 + tt)
                k(f'v_cvt_pk_bf16_f32 v{dst}, v{d}, v{d + 1}')
            epi.append(k.end())
        k.begin()
        k('v_permlane32_swap_b32 v16, v18')
        k('v_permlane32_swap_b32 v17, v19')
        k('v_permlane16_swap_b32 v6, v7')
        k('v_permlane16_swap_b32 v16, v17')
        k('v_permlane16_swap_b32 v18, v19')
        k(f'buffer_store_dwordx2 v[6:7], v21, {WS}, s82 offen offset:512', f'hh{q}')
        k(f'buffer_store_dwordx4 v[16:19], v20, {WS}, s82 offen', f'hh{q}')
        if q < 3:
            k('s_add_u32 s82, s82, 98304')
        fin = k.end()
        return zipper(epi[0], epi[1], 0 if packed else 12), fin

    def gu(self):
        k = self.k
        o = self.o
        slots = [L_A, L_B, 0, L_A]
        K1 = (60 - len(self.bg)) // 3
        k.put(self.csbias())
        k(f'v_add_u32 v8, {L_A}, v1')
        k(f'v_add_u32 v9, {L_B}, v1')
        addr = ['v8', 'v9', 'v1', 'v8']
        k('v_and_b32 v20, 15, v3')
        k('v_lshlrev_b32 v20, 4, v20')
        k('v_lshrrev_b32 v12, 5, v3')
        k('v_bfe_u32 v13, v3, 4, 1')
        k('s_mov_b32 s72, 49152')
        k('v_mad_u32_u24 v21, v13, s72, v20')
        k('v_lshl_add_u32 v21, v12, 3, v21')
        k('v_mad_u32_u24 v20, v12, s72, v20')
        k('v_lshl_add_u32 v20, v13, 8, v20')
        k('v_and_b32 v13, 60, v10')
        k(f's_mul_i32 s86, {sJC}, {48 * 5120}')
        k(f's_mul_i32 s72, {sW}, 61440')
        k('s_add_u32 s86, s86, s72')
        k(f's_add_u32 s86, s86, {WS_WD}')
        k(f's_mov_b32 s48, {f2u(-2.0 * 0.7978845608028654 * 1.4426950408889634 * 0.044715):#x}')
        k('s_mov_b32 s49, s48')
        k(f'v_mov_b32 v14, {f2u(-2.0 * 0.7978845608028654 * 1.4426950408889634):#x}')
        k('v_mov_b32 v15, 1.0')
        k(f's_mul_i32 s94, {sCL}, 163840')
        k(f's_add_u32 s94, s94, {WS_Z}')
        k(f's_lshl_b32 s76, {sCL}, 13')
        k(f's_add_u32 s76, s76, {WS_ST}')
        k(f's_mul_i32 s60, {sCL}, 393216')
        k(f's_mul_i32 s72, {sTH}, 49152')
        k('s_add_u32 s60, s60, s72')
        k(f's_mul_i32 s72, {sW}, 12288')
        k('s_add_u32 s60, s60, s72')
        k(f's_add_u32 s60, s60, {WS_HH}')
        for t in range(1, 4):
            k(f's_add_u32 s{60 + t}, s60, {98304 * t}')
        self.publish(PH_Z, 'z')
        self.stamp('wo')
        for s in range(min(o.cs1, K1)):
            self.cs_mm(s)
        self.flag_off('s74', PH_Z)
        self.poll('v10', 's74', 64, True)
        self.stamp('zflag')
        zd = [self.units_dma('s94', 40960 * q, slots[q], 40, f'z{q}') for q in range(4)]
        self.put_units(zd[0])
        stl = self.units_frags([96 + 4 * i for i in range(8)], 's76')
        self.put_units(self.take(self.nbg[6]))
        for s in range(min(o.cs1, K1), K1):
            self.cs_mm(s)
        self.flag_off('s74', PH_HH)
        k(f's_lshl_b32 s72, {sW}, 6')
        k('s_add_u32 s74, s74, s72')
        wd = self.units_frags(list(self.WD_EARLY) + list(self.WD_LATE), 's86', tag='wd')
        self.hl = [self.units_frags(self.HH_B[t % 3], f's{60 + t}') for t in range(4)]
        sts = [[], []]
        for T in range(8):
            k.begin()
            b = 96 + 4 * T
            k(f'v_add_f32 v{b}, v{b}, v{b + 2}')
            k(f'v_add_f32 v{b + 1}, v{b + 1}, v{b + 3}')
            k(f'v_permlane16_swap_b32 v{b}, v{b + 1}')
            k(f'v_add_f32 v{b}, v{b}, v{b + 1}')
            k(f'v_mov_b32 v{b + 1}, v{b}')
            k(f'v_permlane32_swap_b32 v{b}, v{b + 1}')
            k(f'v_add_f32 v{b}, v{b}, v{b + 1}')
            k(f'v_mul_f32 v{b + 2}, {f2u(1 / 640):#x}, v{b}')
            k(f'v_mul_f32 v{b + 1}, {f2u(1 / 640):#x}, v{b}')
            k(f'v_permlane16_swap_b32 v{b + 2}, v{b + 1}')
            k(f'v_fma_f32 v{b + 1}, -v{b + 2}, v{b + 2}, v{b + 1}')
            k(f'v_max_f32 v{b + 1}, 0, v{b + 1}')
            k(f'v_add_f32 v{b + 1}, {f2u(1e-5):#x}, v{b + 1}')
            k(f'v_rsq_f32 v{b}, v{b + 1}')
            k(f'v_mul_f32 v{b + 1}, -v{b + 2}, v{b}')
            sts[T & 1] += k.end()
        acc = [32, 56]
        FR = 80
        k.wait_vm('z0')
        k.barrier()
        self.stamp('g0')
        seq = [(q, s, tt) for q in range(4) for s in range(20) for tt in range(2)]
        k.begin()

        def rd(i):
            q, s, tt = seq[i]
            k(f'ds_read_b128 v[{FR + 4 * (i % 4)}:{FR + 4 * (i % 4) + 3}], {addr[q]} offset:{20480 * tt + 1024 * s}')
        for i in range(3):
            rd(i)
        gap_of, n = [], 0
        for i, (q, s, tt) in enumerate(seq):
            gap_of.append(n)
            for ft in range(3):
                d = acc[q & 1] + 12 * tt + 4 * ft
                k(f'v_mfma_f32_16x16x32_bf16 v[{d}:{d + 3}], {ur(256 + 12 * s + 4 * ft)}, v[{FR + 4 * (i % 4)}:{FR + 4 * (i % 4) + 3}], {"0" if s == 0 else f"v[{d}:{d + 3}]"}')
                if ft == 0 and i + 3 < len(seq):
                    rd(i + 3)
            n += 3
            if q == 0 and tt == 0 and s >= K1:
                self.cs_mm(s)
                n += 3
        Q = [gap_of[40 * q] for q in range(4)] + [n]
        w = Sched(k.end())
        for q in range(1, 4):
            k.begin()
            k.wait_vm(f'z{q}')
            k('s_barrier')
            if o.fine:
                self.stamp(f'g{q}')
            w.pre(gap_of[40 * q - 3], k.end())
        for q in (1, 2):
            k.begin()
            k('s_barrier')
            w.pre(Q[q] + 4, k.end())
        M = (3, 1)
        k(f's_mul_i32 s95, {sW}, 9216')
        k(f's_mul_i32 s96, {sW}, 10240')
        k('v_add_u32 v10, s95, v1')
        wl = []
        for i in range(30, 49):
            k.begin()
            if i % 4 == 0:
                k('s_add_u32 s86, s86, 4096')
            base = 40960 + 1024 * (i - 30) if i < 39 else L_B + 1024 * (i - 39)
            k(f's_add_u32 m0, {"s95" if i < 39 else "s96"}, {base - 1024 * (i % 4)}')
            if 'nobg' not in o.x:
                k(f'buffer_load_dwordx4 v1, {WS}, s86 offen offset:{1024 * (i % 4)} sc1 lds', 'wdl')
            wl.append(k.end())
        rest = self.take(len(self.bg))
        w.spread(zipper(rest, stl, 2) + zd[1], 0, o.q0a, M)
        w.spread(zd[2], o.q0a + 2, Q[1] - 12, M)
        w.spread(zd[3], Q[1] + 5, Q[1] + 35, M)
        w.spread(wd[:30] + wl[:9], Q[1] + 38, Q[2] + 64, M)
        w.spread(wl[9:], Q[2] + 66, Q[3] + 6, M)
        w.spread(wd[49:], Q[3] + 10, Q[3] + 70, M)
        w.post(Q[2] + 70, self.hh_publish(0))
        w.post(Q[3] + 70, self.hh_publish(1))
        w.at(Q[3] + 56, self.hh_flagload())
        w.post(Q[3] + 86, self.hh_check(1))
        w.spread(self.hl[0], Q[3] + 88, Q[4] - 1, (3, 1))
        w.fill(zipper(sts[0], sts[1], 6), first=30, last=Q[1] - 1)
        print('gu stats tail', w.ntail)
        for q in range(3):
            e, fin = self.gu_epilogue(q, acc[q & 1], False)
            w.fill((self.cs_fin() if q == 0 else []) + e + fin, first=Q[q + 1] + 3, last=Q[q + 2] - 1)
            print('gu quarter', q, 'tail', w.ntail)
        k.put(w.result())
        self.stamp('g4')
        k.put(self.hh_flagload())
        k.wait_vm('wdl')
        k('v_add_u32 v9, s96, v9')
        for i in range(19):
            r = self.WD_LATE[i]
            if i < 9:
                k(f'ds_read_b128 {ur(r)}, v10 offset:{40960 + 1024 * i}')
            else:
                k(f'ds_read_b128 {ur(r)}, v9 offset:{1024 * (i - 9)}')
        e, fin = self.gu_epilogue(3, acc[1], True)
        k.put(e)
        k.put(self.hh_publish(2))
        k.put(fin)
        k.put(self.hh_check(2))
        self.stamp('g5')

    def down(self):
        k = self.k
        X1 = self.X1
        W = list(self.WD_EARLY) + list(self.WD_LATE)
        acc = [32, 52]
        k(f's_mul_i32 s76, {sW}, 5120')
        k(f's_add_u32 s76, s76, {L_A}')
        k('v_add_u32 v8, s76, v1')
        k(f's_mul_i32 s76, {sW}, 20480')
        k(f's_add_u32 s76, s76, {L_A}')
        k('v_add_u32 v9, s76, v1')
        k.begin()
        for t in range(4):
            self.mm5(acc[t & 1], W, self.HH_B[t % 3], 12, self.o.chain)
        w = Sched(k.end())
        k.begin()
        k('s_barrier')
        w.pre(62, k.end())

        def wr(t):
            us = []
            for ft in range(5):
                k.begin()
                a = acc[t & 1] + 4 * ft
                off = t * 20480 + ft * 1024
                if off > 65535 - 16:
                    k(f'ds_write_b128 v6, v[{a}:{a + 3}] offset:{off - 40960}')
                else:
                    k(f'ds_write_b128 v8, v[{a}:{a + 3}] offset:{off}')
                us.append(k.end())
            return us
        for t in range(3):
            w.spread(self.hl[t + 1], 60 * t + 1, 60 * t + 36)
            w.spread(wr(t), 60 * (t + 1) + 38, 60 * (t + 1) + 57)
        w.post(self.o.pub3, self.hh_publish(3))
        for t in range(2):
            w.at(60 * t + 40, self.hh_flagload())
            w.post(60 * t + 59, self.hh_check(3 + t))
        k.begin()
        k('v_add_u32 v6, 40960, v8')
        self.rowmajor(16, 17)
        self.vec_addr()
        self.lds_cols(P_GB - L_P, 120, 'v18', 'v19')
        self.unpack10(120, 130)
        w.fill(k.end(), first=122, last=175)
        k.begin()
        self.unpack10(X1, 72)
        w.fill(k.end(), first=184)
        k.put(w.result())
        self.stamp('ks3')
        self.put_units(wr(3))
        k.barrier()
        red = 160
        for t in range(4):
            for ft in range(5):
                r = red + 20 * t + 4 * ft
                k(f'ds_read_b128 v[{r}:{r + 3}], v9 offset:{t * 5120 + ft * 1024}')
        for i in range(0, 20, 2):
            k(f'v_pk_add_f32 v[{red + i}:{red + i + 1}], v[{red + i}:{red + i + 1}], v[{red + 20 + i}:{red + 21 + i}]')
        for i in range(0, 20, 2):
            k(f'v_pk_add_f32 v[{red + i}:{red + i + 1}], v[{red + i}:{red + i + 1}], v[{red + 40 + i}:{red + 41 + i}]')
        for i in range(0, 20, 2):
            k(f'v_pk_add_f32 v[{red + i}:{red + i + 1}], v[{red + i}:{red + i + 1}], v[{red + 60 + i}:{red + 61 + i}]')
            k(f'v_pk_fma_f32 v[{red + i}:{red + i + 1}], v[{red + i}:{red + i + 1}], v[{130 + i}:{131 + i}], v[{72 + i}:{73 + i}]')
            k(f'v_cvt_pk_bf16_f32 v{32 + i // 2}, v{red + i}, v{red + i + 1}')
            if i == 6:
                k(f'buffer_store_dwordx4 v[32:35], v16, {OUTS}, s90 offen')
            if i == 14:
                k(f'buffer_store_dwordx4 v[36:39], v16, {OUTS}, s90 offen offset:64')
        k(f'buffer_store_dwordx2 v[40:41], v17, {OUTS}, s90 offen offset:128')

    def finish(self):
        k = self.k
        if self.o.stamps:
            k.wait_vm_all()
            self.stamp('end')
            k.wait_lgkm_all()
            k('s_memtime s[98:99]')
            k('v_writelane_b32 v11, s98, 62')
            k(f'v_writelane_b32 v11, {sFAST}, 63')
            k(f's_lshl2_add_u32 s72, s2, {sW}')
            k('s_lshl_b32 s72, s72, 8')
            k(f's_add_u32 s72, s72, {WS_DBG}')
            k('v_lshlrev_b32 v64, 2, v3')
            k(f'buffer_store_dword v11, v64, {WS}, s72 offen')
            if self.o.dbg:
                sel = [self.stampnames.index(n) + 1 for n in self.o.dbg.split(',')]
                k(f's_lshl2_add_u32 s72, s2, {sW}')
                k(f's_cmp_lg_u32 s72, {self.o.dbgwave}')
                k('s_cbranch_scc1 .Lend')
                k('s_mov_b64 s[28:29], s[68:69]')
                k('s_mov_b32 s30, 256')
                k('v_readlane_b32 s72, v11, 0')
                k('v_mov_b32 v64, 0')
                for i, n in enumerate(sel):
                    k(f'v_readlane_b32 s73, v11, {n}')
                    k('s_sub_u32 s73, s73, s72')
                    k('v_mov_b32 v65, s73')
                    k(f'buffer_store_dword v65, v64, {CS}, 0 offen offset:{4 * i}')
        k.label('.Lend')
        k('s_endpgm')

    def build(self):
        o = self.o
        def pre():
            order = o.order.split(',')
            fns = dict(wqi=self.st_wq_issue, xi=self.st_x_issue, mod=self.st_mod, mc=self.st_modc, a1=self.st_addr,
                       wqp=self.st_wq_process, pq=lambda: (self.wg_flag('wqst', WS_PQ), self.stamp('pq')),
                       th=lambda: self.touch('s86', 1, 20, 512, 8), norm=self.st_norm,
                       li=lambda: self.late_mod(self.mod_issue), lc=lambda: self.late_mod(self.mod_core),
                       rq=self.st_rest_prep, ri=lambda: self.put_units(self.rest_units(36, 38)), m1=lambda: self.mod_pass(False), h=self.make_h)
            assert set(fns) - set(order) <= {'ri'} and len(set(order)) == len(order)
            self.st_entry()
            for n in order:
                fns[n]()
        steps = [
            ('pre', pre),
            ('qkv', self.qkv),
            ('attn', self.attention),
            ('wo', self.wo),
            ('gu', self.gu),
            ('down', self.down),
        ]
        for name, fn in steps:
            self.k.comment(f'==================== {name}')
            fn()
            if o.stop == name:
                break
        self.finish()
        if o.stop not in ('pre', 'qkv'):
            self.k.assume_vm_empty()
            self.fallback()
        body = self.k.finalize()
        hdr = open('cdna_kernels/' + NAME + '.s.ref').read().split('\n')
        top = [l for l in hdr if l.startswith(';') and '@launch' not in l]
        txt = '\n'.join(top) + f'''
; @launch grid=(256,1,1) block=(256,1,1) lds={LDS_BYTES}
.amdgcn_target "amdgcn-amd-amdhsa--gfx950"
.text
.globl {NAME}_kernel
.p2align 8
.type {NAME}_kernel,@function
{NAME}_kernel:
{body}
.Lcode_end:
.section .rodata,"a"
.p2align 6
.amdhsa_kernel {NAME}_kernel
  .amdhsa_next_free_vgpr 512
  .amdhsa_next_free_sgpr 102
  .amdhsa_accum_offset 256
  .amdhsa_group_segment_fixed_size 0
  .amdhsa_kernarg_size 96
  .amdhsa_user_sgpr_count 2
  .amdhsa_user_sgpr_kernarg_segment_ptr 1
  .amdhsa_system_sgpr_workgroup_id_x 1
.end_amdhsa_kernel
'''
        return txt


if __name__ == '__main__':
    ap = argparse.ArgumentParser()
    ap.add_argument('-o', default='cdna_kernels/' + NAME + '.s')
    ap.add_argument('--stop', default=None)
    ap.add_argument('--stamps', action='store_true')
    ap.add_argument('--force-slow', dest='force_slow', action='store_true')
    ap.add_argument('--dbg', default=None)
    ap.add_argument('--dbgwave', type=int, default=401)
    ap.add_argument('--x', default='')
    ap.add_argument('--cyc', action='store_true')
    ap.add_argument('--order', default='wqi,xi,mod,a1,mc,wqp,th,norm,pq,li,lc,rq,ri,m1,h')
    ap.add_argument('--wqlook', type=int, default=14)
    ap.add_argument('--wgu-q', dest='wgu_q', type=int, default=8)
    ap.add_argument('--bg-quiet', dest='bg_quiet', type=int, default=10)
    ap.add_argument('--bg-attn', dest='bg_attn', type=int, default=45)
    ap.add_argument('--gubud', type=int, default=8)
    ap.add_argument('--dnlook', type=int, default=16)
    ap.add_argument('--force-fb', dest='force_fb', action='store_true')
    ap.add_argument('--fine', action='store_true')
    ap.add_argument('--chain', type=int, default=0)
    ap.add_argument('--pub3', type=int, default=24)
    ap.add_argument('--prgap', type=int, default=118)
    ap.add_argument('--wgu-q1', dest='wgu_q1', type=int, default=0)
    ap.add_argument('--wgu-q1end', dest='wgu_q1end', type=int, default=112)
    ap.add_argument('--prflag', type=int, default=43)
    ap.add_argument('--rsgap', type=int, default=100)
    ap.add_argument('--late', type=int, default=240)
    ap.add_argument('--rspos', type=int, default=20)
    ap.add_argument('--wlead', type=int, default=6)
    ap.add_argument('--remend', type=int, default=56)
    ap.add_argument('--rigap', type=int, default=58)
    ap.add_argument('--wend', type=int, default=60)
    ap.add_argument('--hend', type=int, default=90)
    ap.add_argument('--t3end', type=int, default=90)
    ap.add_argument('--bg', default='0,9,6,8,22,14,8')
    ap.add_argument('--bg-start', dest='bg_start', type=int, default=6)
    ap.add_argument('--wo-quiet', dest='wo_quiet', type=int, default=70)
    ap.add_argument('--cs1', type=int, default=7)
    ap.add_argument('--q0a', type=int, default=84)
    ap.add_argument('--spin', type=int, default=20000)
    opt = ap.parse_args()
    g = Gen(opt)
    txt = g.build()
    open(opt.o, 'w').write(txt)
    if opt.stamps:
        open(opt.o + '.stamps', 'w').write(' '.join(g.stampnames))
    print('written', opt.o, 'lines', txt.count('\n'), g.k.stats, g.stampnames)
```

```python
import re

A0 = 256
S0 = 1000
VCC = (1106, 1107)
EXEC = (1126, 1127)
M0 = 1124

TRANS = ('v_exp_f32', 'v_log_f32', 'v_rcp_f32', 'v_rsq_f32', 'v_sqrt_f32', 'v_sin_f32', 'v_cos_f32', 'v_rcp_iflag_f32')
RMW_VALU = ('v_fmac_f32', 'v_dot2c_f32_bf16', 'v_pk_fmac_f16', 'v_writelane_b32')

_reg_re = re.compile(r'^(-|\|)?(?:abs\()?([vas])(?:(\d+)|\[(\d+):(\d+)\])\)?\|?$')


def regs_of(op):
    op = op.strip()
    if op == 'vcc':
        return set(VCC)
    if op == 'vcc_lo':
        return {VCC[0]}
    if op == 'vcc_hi':
        return {VCC[1]}
    if op == 'exec':
        return set(EXEC)
    if op == 'exec_lo':
        return {EXEC[0]}
    if op == 'exec_hi':
        return {EXEC[1]}
    if op == 'm0':
        return {M0}
    m = _reg_re.match(op)
    if not m:
        return set()
    base = {'v': 0, 'a': A0, 's': S0}[m.group(2)]
    if m.group(3) is not None:
        return {base + int(m.group(3))}
    lo, hi = int(m.group(4)), int(m.group(5))
    return set(range(base + lo, base + hi + 1))


def split_ops(s):
    out, depth, cur = [], 0, ''
    for ch in s:
        if ch in '[(':
            depth += 1
        if ch in '])':
            depth -= 1
        if ch == ',' and depth == 0:
            out.append(cur.strip())
            cur = ''
        else:
            cur += ch
    if cur.strip():
        out.append(cur.strip())
    return out


class Ins:
    __slots__ = ('text', 'mn', 'ops', 'mods', 'kind', 'rd', 'wr', 'tag', 'passes', 'A', 'B', 'C', 'D', 'sdata', 'dpp', 'meta')

    def __init__(self, text, tag=None):
        self.text = text
        self.tag = tag
        self.meta = None
        t = text.split(';')[0].strip()
        parts = t.split(None, 1)
        self.mn = mn = parts[0]
        rest = parts[1] if len(parts) > 1 else ''
        ops = split_ops(rest)
        mods = ''
        if ops:
            last = ops[-1]
            m = re.match(r'^(\S+(?:\([^)]*\))?)\s+(.*)$', last)
            if m and not last.startswith('hwreg'):
                ops[-1] = m.group(1)
                mods = m.group(2)
        self.ops, self.mods = ops, mods
        self.rd, self.wr = set(), set()
        self.passes = 0
        self.A = self.B = self.C = self.D = None
        self.sdata = set()
        self.dpp = ('quad_perm' in mods or 'row_' in mods or 'wave_' in mods or mn.endswith('_dpp'))
        R = [regs_of(o) for o in ops]
        base = mn
        for suf in ('_e32', '_e64', '_dpp', '_sdwa'):
            if base.endswith(suf):
                base = base[:-len(suf)]
        if mn.startswith('v_mfma'):
            self.kind = 'mfma'
            self.D, self.A, self.B, self.C = R[0], R[1], R[2], R[3]
            self.wr = set(R[0])
            self.rd = R[1] | R[2] | R[3]
            self.passes = 8 if '32x32' in mn else 4
        elif mn.startswith('v_'):
            self.kind = 'trans' if base in TRANS else 'valu'
            if base.startswith('v_cmpx'):
                self.wr = R[0] | set(EXEC)
                self.rd = set().union(*R[1:])
            elif base in ('v_permlane16_swap_b32', 'v_permlane32_swap_b32', 'v_swap_b32'):
                self.wr = R[0] | R[1]
                self.rd = R[0] | R[1]
            elif base in ('v_add_co_u32', 'v_sub_co_u32', 'v_addc_co_u32', 'v_subb_co_u32', 'v_mad_u64_u32'):
                self.wr = R[0] | R[1]
                self.rd = set().union(*R[2:])
            elif base == 'v_nop':
                pass
            else:
                self.wr = set(R[0])
                self.rd = set().union(*R[1:]) if len(R) > 1 else set()
                if base in RMW_VALU or self.dpp:
                    self.rd |= R[0]
                if base == 'v_cndmask_b32' and len(ops) == 3:
                    self.rd |= set(VCC)
        elif mn.startswith('ds_'):
            self.kind = 'ds'
            if mn.startswith('ds_read') or mn.startswith('ds_bpermute') or mn.startswith('ds_permute') or mn.startswith('ds_swizzle') or '_rtn' in mn:
                self.wr = set(R[0])
                self.rd = set().union(*R[1:])
            else:
                self.rd = set().union(*R)
        elif mn.startswith('buffer_wbl2') or mn.startswith('buffer_inv'):
            self.kind = 'vmem'
        elif mn.startswith('buffer_') or mn.startswith('global_'):
            self.kind = 'vmem'
            lds = bool(re.search(r'\blds\b', mods)) or '_lds_' in mn
            if lds:
                self.rd = set().union(*R) | {M0}
                self.meta = 'dma'
            elif '_load' in mn:
                self.wr = set(R[0])
                self.rd = set().union(*R[1:])
            elif '_store' in mn:
                self.rd = set().union(*R)
                data = R[0] if mn.startswith('buffer_') else R[1]
                if len(data) >= 3:
                    self.sdata = set(data)
            elif '_atomic' in mn:
                self.rd = set().union(*R)
                if 'sc0' in mods:
                    self.wr = set(R[0])
            else:
                raise ValueError(text)
        elif mn.startswith('s_load') or mn.startswith('s_buffer_load') or mn in ('s_memtime', 's_memrealtime') or mn.startswith('s_atomic'):
            self.kind = 'smem'
            self.wr = set(R[0])
            self.rd = set().union(*R[1:]) if len(R) > 1 else set()
            if mn.startswith('s_atomic'):
                self.rd |= R[0]
        elif mn in ('s_waitcnt', 's_nop', 's_barrier', 's_endpgm', 's_sleep', 's_setprio', 's_branch') or mn.startswith('s_cbranch'):
            self.kind = 'ctl'
        elif mn.startswith('s_cmp') or mn.startswith('s_bitcmp'):
            self.kind = 'salu'
            self.rd = set().union(*R)
        elif mn in ('s_setpc_b64',):
            self.kind = 'ctl'
            self.rd = set(R[0])
        elif mn.startswith('s_'):
            self.kind = 'salu'
            self.wr = set(R[0])
            self.rd = set().union(*R[1:]) if len(R) > 1 else set()
            if 'saveexec' in mn:
                self.wr |= set(EXEC)
            if mn in ('s_addk_i32', 's_mulk_i32', 's_cmov_b32', 's_cmov_b64'):
                self.rd |= R[0]
        else:
            raise ValueError('unknown instruction: ' + text)


class Pseudo:
    def __init__(self, what, arg=None):
        self.what, self.arg = what, arg


class Builder:
    def __init__(self):
        self.items = []
        self._stack = []
        self._lab = 0

    def __call__(self, text, tag=None):
        for line in text.split('\n'):
            line = line.strip()
            if not line or line.startswith(';'):
                continue
            self.items.append(Ins(line, tag))

    def newlabel(self, stem='L'):
        self._lab += 1
        return f'.L{stem}_{self._lab}'

    def label(self, name):
        self.items.append(Pseudo('label', name))

    def comment(self, s):
        self.items.append(Pseudo('comment', s))

    def wait_vm(self, tag):
        self.items.append(Pseudo('wait_vm', tag))

    def wait_vm_all(self):
        self.items.append(Pseudo('wait_vm', None))

    def wait_lgkm_all(self):
        self.items.append(Pseudo('wait_lgkm', None))

    def wait_lgkm(self, tag):
        self.items.append(Pseudo('wait_lgkm', tag))

    def barrier(self):
        self.wait_lgkm_all()
        self('s_barrier')

    def cond_begin(self):
        self.items.append(Pseudo('cond_begin'))

    def cond_end(self):
        self.items.append(Pseudo('cond_end'))

    def fence_hazards(self):
        self.items.append(Pseudo('fence'))

    def assume_vm_empty(self):
        self.items.append(Pseudo('vm_empty'))

    def raw(self, s):
        self.items.append(Pseudo('raw', s))

    def begin(self):
        self._stack.append(self.items)
        self.items = []

    def end(self):
        out = self.items
        self.items = self._stack.pop()
        return out

    def put(self, items):
        self.items.extend(items)

    def finalize(self):
        out = []
        vmq, lgq = [], []
        cond_stack = []
        hist = []
        pos = [0]
        stats = dict(nops=0, waits=0)

        def emit(text, states=1, ins=None):
            out.append('    ' + text)
            if ins is not None:
                hist.append((ins, pos[0]))
                hist[:] = [(p, pp) for (p, pp) in hist if pos[0] - pp <= 24]
            pos[0] += states

        def do_wait(vm=None, lg=None):
            parts = []
            if vm is not None:
                parts.append(f'vmcnt({vm})')
            if lg is not None:
                parts.append(f'lgkmcnt({lg})')
            if parts:
                emit('s_waitcnt ' + ' '.join(parts))
                stats['waits'] += 1

        def need_count(q, idx, cap):
            n = sum(1 for e in q[idx + 1:] if e['certain'])
            return min(n, cap)

        def retire(q, n):
            keep, c = [], 0
            for e in reversed(q):
                if c >= n:
                    break
                keep.append(e)
                if e['certain']:
                    c += 1
            q[:] = list(reversed(keep))

        def hazard_need(ins):
            need = 0
            cur = pos[0]
            isvalu = ins.kind in ('valu', 'trans')
            base = ins.mn
            for p, ppos in hist:
                dist = cur - ppos - 1
                req = 0
                pv = p.kind in ('valu', 'trans')
                if p.kind == 'mfma':
                    big = {4: 8, 8: 12}[p.passes]
                    if ins.kind == 'mfma':
                        if p.D & (ins.A | ins.B):
                            req = max(req, big)
                        if p.D & ins.C:
                            if not (p.D == ins.C and p.passes == ins.passes):
                                req = max(req, {4: 6, 8: 10}[p.passes])
                        elif p.D & ins.D:
                            req = max(req, {4: 6, 8: 10}[p.passes])
                    elif isvalu or ins.kind in ('vmem', 'ds'):
                        if p.D & (ins.rd | ins.wr):
                            req = max(req, big)
                        if isvalu and (p.C & ins.wr):
                            req = max(req, {4: 3, 8: 7}[p.passes])
                if pv:
                    vw = {r for r in p.wr if r < S0}
                    sw = {r for r in p.wr if r >= S0}
                    if ins.kind == 'mfma' and (vw & ins.rd):
                        req = max(req, 2)
                    if ins.kind == 'mfma' and (set(EXEC) & sw):
                        req = max(req, 4)
                    if isvalu:
                        if p.kind == 'trans' and ins.kind != 'trans' and (vw & (ins.rd | ins.wr)):
                            req = max(req, 1)
                        if base.startswith('v_permlane') and (vw & ins.rd):
                            req = max(req, 2)
                        if ins.dpp and (vw & ins.rd):
                            req = max(req, 2)
                        if (base.startswith('v_readlane') or base.startswith('v_readfirstlane')) and (vw & ins.rd):
                            req = max(req, 1)
                        if sw & ins.rd:
                            req = max(req, 4 if (base.startswith('v_readlane') or base.startswith('v_writelane')) else 2)
                        if set(EXEC) & sw:
                            req = max(req, 5)
                        if ('op_sel' in p.mods or 'dst_sel' in p.mods) and not p.mn.startswith('v_pk') and (vw & (ins.rd | ins.wr)):
                            req = max(req, 1)
                    if p.kind == 'trans' and ins.kind in ('vmem', 'ds') and (vw & ins.rd):
                        req = max(req, 1)
                    if ins.kind == 'vmem' and (sw & ins.rd):
                        req = max(req, 5)
                    if ins.kind in ('salu', 'smem', 'ctl') and (sw & ins.rd):
                        req = max(req, 1)
                if p.kind == 'salu' and M0 in p.wr and ins.meta == 'dma':
                    req = max(req, 1)
                if p.kind == 'vmem' and p.sdata and (p.sdata & ins.wr):
                    req = max(req, 2 if (isvalu or ins.kind == 'mfma') else 1)
                if p.kind == 'ds' and not p.wr and len(p.rd) >= 4 and isvalu and (p.rd & ins.wr):
                    req = max(req, 1)
                if req > dist:
                    need = max(need, req - dist)
            return need

        def pad(n):
            while n > 0:
                k = min(n, 16)
                emit(f's_nop {k - 1}', states=k)
                stats['nops'] += 1
                n -= k

        for it in self.items:
            if isinstance(it, Pseudo):
                if it.what == 'label':
                    out.append(it.arg + ':')
                elif it.what == 'comment':
                    out.append('    ; ' + it.arg)
                elif it.what == 'raw':
                    out.append(it.arg)
                elif it.what == 'wait_vm':
                    idxs = [i for i, e in enumerate(vmq) if it.arg is None or e['tag'] == it.arg]
                    if idxs:
                        n = need_count(vmq, idxs[-1], 63)
                        do_wait(vm=n)
                        retire(vmq, n)
                elif it.what == 'wait_lgkm':
                    idxs = [i for i, e in enumerate(lgq) if it.arg is None or e['tag'] == it.arg]
                    if idxs:
                        n = 0 if any(e['smem'] for e in lgq) else need_count(lgq, idxs[-1], 15)
                        do_wait(lg=n)
                        retire(lgq, n)
                elif it.what == 'need':
                    vm = lg = None
                    idxs = [i for i, e in enumerate(vmq) if e['wr'] & it.arg]
                    if idxs:
                        vm = need_count(vmq, idxs[-1], 63)
                    idxs = [i for i, e in enumerate(lgq) if e['wr'] & it.arg]
                    if idxs:
                        lg = 0 if any(e['smem'] for e in lgq) else need_count(lgq, idxs[-1], 15)
                    do_wait(vm, lg)
                    if vm is not None:
                        retire(vmq, vm)
                    if lg is not None:
                        retire(lgq, lg)
                elif it.what == 'vm_empty':
                    vmq[:] = []
                elif it.what == 'cond_begin':
                    cond_stack.append((list(vmq), list(lgq), list(hist), pos[0]))
                elif it.what == 'cond_end':
                    v0, l0, h0, p0 = cond_stack.pop()
                    delta = pos[0] - p0
                    inner = [(p, pp) for (p, pp) in hist if pp >= p0]
                    hist[:] = [(p, pp + delta) for (p, pp) in h0] + inner
                    for q, q0 in ((vmq, v0), (lgq, l0)):
                        new = [e for e in q if not any(e is x for x in q0)]
                        for e in new:
                            e['certain'] = False
                        q[:] = q0 + new
                elif it.what == 'fence':
                    need = 0
                    for p, ppos in hist:
                        dist = pos[0] - ppos - 1
                        req = 0
                        if p.kind == 'mfma':
                            req = {4: 8, 8: 12}[p.passes]
                        elif p.kind in ('valu', 'trans'):
                            req = 5 if any(r >= S0 for r in p.wr) else 2
                        elif p.kind == 'vmem' and p.sdata:
                            req = 2
                        elif p.kind == 'salu' and M0 in p.wr:
                            req = 1
                        need = max(need, req - dist)
                    pad(need)
                continue
            ins = it
            touch = ins.rd | ins.wr
            vm = lg = None
            tv = ins.rd if ins.kind == 'vmem' else touch
            idxs = [i for i, e in enumerate(vmq) if e['wr'] & tv]
            if idxs:
                vm = need_count(vmq, idxs[-1], 63)
            tl = ins.rd if ins.kind == 'ds' else touch
            idxs = [i for i, e in enumerate(lgq) if e['wr'] & tl]
            if idxs:
                lg = 0 if any(e['smem'] for e in lgq) else need_count(lgq, idxs[-1], 15)
            do_wait(vm, lg)
            if vm is not None:
                retire(vmq, vm)
            if lg is not None:
                retire(lgq, lg)
            if ins.mn == 's_waitcnt':
                m = re.search(r'vmcnt\((\d+)\)', ins.text)
                if m:
                    retire(vmq, int(m.group(1)))
                m = re.search(r'lgkmcnt\((\d+)\)', ins.text)
                if m and (int(m.group(1)) == 0 or not any(e['smem'] for e in lgq)):
                    retire(lgq, int(m.group(1)))
            pad(hazard_need(ins))
            states = 1
            if ins.mn == 's_nop':
                states = int(ins.ops[0], 0) + 1
            emit(ins.text, states=states, ins=ins)
            if ins.kind == 'vmem':
                vmq.append(dict(wr=set(ins.wr), tag=ins.tag, certain=True, smem=False))
            elif ins.kind == 'ds':
                lgq.append(dict(wr=set(ins.wr), tag=ins.tag, certain=True, smem=False))
            elif ins.kind == 'smem':
                lgq.append(dict(wr=set(ins.wr), tag=ins.tag, certain=True, smem=True))
        self.stats = stats
        return '\n'.join(out)


def interleave(main, fill, start=0, every=1, per=1):
    out, fi, n = [], 0, 0
    for it in main:
        out.append(it)
        if isinstance(it, Ins) and it.kind == 'mfma':
            if n >= start and (n - start) % every == 0:
                c = 0
                while fi < len(fill) and c < per:
                    f = fill[fi]
                    out.append(f)
                    fi += 1
                    if isinstance(f, Ins):
                        c += 2 if f.kind == 'trans' else 1
            n += 1
    out.extend(fill[fi:])
    return out


def n_mfma(main):
    return sum(1 for it in main if isinstance(it, Ins) and it.kind == 'mfma')


class Weave:
    def __init__(self, main):
        self.main = main
        self.n = n_mfma(main)
        self.slots = [[] for _ in range(self.n)]
        self.tail = []

    def spread(self, units, first=0, last=None):
        if last is None:
            last = self.n - 1
        m = len(units)
        for i, u in enumerate(units):
            pos = first + (i * (last - first + 1)) // m
            self.slots[pos].extend(u)

    def at(self, pos, items):
        self.slots[pos].extend(items)

    def fill(self, items, first=0, budget=8):
        def cost(it):
            if not isinstance(it, Ins):
                return 0
            if it.kind == 'trans':
                return 8
            if it.kind == 'salu':
                return 1
            return 4
        fi, carry = 0, 0
        for pos in range(first, self.n):
            carry = min(carry + budget, budget + 4)
            while fi < len(items) and cost(items[fi]) <= carry:
                carry -= cost(items[fi])
                self.slots[pos].append(items[fi])
                fi += 1
        self.tail.extend(items[fi:])

    def result(self):
        out, n = [], 0
        for it in self.main:
            out.append(it)
            if isinstance(it, Ins) and it.kind == 'mfma':
                out.extend(self.slots[n])
                n += 1
        out.extend(self.tail)
        return out


def slots_of(it):
    if not isinstance(it, Ins):
        return 0
    if it.kind == 'trans' or it.mn.startswith('v_permlane'):
        return 2
    if it.mn.startswith('ds_write_b128'):
        return 5
    if it.mn.startswith('ds_write_b64'):
        return 3
    if it.kind == 'vmem' and '_store' in it.mn:
        return 3
    return 1


def is_mem(it):
    return isinstance(it, Ins) and it.kind in ('ds', 'vmem')


class Sched:
    def __init__(self, main):
        self.head = []
        self.mf, self.mem, self.val = [], [], []
        for it in main:
            if isinstance(it, Ins) and it.kind == 'mfma':
                self.mf.append(it)
                self.mem.append([])
                self.val.append([])
            elif not self.mf:
                self.head.append(it)
            elif is_mem(it):
                self.mem[-1].append(it)
            else:
                self.val[-1].append(it)
        self.n = len(self.mf)
        self.tail = []

    def cap(self, g):
        return 6 if self.mf[g].passes == 8 else 2

    def used(self, g):
        u = sum(slots_of(i) for i in self.mem[g]) + sum(slots_of(i) for i in self.val[g])
        if self.mem[g] and isinstance(self.mem[g][0], Ins) and self.mem[g][0].kind == 'salu':
            u -= 1
        return u

    def at(self, g, unit):
        self.mem[g].extend(unit)

    def pre(self, g, unit):
        self.mem[g][0:0] = unit

    def post(self, g, unit):
        self.val[g].extend(unit)

    def spread(self, units, first=0, last=None, mod=None):
        if last is None:
            last = self.n - 1
        gaps = [g for g in range(first, last + 1) if mod is None or g % mod[0] == mod[1]]
        m = len(units)
        for i, u in enumerate(units):
            lst = self.mem[gaps[(i * len(gaps)) // m]]
            if u and isinstance(u[0], Ins) and u[0].kind == 'salu' and len(lst) == 1 and is_mem(lst[0]) and lst[0].kind == 'ds':
                j = 0
                while isinstance(u[j], Ins) and u[j].kind == 'salu' and j + 1 < len(u):
                    j += 1
                lst[0:0] = u[:j]
                lst.extend(u[j:])
            else:
                lst.extend(u)

    def fill(self, items, first=0, window=24, last=None):
        items = [it for it in items]
        assert all(isinstance(it, Ins) for it in items)
        n = len(items)
        SCC = 1200
        def rw(it):
            rd, wr = set(it.rd), set(it.wr)
            if it.kind == 'salu':
                rd.add(SCC); wr.add(SCC)
            return rd, wr
        RW = [rw(it) for it in items]
        preds = []
        for i in range(n):
            p = set()
            for j in range(i):
                if (RW[j][1] & (RW[i][0] | RW[i][1])) or (RW[j][0] & RW[i][1]) or (is_mem(items[i]) and is_mem(items[j])):
                    p.add(j)
            preds.append(p)
        where = [None] * n
        left = list(range(n))
        g = first
        end = self.n if last is None else last + 1
        while g < end and left:
            free = self.cap(g) - self.used(g)
            best = None
            for i in left[:window]:
                if any(where[j] is None for j in preds[i]):
                    continue
                it = items[i]
                c = slots_of(it)
                if is_mem(it):
                    if any(where[j] == (g, 'v') for j in preds[i]) or (c > free and self.used(g) > 0):
                        continue
                    score = 3
                else:
                    if c > free:
                        continue
                    if self.val[g]:
                        prev = self.val[g][-1]
                        if isinstance(prev, Ins) and (prev.wr & it.rd) and (prev.kind == 'trans' or it.mn.startswith('v_permlane')):
                            continue
                    score = 2 if c == 2 else 1
                if best is None or score > best[0]:
                    best = (score, i)
            if best is None:
                g += 1
                continue
            i = best[1]
            left.remove(i)
            if is_mem(items[i]):
                self.mem[g].append(items[i]); where[i] = (g, 'm')
            else:
                self.val[g].append(items[i]); where[i] = (g, 'v')
        (self.tail if last is None else self.val[last]).extend(items[i] for i in left)
        self.ntail = len(left)
        self.lastgap = g

    def result(self):
        out = list(self.head)
        for g in range(self.n):
            out.append(self.mf[g])
            if g + 1 < self.n:
                out.append(Pseudo('need', self.mf[g + 1].A | self.mf[g + 1].B))
            out.extend(self.mem[g])
            out.extend(self.val[g])
        out.extend(self.tail)
        return out
```

```python
import os, sys, struct, argparse
sys.path.insert(0, 'dev')
from asmb import Builder, Sched, Ins

NAME = 'adaLN_cond__sliding_block__glu_gated_geglu__prompt'

WS_EPOCH = 0
WS_HELLO = 0x400
WS_PQ = 0x1000
WS_PR = 0x1400
WS_KVF = 0x8000
WS_FLAG = 0x40000
WS_MODG = 0x10000
WS_ST = 0x20000
WS_WQ = 0x100000
WS_WO = 0x3C0000
WS_WGU = 0x4C0000
WS_WD = 0x900000
PAD = int(os.environ.get('PAD', '1280'))
WQ_T = 40960 + PAD
WQ_J = 4 * WQ_T + PAD
WGU_S = 61440 + PAD
OD_W = PAD
WO_J = 20 * 5120 + 5 * PAD
WD_J = 48 * 5120 + 5 * PAD
WS_H = 0xB40000
WS_O = 0xDC0000
WS_Z = 0x1040000
WS_KV = 0x12C0000
WS_HH = 0x1840000
O_CL = 163840
if 'NOARENA' not in os.environ:
    WS_Z = WS_H
    WS_O = WS_HH
    O_CL = 393216
WS_DBG = 0x1E40000
WS_SIZE = 0x1F00000
WS_BASE = int(os.environ.get('WSBASE', '0'), 0)
OOB = 0x40000000
PH_H, PH_O, PH_Z, PH_HH = range(4)
SF = 52
VF_FAST, VF_SLOW = 4, 0

KVB = 5632
L_C = 0
L_KVOWN = 8 * KVB
L_Q = 12 * KVB
L_P = L_Q + 10240
L_A = 81920
L_B = 122880
LDS_BYTES = 163840
L_X = L_Q
L_MOD = L_C
L_WQS = L_C + 20480
L_MV = L_KVOWN + 16384
L_STAT = L_C + 40960
L_SC = L_C + 41472
L_GUS = L_KVOWN
L_ODS = [L_X, L_GUS]
KM_OFF = [0, 1024]
KT_OFF = 2048
V_OFF = [2560, 4096]
P_SB = L_P
P_G2 = L_P + 1280
P_GA = L_P + 2560
P_GB = L_P + 2720
P_DUMMY = L_P + 3072
L_RED = 0

sW = 's3'
WS = 's[4:7]'; XS = 's[8:11]'; WQS = 's[12:15]'; ODS = 's[16:19]'; WGS = 's[20:23]'; WUS = 's[24:27]'
CS = 's[28:31]'; WMS = 's[32:35]'; OUTS = 's[36:39]'
sCL, sJ, sTAG, sFAST = 's40', 's41', 's42', 's43'
sJC, sTH = 's46', 's47'

DUMMY = 47
QSCALE = 20 ** -0.5 * 1.4426950408889634
NEG = -1.0e30


def f2u(x):
    return struct.unpack('<I', struct.pack('<f', x))[0]


def vr(a, n=1, t='v'):
    return f'{t}{a}' if n == 1 else f'{t}[{a}:{a + n - 1}]'


def ur(a, n=4):
    return vr(a, n, 'v') if a < 256 else vr(a - 256, n, 'a')


def zipper(a, b, lead):
    out = list(a[:lead])
    a = a[lead:]
    for i in range(max(len(a), len(b))):
        out += a[i:i + 1] + b[i:i + 1]
    return out


class TagBuilder(Builder):
    wt = ()

    def __call__(self, text, tag=None):
        if tag is not None and tag.rstrip('0123') in self.wt and text.startswith('buffer_store'):
            text += ' sc1'
        if tag in self.drop and text.startswith('buffer_store'):
            return
        if tag in self.ntst and text.startswith('buffer_store'):
            text += ' nt'
        super().__call__(text, tag)


class Gen:
    def __init__(self, opt):
        self.o = opt
        self.k = TagBuilder()
        self.k.wt = opt.wt.split(',')
        self.k.drop = opt.drop.split(',')
        self.k.ntst = opt.ntst.split(',')
        self.nstamp = 0
        self.stampnames = []
        self.ool = []
        self.ntw = ' nt' if 'ntw' in opt.x else ''
        self.ntx = ' nt' if 'ntx' in opt.x else ''
        self.nt = '' if 'nont' in opt.x else ' nt'

    def stamp(self, name):
        if not self.o.stamps:
            return
        k = self.k
        n = self.nstamp
        assert n < 60
        self.nstamp += 1
        self.stampnames.append(name)
        k('s_memtime s[100:101]' if self.o.cyc else 's_memrealtime s[100:101]')
        k(f'v_writelane_b32 v11, s100, {n + 1}')

    def rawstamps(self, w, gaps, prefix):
        k = self.k
        for gp in gaps:
            n = self.nstamp
            self.nstamp += 1
            self.stampnames.append(f'{prefix}{gp}')
            k.begin()
            k.raw('    s_memtime s[98:99]')
            w.pre(gp, k.end())
            k.begin()
            k.raw(f'    v_writelane_b32 v11, s98, {n + 1}')
            w.post(gp + (10 if w.cap(gp) == 2 else 5), k.end())

    def dma(self, srd, voff, soff, lds, imm=0, tag=None, sc1=False):
        k = self.k
        k(f's_mov_b32 m0, {lds}')
        k(f'buffer_load_dwordx4 {voff}, {srd}, {soff} offen offset:{imm}{" sc1" if sc1 else ""} lds', tag)

    def bf16_round_keep(self, regs, tmp):
        k = self.k
        for i in range(0, len(regs), 2):
            k(f'v_cvt_pk_bf16_f32 v{tmp}, v{regs[i]}, v{regs[i + 1]}')
            k(f'v_lshlrev_b32 v{regs[i]}, 16, v{tmp}')
            k(f'v_and_b32 v{regs[i + 1]}, 0xffff0000, v{tmp}')

    def flag_off(self, sdst, phase, scl=sCL):
        k = self.k
        k(f's_add_u32 {sdst}, s{SF + phase // 2}, {(phase % 2) * 2048}')

    def publish(self, phase, tag):
        k = self.k
        if tag.rstrip('0123') in k.wt:
            k.wait_vm(tag)
            k(f'buffer_store_dword v5, v{VF_FAST}, {WS}, s{SF + phase // 2} offen offset:{(phase % 2) * 2048}')
            k(f'buffer_store_dword v5, v{VF_SLOW}, {WS}, s{SF + phase // 2} offen offset:{(phase % 2) * 2048} sc1')
            return
        k.wait_vm(tag)
        k(f'buffer_store_dword v5, v{VF_FAST}, {WS}, s{SF + phase // 2} offen offset:{(phase % 2) * 2048}')
        back, slow = k.newlabel('pubb'), k.newlabel('pubs')
        k(f's_cmp_eq_u32 {sFAST}, 0')
        k(f's_cbranch_scc1 {slow}')
        k.label(back)

        def ool():
            k.label(slow)
            k('buffer_wbl2 sc1')
            k('s_waitcnt vmcnt(0)')
            k(f'buffer_store_dword v5, v{VF_SLOW}, {WS}, s{SF + phase // 2} offen offset:{(phase % 2) * 2048} sc1')
            k(f's_branch {back}')
        self.ool.append(ool)

    def recheck(self, body):
        k = self.k
        back, slow = k.newlabel('rcb'), k.newlabel('rcs')
        k('s_cmp_lg_u64 vcc, 0')
        k(f's_cbranch_scc1 {slow}')
        k.label(back)

        def ool():
            k.label(slow)
            self.spin(body)
            k.fence_hazards()
            k(f's_branch {back}')
        self.ool.append(ool)

    def acquire(self, tag):
        k = self.k
        if tag in k.wt:
            return
        back, slow = k.newlabel('acb'), k.newlabel('acs')
        k(f's_cmp_eq_u32 {sFAST}, 0')
        k(f's_cbranch_scc1 {slow}')
        k.label(back)

        def ool():
            k.label(slow)
            k('buffer_inv sc1')
            k('s_waitcnt vmcnt(0)')
            k(f's_branch {back}')
        self.ool.append(ool)

    def spin(self, body, onmiss=None):
        k = self.k
        lab, out = k.newlabel('poll'), k.newlabel('pollx')
        k('s_mov_b32 s73, 0')
        k.fence_hazards()
        k.label(lab)
        k('s_add_u32 s73, s73, 1')
        body()
        k(f's_cmp_ge_u32 s73, {self.o.spin}')
        k(f's_cbranch_scc1 {out}')
        if onmiss is None:
            k('s_cmp_lg_u64 vcc, 0')
            k(f's_cbranch_scc1 {lab}')
        else:
            k('s_cmp_eq_u64 vcc, 0')
            k(f's_cbranch_scc1 {out}')
            k('s_cmp_lg_u32 s73, 1')
            k(f's_cbranch_scc1 {lab}')
            onmiss()
            k(f's_branch {lab}')
        k.label(out)
        k.assume_vm_empty()

    def allcheck(self, regs, t):
        k = self.k
        if len(regs) == 1:
            k(f'v_cmp_ne_u32 vcc, {sTAG}, v{regs[0]}')
            return
        k(f'v_xor_b32 v{t}, {sTAG}, v{regs[0]}')
        rest = regs[1:]
        while rest:
            k(f'v_xor_b32 v{t + 1}, {sTAG}, v{rest[0]}')
            if len(rest) > 1:
                k(f'v_xor_b32 v{t + 2}, {sTAG}, v{rest[1]}')
                k(f'v_or3_b32 v{t}, v{t}, v{t + 1}, v{t + 2}')
            else:
                k(f'v_or_b32 v{t}, v{t}, v{t + 1}')
            rest = rest[2:]
        k(f'v_cmp_ne_u32 vcc, 0, v{t}')

    def poll(self, voff, soff, vt, local):
        k = self.k

        def body():
            k(f'buffer_load_dword v{vt}, {voff}, {WS}, {soff} offen sc1')
            k('s_waitcnt vmcnt(0)')
            self.allcheck([vt], vt)
        self.spin(body)
        if local:
            self.acquire(local)

    def units_frags(self, regs, sbase, voff='v1', tag=None, first=0):
        k = self.k
        out = []
        for n, r in enumerate(regs):
            i = n + first
            k.begin()
            if i and i % 4 == 0:
                k(f's_add_u32 {sbase}, {sbase}, 4096')
            if not ('nobg' in self.o.x and tag in ('wgu', 'wo', 'wd')):
                k(f'buffer_load_dwordx4 {ur(r)}, {voff}, {WS}, {sbase} offen offset:{1024 * (i % 4)} sc1{self.ntw if tag in ("wgu", "wo", "wd") else ""}', tag)
            out.append(k.end())
        return out

    def units_dma(self, ssrc, srcadd, ldsbase, n, tag, voff='v1'):
        k = self.k
        c = (n + 3) // 4
        out = []
        for i in range(c):
            k.begin()
            if i == 0:
                k(f's_mul_i32 s88, {sW}, {c}')
                if c * 4 != n:
                    k(f's_min_u32 s88, s88, {n - c}')
                k('s_lshl_b32 s88, s88, 10')
                k(f's_add_u32 s87, {ssrc}, s88')
                if srcadd:
                    k(f's_add_u32 s87, s87, {srcadd}')
                k(f's_add_u32 m0, s88, {ldsbase}')
            elif i % 4 == 0:
                k('s_add_u32 s87, s87, 4096')
                k('s_add_u32 m0, m0, 4096')
            k(f'buffer_load_dwordx4 {voff}, {WS}, s87 offen offset:{1024 * (i % 4)} sc1 lds', tag)
            out.append(k.end())
        return out

    def take(self, n):
        out, self.bg = self.bg[:n], self.bg[n:]
        return out

    def put_units(self, units):
        for u in units:
            self.k.put(u)

    def rowsum(self, r, t):
        k = self.k
        k(f'v_mov_b32 v{t}, v{r}')
        k(f'v_permlane16_swap_b32 v{r}, v{t}')
        k(f'v_add_f32 v{r}, v{r}, v{t}')
        k(f'v_mov_b32 v{t}, v{r}')
        k(f'v_permlane32_swap_b32 v{r}, v{t}')
        k(f'v_add_f32 v{r}, v{r}, v{t}')

    def touch(self, soff, per, n, stride, t, dst=DUMMY):
        k = self.k
        if 'notouch' in self.o.x:
            return
        magic = (65536 + per - 1) // per
        assert all((l * magic) >> 16 == l // per for l in range(64))
        if per == 1:
            k(f'v_mul_u32_u24 v{t}, {stride}, v3')
        else:
            k(f'v_mul_u32_u24 v{t}, {magic}, v3')
            k(f'v_lshrrev_b32 v{t}, 16, v{t}')
            k(f'v_mul_u32_u24 v{t}, {stride - per * 128}, v{t}')
            k(f'v_lshl_add_u32 v{t}, v3, 7, v{t}')
        k(f'v_sub_u32 v{t + 1}, {n - 1}, v3')
        k(f'v_and_b32 v{t + 1}, {OOB}, v{t + 1}')
        k(f'v_or_b32 v{t}, v{t}, v{t + 1}')
        k(f'buffer_load_dword v{dst}, v{t}, {WS}, {soff} offen{" nt" if "ntt" in self.o.x else " sc1"}')


    def st_entry(self):
        k = self.k
        o = self.o
        k('s_load_dwordx8 s[64:71], s[0:1], 64')
        k('s_load_dwordx16 s[48:63], s[0:1], 0')
        k(f's_cmp_ge_u32 s2, {0 if "exit0" in o.x else 256}')
        k('s_cbranch_scc1 .Lend')
        if o.stamps:
            k('s_memrealtime s[100:101]')
            k('s_memtime s[98:99]')
        k('s_getpc_b64 s[44:45]')
        k.label('.Lpc0')
        k('v_mov_b32 v37, v0')
        k('s_bfe_u32 s72, s2, 0x30003')
        k('v_lshrrev_b32 v2, 2, v37')
        k('v_lshl_add_u32 v2, s72, 6, v2')
        k('v_lshlrev_b32 v2, 7, v2')
        k('v_min_u32 v2, .Lcode_end-.Lpc0-4, v2')
        k('global_load_dword v95, v2, s[44:45]')
        k('v_lshrrev_b32 v2, 6, v37')
        k('v_and_b32 v3, 63, v37')
        k('v_readfirstlane_b32 s3, v2')
        k('s_mov_b32 s34, 4915200')
        k('s_mov_b32 s35, 0x20000')
        k('s_movk_i32 s30, 1280')
        k('s_mov_b32 s31, 0x20000')
        k('s_sub_u32 s74, s2, 16')
        k('s_cmp_lt_u32 s2, 240')
        k('s_cselect_b32 s74, s2, s74')
        k('s_lshr_b32 s75, s74, 2')
        k('s_and_b32 s76, s74, 3')
        k('v_lshrrev_b32 v6, 3, v3')
        k('v_and_b32 v7, 7, v3')
        k('v_lshlrev_b32 v7, 4, v7')
        k('s_movk_i32 s72, 7680')
        k('v_mad_u32_u24 v39, v6, s72, v7')
        k('s_mul_i32 s77, s76, 160')
        k(f's_lshl3_add_u32 s77, {sW}, s77')
        k('s_mul_i32 s77, s77, 7680')
        k('s_lshl_b32 s72, s75, 7')
        k('s_add_u32 s77, s77, s72')
        k('v_min_u32 v9, 79, v37')
        k('v_lshlrev_b32 v9, 2, v9')
        k('s_mul_i32 s79, s76, 320')
        k.wait_lgkm_all()
        if o.stamps:
            k('v_mov_b32 v11, s100')
            k('v_writelane_b32 v11, s98, 61')
        k('s_mov_b64 s[32:33], s[64:65]')
        k('s_mov_b64 s[28:29], s[62:63]')
        if WS_BASE:
            k(f's_add_u32 s70, s70, {WS_BASE}')
            k('s_addc_u32 s71, s71, 0')
        k('s_load_dword s42, s[70:71], 0')
        k(f'buffer_load_dword v10, v9, {CS}, s79 offen')
        k('s_mov_b32 s95, s77')
        lab = k.newlabel('me')
        k(f's_cmp_ge_u32 s2, {o.late}')
        k(f's_cbranch_scc1 {lab}')
        k.cond_begin()
        self.mod_issue('mod')
        k.cond_end()
        k.label(lab)
        self.stamp('modiss')
        for srd, size, p in ((4, WS_SIZE, 70), (8, 2621440, 48), (12, 2457600, 50), (20, 1966080, 56), (24, 1966080, 58), (36, 2621440, 66)):
            k(f's_mov_b64 s[{srd}:{srd + 1}], s[{p}:{p + 1}]')
            k(f's_mov_b32 s{srd + 2}, {size}')
            k(f's_mov_b32 s{srd + 3}, 0x20000')
        k('s_mov_b32 s19, 0x20000')
        if o.split == 1:
            k('s_and_b32 s72, s2, 7')
            k('s_lshr_b32 s73, s2, 3')
            k(f's_and_b32 {sJ}, s73, 15')
            k('s_lshr_b32 s73, s73, 4')
            k(f's_lshl1_add_u32 {sCL}, s72, s73')
        else:
            k('s_bfe_u32 s72, s2, 0x20001')
            k('s_lshr_b32 s73, s2, 6')
            k(f's_lshl2_add_u32 {sCL}, s72, s73')
            k('s_bfe_u32 s72, s2, 0x30003')
            k('s_and_b32 s73, s2, 1')
            k(f's_lshl1_add_u32 {sJ}, s72, s73')
        k(f's_and_b32 {sJC}, {sJ}, 7')
        k(f's_lshr_b32 {sTH}, {sJ}, 3')
        k('v_lshlrev_b32 v1, 4, v3')
        k(f'v_mov_b32 v2, {OOB}')
        k('s_mul_i32 s80, s74, 171')
        k('s_lshr_b32 s80, s80, 9')
        k('s_mul_i32 s81, s80, 3')
        k('s_sub_u32 s81, s74, s81')

    def mod_issue(self, tag):
        k = self.k
        k(f's_lshl_b32 s72, {sW}, 10')
        k(f's_add_u32 m0, s72, {L_MOD}')
        for t in range(5):
            k(f'buffer_load_dwordx4 v39, {WMS}, s95 offen{self.nt} lds', tag)
            if t < 4:
                k(f's_add_u32 s95, s95, {32 * 7680}')
                k('s_add_u32 m0, m0, 4096')

    def mod_core(self, tag):
        k = self.k
        k('s_mov_b32 s73, 0x07060503')
        k('s_mov_b32 s77, 0x07060502')
        k('s_mov_b32 s78, 0x07060501')
        k.wait_vm(tag)
        k.barrier()
        for s in range(5):
            k(f'ds_read_b64_tr_b16 v[{200 + 4 * s}:{201 + 4 * s}], v17 offset:{L_MOD + 4096 * s}')
            k(f'ds_read_b64_tr_b16 v[{202 + 4 * s}:{203 + 4 * s}], v17 offset:{L_MOD + 4096 * s + 512}')
            k(f'ds_read_b128 v[{220 + 4 * s}:{223 + 4 * s}], v18 offset:{L_SC + 64 * s}')
        for s in range(5):
            k(f'v_mfma_f32_16x16x32_bf16 v[80:83], v[{200 + 4 * s}:{203 + 4 * s}], v[{220 + 4 * s}:{223 + 4 * s}], {"0" if s == 0 else "v[80:83]"}')
        k('v_perm_b32 v80, v80, v83, s73')
        k('v_perm_b32 v81, v81, v83, s77')
        k('v_perm_b32 v82, v82, v83, s78')
        k('v_mov_b32 v83, s42')
        k(f'buffer_store_dwordx4 v[80:83], v15, {WS}, s96 offen sc1')
        k.fence_hazards()

    def st_wq_issue(self):
        k = self.k
        k('s_movk_i32 s72, 3840')
        k('v_mad_u32_u24 v8, v6, s72, v7')
        k('s_mul_i32 s77, s80, 30720')
        k('s_mul_i32 s72, s81, 1280')
        k('s_add_u32 s77, s77, s72')
        k(f's_mul_i32 s78, {sW}, 3072')
        k(f's_add_u32 m0, s78, {L_WQS}')
        k(f's_add_u32 s82, {sW}, 8')
        k('s_min_u32 s82, s82, 9')
        k(f's_lshl_b32 s72, {sW}, 7')
        k('s_add_u32 s72, s72, s77')
        k(f'buffer_load_dwordx4 v8, {WQS}, s72 offen{self.nt} lds', 'wq')
        k('s_add_u32 s72, s72, 512')
        k('s_add_u32 m0, m0, 1024')
        k(f'buffer_load_dwordx4 v8, {WQS}, s72 offen{self.nt} lds', 'wq')
        k('s_lshl_b32 s72, s82, 7')
        k('s_add_u32 s72, s72, s77')
        k('s_add_u32 m0, m0, 1024')
        k(f'buffer_load_dwordx4 v8, {WQS}, s72 offen{self.nt} lds', 'wq')

    def st_addr(self):
        k = self.k
        k('s_lshl_b32 s97, s80, 9')
        k(f's_add_u32 s97, s97, {WS_WQ}')
        k('s_mul_i32 s78, s81, 40')
        k('s_sub_u32 s78, s78, 40')
        k('s_cmp_eq_u32 s81, 0')
        k('s_cmov_b32 s78, 80')
        k(f's_mov_b32 s79, {WQ_J}')
        k(f's_mov_b32 s73, {WQ_T}')
        for t in range(3):
            if t < 2:
                k(f's_lshl_b32 s72, {sW}, 6')
                if t:
                    k('s_add_u32 s72, s72, 256')
            else:
                k('s_lshl_b32 s72, s82, 6')
            k('v_add_u32 v76, s72, v3')
            k('v_mul_u32_u24 v77, 205, v76')
            k('v_lshrrev_b32 v77, 13, v77')
            k('v_mul_u32_u24 v78, 40, v77')
            k('v_sub_u32 v76, v76, v78')
            k('v_add_u32 v76, s78, v76')
            k('v_lshrrev_b32 v78, 5, v76')
            k('v_and_b32 v76, 31, v76')
            k('v_lshlrev_b32 v76, 4, v76')
            k('v_mad_u32_u24 v76, v78, s73, v76')
            k(f'v_mad_u32_u24 v{20 + t}, v77, s79, v76')
        k(f's_cmp_ge_u32 {sW}, 2')
        k(f's_cselect_b32 s72, {OOB}, 0')
        k('v_or_b32 v22, s72, v22')
        k('s_cmp_ge_u32 s2, 240')
        k(f's_cselect_b32 s72, {OOB}, 0')
        for t in range(3):
            k(f'v_or_b32 v{20 + t}, s72, v{20 + t}')

    def st_wq_process(self):
        k = self.k
        k(f's_mul_i32 s72, {sW}, 3072')
        k('v_add_u32 v76, s72, v19')
        k.wait_vm('wq')
        for t in range(3):
            k(f'ds_read_b64_tr_b16 v[{64 + 4 * t}:{65 + 4 * t}], v76 offset:{L_WQS + 1024 * t}')
            k(f'ds_read_b64_tr_b16 v[{66 + 4 * t}:{67 + 4 * t}], v76 offset:{L_WQS + 1024 * t + 512}')
        for t in range(3):
            k(f'buffer_store_dwordx4 v[{64 + 4 * t}:{67 + 4 * t}], v{20 + t}, {WS}, s97 offen sc1', 'wqst')
        self.stamp('wqst')

    def st_x_issue(self):
        k = self.k
        k('v_mul_u32_u24 v36, 80, v7')
        k('v_lshl_add_u32 v36, v6, 4, v36')
        k('v_cmp_gt_u32 vcc, 32, v3')
        k('v_cndmask_b32 v38, v2, v36, vcc')
        k(f's_lshl4_add_u32 s72, {sCL}, {sJ}')
        k('s_mul_i32 s72, s72, 10240')
        k(f's_mul_i32 s73, {sW}, 320')
        k('s_add_u32 s72, s72, s73')
        k(f'buffer_load_dwordx4 v[24:27], v36, {XS}, s72 offen{self.ntx}')
        k(f'buffer_load_dwordx4 v[28:31], v36, {XS}, s72 offen offset:128{self.ntx}')
        k(f'buffer_load_dwordx4 v[32:35], v38, {XS}, s72 offen offset:256{self.ntx}')
        k(f's_mul_i32 s86, {sCL}, 163840')
        k(f's_lshr_b32 s72, {sJ}, 2')
        k('s_mul_i32 s72, s72, 40960')
        k('s_add_u32 s86, s86, s72')
        k(f's_and_b32 s72, {sJ}, 3')
        k('s_lshl_b32 s72, s72, 7')
        k('s_add_u32 s86, s86, s72')
        k(f's_mul_i32 s72, {sW}, 10240')
        k('s_add_u32 s86, s86, s72')
        k(f's_add_u32 s86, s86, {WS_H}')
        self.stamp('xiss')

    def st_mod(self):
        k = self.k
        k('s_getreg_b32 s49, hwreg(HW_REG_XCC_ID, 0, 3)')
        k('s_mul_i32 s42, s42, 0x9e3779b1')
        k('s_add_u32 s42, s42, 0x7f4a7c15')
        k('s_mov_b32 s50, s42')
        k('s_and_b32 s42, s42, -8')
        k('s_or_b32 s51, s42, s49')
        k(f's_lshl2_add_u32 s72, {sJ}, {sW}')
        k('s_lshl_b32 s72, s72, 2')
        k('v_mov_b32 v4, s72')
        k('v_cmp_eq_u32 vcc, 0, v3')
        k('v_cndmask_b32 v4, v2, v4, vcc')
        k('v_mov_b32 v5, s42')
        k('v_cmp_eq_u32 vcc, 0, v37')
        k('v_cndmask_b32 v12, v2, 0, vcc')
        k('v_mov_b32 v14, s51')
        k(f's_lshl_b32 s72, {sCL}, 7')
        k(f's_lshl2_add_u32 s72, {sJ}, s72')
        k(f'buffer_store_dword v14, v12, {WS}, s72 offen offset:{WS_HELLO} sc1')
        k('v_lshlrev_b32 v14, 16, v10')
        k('v_and_b32 v15, 0xffff0000, v10')
        for r in (14, 15):
            k(f'v_mul_f32 v{r + 2}, {f2u(-1.4426950408889634):#x}, v{r}')
        for r in (14, 15):
            k(f'v_exp_f32 v{r + 2}, v{r + 2}')
        for r in (14, 15):
            k(f'v_add_f32 v{r + 2}, 1.0, v{r + 2}')
        for r in (14, 15):
            k(f'v_rcp_f32 v{r + 2}, v{r + 2}')
        for r in (14, 15):
            k(f'v_mul_f32 v{r}, v{r}, v{r + 2}')
        k('v_cvt_pk_bf16_f32 v14, v14, v15')
        k(f'ds_write_b32 v9, v14 offset:{L_SC}')
        k('v_bfe_u32 v13, v3, 2, 2')
        k('v_lshlrev_b32 v13, 7, v13')
        k('v_and_b32 v14, 3, v3')
        k('v_lshl_add_u32 v15, v14, 3, v13')
        k('v_lshrrev_b32 v16, 4, v3')
        k('v_lshl_add_u32 v17, v16, 10, v15')
        k(f's_lshl_b32 s72, {sW}, 5')
        k('v_add_u32 v17, s72, v17')
        k('v_lshlrev_b32 v18, 4, v16')
        k('v_lshl_add_u32 v19, v16, 5, v15')
        k('v_lshlrev_b32 v15, 6, v16')
        k('v_and_b32 v38, 15, v3')
        k('v_cmp_eq_u32 vcc, 0, v38')
        k('v_cndmask_b32 v15, v2, v15, vcc')
        k(f's_lshl2_add_u32 s96, s75, {sW}')
        k('s_lshl_b32 s96, s96, 8')
        k('s_lshl4_add_u32 s96, s76, s96')
        k(f's_add_u32 s96, s96, {WS_MODG}')

    def st_modc(self):
        k = self.k
        lab = k.newlabel('mc')
        k(f's_cmp_ge_u32 s2, {self.o.late}')
        k(f's_cbranch_scc1 {lab}')
        k.cond_begin()
        self.mod_core('mod')
        k.cond_end()
        k.label(lab)
        self.stamp('modpub')

    def st_addr2(self):
        k = self.k
        k('s_lshr_b32 s58, s80, 2')
        k('s_mul_i32 s58, s58, 3072')
        k('s_and_b32 s72, s80, 3')
        k('s_lshl_b32 s72, s72, 8')
        k('s_add_u32 s58, s58, s72')
        k(f's_add_u32 s58, s58, {WS_WGU}')
        k('s_lshl_b32 s64, s81, 6')
        k(f's_lshl3_add_u32 s64, {sW}, s64')
        k('s_cmp_ge_u32 s2, 240')
        k(f's_cselect_b32 s59, {OOB}, 0')
        k('v_lshrrev_b32 v154, 1, v14')
        k('v_lshl_add_u32 v154, v154, 3, v13')
        k('v_and_b32 v156, 1, v14')
        k('v_lshl_add_u32 v154, v156, 10, v154')
        k('v_add_u32 v154, v154, v18')
        k(f's_lshl_b32 s77, {sW}, 12')
        k(f's_add_u32 s77, s77, {L_GUS}')
        k('v_add_u32 v154, s77, v154')
        k(f's_sub_u32 s78, 3, {sW}')
        k('s_lshl_b32 s78, s78, 10')
        k(f's_add_u32 s78, s78, {L_GUS}')
        k('v_add_u32 v155, s78, v19')
        k('v_and_b32 v156, 9, v3')
        k('v_bfe_u32 v157, v3, 1, 1')
        k('v_lshl_add_u32 v156, v157, 2, v156')
        k('v_bfe_u32 v157, v3, 2, 1')
        k('v_lshl_add_u32 v156, v157, 1, v156')
        k('v_lshlrev_b32 v156, 4, v156')
        k('v_or_b32 v156, s59, v156')
        k(f's_mov_b32 s73, {WGU_S - 3072}')
        for t in range(2):
            for hf in range(2):
                d = 144 + 2 * t + hf
                k(f's_add_u32 s77, s64, {32 * t + 4 * hf}')
                k('v_add_u32 v157, s77, v16')
                k('v_mul_u32_u24 v158, 171, v157')
                k('v_lshrrev_b32 v158, 9, v158')
                k('v_lshl_add_u32 v157, v157, 10, v156')
                k(f'v_mad_u32_u24 v{d}, v158, s73, v157')
        k(f's_cmp_lt_u32 {sW}, 2')
        k(f's_cselect_b32 s79, {OOB}, 0')
        for t in range(3):
            k(f's_sub_u32 s78, {3 + 4 * t}, {sW}')
            k('s_lshl_b32 s78, s78, 6')
            k('v_add_u32 v156, s78, v3')
            k('v_mul_u32_u24 v157, 205, v156')
            k('v_lshrrev_b32 v157, 14, v157')
            k('v_mul_u32_u24 v158, 80, v157')
            k('v_sub_u32 v156, v156, v158')
            k('v_bfe_u32 v158, v156, 3, 2')
            k('v_and_b32 v159, 3, v156')
            k('v_lshl_add_u32 v158, v158, 2, v159')
            k('v_bfe_u32 v159, v156, 2, 1')
            k('v_lshl_add_u32 v158, v159, 6, v158')
            k('v_cmp_gt_u32 vcc, 64, v156')
            k('v_and_b32 v159, 15, v156')
            k('v_lshrrev_b32 v156, 5, v156')
            k('v_cndmask_b32 v158, v159, v158, vcc')
            k('v_lshl_add_u32 v158, v156, 7, v158')
            k('v_lshlrev_b32 v158, 4, v158')
            if t == 2:
                k('v_or_b32 v158, s79, v158')
            k(f'v_mad_u32_u24 v{148 + t}, v157, s55, v158')
            k(f'v_mad_u32_u24 v{151 + t}, v157, s57, v158')

    def st_ones(self):
        k = self.k
        k('v_and_b32 v92, 32, v3')
        k('v_add_u32 v92, v92, v21')
        k('v_mov_b32 v94, 0x3f80')
        k('v_mov_b32 v95, 0')
        k(f'ds_write_b64 v92, v[94:95] offset:{L_KVOWN + V_OFF[0] + 40}')

    def st_norm(self):
        k = self.k
        X = list(range(40, 64))
        for i in range(12):
            k(f'v_lshlrev_b32 v{40 + 2 * i}, 16, v{24 + i}')
            k(f'v_and_b32 v{41 + 2 * i}, 0xffff0000, v{24 + i}')
        self.stamp('xin')
        k('v_pk_add_f32 v[76:77], v[40:41], v[42:43]')
        k('v_pk_mul_f32 v[78:79], v[40:41], v[40:41]')
        k('v_pk_fma_f32 v[78:79], v[42:43], v[42:43], v[78:79]')
        for i in range(2, 12):
            k(f'v_pk_add_f32 v[76:77], v[76:77], v[{40 + 2 * i}:{41 + 2 * i}]')
            k(f'v_pk_fma_f32 v[78:79], v[{40 + 2 * i}:{41 + 2 * i}], v[{40 + 2 * i}:{41 + 2 * i}], v[78:79]')
        k('v_add_f32 v76, v76, v77')
        k('v_add_f32 v77, v78, v79')
        k('v_add_f32_dpp v76, v76, v76 row_ror:8 row_mask:0xf bank_mask:0xf')
        k('v_add_f32_dpp v77, v77, v77 row_ror:8 row_mask:0xf bank_mask:0xf')
        self.rowsum(76, 78)
        self.rowsum(77, 79)
        k('v_lshlrev_b32 v78, 1, v7')
        k(f'v_add_u32 v78, {L_STAT}, v78')
        k(f's_lshl_b32 s72, {sW}, 3')
        k('v_add_u32 v79, s72, v78')
        k(f'ds_write_b64 v79, v[76:77]')
        k.barrier()
        k(f'ds_read_b128 v[88:91], v78')
        k(f'ds_read_b128 v[92:95], v78 offset:16')
        k('v_pk_add_f32 v[88:89], v[88:89], v[90:91]')
        k('v_pk_add_f32 v[92:93], v[92:93], v[94:95]')
        k('v_pk_add_f32 v[88:89], v[88:89], v[92:93]')
        k(f'v_mul_f32 v88, {f2u(1 / 640):#x}, v88')
        k(f'v_mul_f32 v89, {f2u(1 / 640):#x}, v89')
        k('v_fma_f32 v89, -v88, v88, v89')
        k('v_max_f32 v89, 0, v89')
        self.bf16_round_keep([88, 89], 90)
        k(f'v_add_f32 v89, {f2u(1e-5):#x}, v89')
        self.bf16_round_keep([88, 89], 90)
        k('v_sqrt_f32 v89, v89')
        self.bf16_round_keep([88, 89], 90)
        k('v_rcp_f32 v89, v89')
        for i in range(12):
            k(f'v_pk_add_f32 v[{40 + 2 * i}:{41 + 2 * i}], v[{40 + 2 * i}:{41 + 2 * i}], v[88:89] op_sel_hi:[1,0] neg_lo:[0,1] neg_hi:[0,1]')
        self.bf16_round_keep(X, 90)
        for i in range(12):
            k(f'v_pk_mul_f32 v[{40 + 2 * i}:{41 + 2 * i}], v[{40 + 2 * i}:{41 + 2 * i}], v[88:89] op_sel:[0,1]')
        self.bf16_round_keep(X, 90)

    def wg_flag(self, tag, base):
        k = self.k
        k.wait_vm(tag)
        k.barrier()
        k('s_lshl_b32 s72, s2, 2')
        k(f's_add_u32 s72, s72, {base}')
        k(f'buffer_store_dword v5, v12, {WS}, s72 offen sc1')

    def late_mod(self, fn):
        k = self.k
        if self.o.late >= 240:
            return
        lab = k.newlabel('ml')
        k(f's_sub_u32 s72, s2, {self.o.late}')
        k(f's_cmp_ge_u32 s72, {240 - self.o.late}')
        k(f's_cbranch_scc1 {lab}')
        k.cond_begin()
        fn('modl')
        k.cond_end()
        k.label(lab)

    def st_rest_prep(self):
        k = self.k
        self.od_prep('s2', 0)
        k('s_add_u32 s48, s2, 16')
        self.od_prep('s48', 1)
        k('s_movk_i32 s72, 3072')
        k('v_mad_u32_u24 v36, v6, s72, v7')
        k('s_mul_i32 s65, s80, 24576')
        k('s_lshl_b32 s72, s81, 10')
        k('s_add_u32 s65, s65, s72')
        k(f's_lshl_b32 s72, {sW}, 7')
        k('s_add_u32 s65, s65, s72')

    def rest_units(self, vg, vo):
        k = self.k

        def od(which):
            so = f's{66 + which}'
            k(f's_sub_u32 s88, 3, {sW}')
            k('s_lshl_b32 s88, s88, 10')
            k(f's_add_u32 m0, s88, {L_ODS[which]}')
            k(f'buffer_load_dwordx4 v{vo + which}, {ODS}, {so} offen{self.nt} lds', 'rest')
            k(f's_add_u32 {so}, {so}, 512')
            k('s_add_u32 m0, m0, 4096')
            k(f'buffer_load_dwordx4 v{vo + which}, {ODS}, {so} offen{self.nt} lds', 'rest')
            lab = k.newlabel('od3')
            k(f's_cmp_lt_u32 {sW}, 2')
            k(f's_cbranch_scc1 {lab}')
            k.cond_begin()
            k(f's_add_u32 {so}, {so}, 512')
            k('s_add_u32 m0, m0, 4096')
            k(f'buffer_load_dwordx4 v{vo + which}, {ODS}, {so} offen{self.nt} lds', 'rest')
            k.cond_end()
            k.label(lab)
        k.begin()
        lab, done = k.newlabel('od2'), k.newlabel('rid')
        k('s_cmp_ge_u32 s2, 240')
        k(f's_cbranch_scc1 {lab}')
        k.cond_begin()
        k(f's_lshl_b32 s88, {sW}, 12')
        k(f's_add_u32 m0, s88, {L_GUS}')
        for t in range(2):
            k(f'buffer_load_dwordx4 v{vg}, {WGS}, s65 offen{self.nt} lds', 'rest')
            k('s_add_u32 m0, m0, 1024')
            k(f'buffer_load_dwordx4 v{vg}, {WUS}, s65 offen{self.nt} lds', 'rest')
            if t == 0:
                k('s_add_u32 m0, m0, 1024')
                k('s_add_u32 s65, s65, 512')
        k(f's_branch {done}')
        k.cond_end()
        k.label(lab)
        k.cond_begin()
        od(1)
        k.cond_end()
        k.label(done)
        u0 = k.end()
        k.begin()
        od(0)
        return [u0, k.end()]

    RA = 144

    def rest_reads(self):
        k = self.k
        k.wait_vm('rest')
        for t in range(2):
            for hf in range(2):
                b = 8 * t + 4 * hf
                k(f'ds_read_b64_tr_b16 a[{b}:{b + 1}], v{self.RA + 10} offset:{2048 * t + 64 * hf}')
                k(f'ds_read_b64_tr_b16 a[{b + 2}:{b + 3}], v{self.RA + 10} offset:{2048 * t + 64 * hf + 512}')
        for which in range(2):
            for t in range(3):
                b = 16 + 12 * which + 4 * t
                off = L_ODS[which] - L_GUS + 4096 * t
                k(f'ds_read_b64_tr_b16 a[{b}:{b + 1}], v{self.RA + 11} offset:{off}')
                k(f'ds_read_b64_tr_b16 a[{b + 2}:{b + 3}], v{self.RA + 11} offset:{off + 512}')

    def rest_stores(self):
        k = self.k
        us = []
        for i in range(4):
            k.begin()
            k(f'buffer_store_dwordx4 a[{4 * i}:{4 * i + 3}], v{self.RA + i}, {WS}, s58 offen sc1', 'pre')
            us.append(k.end())
        for t in range(3):
            k.begin()
            k(f'buffer_store_dwordx4 a[{16 + 4 * t}:{19 + 4 * t}], v{self.RA + 4 + t}, {WS}, s54 offen sc1', 'pre')
            us.append(k.end())
        k.begin()
        lab = k.newlabel('od2p')
        k('s_cmp_lt_u32 s2, 240')
        k(f's_cbranch_scc1 {lab}')
        k.cond_begin()
        for t in range(3):
            k(f'buffer_store_dwordx4 a[{28 + 4 * t}:{31 + 4 * t}], v{self.RA + 7 + t}, {WS}, s56 offen sc1', 'pre')
        k.cond_end()
        k.label(lab)
        us.append(k.end())
        return us

    def od_prep(self, sn, which):
        k = self.k
        sB, sJS = (f's{54 + 2 * which}', f's{55 + 2 * which}')
        if which == 0:
            k('s_mov_b32 s18, 819200')
        k(f's_mov_b32 {sJS}, {WO_J}')
        k('s_movk_i32 s73, 3277')
        k(f's_mov_b32 {sB}, {WS_WO}')
        k(f's_cmp_lt_u32 {sn}, 192')
        if which == 0:
            k('s_cselect_b64 s[16:17], s[60:61], s[52:53]')
            k('s_cmov_b32 s18, 1966080')
        k(f's_cmov_b32 {sJS}, {WD_J}')
        k('s_cmov_b32 s73, 1366')
        k(f's_cmov_b32 {sB}, {WS_WD}')
        k(f's_cselect_b32 s72, 0, 192')
        k(f's_sub_u32 s77, {sn}, s72')
        k('s_mul_i32 s73, s73, s77')
        k('s_lshr_b32 s73, s73, 16')
        k(f's_mul_i32 s73, s73, {OD_W}')
        k(f's_add_u32 {sB}, {sB}, s73')
        k('s_lshr_b32 s72, s77, 2')
        k('s_mul_i32 s72, s72, 5120')
        k(f's_add_u32 {sB}, {sB}, s72')
        k('s_and_b32 s72, s77, 3')
        k('s_lshl_b32 s72, s72, 8')
        k(f's_add_u32 {sB}, {sB}, s72')
        k('s_mul_i32 s72, s77, 205')
        k('s_lshr_b32 s72, s72, 10')
        k('s_mul_i32 s73, s72, 5')
        k('s_sub_u32 s73, s77, s73')
        k('s_mul_i32 s72, s72, 40')
        k('s_lshr_b32 s78, s73, 1')
        k('s_mul_i32 s78, s78, 20')
        k('s_and_b32 s79, s73, 1')
        k('s_lshl2_add_u32 s78, s79, s78')
        k('s_cmp_eq_u32 s73, 4')
        k('s_cselect_b32 s78, 16, s78')
        k('s_cselect_b32 s79, 20, 8')
        k('s_add_u32 s72, s72, s78')
        k('s_lshl_b32 s77, s77, 3')
        k(f's_cmp_lt_u32 {sn}, 192')
        k('s_cselect_b32 s77, s77, s72')
        k('s_cselect_b32 s79, 4, s79')
        k('s_mul_i32 s77, s77, 1280')
        k('v_lshrrev_b32 v8, 5, v3')
        k('v_and_b32 v9, 3, v6')
        k('v_mad_u32_u24 v8, v8, s79, v9')
        k('s_movk_i32 s72, 1280')
        k(f'v_mad_u32_u24 v{38 + which}, v8, s72, v7')
        k(f's_sub_u32 s72, 3, {sW}')
        k('s_lshl_b32 s72, s72, 7')
        k(f's_add_u32 s{66 + which}, s72, s77')

    def mod_pass(self, second, between=None, withpq=False, onmiss=None):
        k = self.k
        G = 64
        vecA = 3 if second else 0
        n = 6 if second else 5
        k(f's_mul_i32 s74, {sW}, 2560')
        k(f's_add_u32 s74, s74, {WS_MODG + vecA * 10240}')
        k(f's_add_u32 s75, s74, {7680 + 3072}')
        k('v_cmp_gt_u32 vcc, 32, v3')
        k('v_add_u32 v93, 7680, v1')
        k('v_cndmask_b32 v93, v93, v1, vcc')
        k('v_cndmask_b32 v94, 1.0, 0, vcc')
        if second:
            k('v_min_u32 v95, 624, v1')
            k(f's_lshr_b32 s76, {sW}, 1')
            k('s_mul_i32 s76, s76, 30720')
            k(f's_and_b32 s72, {sW}, 1')
            k(f's_lshl1_add_u32 s72, {sJC}, s72')
            k('s_mul_i32 s72, s72, 640')
            k('s_add_u32 s76, s76, s72')
            k(f's_add_u32 s76, s76, {WS_MODG + 2 * 10240}')
        else:
            k(f's_lshl_b32 s76, {sCL}, 7')
            k('v_and_b32 v95, 15, v3')
            k('v_lshlrev_b32 v95, 2, v95')
        k(f's_movk_i32 s79, {WS_PQ}')
        k('s_mov_b32 s77, 0x04000c0c')
        k('s_mov_b32 s78, 0x0706000c')

        def body():
            k(f'buffer_load_dwordx4 v[{G}:{G + 3}], v1, {WS}, s74 offen sc1')
            k(f'buffer_load_dwordx4 v[{G + 4}:{G + 7}], v1, {WS}, s74 offen offset:1024 sc1')
            k(f'buffer_load_dwordx4 v[{G + 8}:{G + 11}], v93, {WS}, s74 offen offset:2048 sc1')
            k(f'buffer_load_dwordx4 v[{G + 12}:{G + 15}], v1, {WS}, s75 offen sc1')
            k(f'buffer_load_dwordx4 v[{G + 16}:{G + 19}], v1, {WS}, s75 offen offset:1024 sc1')
            if second:
                k(f'buffer_load_dwordx4 v[{G + 20}:{G + 23}], v95, {WS}, s76 offen sc1')

            else:
                k(f'buffer_load_dword v{G + 22}, v95, {WS}, s76 offen offset:{WS_HELLO} sc1')
            if withpq:
                k(f'buffer_load_dwordx4 v[96:99], v1, {WS}, s79 offen sc1')
            k('s_waitcnt vmcnt(0)')
            if not second:
                k(f'v_and_b32 v{G + 23}, -8, v{G + 22}')
            self.allcheck([G + 4 * i + 3 for i in range(6)] + ([96, 97, 98, 99] if withpq else []), 88)
            if second or withpq:
                k('s_cbranch_vccz 1')
                k('s_sleep 8')
        self.spin(body, onmiss)
        if onmiss is not None:
            k('s_mov_b32 s93, s73')
        if not second:
            self.stamp('modin')
        if between is not None:
            between()
        if not second:
            k(f'v_cmp_ne_u32 vcc, s51, v{G + 22}')
            k('s_cmp_eq_u64 vcc, 0')
            k(f's_cselect_b32 {sFAST}, {0 if self.o.force_slow else 1}, 0')
            k(f's_cmp_lg_u32 {sFAST}, 0')
            k(f's_cselect_b32 s72, {OOB}, 0')
            k(f'v_or_b32 v{VF_SLOW}, s72, v4')
            k(f's_cselect_b32 s72, 0, {OOB}')
            k(f'v_or_b32 v{VF_FAST}, s72, v4')
            k(f's_lshl_b32 s{SF}, {sCL}, 13')
            k(f's_add_u32 s{SF}, s{SF}, {WS_FLAG}')
            k(f's_add_u32 s{SF + 1}, s{SF}, 4096')
        for i in range(n):
            b = G + 4 * i
            k(f'v_perm_b32 v{b + 3}, v{b}, v{b + 1}, s77')
        for i in range(n):
            b = G + 4 * i
            k(f'v_perm_b32 v{b + 3}, v{b + 3}, v{b + 2}, s78')
        for qp in ('[1,0,3,2]', '[2,3,0,1]'):
            for r in range(G, G + 4 * n):
                k(f'v_add_f32_dpp v{r}, v{r}, v{r} quad_perm:{qp} row_mask:0xf bank_mask:0xf')
        k('v_lshrrev_b32 v88, 2, v3')
        if not second:
            k('v_lshlrev_b32 v88, 4, v88')
            k(f's_mul_i32 s72, {sW}, 1280')
            k(f's_add_u32 s72, s72, {L_MV}')
            k('v_add_u32 v88, s72, v88')
            for i in range(5):
                b = G + 4 * i
                self.bf16_round_keep([b, b + 1, b + 2, b + 3], 89)
                if i >= 2:
                    for r in range(b, b + 4):
                        k(f'v_add_f32 v{r}, {"v94" if i == 2 else "1.0"}, v{r}')
                    self.bf16_round_keep([b, b + 1, b + 2, b + 3], 89)
                k(f'ds_write_b128 v88, v[{b}:{b + 3}] offset:{256 * i}')
        else:
            k('v_lshlrev_b32 v88, 3, v88')
            k(f's_mul_i32 s72, {sW}, 80')
            k(f's_add_u32 s72, s72, {P_GA}')
            k('v_add_u32 v91, s72, v88')
            k(f'v_mov_b32 v92, {P_DUMMY}')
            k('v_cmp_gt_u32 vcc, 40, v3')
            k('v_cndmask_b32 v91, v92, v91, vcc')
            k(f's_mul_i32 s72, {sW}, 320')
            k(f's_add_u32 s72, s72, {L_P}')
            k('v_add_u32 v88, s72, v88')
            k('v_add_u32 v90, 960, v88')
            k('v_cmp_gt_u32 vcc, 32, v3')
            k('v_cndmask_b32 v90, v90, v88, vcc')
            for i in range(6):
                b = G + 4 * i
                if 2 <= i < 5:
                    self.bf16_round_keep([b, b + 1, b + 2, b + 3], 89)
                    for r in range(b, b + 4):
                        k(f'v_add_f32 v{r}, {"v94" if i == 2 else "1.0"}, v{r}')
                k(f'v_cvt_pk_bf16_f32 v{b}, v{b}, v{b + 1}')
                k(f'v_cvt_pk_bf16_f32 v{b + 1}, v{b + 2}, v{b + 3}')
                if i < 2:
                    k(f'ds_write_b64 v88, v[{b}:{b + 1}] offset:{128 * i}')
                elif i == 2:
                    k(f'ds_write_b64 v90, v[{b}:{b + 1}] offset:256')
                elif i < 5:
                    k(f'ds_write_b64 v88, v[{b}:{b + 1}] offset:{128 * i + 960}')
                else:
                    k(f'ds_write_b64 v91, v[{b}:{b + 1}]')

    def make_h(self):
        k = self.k
        k('v_lshlrev_b32 v88, 5, v6')
        k(f's_mul_i32 s72, {sW}, 1280')
        k(f's_add_u32 s72, s72, {L_MV}')
        k('v_add_u32 v88, s72, v88')
        k('v_lshl_add_u32 v90, v6, 9, v7')
        k('v_cmp_gt_u32 vcc, 32, v3')
        k('v_cndmask_b32 v91, v2, v90, vcc')
        k.wait_lgkm_all()
        for i in range(3):
            for h in range(2):
                k(f'ds_read_b128 v[{96 + 16 * i + 4 * h}:{99 + 16 * i + 4 * h}], v88 offset:{256 * i + 16 * h + 640}')
            for h in range(2):
                k(f'ds_read_b128 v[{104 + 16 * i + 4 * h}:{107 + 16 * i + 4 * h}], v88 offset:{256 * i + 16 * h}')
        for i in range(3):
            xs = [40 + 8 * i + e for e in range(8)]
            for e in range(0, 8, 2):
                k(f'v_pk_mul_f32 v[{xs[e]}:{xs[e] + 1}], v[{xs[e]}:{xs[e] + 1}], v[{96 + 16 * i + e}:{97 + 16 * i + e}]')
            self.bf16_round_keep(xs, 89)
            for e in range(0, 8, 2):
                k(f'v_pk_add_f32 v[{xs[e]}:{xs[e] + 1}], v[{xs[e]}:{xs[e] + 1}], v[{104 + 16 * i + e}:{105 + 16 * i + e}]')
            for e in range(0, 8, 2):
                k(f'v_cvt_pk_bf16_f32 v{24 + 4 * i + e // 2}, v{xs[e]}, v{xs[e] + 1}')
            k(f'buffer_store_dwordx4 v[{24 + 4 * i}:{27 + 4 * i}], {"v90" if i < 2 else "v91"}, {WS}, s86 offen', 'h')
            if i < 2:
                k('s_add_u32 s86, s86, 4096')
        self.stamp('hst')

    WO_W = [160 + 4 * i for i in range(24)] + [508]
    WGU_W = [256 + 4 * i for i in range(60)]

    def wq_pair(self, src, lds, voff, tag):
        k = self.k
        k.begin()
        k(f's_add_u32 s87, s92, {src}')
        k(f's_add_u32 m0, s91, {lds}')
        k(f'buffer_load_dwordx4 {voff}, {WS}, s87 offen sc1{self.ntw} lds', tag)
        u0 = k.end()
        k.begin()
        k(f'buffer_load_dwordx4 {voff}, {WS}, s87 offen offset:1024 sc1{self.ntw} lds', tag)
        return [u0, k.end()]

    def wq_chunk(self, c):
        slots = [L_A, L_C, L_B]
        return sum((self.wq_pair(WQ_T * t + 8192 * c, slots[t] + 8192 * c, 'v1', f'w{c}') for t in range(3)), [])

    def st_bases(self):
        k = self.k
        k(f's_lshl2_add_u32 s84, {sJ}, {sW}')
        k(f's_mul_i32 s84, s84, {WGU_S}')
        k(f's_add_u32 s84, s84, {WS_WGU}')
        k(f's_mul_i32 s85, {sJC}, {WO_J}')
        k(f's_mul_i32 s72, {sW}, {25 * 1024 + OD_W}')
        k('s_add_u32 s85, s85, s72')
        k(f's_add_u32 s85, s85, {WS_WO}')
        k(f's_lshl2_add_u32 s89, {sCL}, {sW}')
        k(f's_lshl1_add_u32 s90, s89, {sTH}')
        k('s_mul_i32 s90, s90, 20480')
        k(f's_mul_i32 s72, {sJC}, 160')
        k('s_add_u32 s90, s90, s72')
        k('s_mul_i32 s89, s89, 40960')
        k(f's_add_u32 s89, s89, {WS_H}')
        k(f's_mul_i32 s92, {sJ}, {WQ_J}')
        k(f's_lshl_b32 s91, {sW}, 11')
        k('s_add_u32 s92, s92, s91')
        k(f's_add_u32 s92, s92, {WS_WQ}')

    def touch_arena(self):
        k = self.k
        k(f's_lshl4_add_u32 s72, {sCL}, {sJ}')
        k(f's_lshl2_add_u32 s72, s72, {sW}')
        k('s_mul_i32 s73, s72, 6144')
        k(f's_add_u32 s73, s73, {WS_HH}')
        self.touch('s73', 1, 48, 128, 8)
        k('s_lshl_b32 s72, s72, 7')
        k(f's_add_u32 s72, s72, {WS_ST}')
        self.touch('s72', 1, 1, 128, 8)

    def x2_issue(self, t=8):
        k = self.k
        k(f's_mul_i32 s72, {sW}, 2560')
        k(f's_add_u32 m0, s72, {L_X}')
        k('s_movk_i32 s72, 1120')
        for p in range(3):
            k(f'v_add_u32 v{t}, {64 * p}, v3')
            k(f'v_mul_u32_u24 v{t + 1}, 205, v{t}')
            k(f'v_lshrrev_b32 v{t + 1}, 11, v{t + 1}')
            k(f'v_mad_u32_u24 v{t}, v{t + 1}, s72, v1')
            if p == 2:
                k('s_mov_b32 exec_hi, 0')
            k(f'buffer_load_dwordx4 v{t}, {XS}, s90 offen offset:{1024 * p} lds', 'x2')
        k('s_mov_b32 exec_hi, -1')

    def align_page(self):
        k = self.k
        k('s_branch .Lpage0')
        k.raw('.p2align 12')
        k.label('.Lpage0')

    def warm(self):
        k = self.k
        k.fence_hazards()
        k('s_mov_b64 exec, 0')
        for w in range(3):
            k(f's_cmp_eq_u32 {sW}, {w}')
            k(f's_cbranch_scc1 .Lchain{w}')
        k('s_branch .Lchain3')
        k.label('.Lwarm_ret')
        k('s_mov_b64 exec, -1')

    def touch_small(self):
        k = self.k
        k(f's_lshl_b32 s72, {sCL}, 13')
        k(f's_add_u32 s72, s72, {WS_FLAG}')
        self.touch('s72', 2, 8, 2048, 8, dst=95)
        k(f's_lshl4_add_u32 s72, {sCL}, {sJ}')
        k(f's_lshl2_add_u32 s72, s72, {sW}')
        k('s_lshl_b32 s72, s72, 7')
        k(f's_add_u32 s72, s72, {WS_ST}')
        k(f'v_and_b32 v8, {OOB}, v4')
        k(f'buffer_load_dword v95, v8, {WS}, s72 offen sc1')

    def pq_sample(self):
        self.k(f'buffer_load_dwordx4 v[160:163], v1, {WS}, s79 offen sc1')

    def pq_early(self):
        k = self.k
        lab = k.newlabel('pqe')
        self.allcheck([160, 161, 162, 163], 164)
        k('s_cmp_eq_u64 vcc, 0')
        k('s_cselect_b32 s94, 1, 0')
        k(f's_cbranch_scc0 {lab}')
        k.cond_begin()
        for c in range(self.o.nearly):
            self.put_units(self.wq_chunk(c))
        k.cond_end()
        k.label(lab)

    def pq_poll(self):
        k = self.k
        k(f's_movk_i32 s75, {WS_PQ}')

        def body():
            k(f'buffer_load_dwordx4 v[96:99], v1, {WS}, s75 offen sc1')
            k('s_waitcnt vmcnt(0)')
            self.allcheck([96, 97, 98, 99], 100)
            k('s_cbranch_vccz 1')
            k('s_sleep 8')
        self.spin(body)
        self.stamp('pqin')

    def qkv(self):
        k = self.k
        o = self.o
        order = o.order.replace('+', ',').split(',')
        HR = 96
        RING = 256 + 224
        k('v_lshlrev_b32 v10, 2, v3')
        k('v_and_b32 v7, 60, v10')
        k(f'v_add_u32 v8, {L_A}, v1')
        k(f'v_add_u32 v9, {L_B}, v1')
        k('v_and_b32 v64, 31, v3')
        k('v_cmp_gt_u32 vcc, 24, v64')
        k('v_cndmask_b32 v6, v2, v1, vcc')
        self.flag_off('s74', PH_H)
        k(f's_lshl_b32 s72, {sW}, 6')
        k('s_add_u32 s74, s74, s72')
        k(f's_movk_i32 s75, {WS_PQ}')
        k(f's_mul_i32 s80, {sCL}, {O_CL}')
        k(f's_mul_i32 s72, {sW}, 40960')
        k('s_add_u32 s80, s80, s72')
        k(f's_mul_i32 s72, {sJ}, 1280')
        k('s_add_u32 s80, s80, s72')
        k(f's_add_u32 s80, s80, {WS_O}')
        k(f's_lshl4_add_u32 s96, {sCL}, {sJ}')
        k(f's_mul_i32 s97, s96, {4 * KVB}')
        k(f's_add_u32 s97, s97, {WS_KV}')
        k(f's_mul_i32 s81, {sW}, {KVB}')
        k('s_add_u32 s82, s97, s81')
        k('s_add_u32 s83, s82, 2560')
        needpq = not ('pqp' in order or 'm1q' in order)

        def body():
            if needpq:
                k(f'buffer_load_dwordx4 v[64:67], v1, {WS}, s75 offen sc1')
            k(f'buffer_load_dword v68, v7, {WS}, s74 offen sc1')
            k('s_waitcnt vmcnt(0)')
            self.allcheck(([64, 65, 66, 67] if needpq else []) + [68], 69)
        self.spin(body)
        self.acquire('h')
        self.stamp('hflag')
        addr = ['v8', 'v1', 'v9']
        t3 = [(L_A, 'v8', 0), (L_A + 8192, 'v8', 8192), (L_B, 'v9', 0), (L_B + 8192, 'v9', 8192), (L_C, 'v1', 0)]
        pair = self.wq_pair
        hl = self.units_frags([HR + 4 * i for i in range(40)], 's89')
        wgu = self.units_frags(self.WGU_W, 's84', tag='wgu')
        done = [c for c in range(5) if f'c{c}' in order]
        dyn = 'm1d' in order
        if 'pqe' in order:
            lab = k.newlabel('pql')
            k('s_cmp_lg_u32 s94, 0')
            k(f's_cbranch_scc1 {lab}')
            k.cond_begin()
            for c in range(o.nearly):
                self.put_units(self.wq_chunk(c))
            k.cond_end()
            k.label(lab)
            allw = sum((self.wq_chunk(c) for c in range(o.nearly, 5)), [])
            lst = hl[:8]
        else:
            allw = sum((self.wq_chunk(c) for c in range(5) if c not in done), [])
            nw = max(0, 12 - 6 * len(done))
            lst = allw[:nw // 2] + hl[:4] + allw[nw // 2:nw] + hl[4:8]
            allw = allw[nw:]
        if 'rs' not in order and not dyn:
            lst = lst[:o.rspos] + self.rest_stores() + lst[o.rspos:]
        self.put_units(lst)
        if dyn:
            lab = k.newlabel('ril')
            k('s_cmp_lg_u32 s93, 1')
            k(f's_cbranch_scc1 {lab}')
            k.cond_begin()
            self.put_units(self.rest_units(36, 38))
            k.cond_end()
            k.label(lab)
            for i in range(12):
                k(f'v_mov_b32 v{80 + i}, v{144 + i}')
        lab = k.newlabel('ep')
        k('s_cmp_lg_u32 s2, 0')
        k(f's_cbranch_scc1 {lab}')
        k.cond_begin()
        k('v_mov_b32 v13, s50')
        k(f'buffer_store_dword v13, v12, {WS}, 0 offen sc1')
        k.cond_end()
        k.label(lab)
        k('v_mov_b32 v23, v12')
        seq = [(t, s, 1024 * s, addr[t]) for s in range(40) for t in range(3)]
        seq += [(3, s, t3[s // 8][2] + 1024 * (s % 8), t3[s // 8][1]) for s in range(40)]
        D = 6
        k.wait_vm('w0')
        k.barrier()
        self.stamp('c0')
        k.begin()

        def rd(i):
            k(f'ds_read_b128 {ur(RING + 4 * (i % 8))}, {seq[i][3]} offset:{seq[i][2]}')
        for i in range(D):
            rd(i)
        for i, (t, s, _, _) in enumerate(seq):
            a = 32 + 16 * t
            k(f'v_mfma_f32_32x32x16_bf16 v[{a}:{a + 15}], {ur(RING + 4 * (i % 8))}, v[{HR + 4 * s}:{HR + 4 * s + 3}], {"0" if s == 0 else f"v[{a}:{a + 15}]"}')
            if i + D < len(seq):
                rd(i + D)
        w = Sched(k.end())
        bars = [(24 * c - D, f'w{c}') for c in range(1, 6) if c not in done or c == 3] + ([] if 'pr' in order else [(o.prflag, 'pre')])
        for gap, tag in sorted(bars):
            k.begin()
            k.wait_vm(tag)
            k('s_barrier')
            if o.fine:
                self.stamp(f'c{gap}')
            if tag == 'pre':
                k('s_lshl_b32 s72, s2, 2')
                k(f's_add_u32 s72, s72, {WS_PR}')
                k(f'buffer_store_dword v5, v23, {WS}, s72 offen sc1')
            w.pre(gap, k.end())
        if allw:
            w.spread(allw, 0, o.wend)
        w.spread(hl[8:], 1, o.hend)
        if dyn:
            self.RA = 80
            k.begin()
            self.rest_reads()
            rr = k.end()
            w.pre(o.rsgap - 8, rr[:1])
            w.fill(rr[1:], first=o.rsgap - 8, last=o.rsgap - 1)
            w.spread(self.rest_stores(), o.rsgap, o.rsgap + 9)
            k.begin()
            self.x2_issue(92)
            w.post(o.x2gap, k.end())
        w.spread(sum((pair(WQ_T * 3 + 8192 * i, t3[i][0], 'v6', 'w5') for i in range(5)), []), 67, o.t3end)
        k.begin()
        k(f'buffer_load_dwordx4 v[24:27], v1, {WS}, s75 offen offset:{WS_PR - WS_PQ} sc1')
        w.at(max(o.prgap - 19, 0), k.end())
        k.begin()
        if 'to' not in order and 'o' not in k.wt:
            self.touch('s80', 10, 20, 20480, 20)
        k('v_and_b32 v20, 31, v3')
        k('v_lshrrev_b32 v21, 5, v3')
        k('v_mul_u32_u24 v20, 48, v20')
        k('v_add_u32 v20, s81, v20')
        k('v_lshl_add_u32 v22, v21, 3, v20')
        k('v_mul_u32_u24 v21, 1504, v21')
        k('v_add_u32 v21, v20, v21')
        k('v_add_u32 v28, s81, v1')
        k('v_lshlrev_b32 v7, 3, v3')
        k('v_add_u32 v29, s81, v7')
        w.fill(k.end(), first=82, last=112)
        k.begin()
        self.st_ones()
        w.fill(k.end(), first=115, last=119)
        k.begin()
        OWN = L_KVOWN

        def pack(dst, src, n):
            for i in range(n):
                k(f'v_cvt_pk_bf16_f32 v{dst + i}, v{src + 2 * i}, v{src + 2 * i + 1}')
        for h, r in ((0, 32), (1, 44)):
            pack(r, r, 4)
            k(f'buffer_store_dwordx4 v[{r}:{r + 3}], v1, {WS}, s82 offen offset:{KM_OFF[h]} sc1', 'kv')
        for r, ad, off in ((52, 22, V_OFF[0]), (56, 22, V_OFF[0] + 16), (60, 21, V_OFF[0] + 32), (64, 22, V_OFF[1] + 8), (68, 22, V_OFF[1] + 24)):
            pack(r, r, 2)
            k(f'ds_write_b64 v{ad}, v[{r}:{r + 1}] offset:{OWN + off}')
        for t in range(3):
            k(f'ds_read_b128 v[{52 + 4 * t}:{55 + 4 * t}], v28 offset:{OWN + 2560 + 1024 * t}')
        pack(40, 40, 2)
        k(f'buffer_store_dwordx2 v[40:41], v7, {WS}, s82 offen offset:{KT_OFF} sc1', 'kv')
        k(f'ds_write_b64 v29, v[40:41] offset:{OWN + KT_OFF}')
        for t in range(3):
            k(f'buffer_store_dwordx4 v[{52 + 4 * t}:{55 + 4 * t}], v1, {WS}, s83 offen offset:{1024 * t} sc1', 'kv')
        for h, r in ((0, 32), (1, 44)):
            k(f'ds_write_b128 v28, v[{r}:{r + 3}] offset:{OWN + KM_OFF[h]}')
        for i in range(8):
            k(f'v_mul_f32 v{72 + i}, {f2u(QSCALE):#x}, v{72 + i}')
        pack(self.QM[0], 72, 4)
        self.attn_setup()
        epi = k.end()
        k.begin()
        self.allcheck([24, 25, 26, 27], 16)

        def body2():
            k('s_sleep 16')
            k(f'buffer_load_dwordx4 v[24:27], v1, {WS}, s75 offen offset:{WS_PR - WS_PQ} sc1')
            k('s_waitcnt vmcnt(0)')
            self.allcheck([24, 25, 26, 27], 16)
        self.recheck(body2)
        chk = k.end()
        self.nbg = [int(x) for x in o.bg.split(',')]
        w.post(o.prgap, chk)
        self.bg = wgu
        if self.nbg[0]:
            w.spread(self.take(self.nbg[0]), o.prgap + 1, 117)
        if self.nbg[1]:
            w.spread(self.take(self.nbg[1]), 138, 159)
        self.bg = self.units_frags(self.WO_W, 's85', tag='wo') + self.bg
        w.fill(epi, first=120, window=12)
        print('qkv pass2 tail', w.ntail, 'last gap', w.lastgap)
        if o.raw == 'qkv':
            self.rawstamps(w, range(0, 154, 6), 'r')
        k.put(w.result())
        self.stamp('qkv')

    def kv_flag(self):
        k = self.k
        k('s_lshl_b32 s72, s96, 7')
        k(f's_lshl_b32 s73, {sJ}, 4')
        k('s_sub_u32 s72, s72, s73')
        k(f's_add_u32 s72, s72, {WS_KVF}')
        k(f'v_and_b32 v6, v{VF_FAST}, v{VF_SLOW}')
        k.wait_vm('kv')
        k(f'buffer_store_dword v5, v6, {WS}, s72 offen sc1')
        self.stamp('kvpub')

    def halo(self):
        k = self.k
        k(f's_min_u32 s75, {sCL}, 2')
        k('s_lshl_b32 s75, s75, 4')
        k('s_sub_u32 s75, s96, s75')
        k('s_lshl_b32 s75, s75, 7')
        k(f's_add_u32 s75, s75, {WS_KVF}')
        k(f's_cmp_ge_u32 {sCL}, 2')
        k('s_cselect_b32 s72, 2048, 0')
        k('v_and_b32 v6, 3, v3')
        k('v_lshlrev_b32 v6, 2, v6')
        k('v_bfe_u32 v7, v3, 2, 1')
        k('v_mad_u32_u24 v6, v7, s72, v6')
        self.poll('v6', 's75', 7, False)
        k('s_barrier')
        self.stamp('kvflag')
        for d in (1, 2):
            k(f's_cmp_ge_u32 {sCL}, {d}')
            k(f's_cselect_b32 s72, 0, {OOB}')
            k(f's_cselect_b32 s75, {d * 16 * 4 * KVB}, 0')
            k('v_add_u32 v6, s72, v1')
            k('s_sub_u32 s75, s97, s75')
            self.put_units(self.units_dma('s75', 0, L_C + (2 - d) * 4 * KVB, 22, f'halo{d}', voff='v6'))

    QM = [12, 16]; Q2 = [20, 24]
    CD, CO = 32, 48
    SS = [64, 80]
    OO = [96, 112]
    PP = 128
    KM = [136, 140]; K2 = [144, 148]
    VF = 152

    def attn_setup(self):
        k = self.k
        k('v_and_b32 v64, 31, v3')
        k('v_lshrrev_b32 v65, 5, v3')
        k('v_bfe_u32 v66, v3, 2, 2')
        k('v_lshl_add_u32 v66, v65, 2, v66')
        k('v_mul_u32_u24 v30, 48, v66')
        k('v_and_b32 v66, 3, v3')
        k('v_min_u32 v67, 1, v66')
        k('v_add_u32 v67, 4, v67')
        k('v_and_b32 v68, 16, v3')
        k('v_cmp_eq_u32 vcc, 0, v68')
        k('v_cmp_gt_u32 s[48:49], 32, v3')
        k('v_cndmask_b32 v66, v67, v66, vcc')
        k('v_lshl_add_u32 v30, v66, 3, v30')
        k('v_add_u32 v30, s81, v30')
        k('v_lshlrev_b32 v31, 2, v65')
        k('v_sub_u32 v31, v64, v31')
        k(f'v_mov_b32 v69, {f2u(NEG):#x}')
        self.masks(True, True)

    def masks(self, diag, old):
        k = self.k
        for i0 in range(0, 16, 4):
            for i in range(i0, i0 + 4):
                k(f'v_cmp_le_i32 s[{60 + 2 * (i % 4)}:{61 + 2 * (i % 4)}], {8 * (i >> 2) + (i & 3)}, v31')
            for i in range(i0, i0 + 4):
                m = f's[{60 + 2 * (i % 4)}:{61 + 2 * (i % 4)}]'
                if diag:
                    k(f'v_cndmask_b32 v{self.CD + i}, v69, 0, {m}')
                if old:
                    k(f'v_cndmask_b32 v{self.CO + i}, 0, v69, {m}')

    def ld_k(self, kset, i, head):
        k = self.k
        k(f'ds_read_b128 v[{self.KM[kset]}:{self.KM[kset] + 3}], v28 offset:{i * KVB + KM_OFF[head]}')
        if head == 0:
            r = self.K2[i & 1]
            k(f'ds_read_b64 v[{r}:{r + 1}], v29 offset:{i * KVB + KT_OFF}')

    def ld_v(self, half, i, head):
        k = self.k
        off = i * KVB + V_OFF[head] + 768 * half
        b = self.VF + 4 * half
        k(f'ds_read_b64_tr_b16 v[{b}:{b + 1}], v30 offset:{off}')
        k(f'ds_read_b64_tr_b16 v[{b + 2}:{b + 3}], v30 offset:{off + 384}')

    def m_sa(self, sset, kset, head, C):
        S = self.SS[sset]
        self.k(f'v_mfma_f32_32x32x16_bf16 v[{S}:{S + 15}], v[{self.KM[kset]}:{self.KM[kset] + 3}], v[{self.QM[head]}:{self.QM[head] + 3}], {C}')

    def m_sb(self, sset, i, head):
        S = self.SS[sset]
        r = self.K2[i & 1]
        self.k(f'v_mfma_f32_32x32x16_bf16 v[{S}:{S + 15}], v[{r}:{r + 3}], v[{self.Q2[head]}:{self.Q2[head] + 3}], v[{S}:{S + 15}]')

    def m_pv(self, half, head, first):
        O = self.OO[head]
        b, p = self.VF + 4 * half, self.PP + 4 * half
        self.k(f'v_mfma_f32_32x32x16_bf16 v[{O}:{O + 15}], v[{b}:{b + 3}], v[{p}:{p + 3}], {"0" if first else f"v[{O}:{O + 15}]"}')

    def cmask(self, i):
        return f'v[{self.CD}:{self.CD + 15}]' if i == 8 else (f'v[{self.CO}:{self.CO + 15}]' if i == 0 else '0')

    def attn_steps(self, seq, firsts):
        k = self.k
        n = len(seq)
        self.ld_v(0, *seq[0])
        self.ld_v(1, *seq[0])
        self.m_sa(0, 0, seq[0][1], self.cmask(seq[0][0]))
        self.m_sb(0, *seq[0])
        for t in range(n):
            i, h = seq[t]
            S = self.SS[t & 1]

            def e(*xs):
                for x in xs:
                    k(f'v_exp_f32 v{S + x}, v{S + x}')

            def c(x):
                k(f'v_cvt_pk_bf16_f32 v{self.PP + x}, v{S + 2 * x}, v{S + 2 * x + 1}')
            nx = t + 1 < n
            if nx:
                self.m_sa((t + 1) & 1, (t + 1) & 1, seq[t + 1][1], self.cmask(seq[t + 1][0]))
            if t + 2 < n:
                self.ld_k(t & 1, *seq[t + 2])
            e(0, 1, 2, 3)
            if t:
                self.m_pv(1, seq[t - 1][1], False)
                self.ld_v(1, i, h)
            c(0); e(4, 5); c(1); e(6, 7)
            if nx:
                self.m_sb((t + 1) & 1, *seq[t + 1])
            c(2); c(3); e(8, 9, 10, 11)
            self.m_pv(0, h, firsts and t < 2)
            if nx:
                self.ld_v(0, *seq[t + 1])
            c(4); e(12, 13); c(5); e(14, 15); c(6); c(7)
        self.m_pv(1, seq[n - 1][1], False)

    def attention(self):
        k = self.k
        for h in range(2):
            self.ld_k(h, 8, h)
        for r in self.K2:
            k(f'v_mov_b32 v{r + 2}, 0x3f80')
            k(f'v_mov_b32 v{r + 3}, 0')
        for h in range(2):
            k(f'v_mov_b32 v{self.Q2[h] + 2}, 0')
            k(f'v_mov_b32 v{self.Q2[h] + 3}, 0')
        self.m_sa(0, 0, 0, '0')
        for i in range(12):
            k(f'v_mul_f32 v{80 + i}, {f2u(QSCALE):#x}, v{80 + i}')
        for i in range(4):
            k(f'v_cvt_pk_bf16_f32 v{self.QM[1] + i}, v{84 + 2 * i}, v{85 + 2 * i}')
        for i in range(2):
            k(f'v_cvt_pk_bf16_f32 v{92 + i}, v{80 + 2 * i}, v{81 + 2 * i}')
        for i in range(2):
            k(f'v_cndmask_b32 v{self.Q2[0] + i}, 0, v{92 + i}, s[48:49]')
            k(f'v_cndmask_b32 v{self.Q2[1] + i}, v{92 + i}, 0, s[48:49]')
        self.m_sb(0, 8, 0)
        self.m_sa(1, 1, 1, '0')
        self.m_sb(1, 8, 1)
        k('v_bfe_u32 v6, v3, 4, 1')
        k('v_mul_u32_u24 v6, 20480, v6')
        k('v_and_b32 v7, 15, v3')
        k('v_lshl_add_u32 v6, v7, 4, v6')
        k('v_lshrrev_b32 v7, 5, v3')
        k('v_lshl_add_u32 v8, v7, 8, v6')
        k('v_cndmask_b32 v9, v2, v6, s[48:49]')
        self.kv_flag()
        self.put_units(self.take(self.nbg[2]))
        for h in range(2):
            S = self.SS[h]
            k(f'v_max3_f32 v{S}, v{S}, v{S + 1}, v{S + 2}')
            for i in range(3, 15, 2):
                k(f'v_max3_f32 v{S}, v{S}, v{S + i}, v{S + i + 1}')
            k(f'v_max_f32 v{S}, v{S}, v{S + 15}')
            k(f'v_mov_b32 v{S + 1}, v{S}')
        for h in range(2):
            S = self.SS[h]
            k(f'v_permlane32_swap_b32 v{S}, v{S + 1}')
        for h in range(2):
            S = self.SS[h]
            k(f'v_max_f32 v{S}, v{S}, v{S + 1}')
            k(f'v_cvt_pk_bf16_f32 v{S}, -v{S}, 0')
            k(f'v_cndmask_b32 v{self.Q2[h] + 2}, 0, v{S}, s[48:49]')
        k.begin()
        self.attn_steps([(8, 0), (8, 1)], True)
        k.put(Sched(k.end()).result())
        self.stamp('diag')
        self.wo_prep()
        self.mod_pass(True, between=lambda: (self.halo(), self.put_units(self.early_units + self.take(self.nbg[3]))))
        self.stamp('mod2')
        k.wait_vm('halo1')
        k.barrier()
        self.stamp('halo')
        seq = [(i, h) for i in range(7, -1, -1) for h in range(2)]
        k.begin()
        self.ld_k(0, *seq[0])
        self.ld_k(1, *seq[1])
        self.attn_steps(seq, False)
        w = Sched(k.end())
        k.begin()
        k.wait_vm('halo2')
        k('s_barrier')
        w.pre(2 + 3 + 4 * 5, k.end())
        assert sum(self.nbg[2:5]) >= 25
        w.spread(self.take(self.nbg[4]), self.o.bg_start, w.n - self.o.bg_quiet)
        k.put(w.result())
        self.stamp('steps')
        k(f's_mov_b32 s72, {f2u(2.0 ** -90):#x}')
        k(f's_mov_b32 s73, {f2u(2.0 ** 64):#x}')
        la, lb = self.OO[0] + 12, self.OO[1] + 12
        k(f'v_cmp_nlt_f32 vcc, s72, v{la}')
        k(f'v_cmp_ngt_f32 s[76:77], s73, v{la}')
        k(f'v_cmp_nlt_f32 s[74:75], s72, v{lb}')
        k(f'v_cmp_ngt_f32 s[78:79], s73, v{lb}')
        k('s_or_b64 vcc, vcc, s[74:75]')
        k('s_or_b64 s[76:77], s[76:77], s[78:79]')
        k('s_or_b64 vcc, vcc, s[76:77]')
        k.wait_lgkm_all()
        if self.o.force_fb:
            k('s_branch .Lfallback')
        else:
            k('s_cbranch_scc1 .Lfallback')
        k.label('.Lfb_ret')
        for h in range(2):
            k(f'v_rcp_f32 v{64 + h}, v{self.OO[h] + 12}')
        for h in range(2):
            O = self.OO[h]
            for i in range(0, 12, 2):
                k(f'v_pk_mul_f32 v[{O + i}:{O + i + 1}], v[{O + i}:{O + i + 1}], v[64:65] {"op_sel:[0,1]" if h else "op_sel_hi:[1,0]"}')
            for i in range(4):
                k(f'v_cvt_pk_bf16_f32 v{68 + 4 * h + i}, v{O + 2 * i}, v{O + 2 * i + 1}')
            for i in range(2):
                k(f'v_cvt_pk_bf16_f32 v{76 + 2 * h + i}, v{O + 8 + 2 * i}, v{O + 9 + 2 * i}')
            k(f'buffer_store_dwordx4 v[{68 + 4 * h}:{71 + 4 * h}], v8, {WS}, s80 offen offset:{512 * h}', 'o')
        k(f'buffer_store_dwordx4 v[76:79], v9, {WS}, s80 offen offset:1024', 'o')

    def fallback(self):
        k = self.k
        k.label('.Lfallback')
        k.fence_hazards()
        k('s_nop 15')
        k('s_waitcnt vmcnt(0)')
        k(f's_lshl2_add_u32 s74, {sCL}, {sW}')
        k('s_min_u32 s75, s74, 7')
        k(f'v_mov_b32 v69, {f2u(NEG):#x}')
        self.masks(True, False)
        S = self.SS[0]

        def run(body):
            k(f'v_add_u32 v80, {8 * KVB}, v28')
            k(f'v_add_u32 v81, {8 * KVB}, v29')
            k(f'v_add_u32 v82, {8 * KVB}, v30')

            def step():
                for r in (80, 81, 82):
                    k(f'v_add_u32 v{r}, {-KVB & 0xffffffff:#x}, v{r}')
            body(self.cmask(8))
            step()
            lab, out, done = k.newlabel('al'), k.newlabel('alx'), k.newlabel('ald')
            k('s_mov_b32 s77, s75')
            k('s_cmp_eq_u32 s77, 0')
            k.wait_lgkm_all()
            k.fence_hazards()
            k(f's_cbranch_scc1 {out}')
            k.label(lab)
            body('0')
            step()
            k('s_sub_u32 s77, s77, 1')
            k('s_cmp_lg_u32 s77, 0')
            k.wait_lgkm_all()
            k.fence_hazards()
            k(f's_cbranch_scc1 {lab}')
            k.label(out)
            k('s_cmp_lt_u32 s74, 8')
            k(f's_cbranch_scc1 {done}')
            body(self.cmask(0))
            k.wait_lgkm_all()
            k.fence_hazards()
            k.label(done)
        for h in range(2):
            k(f'v_mov_b32 v{self.Q2[h] + 2}, 0')
            k(f'v_mov_b32 v83, {f2u(-3.0e38):#x}')

            def score(C):
                k(f'ds_read_b128 v[{self.KM[0]}:{self.KM[0] + 3}], v80 offset:{KM_OFF[h]}')
                k(f'ds_read_b64 v[{self.K2[0]}:{self.K2[0] + 1}], v81 offset:{KT_OFF}')
                self.m_sa(0, 0, h, C)
                self.m_sb(0, 0, h)

            def p1(C):
                score(C)
                for i in range(0, 16, 2):
                    k(f'v_max3_f32 v83, v83, v{S + i}, v{S + i + 1}')
            run(p1)
            k('v_mov_b32 v84, v83')
            k('v_permlane32_swap_b32 v83, v84')
            k('v_max_f32 v83, v83, v84')
            k('v_cvt_pk_bf16_f32 v84, -v83, 0')
            k(f'v_cndmask_b32 v{self.Q2[h] + 2}, 0, v84, s[48:49]')
            for i in range(16):
                k(f'v_mov_b32 v{self.OO[h] + i}, 0')

            def p2(C):
                score(C)
                for t in range(4):
                    k(f'ds_read_b64_tr_b16 v[{self.VF + 2 * t}:{self.VF + 2 * t + 1}], v82 offset:{V_OFF[h] + 384 * t}')
                for i in range(16):
                    k(f'v_exp_f32 v{S + i}, v{S + i}')
                for i in range(8):
                    k(f'v_cvt_pk_bf16_f32 v{self.PP + i}, v{S + 2 * i}, v{S + 2 * i + 1}')
                self.m_pv(0, h, False)
                self.m_pv(1, h, False)
            run(p2)
        k.fence_hazards()
        k('s_branch .Lfb_ret')

    def unpack10(self, src, dst):
        k = self.k
        for i in range(10):
            k(f'v_lshlrev_b32 v{dst + 2 * i}, 16, v{src + i}')
            k(f'v_and_b32 v{dst + 2 * i + 1}, 0xffff0000, v{src + i}')

    def lds_cols(self, base, dst, vA, vB):
        k = self.k
        k(f'ds_read_b128 v[{dst}:{dst + 3}], {vA} offset:{base}')
        k(f'ds_read_b128 v[{dst + 4}:{dst + 7}], {vA} offset:{base + 64}')
        k(f'ds_read_b64 v[{dst + 8}:{dst + 9}], {vB} offset:{base + 128}')

    X1 = 22

    def rowmajor(self, a, b):
        k = self.k
        k(f'v_and_b32 v{a}, 15, v3')
        k(f'v_mul_u32_u24 v{a}, 1280, v{a}')
        k(f'v_lshrrev_b32 v{b}, 4, v3')
        k(f'v_lshl_add_u32 v{a}, v{b}, 4, v{a}')
        k(f'v_lshlrev_b32 v{b}, 3, v{b}')
        k(f'v_sub_u32 v{b}, v{a}, v{b}')

    def vec_addr(self):
        k = self.k
        k('v_lshrrev_b32 v19, 4, v3')
        k('v_lshlrev_b32 v18, 4, v19')
        k('v_lshlrev_b32 v19, 3, v19')
        k(f'v_add_u32 v18, {L_P}, v18')
        k(f'v_add_u32 v19, {L_P}, v19')

    def wo_prep(self):
        k = self.k
        o = self.o
        k(f's_lshl2_add_u32 s91, {sCL}, {sW}')
        k(f's_lshl1_add_u32 s91, s91, {sTH}')
        k('s_mul_i32 s92, s91, 20480')
        k(f's_mul_i32 s72, {sJC}, 2560')
        k('s_add_u32 s92, s92, s72')
        k(f's_add_u32 s92, s92, {WS_Z}')
        k('s_lshl_b32 s93, s91, 10')
        k(f's_lshr_b32 s72, {sJC}, 1')
        k('s_lshl_b32 s72, s72, 8')
        k('s_add_u32 s93, s93, s72')
        k(f's_and_b32 s72, {sJC}, 1')
        k('s_lshl3_add_u32 s93, s72, s93')
        k(f's_add_u32 s93, s93, {WS_ST}')
        k(f's_mul_i32 s82, {sCL}, 393216')
        k(f's_lshl2_add_u32 s72, {sJ}, {sW}')
        k('s_mul_i32 s72, s72, 768')
        k('s_add_u32 s82, s82, s72')
        k(f's_add_u32 s82, s82, {WS_HH}')
        k(f's_mul_i32 s94, {sCL}, {O_CL}')
        k(f's_mul_i32 s72, {sTH}, 20480')
        k('s_add_u32 s94, s94, s72')
        k(f's_mul_i32 s72, {sW}, 5120')
        k('s_add_u32 s94, s94, s72')
        k(f's_add_u32 s94, s94, {WS_O}')
        us = []
        tl = [('s92', 1, 20, 128, 42)] if o.touchz and 'z' not in k.wt else []
        if 'to' not in o.order.replace('+', ',').split(','):
            if 'z' not in k.wt and 'ts' not in o.order.split(','):
                tl += [('s93', 1, 2, 128, 44)]
            if 'hh' not in k.wt:
                tl += [('s82', 6, 48, 49152, 46)]
        for so, per, n, stride, t in tl:
            k.begin()
            self.touch(so, per, n, stride, t)
            it = k.end()
            k.put(it[:-1])
            us.append(it[-1:])
        self.early_units = us
        self.wd_setup()
        self.nwd = 0

    def mm5(self, a, wregs, B, NS, chain):
        k = self.k
        order = [(s, ft) for ft in range(5) for s in range(NS)] if chain else [(s, ft) for s in range(NS) for ft in range(5)]
        for s, ft in order:
            d = a + 4 * ft
            k(f'v_mfma_f32_16x16x32_bf16 v[{d}:{d + 3}], {ur(wregs[s * 5 + ft])}, {ur(B[s])}, {"0" if s == 0 else f"v[{d}:{d + 3}]"}')

    def wo(self):
        k = self.k
        X1 = self.X1
        self.vec_addr()
        k(f's_mul_i32 s72, {sJC}, 160')
        k('v_add_u32 v20, s72, v18')
        k('v_add_u32 v21, s72, v19')
        self.lds_cols(P_GA - L_P, 84, 'v18', 'v19')
        self.lds_cols(P_G2 - L_P, X1, 'v20', 'v21')
        k('v_and_b32 v20, 15, v3')
        k('v_mul_u32_u24 v20, 160, v20')
        k(f's_mul_i32 s72, {sW}, 2560')
        k(f's_sub_u32 s72, s72, {L_P - L_X}')
        k('v_add3_u32 v21, v20, s72, v19')
        k('v_add3_u32 v20, v20, s72, v18')
        self.lds_cols(0, 32, 'v20', 'v21')
        self.unpack10(32, 120)
        self.publish(PH_O, 'o')
        self.stamp('attn')
        self.unpack10(84, 140)
        k('v_and_b32 v20, 15, v3')
        k('v_lshlrev_b32 v20, 4, v20')
        k('v_bfe_u32 v21, v3, 4, 1')
        k('v_lshl_add_u32 v21, v21, 3, v20')
        k('v_lshrrev_b32 v64, 5, v3')
        k('v_lshl_add_u32 v21, v64, 8, v21')
        k('v_cmp_gt_u32 vcc, 16, v3')
        k('v_cndmask_b32 v20, v2, v20, vcc')
        k(f's_mul_i32 s76, {sW}, 15360')
        k('v_add_u32 v9, s76, v1')
        for t in range(4):
            k(f's_add_u32 s72, {sW}, {t + 1}')
            k('s_and_b32 s72, s72, 3')
            k(f's_mul_i32 s{60 + t}, s72, 40960')
            k(f's_add_u32 s{60 + t}, s{60 + t}, s94')
            if t < 3:
                k('s_mul_i32 s72, s72, 15360')
                k(f'v_add_u32 v{16 + t}, s72, v1')
        self.flag_off('s74', PH_O)
        self.poll('v10', 's74', 64, 'o')
        self.stamp('oflag')
        quads = [72 + 4 * i for i in range(12)] + [12] + [480 + 4 * i for i in range(7)]
        B = [quads[5 * t:5 * t + 5] for t in range(4)]
        for t in range(4):
            self.put_units(self.units_frags(B[t], f's{60 + t}'))
        acc = [32, 52]
        k.begin()
        for t in range(4):
            self.mm5(acc[t & 1], self.WO_W, B[t], 5, t > 0)
        w = Sched(k.end())
        for t in range(3):
            for ft in range(5):
                k.begin()
                a = acc[t & 1] + 4 * ft
                k(f'ds_write_b128 v{16 + t}, v[{a}:{a + 3}] offset:{L_RED + t * 5120 + ft * 1024}')
                w.at(25 * (t + 1) + 4 + 4 * ft, k.end())
        assert len(self.bg) - self.nbg[5] >= 4
        self.nwd = self.nbg[6]
        if self.nbg[5] + self.nwd:
            w.spread(self.take(self.nbg[5]) + self.wd[:self.nwd], 4, self.o.wo_quiet, (2, 0))
        k.put(w.result())
        self.stamp('ks3')
        k.barrier()
        a, red = 52, 160
        for t in range(3):
            for ft in range(5):
                r = red + 20 * t + 4 * ft
                k(f'ds_read_b128 v[{r}:{r + 3}], v9 offset:{L_RED + t * 5120 + ft * 1024}')
        self.unpack10(X1, 220)
        for t in range(3):
            for i in range(0, 20, 2):
                k(f'v_pk_add_f32 v[{a + i}:{a + i + 1}], v[{a + i}:{a + i + 1}], v[{red + 20 * t + i}:{red + 20 * t + i + 1}]')
        for i in range(0, 20, 2):
            k(f'v_pk_fma_f32 v[{a + i}:{a + i + 1}], v[{a + i}:{a + i + 1}], v[{140 + i}:{141 + i}], v[{120 + i}:{121 + i}]')
        for i in range(10):
            k(f'v_cvt_pk_bf16_f32 v{X1 + i}, v{a + 2 * i}, v{a + 2 * i + 1}')
        self.unpack10(X1, 160)
        for i in range(0, 20, 2):
            k(f'v_pk_mul_f32 v[{220 + i}:{221 + i}], v[{220 + i}:{221 + i}], v[{160 + i}:{161 + i}]')
        for i in range(10):
            k(f'v_cvt_pk_bf16_f32 v{72 + i}, v{220 + 2 * i}, v{221 + 2 * i}')
        k(f'buffer_store_dwordx4 v[72:75], v1, {WS}, s92 offen', 'z')
        k(f'buffer_store_dwordx4 v[76:79], v1, {WS}, s92 offen offset:1024', 'z')
        k(f'buffer_store_dwordx2 v[80:81], v21, {WS}, s92 offen offset:2048', 'z')
        k('v_pk_add_f32 v[64:65], v[160:161], v[162:163]')
        k('v_pk_mul_f32 v[66:67], v[160:161], v[160:161]')
        k('v_pk_fma_f32 v[66:67], v[162:163], v[162:163], v[66:67]')
        for i in range(4, 20, 2):
            k(f'v_pk_add_f32 v[64:65], v[64:65], v[{160 + i}:{161 + i}]')
            k(f'v_pk_fma_f32 v[66:67], v[{160 + i}:{161 + i}], v[{160 + i}:{161 + i}], v[66:67]')
        k('v_add_f32 v64, v64, v65')
        k('v_add_f32 v65, v66, v67')
        k('v_mov_b32 v66, v64')
        k('v_mov_b32 v67, v65')
        k('v_permlane16_swap_b32 v64, v66')
        k('v_permlane16_swap_b32 v65, v67')
        k('v_pk_add_f32 v[64:65], v[64:65], v[66:67]')
        k('v_mov_b32 v66, v64')
        k('v_mov_b32 v67, v65')
        k('v_permlane32_swap_b32 v64, v66')
        k('v_permlane32_swap_b32 v65, v67')
        k('v_pk_add_f32 v[64:65], v[64:65], v[66:67]')
        k(f'buffer_store_dwordx2 v[64:65], v20, {WS}, s93 offen', 'z')

    def csbias(self):
        k = self.k
        k.begin()
        k('v_and_b32 v32, 1, v3')
        k('v_mul_u32_u24 v32, 1280, v32')
        k('v_lshrrev_b32 v33, 4, v3')
        k('v_lshlrev_b32 v33, 4, v33')
        k(f'v_add_u32 v33, {P_G2}, v33')
        k('v_sub_u32 v32, v33, v32')
        for s in range(20):
            k(f'ds_read_b128 v[{160 + 4 * s}:{163 + 4 * s}], v32 offset:{64 * s}')
        return k.end()

    CSA = 140
    EXA = 128
    EXB = 96
    L_TS = 73728

    def cs_mm(self, s):
        for ft in range(3):
            d = self.CSA + 4 * ft
            self.k(f'v_mfma_f32_16x16x32_bf16 v[{d}:{d + 3}], v[{160 + 4 * s}:{163 + 4 * s}], {ur(256 + 12 * s + 4 * ft)}, {"0" if s == 0 else f"v[{d}:{d + 3}]"}')

    def cs_fin(self):
        k = self.k
        k.begin()
        for ft in range(3):
            c, e = self.CSA + 4 * ft, self.EXA + 4 * ft
            k(f'v_cvt_pk_bf16_f32 v{e + 3}, v{c}, v{c + 1}')
            k(f'v_lshlrev_b32 v{c + 2}, 16, v{e + 3}')
            k(f'v_and_b32 v{c + 3}, 0xffff0000, v{e + 3}')
            k(f'v_sub_f32 v{c}, v{c}, v{c + 2}')
            k(f'v_sub_f32 v{c + 1}, v{c + 1}, v{c + 3}')
            k(f'v_cvt_pk_bf16_f32 v{e}, v{c + 2}, v{c + 2}')
            k(f'v_cvt_pk_bf16_f32 v{e + 1}, v{c}, v{c + 3}')
            k(f'v_cvt_pk_bf16_f32 v{e + 2}, v{c + 3}, v{c + 1}')
            for i in range(3):
                k(f'v_cndmask_b32 v{e + i}, 0, v{e + i}, s[50:51]')
            k(f'v_mov_b32 v{e + 3}, 0')
        return k.end()

    WD_REG = ([256 + 32 + 4 * i for i in range(10)] + [152 + 4 * i for i in range(26)] + [496, 500, 504, 508] +
              [124, 140, 144, 148] + [256 + 72 + 4 * i for i in range(8)] + [256 + 4 * i for i in range(8)])
    HH_B = [[256 + 104 + 4 * i for i in range(12)], [256 + 152 + 4 * i for i in range(12)],
            [256 + 200 + 4 * i for i in range(10)] + [112, 116]]

    def wd_setup(self):
        k = self.k
        k(f's_mul_i32 s86, {sJC}, {WD_J}')
        k(f's_mul_i32 s72, {sW}, {61440 + OD_W}')
        k('s_add_u32 s86, s86, s72')
        k(f's_add_u32 s86, s86, {WS_WD}')
        k(f's_lshl_b32 s95, {sW}, 13')
        k(f's_mul_i32 s81, {sW}, 10240')
        us = self.units_frags(self.WD_REG, 's86', tag='wd')
        for i in list(range(10)) + list(range(44, 52)):
            k.begin()
            if i and i % 4 == 0:
                k('s_add_u32 s86, s86, 4096')
            base = L_B + 1024 * i if i < 10 else 40960 + 1024 * (i - 44)
            k(f's_add_u32 m0, {"s81" if i < 10 else "s95"}, {base - 1024 * (i % 4)}')
            if 'nobg' not in self.o.x:
                k(f'buffer_load_dwordx4 v1, {WS}, s86 offen offset:{1024 * (i % 4)} sc1{self.ntw} lds', 'wdl')
            us[i] = k.end()
        self.wd = us

    def hh_publish(self, q):
        k = self.k
        k.begin()
        k('v_add_u32 v5, 1, v5')
        self.publish(PH_HH, f'hh{q}')
        return k.end()

    def hh_flagload(self):
        k = self.k
        k.begin()
        k(f'buffer_load_dword v12, v13, {WS}, s74 offen sc1')
        return k.end()

    def hh_check(self, need):
        k = self.k
        k.begin()
        k(f's_add_u32 s75, {sTAG}, {need}')

        def test():
            k('v_subrev_u32 v12, s75, v12')
            k(f'v_cmp_lt_u32 vcc, {7 - need}, v12')
        test()

        def body():
            k(f'buffer_load_dword v12, v13, {WS}, s74 offen sc1')
            k('s_waitcnt vmcnt(0)')
            test()
        self.recheck(body)
        self.acquire('hh')
        return k.end()

    def gu_epilogue(self, q, a, packed):
        k = self.k
        epi = []
        for tt in range(2):
            k.begin()
            c = self.EXB + 8 * tt + 4
            t0, t1 = 112 + 2 * tt, 113 + 2 * tt
            for ft in range(3):
                d = a + 12 * tt + 4 * ft
                if packed:
                    k(f'v_pk_mul_f32 v[{t0}:{t1}], v[{d}:{d + 1}], v[{d}:{d + 1}]')
                    k(f'v_pk_fma_f32 v[{t0}:{t1}], v[{t0}:{t1}], v[{c}:{c + 1}], v[{c}:{c + 1}] op_sel:[0,1,0] op_sel_hi:[1,1,0]')
                    k(f'v_pk_mul_f32 v[{t0}:{t1}], v[{t0}:{t1}], v[{d}:{d + 1}]')
                    k(f'v_exp_f32 v{t0}, v{t0}')
                    k(f'v_exp_f32 v{t1}, v{t1}')
                    k(f'v_pk_mul_f32 v[{d}:{d + 1}], v[{d}:{d + 1}], v[{d + 2}:{d + 3}]')
                    k(f'v_pk_fma_f32 v[{t0}:{t1}], v[{t0}:{t1}], v[{c + 2}:{c + 3}], v[{c + 2}:{c + 3}] op_sel_hi:[1,0,0]')
                    k(f'v_rcp_f32 v{t0}, v{t0}')
                    k(f'v_rcp_f32 v{t1}, v{t1}')
                    k(f'v_pk_mul_f32 v[{d}:{d + 1}], v[{d}:{d + 1}], v[{t0}:{t1}]')
                else:
                    k(f'v_mul_f32 v{t0}, v{d}, v{d}')
                    k(f'v_mul_f32 v{t1}, v{d + 1}, v{d + 1}')
                    k(f'v_fma_f32 v{t0}, v{t0}, v{c + 1}, v{c}')
                    k(f'v_fma_f32 v{t1}, v{t1}, v{c + 1}, v{c}')
                    k(f'v_mul_f32 v{t0}, v{t0}, v{d}')
                    k(f'v_mul_f32 v{t1}, v{t1}, v{d + 1}')
                    k(f'v_exp_f32 v{t0}, v{t0}')
                    k(f'v_exp_f32 v{t1}, v{t1}')
                    k(f'v_mul_f32 v{d}, v{d}, v{d + 2}')
                    k(f'v_fma_f32 v{t0}, v{t0}, v{c + 2}, v{c + 2}')
                    k(f'v_fma_f32 v{t1}, v{t1}, v{c + 2}, v{c + 2}')
                    k(f'v_rcp_f32 v{t0}, v{t0}')
                    k(f'v_rcp_f32 v{t1}, v{t1}')
                    k(f'v_mul_f32 v{d + 1}, v{d + 1}, v{d + 3}')
                    k(f'v_mul_f32 v{d}, v{d}, v{t0}')
                    k(f'v_mul_f32 v{d + 1}, v{d + 1}, v{t1}')
                dst = (16 + 2 * tt + ft) if ft < 2 else (6 + tt)
                k(f'v_cvt_pk_bf16_f32 v{dst}, v{d}, v{d + 1}')
            epi.append(k.end())
        k.begin()
        k('v_permlane32_swap_b32 v16, v18')
        k('v_permlane32_swap_b32 v17, v19')
        k('v_permlane16_swap_b32 v6, v7')
        k('v_permlane16_swap_b32 v16, v17')
        k('v_permlane16_swap_b32 v18, v19')
        k(f'buffer_store_dwordx2 v[6:7], v21, {WS}, s82 offen offset:512', f'hh{q}')
        k(f'buffer_store_dwordx4 v[16:19], v20, {WS}, s82 offen', f'hh{q}')
        if q < 3:
            k('s_add_u32 s82, s82, 98304')
        fin = k.end()
        return zipper(epi[0], epi[1], 0 if packed else 8), fin

    def gu(self):
        k = self.k
        o = self.o
        slots = [L_A, 0, L_A, 0]
        addr = ['v8', 'v1', 'v8', 'v1']
        K1 = (60 - len(self.bg)) // 3
        C1 = -2.0 * 0.7978845608028654 * 1.4426950408889634
        k.put(self.csbias())
        k(f'v_add_u32 v8, {L_A}, v1')
        k('v_and_b32 v20, 15, v3')
        k('v_lshlrev_b32 v14, 5, v20')
        k(f'v_add_u32 v14, {self.L_TS}, v14')
        k(f's_lshl_b32 s72, {sW}, 10')
        k('v_add_u32 v15, s72, v14')
        k('v_lshlrev_b32 v20, 4, v20')
        k('v_lshrrev_b32 v12, 5, v3')
        k('v_bfe_u32 v13, v3, 4, 1')
        k('s_mov_b32 s72, 49152')
        k('v_mad_u32_u24 v21, v13, s72, v20')
        k('v_lshl_add_u32 v21, v12, 3, v21')
        k('v_mad_u32_u24 v20, v12, s72, v20')
        k('v_lshl_add_u32 v20, v13, 8, v20')
        k('v_and_b32 v13, 60, v10')
        k('s_mov_b64 s[50:51], 0xffff')
        k(f's_mul_i32 s94, {sCL}, 163840')
        k(f's_add_u32 s94, s94, {WS_Z}')
        k(f's_lshl2_add_u32 s76, {sCL}, {sW}')
        k('s_lshl_b32 s76, s76, 11')
        k(f's_add_u32 s76, s76, {WS_ST}')
        k(f's_mul_i32 s60, {sCL}, 393216')
        k(f's_mul_i32 s72, {sTH}, 49152')
        k('s_add_u32 s60, s60, s72')
        k(f's_mul_i32 s72, {sW}, 12288')
        k('s_add_u32 s60, s60, s72')
        k(f's_add_u32 s60, s60, {WS_HH}')
        for t in range(1, 4):
            k(f's_add_u32 s{60 + t}, s60, {98304 * t}')
        self.publish(PH_Z, 'z')
        self.stamp('wo')
        for s in range(min(o.cs1, K1)):
            self.cs_mm(s)
        self.flag_off('s74', PH_Z)
        self.poll('v10', 's74', 64, 'z')
        self.stamp('zflag')
        zd = [self.units_dma('s94', 40960 * q, slots[q], 40, f'z{q}') for q in range(4)]
        self.put_units(zd[0])
        self.put_units(self.units_frags([96, 104], 's76'))
        for s in range(min(o.cs1, K1), K1):
            self.cs_mm(s)
        self.flag_off('s74', PH_HH)
        k(f's_lshl_b32 s72, {sW}, 6')
        k('s_add_u32 s74, s74, s72')
        k('v_add_u32 v10, s95, v1')
        k(f's_add_u32 s72, s81, {L_B}')
        k('v_add_u32 v9, s72, v1')
        self.hl = [self.units_frags(self.HH_B[t % 3], f's{60 + t}') for t in range(4)]
        sts = []
        for T in range(2):
            k.begin()
            b = 96 + 8 * T
            k(f'v_add_f32 v{b}, v{b}, v{b + 2}')
            k(f'v_add_f32 v{b + 1}, v{b + 1}, v{b + 3}')
            k(f'v_permlane16_swap_b32 v{b}, v{b + 1}')
            k(f'v_add_f32 v{b}, v{b}, v{b + 1}')
            k(f'v_mov_b32 v{b + 1}, v{b}')
            k(f'v_permlane32_swap_b32 v{b}, v{b + 1}')
            k(f'v_add_f32 v{b}, v{b}, v{b + 1}')
            k(f'v_mul_f32 v{b + 2}, {f2u(-1 / 640):#x}, v{b}')
            k(f'v_mul_f32 v{b + 6}, {f2u(-1 / 640):#x}, v{b}')
            k(f'v_permlane16_swap_b32 v{b + 2}, v{b + 6}')
            k(f'v_fma_f32 v{b + 6}, -v{b + 2}, v{b + 2}, -v{b + 6}')
            k(f'v_max_f32 v{b + 6}, 0, v{b + 6}')
            k(f'v_add_f32 v{b + 6}, {f2u(1e-5):#x}, v{b + 6}')
            k(f'v_rsq_f32 v{b + 4}, v{b + 6}')
            k(f'v_mul_f32 v{b + 3}, v{b + 6}, v{b + 4}')
            k(f'v_mul_f32 v{b + 5}, v{b + 4}, v{b + 4}')
            k(f'v_mul_f32 v{b + 4}, {f2u(C1):#x}, v{b + 4}')
            k(f'v_mul_f32 v{b + 5}, v{b + 5}, v{b + 4}')
            k(f'v_mul_f32 v{b + 5}, {f2u(0.044715):#x}, v{b + 5}')
            k(f'v_cvt_pk_bf16_f32 v{b + 1}, v{b + 2}, v{b + 3}')
            k(f'v_lshlrev_b32 v{b}, 16, v{b + 1}')
            k(f'v_and_b32 v{b + 7}, 0xffff0000, v{b + 1}')
            k(f'v_sub_f32 v{b + 2}, v{b + 2}, v{b}')
            k(f'v_sub_f32 v{b + 3}, v{b + 3}, v{b + 7}')
            k(f'v_cvt_pk_bf16_f32 v{b}, v{b}, v{b + 2}')
            k(f'v_cvt_pk_bf16_f32 v{b + 2}, v{b + 3}, v{b + 7}')
            k(f'v_mov_b32 v{b + 3}, 0')
            sts.append(k.end())
        tsw = []
        for i in range(4):
            k.begin()
            k('s_mov_b64 exec, s[50:51]')
            k(f'ds_write_b128 v15, v[{96 + 4 * i}:{99 + 4 * i}] offset:{512 * (i >> 1) + 16 * (i & 1)}', 'ts')
            k('s_mov_b64 exec, -1')
            tsw.append(k.end())
        acc = [32, 56]
        FRL = [80, 84, 88, 92, 116, 120]
        LA = o.gula
        k.wait_vm('z0')
        k.barrier()
        self.stamp('g0')
        seq = [(q, s, tt) for q in range(4) for s in range(20) for tt in range(2)]
        k.begin()

        def rd(i):
            q, s, tt = seq[i]
            k(f'ds_read_b128 {ur(FRL[i % 6])}, {addr[q]} offset:{20480 * tt + 1024 * s}')

        def extra(q):
            for tt in range(2):
                for ft in range(3):
                    d = acc[q & 1] + 12 * tt + 4 * ft
                    e, x = self.EXA + 4 * ft, self.EXB + 8 * tt
                    k(f'v_mfma_f32_16x16x32_bf16 v[{d}:{d + 3}], v[{e}:{e + 3}], v[{x}:{x + 3}], v[{d}:{d + 3}]')
        for i in range(LA):
            rd(i)
        gap_of, n, X = [], 0, {}
        for i, (q, s, tt) in enumerate(seq):
            gap_of.append(n)
            for ft in range(3):
                d = acc[q & 1] + 12 * tt + 4 * ft
                k(f'v_mfma_f32_16x16x32_bf16 v[{d}:{d + 3}], {ur(256 + 12 * s + 4 * ft)}, {ur(FRL[i % 6])}, {"0" if s == 0 else f"v[{d}:{d + 3}]"}')
                if ft == 0 and i + LA < len(seq):
                    rd(i + LA)
            n += 3
            if q == 0 and tt == 0 and s >= K1:
                self.cs_mm(s)
                n += 3
            if (q == 1 and i % 40 == 7) or (q >= 1 and i % 40 == 39):
                qq = 0 if i % 40 == 7 else q
                X[qq] = n
                extra(qq)
                n += 6
        Q = [gap_of[40 * q] for q in range(4)] + [n]
        w = Sched(k.end())
        for q in range(1, 4):
            k.begin()
            k.wait_vm(f'z{q}')
            if q == 1:
                k.wait_lgkm('ts')
            k('s_barrier')
            if o.fine:
                self.stamp(f'g{q}')
            w.pre(gap_of[40 * q - LA], k.end())
        for q in (1, 2):
            k.begin()
            k('s_barrier')
            w.pre(Q[q] + 4, k.end())
        for q in range(4):
            for i in range(4):
                k.begin()
                r = self.EXB + 4 * i
                k(f'ds_read_b128 v[{r}:{r + 3}], v14 offset:{1024 * q + 512 * (i >> 1) + 16 * (i & 1)}')
                w.at(X[q] - 14 + 3 * i, k.end())
        M = (3, 0)
        wd = self.wd[self.nwd:]
        off = self.nwd
        rest = self.take(len(self.bg))
        n0 = o.wdq[0] - off
        n1 = o.wdq[1] - off
        w.spread(rest + zd[1] + wd[:n0], 0, Q[1] + 3, M)
        w.spread(zd[2] + wd[n0:n1], Q[1] + 5, Q[2] + 3, M)
        w.spread(zd[3] + wd[n1:52 - off], Q[2] + 5, Q[3] + 12, M)
        w.spread(wd[52 - off:], Q[3] + 18, Q[3] + 56, M)
        k.begin()
        k.wait_vm('wdl')
        w.pre(Q[3] + 57, k.end())
        lr = []
        for i in list(range(10)) + list(range(44, 52)):
            k.begin()
            if i < 10:
                k(f'ds_read_b128 {ur(self.WD_REG[i])}, v9 offset:{1024 * i}')
            else:
                k(f'ds_read_b128 {ur(self.WD_REG[i])}, v10 offset:{40960 + 1024 * (i - 44)}')
            lr.append(k.end())
        w.spread(lr[:7], Q[3] + 57, Q[3] + 78, M)
        w.spread(lr[7:], Q[3] + 88, Q[4] - 1, (3, 1))
        w.post(Q[2] + o.pubgap, self.hh_publish(0))
        w.post(Q[3] + o.pubgap, self.hh_publish(1))
        w.at(Q[3] + 8, self.hh_flagload())
        w.post(Q[3] + 77, self.hh_check(1))
        w.spread(self.hl[0][:10], Q[3] + 79, Q[4] - 1, M)
        w.at(Q[3] + 104, self.hh_flagload())
        for i in range(4):
            w.at(Q[1] - 44 + 6 * i, tsw[i])
        w.fill(zipper(sts[0], sts[1], 4), first=24, last=Q[1] - 46)
        print('gu stats tail', w.ntail, 'K1', K1)
        w.fill(self.cs_fin(), first=Q[1] + (3 if K1 < 20 else -60), last=X[0] - 2)
        print('gu cs tail', w.ntail)
        for q in range(3):
            e, fin = self.gu_epilogue(q, acc[q & 1], False)
            w.fill(e + fin, first=X[q] + 8, last=X[q + 1] - 15)
            print('gu quarter', q, 'tail', w.ntail, 'ends', w.lastgap - Q[q + 1])
        if o.raw == 'gu':
            print('Q', Q, 'X', X)
            self.rawstamps(w, range(2, n - 12, 18), 'r')
        res = w.result()
        xs = o.x.split(',')

        def keep(it):
            if not isinstance(it, Ins):
                return True
            if 'g_noval' in xs and it.kind in ('valu', 'trans') and not it.mn.startswith('v_cmp') and 'v12' not in it.text and 'v5' not in it.text.split():
                return False
            if 'g_nobar' in xs and it.mn == 's_barrier':
                return False
            if 'g_nodma' in xs and it.meta == 'dma':
                return False
            if 'g_nost' in xs and it.kind == 'vmem' and '_store_dwordx' in it.mn:
                return False
            if 'g_nods' in xs and it.kind == 'ds':
                return False
            return True
        k.put([it for it in res if keep(it)])
        self.stamp('g4')
        e, fin = self.gu_epilogue(3, acc[1], True)
        self.put_units(self.hl[0][10:])
        k.put(e[:len(e) // 3])
        k.put(self.hh_check(2))
        self.put_units(self.hl[1][:6])
        k.put(e[len(e) // 3:])
        k.put(fin)
        self.stamp('g5')

    def down(self):
        k = self.k
        X1 = self.X1
        W = self.WD_REG
        acc = [32, 52]
        k(f's_mul_i32 s76, {sW}, 5120')
        k(f's_add_u32 s76, s76, {L_A}')
        k('v_add_u32 v8, s76, v1')
        k(f's_mul_i32 s76, {sW}, 20480')
        k(f's_add_u32 s76, s76, {L_A}')
        k('v_add_u32 v9, s76, v1')
        k.begin()
        for t in range(4):
            self.mm5(acc[t & 1], W, self.HH_B[t % 3], 12, self.o.chain)
        w = Sched(k.end())
        k.begin()
        k('s_barrier')
        w.pre(61, k.end())

        def wr(t):
            us = []
            for ft in range(5):
                k.begin()
                a = acc[t & 1] + 4 * ft
                off = t * 20480 + ft * 1024
                if off > 65535 - 16:
                    k(f'ds_write_b128 v6, v[{a}:{a + 3}] offset:{off - 40960}')
                else:
                    k(f'ds_write_b128 v8, v[{a}:{a + 3}] offset:{off}')
                us.append(k.end())
            return us
        o = self.o
        for t in range(3):
            w.spread(wr(t), 60 * (t + 1) + 8, 60 * (t + 1) + 50)
        d = o.dn
        w.spread(self.hl[1][6:], 0, 24)
        w.post(d[0], self.hh_publish(2))
        w.post(d[1], self.hh_publish(3))
        w.at(d[2], self.hh_flagload())
        w.post(d[3], self.hh_check(3))
        w.spread(self.hl[2], d[3] + 1, d[3] + d[6])
        w.at(d[4], self.hh_flagload())
        w.post(d[5], self.hh_check(4))
        w.spread(self.hl[3], d[5] + 1, d[5] + d[6])
        k.begin()
        k('v_add_u32 v6, 40960, v8')
        self.rowmajor(16, 17)
        self.vec_addr()
        self.lds_cols(P_GB - L_P, 128, 'v18', 'v19')
        self.unpack10(128, 92)
        self.unpack10(X1, 72)
        w.fill(k.end(), first=160)
        if o.fine:
            for gp in (3, 30, 59, 71, 73, 100, 119, 129, 131, 160, 179, 210):
                k.begin()
                self.stamp(f'd{gp}')
                w.post(gp, k.end())
        k.put(w.result())
        self.stamp('ks3')
        self.put_units(wr(3))
        k.barrier()
        red = 160
        for t in range(4):
            for ft in range(5):
                r = red + 20 * t + 4 * ft
                k(f'ds_read_b128 v[{r}:{r + 3}], v9 offset:{t * 5120 + ft * 1024}')
        for i in range(0, 20, 2):
            k(f'v_pk_add_f32 v[{red + i}:{red + i + 1}], v[{red + i}:{red + i + 1}], v[{red + 20 + i}:{red + 21 + i}]')
        for i in range(0, 20, 2):
            k(f'v_pk_add_f32 v[{red + i}:{red + i + 1}], v[{red + i}:{red + i + 1}], v[{red + 40 + i}:{red + 41 + i}]')
        for i in range(0, 20, 2):
            k(f'v_pk_add_f32 v[{red + i}:{red + i + 1}], v[{red + i}:{red + i + 1}], v[{red + 60 + i}:{red + 61 + i}]')
            k(f'v_pk_fma_f32 v[{red + i}:{red + i + 1}], v[{red + i}:{red + i + 1}], v[{92 + i}:{93 + i}], v[{72 + i}:{73 + i}]')
            k(f'v_cvt_pk_bf16_f32 v{32 + i // 2}, v{red + i}, v{red + i + 1}')
            if i == 6:
                k(f'buffer_store_dwordx4 v[32:35], v16, {OUTS}, s90 offen')
            if i == 14:
                k(f'buffer_store_dwordx4 v[36:39], v16, {OUTS}, s90 offen offset:64')
        k(f'buffer_store_dwordx2 v[40:41], v17, {OUTS}, s90 offen offset:128')

    def finish(self):
        k = self.k
        if self.o.stamps:
            k.wait_vm_all()
            self.stamp('end')
            k.wait_lgkm_all()
            k('s_memtime s[98:99]')
            k('v_writelane_b32 v11, s98, 62')
            k(f'v_writelane_b32 v11, {sFAST}, 63')
            k(f's_lshl2_add_u32 s72, s2, {sW}')
            k('s_lshl_b32 s72, s72, 8')
            k(f's_add_u32 s72, s72, {WS_DBG}')
            k('v_lshlrev_b32 v64, 2, v3')
            k(f'buffer_store_dword v11, v64, {WS}, s72 offen')
            if self.o.dbg:
                sel = [self.stampnames.index(n) + 1 for n in self.o.dbg.split(',')]
                k(f's_lshl2_add_u32 s72, s2, {sW}')
                k(f's_cmp_lg_u32 s72, {self.o.dbgwave}')
                k('s_cbranch_scc1 .Lend')
                k('s_mov_b64 s[28:29], s[68:69]')
                k('s_mov_b32 s30, 256')
                k('v_readlane_b32 s72, v11, 0')
                k('v_mov_b32 v64, 0')
                for i, n in enumerate(sel):
                    k(f'v_readlane_b32 s73, v11, {n}')
                    k('s_sub_u32 s73, s73, s72')
                    k('v_mov_b32 v65, s73')
                    k(f'buffer_store_dword v65, v64, {CS}, 0 offen offset:{4 * i}')
        k.label('.Lend')
        k('s_endpgm')

    def islands(self, body):
        import subprocess, re
        lines = body.split('\n')
        stub = '\n'.join(f'.Lchain{w}:' for w in range(4))
        src = '.amdgcn_target "amdgcn-amd-amdhsa--gfx950"\n.text\n' + body + '\n' + stub + '\n.Lcode_end:\n'
        open('isl.s', 'w').write(src)
        subprocess.check_call(['clang', '-x', 'assembler', '-target', 'amdgcn-amd-amdhsa', '-mcpu=gfx950', '-c', 'isl.s', '-o', 'isl.o'])
        dis = subprocess.check_output(['llvm-objdump', '-d', '-z', '--mcpu=gfx950', 'isl.o']).decode()
        sizes = [(int(m.group(1), 16), 4 * len(m.group(2).split())) for m in re.finditer(r'// ([0-9A-F]{12}): ((?:[0-9A-F]{8} ?)+)', dis)]
        p0 = lines.index('.Lpage0:')
        ret = lines.index('.Lwarm_ret:')
        end = lines.index('.Lend:')
        isins = lambda l: l.startswith('    ') and not l.strip().startswith(';')
        after = [i for i in range(p0, len(lines)) if isins(lines[i])]
        tail = sizes[-len(after):]
        assert tail[0][0] % 4096 == 0
        offs = [int(x) for x in self.o.isl.split(',')]
        pos, addr, nxt, out = [], 0, 0, lines[:p0 + 1]
        targets = [4096 * p + o_ for p in range(1, 20) for o_ in offs]
        sz = {i: s for i, (_, s) in zip(after, tail)}
        prev = ''
        for i in range(p0 + 1, len(lines)):
            l = lines[i]
            if isins(l):
                if i > ret and i < end and addr >= targets[nxt] and not prev.strip().startswith('s_cbranch_vccz'):
                    good = prev.strip().startswith('v_mfma') and not l.strip().startswith('s_')
                    if good or addr >= targets[nxt] + 40:
                        out.append(f'@ISL{len(pos)}')
                        pos.append(addr)
                        addr += 4
                        nxt += 1
                while i <= ret and addr >= targets[nxt]:
                    nxt += 1
                addr += sz[i]
                prev = l
            out.append(l)
        n = len(pos)
        per = (n + 3) // 4
        res = []
        for l in out:
            if l.startswith('@ISL'):
                j = int(l[4:])
                if j % per == 0:
                    res.append(f'.Lchain{j // per}:')
                res.append(f'.Lisl{j}:')
                last = (j + 1) % per == 0 or j + 1 == n
                res.append(f'    s_cbranch_execz {".Lwarm_ret" if last else f".Lisl{j + 1}"}')
            else:
                res.append(l)
                if l == '.Lwarm_ret:':
                    res += [f'.Lchain{w}:' for w in range(4) if w * per >= n]
        print('islands', [hex(p) for p in pos])
        return '\n'.join(res)

    def build(self):
        o = self.o
        def pre():
            fns = dict(wqi=self.st_wq_issue, xi=self.st_x_issue, mod=self.st_mod, mc=self.st_modc, a1=self.st_addr,
                       wqp=self.st_wq_process, pq=lambda: (self.wg_flag('wqst', WS_PQ), self.stamp('pq')),
                       th=lambda: None if 'h' in self.k.wt else self.touch('s86', 1, 20, 512, 8), norm=self.st_norm,
                       li=lambda: self.late_mod(self.mod_issue), lc=lambda: self.late_mod(self.mod_core),
                       rq=self.st_rest_prep, ri=lambda: self.put_units(self.rest_units(36, 38)), a2=self.st_addr2,
                       rr=self.rest_reads, rs=lambda: (self.put_units(self.rest_stores()), self.stamp('rs')),
                       pr=lambda: (self.wg_flag('pre', WS_PR), self.stamp('pr')), bar=self.k.barrier,
                       to=self.touch_arena, x2=self.x2_issue, b=self.st_bases, pqp=self.pq_poll, al=self.align_page, wm=self.warm, ts=self.touch_small, pqs=self.pq_sample, pqe=self.pq_early,
                       h=self.make_h, hp=lambda: (self.publish(PH_H, 'h'), self.stamp('hpub')))
            for c in range(5):
                fns[f'c{c}'] = lambda c=c: self.put_units(self.wq_chunk(c))
            self.st_entry()
            for n in o.order.split(','):
                if n.startswith('m1'):
                    sub = n.split('+')
                    self.mod_pass(False, between=lambda: [fns[x]() for x in sub[1:]], withpq=sub[0] == 'm1q',
                                  onmiss=fns['ri'] if sub[0] == 'm1d' else None)
                else:
                    fns[n]()
        steps = [
            ('pre', pre),
            ('qkv', self.qkv),
            ('attn', self.attention),
            ('wo', self.wo),
            ('gu', self.gu),
            ('down', self.down),
        ]
        for name, fn in steps:
            self.k.comment(f'==================== {name}')
            fn()
            if o.stop == name:
                break
        self.finish()
        if o.stop not in ('pre', 'qkv'):
            self.k.assume_vm_empty()
            self.fallback()
        for fn in self.ool:
            self.k.assume_vm_empty()
            self.k.fence_hazards()
            fn()
        body = self.k.finalize()
        if 'wm' in o.order.split(','):
            body = self.islands(body)
        hdr = open('cdna_kernels/' + NAME + '.s.ref').read().split('\n')
        top = [l for l in hdr if l.startswith(';') and '@launch' not in l]
        txt = '\n'.join(top) + f'''
; @launch grid=(256,1,1) block=(256,1,1) lds={LDS_BYTES}
.amdgcn_target "amdgcn-amd-amdhsa--gfx950"
.text
.globl {NAME}_kernel
.p2align 8
.type {NAME}_kernel,@function
{NAME}_kernel:
{body}
.Lcode_end:
.section .rodata,"a"
.p2align 6
.amdhsa_kernel {NAME}_kernel
  .amdhsa_next_free_vgpr 512
  .amdhsa_next_free_sgpr 102
  .amdhsa_accum_offset 256
  .amdhsa_group_segment_fixed_size 0
  .amdhsa_kernarg_size 96
  .amdhsa_user_sgpr_count 2
  .amdhsa_user_sgpr_kernarg_segment_ptr 1
  .amdhsa_system_sgpr_workgroup_id_x 1
.end_amdhsa_kernel
'''
        return txt


if __name__ == '__main__':
    ap = argparse.ArgumentParser()
    ap.add_argument('-o', default='cdna_kernels/' + NAME + '.s')
    ap.add_argument('--stop', default=None)
    ap.add_argument('--stamps', action='store_true')
    ap.add_argument('--force-slow', dest='force_slow', action='store_true')
    ap.add_argument('--dbg', default=None)
    ap.add_argument('--dbgwave', type=int, default=401)
    ap.add_argument('--x', default='')
    ap.add_argument('--cyc', action='store_true')
    ap.add_argument('--order', default='wqi,xi,al,mod,ts,a1,mc,wqp,th,norm,pq,rq,ri,wm,b,a2,m1+rr+rs,h,hp,bar,x2')
    ap.add_argument('--wqlook', type=int, default=14)
    ap.add_argument('--wgu-q', dest='wgu_q', type=int, default=8)
    ap.add_argument('--bg-quiet', dest='bg_quiet', type=int, default=10)
    ap.add_argument('--bg-attn', dest='bg_attn', type=int, default=45)
    ap.add_argument('--gubud', type=int, default=8)
    ap.add_argument('--dnlook', type=int, default=16)
    ap.add_argument('--force-fb', dest='force_fb', action='store_true')
    ap.add_argument('--fine', action='store_true')
    ap.add_argument('--chain', type=int, default=0)
    ap.add_argument('--pub3', type=int, default=36)
    ap.add_argument('--prgap', type=int, default=92)
    ap.add_argument('--wgu-q1', dest='wgu_q1', type=int, default=0)
    ap.add_argument('--wgu-q1end', dest='wgu_q1end', type=int, default=112)
    ap.add_argument('--prflag', type=int, default=1)
    ap.add_argument('--rsgap', type=int, default=30)
    ap.add_argument('--late', type=int, default=240)
    ap.add_argument('--rspos', type=int, default=20)
    ap.add_argument('--wlead', type=int, default=6)
    ap.add_argument('--remend', type=int, default=56)
    ap.add_argument('--rigap', type=int, default=58)
    ap.add_argument('--wend', type=int, default=60)
    ap.add_argument('--hend', type=int, default=90)
    ap.add_argument('--t3end', type=int, default=90)
    ap.add_argument('--bg', default='8,12,6,10,28,17,4')
    ap.add_argument('--bg-start', dest='bg_start', type=int, default=6)
    ap.add_argument('--wo-quiet', dest='wo_quiet', type=int, default=70)
    ap.add_argument('--cs1', type=int, default=7)
    ap.add_argument('--q0a', type=int, default=84)
    ap.add_argument('--touchz', type=int, default=0)
    ap.add_argument('--wt', default='hh,o,h')
    ap.add_argument('--split', type=int, default=1)
    ap.add_argument('--wdq', type=lambda s: [int(x) for x in s.split(',')], default=[13, 32])
    ap.add_argument('--pubgap', type=int, default=50)
    ap.add_argument('--chk4', type=int, default=100)
    ap.add_argument('--gula', type=int, default=5)
    ap.add_argument('--nearly', type=int, default=2)
    ap.add_argument('--x2gap', type=int, default=92)
    ap.add_argument('--drop', default='')
    ap.add_argument('--ntst', default='')
    ap.add_argument('--dn', type=lambda s: [int(x) for x in s.split(',')], default=[4, 60, 46, 66, 112, 132, 44])
    ap.add_argument('--raw', default='')
    ap.add_argument('--isl', default='0')
    ap.add_argument('--spin', type=int, default=20000)
    opt = ap.parse_args()
    g = Gen(opt)
    txt = g.build()
    open(opt.o, 'w').write(txt)
    if opt.stamps:
        open(opt.o + '.stamps', 'w').write(' '.join(g.stampnames))
    print('written', opt.o, 'lines', txt.count('\n'), g.k.stats, g.stampnames)
```

```python
import os, sys, struct, argparse
sys.path.insert(0, 'dev')
from asmb import Builder, Sched, Ins

NAME = 'adaLN_cond__sliding_block__glu_gated_geglu__prompt'

WS_EPOCH = 0
WS_HELLO = 0x400
WS_PQ = 0x1000
WS_PR = 0x1400
WS_KVF = 0x8000
WS_FLAG = 0x40000
WS_MODG = 0x10000
WS_ST = 0x20000
WS_WQ = 0x100000
WS_WO = 0x3C0000
WS_WGU = 0x4C0000
WS_WD = 0x900000
PAD = int(os.environ.get('PAD', '1280'))
WQ_T = 40960 + PAD
WQ_J = 4 * WQ_T + PAD
WGU_S = 61440 + PAD
OD_W = PAD
WO_J = 20 * 5120 + 5 * PAD
WD_J = 48 * 5120 + 5 * PAD
WS_H = 0xB40000
WS_O = 0xDC0000
WS_Z = 0x1040000
WS_KV = 0x12C0000
WS_HH = 0x1840000
O_CL = 163840
if 'NOARENA' not in os.environ:
    WS_Z = WS_H
    WS_O = WS_HH
    O_CL = 393216
WS_DBG = 0x1E40000
WS_SIZE = 0x1F00000
WS_BASE = int(os.environ.get('WSBASE', '0'), 0)
OOB = 0x40000000
PH_H, PH_O, PH_Z, PH_HH = range(4)
SF = 52
VF_FAST, VF_SLOW = 4, 0

KVB = 5632
L_C = 0
L_KVOWN = 8 * KVB
L_Q = 12 * KVB
L_P = L_Q + 10240
L_A = 81920
L_B = 122880
LDS_BYTES = 163840
L_X = L_Q
L_MOD = L_C
L_WQS = L_C + 20480
L_MV = L_KVOWN + 16384
L_STAT = L_C + 40960
L_SC = L_C + 41472
L_GUS = L_KVOWN
L_ODS = [L_X, L_GUS]
KM_OFF = [0, 1024]
KT_OFF = 2048
V_OFF = [2560, 4096]
P_SB = L_P
P_G2 = L_P + 1280
P_GA = L_P + 2560
P_GB = L_P + 2720
P_DUMMY = L_P + 3072
L_RED = 0

sW = 's3'
WS = 's[4:7]'; XS = 's[8:11]'; WQS = 's[12:15]'; ODS = 's[16:19]'; WGS = 's[20:23]'; WUS = 's[24:27]'
CS = 's[28:31]'; WMS = 's[32:35]'; OUTS = 's[36:39]'
sCL, sJ, sTAG, sFAST = 's40', 's41', 's42', 's43'
sJC, sTH = 's46', 's47'

DUMMY = 47
QSCALE = 20 ** -0.5 * 1.4426950408889634
NEG = -1.0e30


def f2u(x):
    return struct.unpack('<I', struct.pack('<f', x))[0]


def vr(a, n=1, t='v'):
    return f'{t}{a}' if n == 1 else f'{t}[{a}:{a + n - 1}]'


def ur(a, n=4):
    return vr(a, n, 'v') if a < 256 else vr(a - 256, n, 'a')


def zipper(a, b, lead):
    out = list(a[:lead])
    a = a[lead:]
    for i in range(max(len(a), len(b))):
        out += a[i:i + 1] + b[i:i + 1]
    return out


class TagBuilder(Builder):
    wt = ()

    def __call__(self, text, tag=None):
        if tag is not None and tag.rstrip('0123') in self.wt and text.startswith('buffer_store'):
            text += ' sc1'
        if tag in self.drop and text.startswith('buffer_'):
            return
        if tag in self.ntst and text.startswith('buffer_store'):
            text += ' nt'
        super().__call__(text, tag)


class Gen:
    def __init__(self, opt):
        self.o = opt
        self.k = TagBuilder()
        self.k.wt = opt.wt.split(',')
        self.k.drop = opt.drop.split(',')
        self.k.ntst = opt.ntst.split(',')
        self.nstamp = 0
        self.stampnames = []
        self.ool = []
        self.ntw = ' nt' if 'ntw' in opt.x else ''
        self.ntx = ' nt' if 'ntx' in opt.x else ''
        self.nt = '' if 'nont' in opt.x else ' nt'

    def stamp(self, name):
        if self.o.padto and self.o.padat == name:
            self.padspin(self.o.padto)
        if not self.o.stamps:
            return
        k = self.k
        n = self.nstamp
        assert n < 60
        self.nstamp += 1
        self.stampnames.append(name)
        k('s_memtime s[100:101]' if self.o.cyc else 's_memrealtime s[100:101]')
        k(f'v_writelane_b32 v11, s100, {n + 1}')

    def rawstamps(self, w, gaps, prefix):
        k = self.k
        for gp in gaps:
            n = self.nstamp
            self.nstamp += 1
            self.stampnames.append(f'{prefix}{gp}')
            k.begin()
            k.raw('    s_memtime s[98:99]')
            w.pre(gp, k.end())
            k.begin()
            k.raw(f'    v_writelane_b32 v11, s98, {n + 1}')
            w.post(gp + (10 if w.cap(gp) == 2 else 5), k.end())

    def dma(self, srd, voff, soff, lds, imm=0, tag=None, sc1=False):
        k = self.k
        k(f's_mov_b32 m0, {lds}')
        k(f'buffer_load_dwordx4 {voff}, {srd}, {soff} offen offset:{imm}{" sc1" if sc1 else ""} lds', tag)

    def bf16_round_keep(self, regs, tmp):
        k = self.k
        for i in range(0, len(regs), 2):
            k(f'v_cvt_pk_bf16_f32 v{tmp}, v{regs[i]}, v{regs[i + 1]}')
            k(f'v_lshlrev_b32 v{regs[i]}, 16, v{tmp}')
            k(f'v_and_b32 v{regs[i + 1]}, 0xffff0000, v{tmp}')

    def flag_off(self, sdst, phase, scl=sCL):
        k = self.k
        k(f's_add_u32 {sdst}, s{SF + phase // 2}, {(phase % 2) * 2048}')

    def publish(self, phase, tag):
        k = self.k
        if tag.rstrip('0123') in k.wt:
            k.wait_vm(tag)
            k(f'buffer_store_dword v5, v{VF_FAST}, {WS}, s{SF + phase // 2} offen offset:{(phase % 2) * 2048}')
            k(f'buffer_store_dword v5, v{VF_SLOW}, {WS}, s{SF + phase // 2} offen offset:{(phase % 2) * 2048} sc1')
            return
        k.wait_vm(tag)
        k(f'buffer_store_dword v5, v{VF_FAST}, {WS}, s{SF + phase // 2} offen offset:{(phase % 2) * 2048}')
        back, slow = k.newlabel('pubb'), k.newlabel('pubs')
        k(f's_cmp_eq_u32 {sFAST}, 0')
        k(f's_cbranch_scc1 {slow}')
        k.label(back)

        def ool():
            k.label(slow)
            k('buffer_wbl2 sc1')
            k('s_waitcnt vmcnt(0)')
            k(f'buffer_store_dword v5, v{VF_SLOW}, {WS}, s{SF + phase // 2} offen offset:{(phase % 2) * 2048} sc1')
            k(f's_branch {back}')
        self.ool.append(ool)

    def recheck(self, body):
        k = self.k
        back, slow = k.newlabel('rcb'), k.newlabel('rcs')
        k('s_cmp_lg_u64 vcc, 0')
        k(f's_cbranch_scc1 {slow}')
        k.label(back)

        def ool():
            k.label(slow)
            self.spin(body)
            k.fence_hazards()
            k(f's_branch {back}')
        self.ool.append(ool)

    def acquire(self, tag):
        k = self.k
        if tag in k.wt:
            return
        back, slow = k.newlabel('acb'), k.newlabel('acs')
        k(f's_cmp_eq_u32 {sFAST}, 0')
        k(f's_cbranch_scc1 {slow}')
        k.label(back)

        def ool():
            k.label(slow)
            k('buffer_inv sc1')
            k('s_waitcnt vmcnt(0)')
            k(f's_branch {back}')
        self.ool.append(ool)

    def spin(self, body, onmiss=None):
        k = self.k
        lab, out = k.newlabel('poll'), k.newlabel('pollx')
        k('s_mov_b32 s73, 0')
        k.fence_hazards()
        k.label(lab)
        k('s_add_u32 s73, s73, 1')
        body()
        k(f's_cmp_ge_u32 s73, {self.o.spin}')
        k(f's_cbranch_scc1 {out}')
        if onmiss is None:
            k('s_cmp_lg_u64 vcc, 0')
            k(f's_cbranch_scc1 {lab}')
        else:
            k('s_cmp_eq_u64 vcc, 0')
            k(f's_cbranch_scc1 {out}')
            k('s_cmp_lg_u32 s73, 1')
            k(f's_cbranch_scc1 {lab}')
            onmiss()
            k(f's_branch {lab}')
        k.label(out)
        k.assume_vm_empty()

    def allcheck(self, regs, t):
        k = self.k
        if len(regs) == 1:
            k(f'v_cmp_ne_u32 vcc, {sTAG}, v{regs[0]}')
            return
        k(f'v_xor_b32 v{t}, {sTAG}, v{regs[0]}')
        rest = regs[1:]
        while rest:
            k(f'v_xor_b32 v{t + 1}, {sTAG}, v{rest[0]}')
            if len(rest) > 1:
                k(f'v_xor_b32 v{t + 2}, {sTAG}, v{rest[1]}')
                k(f'v_or3_b32 v{t}, v{t}, v{t + 1}, v{t + 2}')
            else:
                k(f'v_or_b32 v{t}, v{t}, v{t + 1}')
            rest = rest[2:]
        k(f'v_cmp_ne_u32 vcc, 0, v{t}')

    def poll(self, voff, soff, vt, local):
        k = self.k

        def body():
            k(f'buffer_load_dword v{vt}, {voff}, {WS}, {soff} offen sc1')
            k('s_waitcnt vmcnt(0)')
            self.allcheck([vt], vt)
        self.spin(body)
        if local:
            self.acquire(local)

    def units_frags(self, regs, sbase, voff='v1', tag=None, first=0):
        k = self.k
        out = []
        for n, r in enumerate(regs):
            i = n + first
            k.begin()
            if i and i % 4 == 0:
                k(f's_add_u32 {sbase}, {sbase}, 4096')
            if not ('nobg' in self.o.x and tag in ('wgu', 'wo', 'wd')):
                k(f'buffer_load_dwordx4 {ur(r)}, {voff}, {WS}, {sbase} offen offset:{1024 * (i % 4)} sc1{self.ntw if tag in ("wgu", "wo", "wd") else ""}', tag)
            out.append(k.end())
        return out

    def units_dma(self, ssrc, srcadd, ldsbase, n, tag, voff='v1'):
        k = self.k
        c = (n + 3) // 4
        out = []
        for i in range(c):
            k.begin()
            if i == 0:
                k(f's_mul_i32 s88, {sW}, {c}')
                if c * 4 != n:
                    k(f's_min_u32 s88, s88, {n - c}')
                k('s_lshl_b32 s88, s88, 10')
                k(f's_add_u32 s87, {ssrc}, s88')
                if srcadd:
                    k(f's_add_u32 s87, s87, {srcadd}')
                k(f's_add_u32 m0, s88, {ldsbase}')
            elif i % 4 == 0:
                k('s_add_u32 s87, s87, 4096')
                k('s_add_u32 m0, m0, 4096')
            k(f'buffer_load_dwordx4 {voff}, {WS}, s87 offen offset:{1024 * (i % 4)} sc1 lds', tag)
            out.append(k.end())
        return out

    def take(self, n):
        out, self.bg = self.bg[:n], self.bg[n:]
        return out

    def put_units(self, units):
        for u in units:
            self.k.put(u)

    def rowsum(self, r, t):
        k = self.k
        k(f'v_mov_b32 v{t}, v{r}')
        k(f'v_permlane16_swap_b32 v{r}, v{t}')
        k(f'v_add_f32 v{r}, v{r}, v{t}')
        k(f'v_mov_b32 v{t}, v{r}')
        k(f'v_permlane32_swap_b32 v{r}, v{t}')
        k(f'v_add_f32 v{r}, v{r}, v{t}')

    def touch(self, soff, per, n, stride, t, dst=DUMMY):
        k = self.k
        if 'notouch' in self.o.x:
            return
        magic = (65536 + per - 1) // per
        assert all((l * magic) >> 16 == l // per for l in range(64))
        if per == 1:
            k(f'v_mul_u32_u24 v{t}, {stride}, v3')
        else:
            k(f'v_mul_u32_u24 v{t}, {magic}, v3')
            k(f'v_lshrrev_b32 v{t}, 16, v{t}')
            k(f'v_mul_u32_u24 v{t}, {stride - per * 128}, v{t}')
            k(f'v_lshl_add_u32 v{t}, v3, 7, v{t}')
        k(f'v_sub_u32 v{t + 1}, {n - 1}, v3')
        k(f'v_and_b32 v{t + 1}, {OOB}, v{t + 1}')
        k(f'v_or_b32 v{t}, v{t}, v{t + 1}')
        k(f'buffer_load_dword v{dst}, v{t}, {WS}, {soff} offen{" nt" if "ntt" in self.o.x else " sc1"}')


    def st_entry(self):
        k = self.k
        o = self.o
        k('s_load_dwordx8 s[64:71], s[0:1], 64')
        k('s_load_dwordx16 s[48:63], s[0:1], 0')
        k(f's_cmp_ge_u32 s2, {0 if "exit0" in o.x else 256}')
        k('s_cbranch_scc1 .Lend')
        if o.stamps:
            k('s_memrealtime s[100:101]')
            k('s_memtime s[98:99]')
        if o.padto:
            k('s_memrealtime s[98:99]')
        k('s_getpc_b64 s[44:45]')
        k.label('.Lpc0')
        k('v_mov_b32 v37, v0')
        k('s_bfe_u32 s72, s2, 0x30003')
        k('v_lshrrev_b32 v2, 2, v37')
        k('v_lshl_add_u32 v2, s72, 6, v2')
        k('v_lshlrev_b32 v2, 7, v2')
        k('v_min_u32 v2, .Lcode_end-.Lpc0-4, v2')
        k('global_load_dword v95, v2, s[44:45]')
        k('v_lshrrev_b32 v2, 6, v37')
        k('v_and_b32 v3, 63, v37')
        k('v_readfirstlane_b32 s3, v2')
        k('s_mov_b32 s34, 4915200')
        k('s_mov_b32 s35, 0x20000')
        k('s_movk_i32 s30, 1280')
        k('s_mov_b32 s31, 0x20000')
        k('s_sub_u32 s74, s2, 16')
        k('s_cmp_lt_u32 s2, 240')
        k('s_cselect_b32 s74, s2, s74')
        k('s_lshr_b32 s75, s74, 2')
        k('s_and_b32 s76, s74, 3')
        k('v_lshrrev_b32 v6, 3, v3')
        k('v_and_b32 v7, 7, v3')
        k('v_lshlrev_b32 v7, 4, v7')
        k('s_movk_i32 s72, 7680')
        k('v_mad_u32_u24 v39, v6, s72, v7')
        k('s_mul_i32 s77, s76, 160')
        k(f's_lshl3_add_u32 s77, {sW}, s77')
        k('s_mul_i32 s77, s77, 7680')
        k('s_lshl_b32 s72, s75, 7')
        k('s_add_u32 s77, s77, s72')
        k('v_min_u32 v9, 79, v37')
        k('v_lshlrev_b32 v9, 2, v9')
        k('s_mul_i32 s79, s76, 320')
        k.wait_lgkm_all()
        if o.stamps:
            k('v_mov_b32 v11, s100')
            k('v_writelane_b32 v11, s98, 61')
        k('s_mov_b64 s[32:33], s[64:65]')
        k('s_mov_b64 s[28:29], s[62:63]')
        if WS_BASE:
            k(f's_add_u32 s70, s70, {WS_BASE}')
            k('s_addc_u32 s71, s71, 0')
        k('s_load_dword s42, s[70:71], 0')
        k(f'buffer_load_dword v10, v9, {CS}, s79 offen')
        k('s_mov_b32 s95, s77')
        lab = k.newlabel('me')
        k(f's_cmp_ge_u32 s2, {o.late}')
        k(f's_cbranch_scc1 {lab}')
        k.cond_begin()
        self.mod_issue('mod')
        k.cond_end()
        k.label(lab)
        self.stamp('modiss')
        for srd, size, p in ((4, WS_SIZE, 70), (8, 2621440, 48), (12, 2457600, 50), (20, 1966080, 56), (24, 1966080, 58), (36, 2621440, 66)):
            k(f's_mov_b64 s[{srd}:{srd + 1}], s[{p}:{p + 1}]')
            k(f's_mov_b32 s{srd + 2}, {size}')
            k(f's_mov_b32 s{srd + 3}, 0x20000')
        k('s_mov_b32 s19, 0x20000')
        if o.split == 1:
            k('s_and_b32 s72, s2, 7')
            k('s_lshr_b32 s73, s2, 3')
            k(f's_and_b32 {sJ}, s73, 15')
            k('s_lshr_b32 s73, s73, 4')
            k(f's_lshl1_add_u32 {sCL}, s72, s73')
        else:
            k('s_bfe_u32 s72, s2, 0x20001')
            k('s_lshr_b32 s73, s2, 6')
            k(f's_lshl2_add_u32 {sCL}, s72, s73')
            k('s_bfe_u32 s72, s2, 0x30003')
            k('s_and_b32 s73, s2, 1')
            k(f's_lshl1_add_u32 {sJ}, s72, s73')
        k(f's_and_b32 {sJC}, {sJ}, 7')
        k(f's_lshr_b32 {sTH}, {sJ}, 3')
        k('v_lshlrev_b32 v1, 4, v3')
        k(f'v_mov_b32 v2, {OOB}')
        k('s_mul_i32 s80, s74, 171')
        k('s_lshr_b32 s80, s80, 9')
        k('s_mul_i32 s81, s80, 3')
        k('s_sub_u32 s81, s74, s81')

    def mod_issue(self, tag):
        k = self.k
        k(f's_lshl_b32 s72, {sW}, 10')
        k(f's_add_u32 m0, s72, {L_MOD}')
        for t in range(5):
            k(f'buffer_load_dwordx4 v39, {WMS}, s95 offen{self.nt} lds', tag)
            if t < 4:
                k(f's_add_u32 s95, s95, {32 * 7680}')
                k('s_add_u32 m0, m0, 4096')

    def mod_core(self, tag):
        k = self.k
        k('s_mov_b32 s73, 0x07060503')
        k('s_mov_b32 s77, 0x07060502')
        k('s_mov_b32 s78, 0x07060501')
        k.wait_vm(tag)
        k.barrier()
        for s in range(5):
            k(f'ds_read_b64_tr_b16 v[{200 + 4 * s}:{201 + 4 * s}], v17 offset:{L_MOD + 4096 * s}')
            k(f'ds_read_b64_tr_b16 v[{202 + 4 * s}:{203 + 4 * s}], v17 offset:{L_MOD + 4096 * s + 512}')
            k(f'ds_read_b128 v[{220 + 4 * s}:{223 + 4 * s}], v18 offset:{L_SC + 64 * s}')
        for s in range(5):
            k(f'v_mfma_f32_16x16x32_bf16 v[80:83], v[{200 + 4 * s}:{203 + 4 * s}], v[{220 + 4 * s}:{223 + 4 * s}], {"0" if s == 0 else "v[80:83]"}')
        k('v_perm_b32 v80, v80, v83, s73')
        k('v_perm_b32 v81, v81, v83, s77')
        k('v_perm_b32 v82, v82, v83, s78')
        k('v_mov_b32 v83, s42')
        k(f'buffer_store_dwordx4 v[80:83], v15, {WS}, s96 offen sc1')
        k.fence_hazards()

    def st_wq_issue(self):
        k = self.k
        k('s_movk_i32 s72, 3840')
        k('v_mad_u32_u24 v8, v6, s72, v7')
        k('s_mul_i32 s77, s80, 30720')
        k('s_mul_i32 s72, s81, 1280')
        k('s_add_u32 s77, s77, s72')
        k(f's_mul_i32 s78, {sW}, 3072')
        k(f's_add_u32 m0, s78, {L_WQS}')
        k(f's_add_u32 s82, {sW}, 8')
        k('s_min_u32 s82, s82, 9')
        k(f's_lshl_b32 s72, {sW}, 7')
        k('s_add_u32 s72, s72, s77')
        k(f'buffer_load_dwordx4 v8, {WQS}, s72 offen{self.nt} lds', 'wq')
        k('s_add_u32 s72, s72, 512')
        k('s_add_u32 m0, m0, 1024')
        k(f'buffer_load_dwordx4 v8, {WQS}, s72 offen{self.nt} lds', 'wq')
        k('s_lshl_b32 s72, s82, 7')
        k('s_add_u32 s72, s72, s77')
        k('s_add_u32 m0, m0, 1024')
        k(f'buffer_load_dwordx4 v8, {WQS}, s72 offen{self.nt} lds', 'wq')

    def st_addr(self):
        k = self.k
        k('s_lshl_b32 s97, s80, 9')
        k(f's_add_u32 s97, s97, {WS_WQ}')
        k('s_mul_i32 s78, s81, 40')
        k('s_sub_u32 s78, s78, 40')
        k('s_cmp_eq_u32 s81, 0')
        k('s_cmov_b32 s78, 80')
        k(f's_mov_b32 s79, {WQ_J}')
        k(f's_mov_b32 s73, {WQ_T}')
        for t in range(3):
            if t < 2:
                k(f's_lshl_b32 s72, {sW}, 6')
                if t:
                    k('s_add_u32 s72, s72, 256')
            else:
                k('s_lshl_b32 s72, s82, 6')
            k('v_add_u32 v76, s72, v3')
            k('v_mul_u32_u24 v77, 205, v76')
            k('v_lshrrev_b32 v77, 13, v77')
            k('v_mul_u32_u24 v78, 40, v77')
            k('v_sub_u32 v76, v76, v78')
            k('v_add_u32 v76, s78, v76')
            k('v_lshrrev_b32 v78, 5, v76')
            k('v_and_b32 v76, 31, v76')
            k('v_lshlrev_b32 v76, 4, v76')
            k('v_mad_u32_u24 v76, v78, s73, v76')
            k(f'v_mad_u32_u24 v{20 + t}, v77, s79, v76')
        k(f's_cmp_ge_u32 {sW}, 2')
        k(f's_cselect_b32 s72, {OOB}, 0')
        k('v_or_b32 v22, s72, v22')
        k('s_cmp_ge_u32 s2, 240')
        k(f's_cselect_b32 s72, {OOB}, 0')
        for t in range(3):
            k(f'v_or_b32 v{20 + t}, s72, v{20 + t}')

    def st_wq_process(self):
        k = self.k
        k(f's_mul_i32 s72, {sW}, 3072')
        k('v_add_u32 v76, s72, v19')
        k.wait_vm('wq')
        for t in range(3):
            k(f'ds_read_b64_tr_b16 v[{64 + 4 * t}:{65 + 4 * t}], v76 offset:{L_WQS + 1024 * t}')
            k(f'ds_read_b64_tr_b16 v[{66 + 4 * t}:{67 + 4 * t}], v76 offset:{L_WQS + 1024 * t + 512}')
        for t in range(3):
            k(f'buffer_store_dwordx4 v[{64 + 4 * t}:{67 + 4 * t}], v{20 + t}, {WS}, s97 offen sc1', 'wqst')
        self.stamp('wqst')

    def st_x_issue(self):
        k = self.k
        k('v_mul_u32_u24 v36, 80, v7')
        k('v_lshl_add_u32 v36, v6, 4, v36')
        k('v_cmp_gt_u32 vcc, 32, v3')
        k('v_cndmask_b32 v38, v2, v36, vcc')
        k(f's_lshl4_add_u32 s72, {sCL}, {sJ}')
        k('s_mul_i32 s72, s72, 10240')
        k(f's_mul_i32 s73, {sW}, 320')
        k('s_add_u32 s72, s72, s73')
        k(f'buffer_load_dwordx4 v[24:27], v36, {XS}, s72 offen{self.ntx}')
        k(f'buffer_load_dwordx4 v[28:31], v36, {XS}, s72 offen offset:128{self.ntx}')
        k(f'buffer_load_dwordx4 v[32:35], v38, {XS}, s72 offen offset:256{self.ntx}')
        k(f's_mul_i32 s86, {sCL}, 163840')
        k(f's_lshr_b32 s72, {sJ}, 2')
        k('s_mul_i32 s72, s72, 40960')
        k('s_add_u32 s86, s86, s72')
        k(f's_and_b32 s72, {sJ}, 3')
        k('s_lshl_b32 s72, s72, 7')
        k('s_add_u32 s86, s86, s72')
        k(f's_mul_i32 s72, {sW}, 10240')
        k('s_add_u32 s86, s86, s72')
        k(f's_add_u32 s86, s86, {WS_H}')
        self.stamp('xiss')

    def st_mod(self):
        k = self.k
        k('s_getreg_b32 s49, hwreg(HW_REG_XCC_ID, 0, 3)')
        k('s_mul_i32 s42, s42, 0x9e3779b1')
        k('s_add_u32 s42, s42, 0x7f4a7c15')
        k('s_mov_b32 s50, s42')
        k('s_and_b32 s42, s42, -8')
        k('s_or_b32 s51, s42, s49')
        k(f's_lshl2_add_u32 s72, {sJ}, {sW}')
        k('s_lshl_b32 s72, s72, 2')
        k('v_mov_b32 v4, s72')
        k('v_cmp_eq_u32 vcc, 0, v3')
        k('v_cndmask_b32 v4, v2, v4, vcc')
        k('v_mov_b32 v5, s42')
        k('v_cmp_eq_u32 vcc, 0, v37')
        k('v_cndmask_b32 v12, v2, 0, vcc')
        k('v_mov_b32 v14, s51')
        k(f's_lshl_b32 s72, {sCL}, 7')
        k(f's_lshl2_add_u32 s72, {sJ}, s72')
        k(f'buffer_store_dword v14, v12, {WS}, s72 offen offset:{WS_HELLO} sc1')
        k('v_lshlrev_b32 v14, 16, v10')
        k('v_and_b32 v15, 0xffff0000, v10')
        for r in (14, 15):
            k(f'v_mul_f32 v{r + 2}, {f2u(-1.4426950408889634):#x}, v{r}')
        for r in (14, 15):
            k(f'v_exp_f32 v{r + 2}, v{r + 2}')
        for r in (14, 15):
            k(f'v_add_f32 v{r + 2}, 1.0, v{r + 2}')
        for r in (14, 15):
            k(f'v_rcp_f32 v{r + 2}, v{r + 2}')
        for r in (14, 15):
            k(f'v_mul_f32 v{r}, v{r}, v{r + 2}')
        k('v_cvt_pk_bf16_f32 v14, v14, v15')
        k(f'ds_write_b32 v9, v14 offset:{L_SC}')
        k('v_bfe_u32 v13, v3, 2, 2')
        k('v_lshlrev_b32 v13, 7, v13')
        k('v_and_b32 v14, 3, v3')
        k('v_lshl_add_u32 v15, v14, 3, v13')
        k('v_lshrrev_b32 v16, 4, v3')
        k('v_lshl_add_u32 v17, v16, 10, v15')
        k(f's_lshl_b32 s72, {sW}, 5')
        k('v_add_u32 v17, s72, v17')
        k('v_lshlrev_b32 v18, 4, v16')
        k('v_lshl_add_u32 v19, v16, 5, v15')
        k('v_lshlrev_b32 v15, 6, v16')
        k('v_and_b32 v76, 15, v3')
        k('v_cmp_eq_u32 vcc, 0, v76')
        k('v_cndmask_b32 v15, v2, v15, vcc')
        k(f's_lshl2_add_u32 s96, s75, {sW}')
        k('s_lshl_b32 s96, s96, 8')
        k('s_lshl4_add_u32 s96, s76, s96')
        k(f's_add_u32 s96, s96, {WS_MODG}')

    def st_modc(self):
        k = self.k
        lab = k.newlabel('mc')
        k(f's_cmp_ge_u32 s2, {self.o.late}')
        k(f's_cbranch_scc1 {lab}')
        k.cond_begin()
        self.mod_core('mod')
        k.cond_end()
        k.label(lab)
        self.stamp('modpub')

    def st_addr2(self):
        k = self.k
        k('s_lshr_b32 s58, s80, 2')
        k('s_mul_i32 s58, s58, 3072')
        k('s_and_b32 s72, s80, 3')
        k('s_lshl_b32 s72, s72, 8')
        k('s_add_u32 s58, s58, s72')
        k(f's_add_u32 s58, s58, {WS_WGU}')
        k('s_lshl_b32 s64, s81, 6')
        k(f's_lshl3_add_u32 s64, {sW}, s64')
        k('s_cmp_ge_u32 s2, 240')
        k(f's_cselect_b32 s59, {OOB}, 0')
        k('v_lshrrev_b32 v154, 1, v14')
        k('v_lshl_add_u32 v154, v154, 3, v13')
        k('v_and_b32 v156, 1, v14')
        k('v_lshl_add_u32 v154, v156, 10, v154')
        k('v_add_u32 v154, v154, v18')
        k(f's_lshl_b32 s77, {sW}, 12')
        k(f's_add_u32 s77, s77, {L_GUS}')
        k('v_add_u32 v154, s77, v154')
        k(f's_sub_u32 s78, 3, {sW}')
        k('s_lshl_b32 s78, s78, 10')
        k(f's_add_u32 s78, s78, {L_GUS}')
        k('v_add_u32 v155, s78, v19')
        k('v_and_b32 v156, 9, v3')
        k('v_bfe_u32 v157, v3, 1, 1')
        k('v_lshl_add_u32 v156, v157, 2, v156')
        k('v_bfe_u32 v157, v3, 2, 1')
        k('v_lshl_add_u32 v156, v157, 1, v156')
        k('v_lshlrev_b32 v156, 4, v156')
        k('v_or_b32 v156, s59, v156')
        k(f's_mov_b32 s73, {WGU_S - 3072}')
        for t in range(2):
            for hf in range(2):
                d = 144 + 2 * t + hf
                k(f's_add_u32 s77, s64, {32 * t + 4 * hf}')
                k('v_add_u32 v157, s77, v16')
                k('v_mul_u32_u24 v158, 171, v157')
                k('v_lshrrev_b32 v158, 9, v158')
                k('v_lshl_add_u32 v157, v157, 10, v156')
                k(f'v_mad_u32_u24 v{d}, v158, s73, v157')
        k(f's_cmp_lt_u32 {sW}, 2')
        k(f's_cselect_b32 s79, {OOB}, 0')
        for t in range(3):
            k(f's_sub_u32 s78, {3 + 4 * t}, {sW}')
            k('s_lshl_b32 s78, s78, 6')
            k('v_add_u32 v156, s78, v3')
            k('v_mul_u32_u24 v157, 205, v156')
            k('v_lshrrev_b32 v157, 14, v157')
            k('v_mul_u32_u24 v158, 80, v157')
            k('v_sub_u32 v156, v156, v158')
            k('v_bfe_u32 v158, v156, 3, 2')
            k('v_and_b32 v159, 3, v156')
            k('v_lshl_add_u32 v158, v158, 2, v159')
            k('v_bfe_u32 v159, v156, 2, 1')
            k('v_lshl_add_u32 v158, v159, 6, v158')
            k('v_cmp_gt_u32 vcc, 64, v156')
            k('v_and_b32 v159, 15, v156')
            k('v_lshrrev_b32 v156, 5, v156')
            k('v_cndmask_b32 v158, v159, v158, vcc')
            k('v_lshl_add_u32 v158, v156, 7, v158')
            k('v_lshlrev_b32 v158, 4, v158')
            if t == 2:
                k('v_or_b32 v158, s79, v158')
            k(f'v_mad_u32_u24 v{148 + t}, v157, s55, v158')
            k(f'v_mad_u32_u24 v{151 + t}, v157, s57, v158')

    def st_ones(self):
        k = self.k
        k('v_and_b32 v92, 32, v3')
        k('v_add_u32 v92, v92, v21')
        k('v_mov_b32 v94, 0x3f80')
        k('v_mov_b32 v95, 0')
        k(f'ds_write_b64 v92, v[94:95] offset:{L_KVOWN + V_OFF[0] + 40}')

    def st_norm(self):
        k = self.k
        X = list(range(40, 64))
        for i in range(12):
            k(f'v_lshlrev_b32 v{40 + 2 * i}, 16, v{24 + i}')
            k(f'v_and_b32 v{41 + 2 * i}, 0xffff0000, v{24 + i}')
        self.stamp('xin')
        k('v_pk_add_f32 v[76:77], v[40:41], v[42:43]')
        k('v_pk_mul_f32 v[78:79], v[40:41], v[40:41]')
        k('v_pk_fma_f32 v[78:79], v[42:43], v[42:43], v[78:79]')
        for i in range(2, 12):
            k(f'v_pk_add_f32 v[76:77], v[76:77], v[{40 + 2 * i}:{41 + 2 * i}]')
            k(f'v_pk_fma_f32 v[78:79], v[{40 + 2 * i}:{41 + 2 * i}], v[{40 + 2 * i}:{41 + 2 * i}], v[78:79]')
        k('v_add_f32 v76, v76, v77')
        k('v_add_f32 v77, v78, v79')
        k('v_add_f32_dpp v76, v76, v76 row_ror:8 row_mask:0xf bank_mask:0xf')
        k('v_add_f32_dpp v77, v77, v77 row_ror:8 row_mask:0xf bank_mask:0xf')
        self.rowsum(76, 78)
        self.rowsum(77, 79)
        k('v_lshlrev_b32 v78, 1, v7')
        k(f'v_add_u32 v78, {L_STAT}, v78')
        k(f's_lshl_b32 s72, {sW}, 3')
        k('v_add_u32 v79, s72, v78')
        k(f'ds_write_b64 v79, v[76:77]')
        k.barrier()
        k(f'ds_read_b128 v[88:91], v78')
        k(f'ds_read_b128 v[92:95], v78 offset:16')
        k('v_pk_add_f32 v[88:89], v[88:89], v[90:91]')
        k('v_pk_add_f32 v[92:93], v[92:93], v[94:95]')
        k('v_pk_add_f32 v[88:89], v[88:89], v[92:93]')
        k(f'v_mul_f32 v88, {f2u(1 / 640):#x}, v88')
        k(f'v_mul_f32 v89, {f2u(1 / 640):#x}, v89')
        k('v_fma_f32 v89, -v88, v88, v89')
        k('v_max_f32 v89, 0, v89')
        self.bf16_round_keep([88, 89], 90)
        k(f'v_add_f32 v89, {f2u(1e-5):#x}, v89')
        self.bf16_round_keep([88, 89], 90)
        k('v_sqrt_f32 v89, v89')
        self.bf16_round_keep([88, 89], 90)
        k('v_rcp_f32 v89, v89')
        for i in range(12):
            k(f'v_pk_add_f32 v[{40 + 2 * i}:{41 + 2 * i}], v[{40 + 2 * i}:{41 + 2 * i}], v[88:89] op_sel_hi:[1,0] neg_lo:[0,1] neg_hi:[0,1]')
        self.bf16_round_keep(X, 90)
        for i in range(12):
            k(f'v_pk_mul_f32 v[{40 + 2 * i}:{41 + 2 * i}], v[{40 + 2 * i}:{41 + 2 * i}], v[88:89] op_sel:[0,1]')
        self.bf16_round_keep(X, 90)

    def wg_flag(self, tag, base):
        k = self.k
        k.wait_vm(tag)
        k.barrier()
        k('s_lshl_b32 s72, s2, 2')
        k(f's_add_u32 s72, s72, {base}')
        k(f'buffer_store_dword v5, v12, {WS}, s72 offen sc1')

    def late_mod(self, fn):
        k = self.k
        if self.o.late >= 240:
            return
        lab = k.newlabel('ml')
        k(f's_sub_u32 s72, s2, {self.o.late}')
        k(f's_cmp_ge_u32 s72, {240 - self.o.late}')
        k(f's_cbranch_scc1 {lab}')
        k.cond_begin()
        fn('modl')
        k.cond_end()
        k.label(lab)

    def st_rest_prep(self):
        k = self.k
        self.od_prep('s2', 0)
        k('s_add_u32 s48, s2, 16')
        self.od_prep('s48', 1)
        k('s_movk_i32 s72, 3072')
        k('v_mad_u32_u24 v36, v6, s72, v7')
        k('s_mul_i32 s65, s80, 24576')
        k('s_lshl_b32 s72, s81, 10')
        k('s_add_u32 s65, s65, s72')
        k(f's_lshl_b32 s72, {sW}, 7')
        k('s_add_u32 s65, s65, s72')

    def rest_units(self, vg, vo):
        k = self.k

        def od(which):
            so = f's{66 + which}'
            k(f's_sub_u32 s88, 3, {sW}')
            k('s_lshl_b32 s88, s88, 10')
            k(f's_add_u32 m0, s88, {L_ODS[which]}')
            k(f'buffer_load_dwordx4 v{vo + which}, {ODS}, {so} offen{self.nt} lds', 'rest')
            k(f's_add_u32 {so}, {so}, 512')
            k('s_add_u32 m0, m0, 4096')
            k(f'buffer_load_dwordx4 v{vo + which}, {ODS}, {so} offen{self.nt} lds', 'rest')
            lab = k.newlabel('od3')
            k(f's_cmp_lt_u32 {sW}, 2')
            k(f's_cbranch_scc1 {lab}')
            k.cond_begin()
            k(f's_add_u32 {so}, {so}, 512')
            k('s_add_u32 m0, m0, 4096')
            k(f'buffer_load_dwordx4 v{vo + which}, {ODS}, {so} offen{self.nt} lds', 'rest')
            k.cond_end()
            k.label(lab)
        k.begin()
        lab, done = k.newlabel('od2'), k.newlabel('rid')
        k('s_cmp_ge_u32 s2, 240')
        k(f's_cbranch_scc1 {lab}')
        k.cond_begin()
        k(f's_lshl_b32 s88, {sW}, 12')
        k(f's_add_u32 m0, s88, {L_GUS}')
        for t in range(2):
            k(f'buffer_load_dwordx4 v{vg}, {WGS}, s65 offen{self.nt} lds', 'rest')
            k('s_add_u32 m0, m0, 1024')
            k(f'buffer_load_dwordx4 v{vg}, {WUS}, s65 offen{self.nt} lds', 'rest')
            if t == 0:
                k('s_add_u32 m0, m0, 1024')
                k('s_add_u32 s65, s65, 512')
        k(f's_branch {done}')
        k.cond_end()
        k.label(lab)
        k.cond_begin()
        od(1)
        k.cond_end()
        k.label(done)
        u0 = k.end()
        k.begin()
        od(0)
        return [u0, k.end()]

    RA = 144

    def rest_reads(self):
        k = self.k
        k.wait_vm('rest')
        for t in range(2):
            for hf in range(2):
                b = 8 * t + 4 * hf
                k(f'ds_read_b64_tr_b16 a[{b}:{b + 1}], v{self.RA + 10} offset:{2048 * t + 64 * hf}')
                k(f'ds_read_b64_tr_b16 a[{b + 2}:{b + 3}], v{self.RA + 10} offset:{2048 * t + 64 * hf + 512}')
        for which in range(2):
            for t in range(3):
                b = 16 + 12 * which + 4 * t
                off = L_ODS[which] - L_GUS + 4096 * t
                k(f'ds_read_b64_tr_b16 a[{b}:{b + 1}], v{self.RA + 11} offset:{off}')
                k(f'ds_read_b64_tr_b16 a[{b + 2}:{b + 3}], v{self.RA + 11} offset:{off + 512}')

    def rest_stores(self):
        k = self.k
        us = []
        for i in range(4):
            k.begin()
            k(f'buffer_store_dwordx4 a[{4 * i}:{4 * i + 3}], v{self.RA + i}, {WS}, s58 offen sc1', 'pre')
            us.append(k.end())
        for t in range(3):
            k.begin()
            k(f'buffer_store_dwordx4 a[{16 + 4 * t}:{19 + 4 * t}], v{self.RA + 4 + t}, {WS}, s54 offen sc1', 'pre')
            us.append(k.end())
        k.begin()
        lab = k.newlabel('od2p')
        k('s_cmp_lt_u32 s2, 240')
        k(f's_cbranch_scc1 {lab}')
        k.cond_begin()
        for t in range(3):
            k(f'buffer_store_dwordx4 a[{28 + 4 * t}:{31 + 4 * t}], v{self.RA + 7 + t}, {WS}, s56 offen sc1', 'pre')
        k.cond_end()
        k.label(lab)
        us.append(k.end())
        return us

    def od_prep(self, sn, which):
        k = self.k
        sB, sJS = (f's{54 + 2 * which}', f's{55 + 2 * which}')
        if which == 0:
            k('s_mov_b32 s18, 819200')
        k(f's_mov_b32 {sJS}, {WO_J}')
        k('s_movk_i32 s73, 3277')
        k(f's_mov_b32 {sB}, {WS_WO}')
        k(f's_cmp_lt_u32 {sn}, 192')
        if which == 0:
            k('s_cselect_b64 s[16:17], s[60:61], s[52:53]')
            k('s_cmov_b32 s18, 1966080')
        k(f's_cmov_b32 {sJS}, {WD_J}')
        k('s_cmov_b32 s73, 1366')
        k(f's_cmov_b32 {sB}, {WS_WD}')
        k(f's_cselect_b32 s72, 0, 192')
        k(f's_sub_u32 s77, {sn}, s72')
        k('s_mul_i32 s73, s73, s77')
        k('s_lshr_b32 s73, s73, 16')
        k(f's_mul_i32 s73, s73, {OD_W}')
        k(f's_add_u32 {sB}, {sB}, s73')
        k('s_lshr_b32 s72, s77, 2')
        k('s_mul_i32 s72, s72, 5120')
        k(f's_add_u32 {sB}, {sB}, s72')
        k('s_and_b32 s72, s77, 3')
        k('s_lshl_b32 s72, s72, 8')
        k(f's_add_u32 {sB}, {sB}, s72')
        k('s_mul_i32 s72, s77, 205')
        k('s_lshr_b32 s72, s72, 10')
        k('s_mul_i32 s73, s72, 5')
        k('s_sub_u32 s73, s77, s73')
        k('s_mul_i32 s72, s72, 40')
        k('s_lshr_b32 s78, s73, 1')
        k('s_mul_i32 s78, s78, 20')
        k('s_and_b32 s79, s73, 1')
        k('s_lshl2_add_u32 s78, s79, s78')
        k('s_cmp_eq_u32 s73, 4')
        k('s_cselect_b32 s78, 16, s78')
        k('s_cselect_b32 s79, 20, 8')
        k('s_add_u32 s72, s72, s78')
        k('s_lshl_b32 s77, s77, 3')
        k(f's_cmp_lt_u32 {sn}, 192')
        k('s_cselect_b32 s77, s77, s72')
        k('s_cselect_b32 s79, 4, s79')
        k('s_mul_i32 s77, s77, 1280')
        k('v_lshrrev_b32 v76, 5, v3')
        k('v_and_b32 v77, 3, v6')
        k('v_mad_u32_u24 v76, v76, s79, v77')
        k('s_movk_i32 s72, 1280')
        k(f'v_mad_u32_u24 v{38 + which}, v76, s72, v7')
        k(f's_sub_u32 s72, 3, {sW}')
        k('s_lshl_b32 s72, s72, 7')
        k(f's_add_u32 s{66 + which}, s72, s77')

    def mod_pass(self, second, between=None, withpq=False, onmiss=None, split=False):
        k = self.k
        G = 64
        vecA = 3 if second else 0
        n = 6 if second else 5
        k(f's_mul_i32 s74, {sW}, 2560')
        k(f's_add_u32 s74, s74, {WS_MODG + vecA * 10240}')
        k(f's_add_u32 s75, s74, {7680 + 3072}')
        k('v_cmp_gt_u32 vcc, 32, v3')
        k('v_add_u32 v93, 7680, v1')
        k('v_cndmask_b32 v93, v93, v1, vcc')
        k('v_cndmask_b32 v94, 1.0, 0, vcc')
        if second:
            k('v_min_u32 v95, 624, v1')
            k(f's_lshr_b32 s76, {sW}, 1')
            k('s_mul_i32 s76, s76, 30720')
            k(f's_and_b32 s72, {sW}, 1')
            k(f's_lshl1_add_u32 s72, {sJC}, s72')
            k('s_mul_i32 s72, s72, 640')
            k('s_add_u32 s76, s76, s72')
            k(f's_add_u32 s76, s76, {WS_MODG + 2 * 10240}')
        else:
            k(f's_lshl_b32 s76, {sCL}, 7')
            k('v_and_b32 v95, 15, v3')
            k('v_lshlrev_b32 v95, 2, v95')
            k('s_mov_b32 s60, 0xaaaaaaaa')
            k('s_mov_b32 s61, s60')
            k('s_mov_b32 s62, 0xcccccccc')
            k('s_mov_b32 s63, s62')
            k(f's_mul_i32 s72, {sW}, 1280')
            k(f's_add_u32 s72, s72, {L_MV}')
            k('v_lshl_add_u32 v92, v3, 2, s72')
            k('v_lshl_add_u32 v17, v6, 5, s72')
            k('v_lshl_add_u32 v15, v6, 9, v7')
            k('v_cndmask_b32 v10, v2, v15, vcc')
            k('v_mov_b32 v101, 0')
        k(f's_movk_i32 s79, {WS_PQ}')
        k('s_mov_b32 s77, 0x04000c0c')
        k('s_mov_b32 s78, 0x0706000c')

        A, B, C = ('s60', 's61', 's62') if split else ('s74', 's75', 's76')
        if split:
            for d_, s_ in zip((A, B, C), ('s74', 's75', 's76')):
                k(f's_mov_b32 {d_}, {s_}')

        def loads():
            k(f'buffer_load_dwordx4 v[{G}:{G + 3}], v1, {WS}, {A} offen sc1')
            k(f'buffer_load_dwordx4 v[{G + 4}:{G + 7}], v1, {WS}, {A} offen offset:1024 sc1')
            k(f'buffer_load_dwordx4 v[{G + 8}:{G + 11}], v93, {WS}, {A} offen offset:2048 sc1')
            k(f'buffer_load_dwordx4 v[{G + 12}:{G + 15}], v1, {WS}, {B} offen sc1')
            k(f'buffer_load_dwordx4 v[{G + 16}:{G + 19}], v1, {WS}, {B} offen offset:1024 sc1')
            if second:
                k(f'buffer_load_dwordx4 v[{G + 20}:{G + 23}], v95, {WS}, {C} offen sc1')
            else:
                k(f'buffer_load_dword v{G + 22}, v95, {WS}, {C} offen offset:{WS_HELLO} sc1')
            if withpq:
                k(f'buffer_load_dwordx4 v[96:99], v1, {WS}, s79 offen sc1')

        def check():
            if not second:
                k(f'v_and_b32 v{G + 23}, -8, v{G + 22}')
            self.allcheck([G + 4 * i + 3 for i in range(6)] + ([96, 97, 98, 99] if withpq else []), 88)

        def body():
            loads()
            k('s_waitcnt vmcnt(0)')
            check()
            if second or withpq:
                k('s_cbranch_vccz 1')
                k('s_sleep 8')
        if split:
            loads()
            k.begin()
            check()
            self.recheck(body)
        else:
            self.spin(body, onmiss)
        if onmiss is not None:
            k('s_mov_b32 s93, s73')
        if not second:
            self.stamp('modin')
        if between is not None:
            between()
        if not second:
            k.begin()
            k(f'v_cmp_ne_u32 vcc, s51, v{G + 22}')
            k('s_cmp_eq_u64 vcc, 0')
            k(f's_cselect_b32 {sFAST}, {0 if self.o.force_slow else 1}, 0')
            k(f's_cmp_lg_u32 {sFAST}, 0')
            k(f's_cselect_b32 s72, {OOB}, 0')
            k(f'v_or_b32 v{VF_SLOW}, s72, v4')
            k(f's_cselect_b32 s72, 0, {OOB}')
            k(f'v_or_b32 v{VF_FAST}, s72, v4')
            k(f's_lshl_b32 s{SF}, {sCL}, 13')
            k(f's_add_u32 s{SF}, s{SF}, {WS_FLAG}')
            k(f's_add_u32 s{SF + 1}, s{SF}, 4096')
            self.fast_setup = k.end()
        for i in range(n):
            b = G + 4 * i
            k(f'v_perm_b32 v{b + 3}, v{b}, v{b + 1}, s77')
        for i in range(n):
            b = G + 4 * i
            k(f'v_perm_b32 v{b + 3}, v{b + 3}, v{b + 2}, s78')
        if second:
            for qp in ('[1,0,3,2]', '[2,3,0,1]'):
                for r in range(G, G + 4 * n):
                    k(f'v_add_f32_dpp v{r}, v{r}, v{r} quad_perm:{qp} row_mask:0xf bank_mask:0xf')
            k('v_lshrrev_b32 v88, 2, v3')
        if not second:
            D = ' row_mask:0xf bank_mask:0xf'
            for i in range(5):
                b = G + 4 * i
                k(f'v_cndmask_b32 v{96 + 2 * i}, v{b + 1}, v{b}, s[60:61]')
                k(f'v_cndmask_b32 v{97 + 2 * i}, v{b + 3}, v{b + 2}, s[60:61]')
                k(f'v_cndmask_b32 v{b}, v{b}, v{b + 1}, s[60:61]')
                k(f'v_cndmask_b32 v{b + 2}, v{b + 2}, v{b + 3}, s[60:61]')
            for i in range(5):
                b = G + 4 * i
                k(f'v_add_f32_dpp v{b}, v{96 + 2 * i}, v{b} quad_perm:[1,0,3,2]{D}')
                k(f'v_add_f32_dpp v{b + 2}, v{97 + 2 * i}, v{b + 2} quad_perm:[1,0,3,2]{D}')
            for i in range(5):
                b = G + 4 * i
                k(f'v_cndmask_b32 v{b + 1}, v{b + 2}, v{b}, s[62:63]')
                k(f'v_cndmask_b32 v{b}, v{b}, v{b + 2}, s[62:63]')
            for i in range(5):
                b = G + 4 * i
                k(f'v_add_f32_dpp v{96 + i}, v{b + 1}, v{b} quad_perm:[2,3,0,1]{D}')
            self.bf16_round_keep([96, 97, 98, 99, 100, 101], 89)
            k('v_add_f32 v98, v94, v98')
            k('v_add_f32 v99, 1.0, v99')
            k('v_add_f32 v100, 1.0, v100')
            self.bf16_round_keep([98, 99, 100, 101], 89)
            for i in range(5):
                k(f'ds_write_b32 v92, v{96 + i} offset:{256 * i}')
        else:
            k('v_lshlrev_b32 v88, 3, v88')
            k(f's_mul_i32 s72, {sW}, 80')
            k(f's_add_u32 s72, s72, {P_GA}')
            k('v_add_u32 v91, s72, v88')
            k(f'v_mov_b32 v92, {P_DUMMY}')
            k('v_cmp_gt_u32 vcc, 40, v3')
            k('v_cndmask_b32 v91, v92, v91, vcc')
            k(f's_mul_i32 s72, {sW}, 320')
            k(f's_add_u32 s72, s72, {L_P}')
            k('v_add_u32 v88, s72, v88')
            k('v_add_u32 v90, 960, v88')
            k('v_cmp_gt_u32 vcc, 32, v3')
            k('v_cndmask_b32 v90, v90, v88, vcc')
            for i in range(6):
                b = G + 4 * i
                if 2 <= i < 5:
                    self.bf16_round_keep([b, b + 1, b + 2, b + 3], 89)
                    for r in range(b, b + 4):
                        k(f'v_add_f32 v{r}, {"v94" if i == 2 else "1.0"}, v{r}')
                k(f'v_cvt_pk_bf16_f32 v{b}, v{b}, v{b + 1}')
                k(f'v_cvt_pk_bf16_f32 v{b + 1}, v{b + 2}, v{b + 3}')
                if i < 2:
                    k(f'ds_write_b64 v88, v[{b}:{b + 1}] offset:{128 * i}')
                elif i == 2:
                    k(f'ds_write_b64 v90, v[{b}:{b + 1}] offset:256')
                elif i < 5:
                    k(f'ds_write_b64 v88, v[{b}:{b + 1}] offset:{128 * i + 960}')
                else:
                    k(f'ds_write_b64 v91, v[{b}:{b + 1}]')
        if split:
            self.m2_rest = k.end()

    def make_h(self):
        k = self.k
        for i in range(3):
            for h in range(2):
                k(f'ds_read_b128 v[{96 + 16 * i + 4 * h}:{99 + 16 * i + 4 * h}], v17 offset:{256 * i + 16 * h + 640}')
            for h in range(2):
                k(f'ds_read_b128 v[{104 + 16 * i + 4 * h}:{107 + 16 * i + 4 * h}], v17 offset:{256 * i + 16 * h}')
        for i in range(3):
            xs = [40 + 8 * i + e for e in range(8)]
            for e in range(0, 8, 2):
                k(f'v_pk_mul_f32 v[{xs[e]}:{xs[e] + 1}], v[{xs[e]}:{xs[e] + 1}], v[{96 + 16 * i + e}:{97 + 16 * i + e}]')
            self.bf16_round_keep(xs, 89)
            for e in range(0, 8, 2):
                k(f'v_pk_add_f32 v[{xs[e]}:{xs[e] + 1}], v[{xs[e]}:{xs[e] + 1}], v[{104 + 16 * i + e}:{105 + 16 * i + e}]')
            for e in range(0, 8, 2):
                k(f'v_cvt_pk_bf16_f32 v{24 + 4 * i + e // 2}, v{xs[e]}, v{xs[e] + 1}')
            k(f'buffer_store_dwordx4 v[{24 + 4 * i}:{27 + 4 * i}], {"v15" if i < 2 else "v10"}, {WS}, s86 offen', 'h')
            if i < 2:
                k('s_add_u32 s86, s86, 4096')
        self.stamp('hst')
        k.put(self.fast_setup)

    WO_W = [160 + 4 * i for i in range(24)] + [508]
    WGU_W = [256 + 4 * i for i in range(60)]

    def wq_pair(self, src, lds, voff, tag):
        k = self.k
        k.begin()
        k(f's_add_u32 s87, s92, {src}')
        k(f's_add_u32 m0, s91, {lds}')
        k(f'buffer_load_dwordx4 {voff}, {WS}, s87 offen sc1{self.ntw} lds', tag)
        u0 = k.end()
        k.begin()
        k(f'buffer_load_dwordx4 {voff}, {WS}, s87 offen offset:1024 sc1{self.ntw} lds', tag)
        return [u0, k.end()]

    def wq_chunk(self, c):
        slots = [L_A, L_C, L_B]
        return sum((self.wq_pair(WQ_T * t + 8192 * c, slots[t] + 8192 * c, 'v1', f'w{c}') for t in range(3)), [])

    def st_bases(self):
        k = self.k
        k(f's_lshl2_add_u32 s84, {sJ}, {sW}')
        k(f's_mul_i32 s84, s84, {WGU_S}')
        k(f's_add_u32 s84, s84, {WS_WGU}')
        k(f's_mul_i32 s85, {sJC}, {WO_J}')
        k(f's_mul_i32 s72, {sW}, {25 * 1024 + OD_W}')
        k('s_add_u32 s85, s85, s72')
        k(f's_add_u32 s85, s85, {WS_WO}')
        k(f's_lshl2_add_u32 s89, {sCL}, {sW}')
        k(f's_lshl1_add_u32 s90, s89, {sTH}')
        k('s_mul_i32 s90, s90, 20480')
        k(f's_mul_i32 s72, {sJC}, 160')
        k('s_add_u32 s90, s90, s72')
        k('s_mul_i32 s89, s89, 40960')
        k(f's_add_u32 s89, s89, {WS_H}')
        k(f's_mul_i32 s92, {sJ}, {WQ_J}')
        k(f's_lshl_b32 s91, {sW}, 11')
        k('s_add_u32 s92, s92, s91')
        k(f's_add_u32 s92, s92, {WS_WQ}')

    def touch_arena(self):
        k = self.k
        k(f's_lshl4_add_u32 s72, {sCL}, {sJ}')
        k(f's_lshl2_add_u32 s72, s72, {sW}')
        k('s_mul_i32 s73, s72, 6144')
        k(f's_add_u32 s73, s73, {WS_HH}')
        self.touch('s73', 1, 48, 128, 8)
        k('s_lshl_b32 s72, s72, 7')
        k(f's_add_u32 s72, s72, {WS_ST}')
        self.touch('s72', 1, 1, 128, 8)

    def x2_issue(self, t=8):
        k = self.k
        k(f's_mul_i32 s72, {sW}, 2560')
        k(f's_add_u32 m0, s72, {L_X}')
        k('s_movk_i32 s72, 1120')
        for p in range(3):
            k(f'v_add_u32 v{t}, {64 * p}, v3')
            k(f'v_mul_u32_u24 v{t + 1}, 205, v{t}')
            k(f'v_lshrrev_b32 v{t + 1}, 11, v{t + 1}')
            k(f'v_mad_u32_u24 v{t}, v{t + 1}, s72, v1')
            if p == 2:
                k('s_mov_b32 exec_hi, 0')
            k(f'buffer_load_dwordx4 v{t}, {XS}, s90 offen offset:{1024 * p} lds', 'x2')
        k('s_mov_b32 exec_hi, -1')

    def align_page(self):
        k = self.k
        k('s_branch .Lpage0')
        k.raw('.p2align 12')
        k.label('.Lpage0')

    def warm(self):
        k = self.k
        k.fence_hazards()
        k('s_mov_b64 exec, 0')
        for w in range(3):
            k(f's_cmp_eq_u32 {sW}, {w}')
            k(f's_cbranch_scc1 .Lchain{w}')
        k('s_branch .Lchain3')
        k.label('.Lwarm_ret')
        k('s_mov_b64 exec, -1')

    def touch_small(self):
        k = self.k
        k(f's_lshl_b32 s72, {sCL}, 13')
        k(f's_add_u32 s72, s72, {WS_FLAG}')
        self.touch('s72', 2, 8, 2048, 8, dst=95)
        k(f's_lshl4_add_u32 s72, {sCL}, {sJ}')
        k(f's_lshl2_add_u32 s72, s72, {sW}')
        k('s_lshl_b32 s72, s72, 7')
        k(f's_add_u32 s72, s72, {WS_ST}')
        k(f'v_and_b32 v8, {OOB}, v4')
        k(f'buffer_load_dword v95, v8, {WS}, s72 offen sc1')

    def pq_sample(self):
        self.k(f'buffer_load_dwordx4 v[160:163], v1, {WS}, s79 offen sc1')

    def pq_early(self):
        k = self.k
        lab = k.newlabel('pqe')
        self.allcheck([160, 161, 162, 163], 164)
        k('s_cmp_eq_u64 vcc, 0')
        k('s_cselect_b32 s94, 1, 0')
        k(f's_cbranch_scc0 {lab}')
        k.cond_begin()
        for c in range(self.o.nearly):
            self.put_units(self.wq_chunk(c))
        k.cond_end()
        k.label(lab)

    def pq_poll(self):
        k = self.k
        k(f's_movk_i32 s75, {WS_PQ}')

        def body():
            k(f'buffer_load_dwordx4 v[96:99], v1, {WS}, s75 offen sc1')
            k('s_waitcnt vmcnt(0)')
            self.allcheck([96, 97, 98, 99], 100)
            k('s_cbranch_vccz 1')
            k('s_sleep 8')
        self.spin(body)
        self.stamp('pqin')

    def qkv(self):
        k = self.k
        o = self.o
        order = o.order.replace('+', ',').split(',')
        HR = 96
        RING = 256 + 224
        k('v_lshlrev_b32 v10, 2, v3')
        k('v_and_b32 v7, 60, v10')
        k(f'v_add_u32 v8, {L_A}, v1')
        k(f'v_add_u32 v9, {L_B}, v1')
        k('v_and_b32 v40, 31, v3')
        k('v_cmp_gt_u32 vcc, 24, v40')
        k('v_cndmask_b32 v6, v2, v1, vcc')
        self.flag_off('s74', PH_H)
        k(f's_lshl_b32 s72, {sW}, 6')
        k('s_add_u32 s74, s74, s72')
        k(f's_movk_i32 s75, {WS_PQ}')
        k(f's_mul_i32 s80, {sCL}, {O_CL}')
        k(f's_mul_i32 s72, {sW}, 40960')
        k('s_add_u32 s80, s80, s72')
        k(f's_mul_i32 s72, {sJ}, 1280')
        k('s_add_u32 s80, s80, s72')
        k(f's_add_u32 s80, s80, {WS_O}')
        k(f's_lshl4_add_u32 s96, {sCL}, {sJ}')
        k(f's_mul_i32 s97, s96, {4 * KVB}')
        k(f's_add_u32 s97, s97, {WS_KV}')
        k(f's_mul_i32 s81, {sW}, {KVB}')
        k('s_add_u32 s82, s97, s81')
        k('s_add_u32 s83, s82, 2560')
        needpq = not ('pqp' in order or 'm1q' in order)

        def body():
            if needpq:
                k(f'buffer_load_dwordx4 v[40:43], v1, {WS}, s75 offen sc1')
            k(f'buffer_load_dword v44, v7, {WS}, s74 offen sc1')
            k('s_waitcnt vmcnt(0)')
            self.allcheck(([40, 41, 42, 43] if needpq else []) + [44], 45)
        self.spin(body)
        self.acquire('h')
        self.stamp('hflag')
        addr = ['v8', 'v1', 'v9']
        t3 = [(L_A, 'v8', 0), (L_A + 8192, 'v8', 8192), (L_B, 'v9', 0), (L_B + 8192, 'v9', 8192), (L_C, 'v1', 0)]
        pair = self.wq_pair
        hl = self.units_frags([HR + 4 * i for i in range(40)], 's89')
        wgu = self.units_frags(self.WGU_W, 's84', tag='wgu')
        done = [c for c in range(5) if f'c{c}' in order]
        dyn = 'm1d' in order
        if 'pqe' in order:
            lab = k.newlabel('pql')
            k('s_cmp_lg_u32 s94, 0')
            k(f's_cbranch_scc1 {lab}')
            k.cond_begin()
            for c in range(o.nearly):
                self.put_units(self.wq_chunk(c))
            k.cond_end()
            k.label(lab)
            allw = sum((self.wq_chunk(c) for c in range(o.nearly, 5)), [])
            lst = hl[:8]
            nh = 8
        else:
            allw = sum((self.wq_chunk(c) for c in range(5) if c not in done), [])
            nw, nh = o.up
            lst = allw[:6] + hl[:4] + allw[6:nw] + hl[4:nh]
            allw = allw[nw:]
        if 'rs' not in order and not dyn:
            lst = lst[:o.rspos] + self.rest_stores() + lst[o.rspos:]
        if 'm2' in order:
            self.put_units(lst[:o.m2pos])
            k.put(self.m2_rest)
            lst = lst[o.m2pos:]
        self.put_units(lst)
        if dyn:
            lab = k.newlabel('ril')
            k('s_cmp_lg_u32 s93, 1')
            k(f's_cbranch_scc1 {lab}')
            k.cond_begin()
            self.put_units(self.rest_units(36, 38))
            k.cond_end()
            k.label(lab)
            for i in range(12):
                k(f'v_mov_b32 v{80 + i}, v{144 + i}')
        lab = k.newlabel('ep')
        k('s_cmp_lg_u32 s2, 0')
        k(f's_cbranch_scc1 {lab}')
        k.cond_begin()
        k('v_mov_b32 v13, s50')
        k(f'buffer_store_dword v13, v12, {WS}, 0 offen sc1')
        k.cond_end()
        k.label(lab)
        k('v_mov_b32 v23, v12')
        seq = [(t, s, 1024 * s, addr[t]) for s in range(40) for t in range(3)]
        seq += [(3, s, t3[s // 8][2] + 1024 * (s % 8), t3[s // 8][1]) for s in range(40)]
        D = 6
        k.wait_vm('w0')
        k.barrier()
        self.stamp('c0')
        k.begin()

        def rd(i):
            k(f'ds_read_b128 {ur(RING + 4 * (i % 8))}, {seq[i][3]} offset:{seq[i][2]}')
        for i in range(D):
            rd(i)
        for i, (t, s, _, _) in enumerate(seq):
            a = 32 + 16 * t
            k(f'v_mfma_f32_32x32x16_bf16 v[{a}:{a + 15}], {ur(RING + 4 * (i % 8))}, v[{HR + 4 * s}:{HR + 4 * s + 3}], {"0" if s == 0 else f"v[{a}:{a + 15}]"}')
            if i + D < len(seq):
                rd(i + D)
        w = Sched(k.end())
        bars = [(24 * c - D, f'w{c}') for c in range(1, 6) if c not in done or c == 3] + ([] if 'pr' in order else [(o.prflag, 'pre')])
        for gap, tag in sorted(bars):
            k.begin()
            k.wait_vm(tag)
            k('s_barrier')
            if o.fine:
                self.stamp(f'c{gap}')
            if tag == 'pre':
                k('s_lshl_b32 s72, s2, 2')
                k(f's_add_u32 s72, s72, {WS_PR}')
                k(f'buffer_store_dword v5, v23, {WS}, s72 offen sc1')
            w.pre(gap, k.end())
        if allw:
            w.spread(allw, 0, o.wend)
        w.spread(hl[nh:], 1, o.hend)
        if dyn:
            self.RA = 80
            k.begin()
            self.rest_reads()
            rr = k.end()
            w.pre(o.rsgap - 8, rr[:1])
            w.fill(rr[1:], first=o.rsgap - 8, last=o.rsgap - 1)
            w.spread(self.rest_stores(), o.rsgap, o.rsgap + 9)
            k.begin()
            self.x2_issue(92)
            w.post(o.x2gap, k.end())
        w.spread(sum((pair(WQ_T * 3 + 8192 * i, t3[i][0], 'v6', 'w5') for i in range(5)), []), 67, o.t3end)
        k.begin()
        k(f'buffer_load_dwordx4 v[24:27], v1, {WS}, s75 offen offset:{WS_PR - WS_PQ} sc1')
        w.at(max(o.prgap - 19, 0), k.end())
        k.begin()
        if 'to' not in order and 'o' not in k.wt:
            self.touch('s80', 10, 20, 20480, 20)
        k('v_and_b32 v20, 31, v3')
        k('v_lshrrev_b32 v21, 5, v3')
        k('v_mul_u32_u24 v20, 48, v20')
        k('v_add_u32 v20, s81, v20')
        k('v_lshl_add_u32 v22, v21, 3, v20')
        k('v_mul_u32_u24 v21, 1504, v21')
        k('v_add_u32 v21, v20, v21')
        k('v_add_u32 v28, s81, v1')
        k('v_lshlrev_b32 v7, 3, v3')
        k('v_add_u32 v29, s81, v7')
        w.fill(k.end(), first=82, last=112)
        k.begin()
        self.st_ones()
        w.fill(k.end(), first=115, last=119)
        k.begin()
        OWN = L_KVOWN

        def pack(dst, src, n):
            for i in range(n):
                k(f'v_cvt_pk_bf16_f32 v{dst + i}, v{src + 2 * i}, v{src + 2 * i + 1}')
        for h, r in ((0, 32), (1, 44)):
            pack(r, r, 4)
            k(f'buffer_store_dwordx4 v[{r}:{r + 3}], v1, {WS}, s82 offen offset:{KM_OFF[h]} sc1', 'kv')
        for r, ad, off in ((52, 22, V_OFF[0]), (56, 22, V_OFF[0] + 16), (60, 21, V_OFF[0] + 32), (64, 22, V_OFF[1] + 8), (68, 22, V_OFF[1] + 24)):
            pack(r, r, 2)
            k(f'ds_write_b64 v{ad}, v[{r}:{r + 1}] offset:{OWN + off}')
        for t in range(3):
            k(f'ds_read_b128 v[{52 + 4 * t}:{55 + 4 * t}], v28 offset:{OWN + 2560 + 1024 * t}')
        pack(40, 40, 2)
        k(f'buffer_store_dwordx2 v[40:41], v7, {WS}, s82 offen offset:{KT_OFF} sc1', 'kv')
        k(f'ds_write_b64 v29, v[40:41] offset:{OWN + KT_OFF}')
        for t in range(3):
            k(f'buffer_store_dwordx4 v[{52 + 4 * t}:{55 + 4 * t}], v1, {WS}, s83 offen offset:{1024 * t} sc1', 'kv')
        for h, r in ((0, 32), (1, 44)):
            k(f'ds_write_b128 v28, v[{r}:{r + 3}] offset:{OWN + KM_OFF[h]}')
        for i in range(8):
            k(f'v_mul_f32 v{72 + i}, {f2u(QSCALE):#x}, v{72 + i}')
        pack(self.QM[0], 72, 4)
        self.attn_setup()
        epi = k.end()
        k.begin()
        self.allcheck([24, 25, 26, 27], 16)

        def body2():
            k('s_sleep 16')
            k(f'buffer_load_dwordx4 v[24:27], v1, {WS}, s75 offen offset:{WS_PR - WS_PQ} sc1')
            k('s_waitcnt vmcnt(0)')
            self.allcheck([24, 25, 26, 27], 16)
        self.recheck(body2)
        chk = k.end()
        self.nbg = [int(x) for x in o.bg.split(',')]
        w.post(o.prgap, chk)
        self.bg = wgu
        if self.nbg[0]:
            w.spread(self.take(self.nbg[0]), o.prgap + 1, 117)
        if self.nbg[1]:
            w.spread(self.take(self.nbg[1]), 138, 159)
        self.bg = self.units_frags(self.WO_W, 's85', tag='wo') + self.bg
        if o.kvgap:
            k.begin()
            self.kv_flag()
            w.post(o.kvgap, k.end())
        w.fill(epi, first=120, window=12)
        print('qkv pass2 tail', w.ntail, 'last gap', w.lastgap)
        if o.raw == 'qkv':
            self.rawstamps(w, range(0, 154, 6), 'r')
        k.put(w.result())
        self.stamp('qkv')

    def kv_flag(self):
        k = self.k
        k('s_lshl_b32 s72, s96, 7')
        k(f's_lshl_b32 s73, {sJ}, 4')
        k('s_sub_u32 s72, s72, s73')
        k(f's_add_u32 s72, s72, {WS_KVF}')
        k(f'v_and_b32 v6, v{VF_FAST}, v{VF_SLOW}')
        k.wait_vm('kv')
        k(f'buffer_store_dword v5, v6, {WS}, s72 offen sc1')

    def halo(self):
        k = self.k
        k(f's_min_u32 s75, {sCL}, 2')
        k('s_lshl_b32 s75, s75, 4')
        k('s_sub_u32 s75, s96, s75')
        k('s_lshl_b32 s75, s75, 7')
        k(f's_add_u32 s75, s75, {WS_KVF}')
        k(f's_cmp_ge_u32 {sCL}, 2')
        k('s_cselect_b32 s72, 2048, 0')
        k('v_and_b32 v6, 3, v3')
        k('v_lshlrev_b32 v6, 2, v6')
        k('v_bfe_u32 v7, v3, 2, 1')
        k('v_mad_u32_u24 v6, v7, s72, v6')
        self.poll('v6', 's75', 7, False)
        k('s_barrier')
        self.stamp('kvflag')
        for d in (1, 2):
            k(f's_cmp_ge_u32 {sCL}, {d}')
            k(f's_cselect_b32 s72, 0, {OOB}')
            k(f's_cselect_b32 s75, {d * 16 * 4 * KVB}, 0')
            k('v_add_u32 v6, s72, v1')
            k('s_sub_u32 s75, s97, s75')
            self.put_units(self.units_dma('s75', 0, L_C + (2 - d) * 4 * KVB, 22, f'halo{d}', voff='v6'))

    QM = [12, 16]; Q2 = [20, 24]
    CD, CO = 32, 48
    SS = [64, 80]
    OO = [96, 112]
    PP = 128
    KM = [136, 140]; K2 = [144, 148]
    VF = 152

    def attn_setup(self):
        k = self.k
        k('v_and_b32 v64, 31, v3')
        k('v_lshrrev_b32 v65, 5, v3')
        k('v_bfe_u32 v66, v3, 2, 2')
        k('v_lshl_add_u32 v66, v65, 2, v66')
        k('v_mul_u32_u24 v30, 48, v66')
        k('v_and_b32 v66, 3, v3')
        k('v_min_u32 v67, 1, v66')
        k('v_add_u32 v67, 4, v67')
        k('v_and_b32 v68, 16, v3')
        k('v_cmp_eq_u32 vcc, 0, v68')
        k('v_cmp_gt_u32 s[48:49], 32, v3')
        k('v_cndmask_b32 v66, v67, v66, vcc')
        k('v_lshl_add_u32 v30, v66, 3, v30')
        k('v_add_u32 v30, s81, v30')
        k('v_lshlrev_b32 v31, 2, v65')
        k('v_sub_u32 v31, v64, v31')
        k(f'v_mov_b32 v69, {f2u(NEG):#x}')
        self.masks(True, True)

    def masks(self, diag, old):
        k = self.k
        for i0 in range(0, 16, 4):
            for i in range(i0, i0 + 4):
                k(f'v_cmp_le_i32 s[{60 + 2 * (i % 4)}:{61 + 2 * (i % 4)}], {8 * (i >> 2) + (i & 3)}, v31')
            for i in range(i0, i0 + 4):
                m = f's[{60 + 2 * (i % 4)}:{61 + 2 * (i % 4)}]'
                if diag:
                    k(f'v_cndmask_b32 v{self.CD + i}, v69, 0, {m}')
                if old:
                    k(f'v_cndmask_b32 v{self.CO + i}, 0, v69, {m}')

    def ld_k(self, kset, i, head):
        k = self.k
        k(f'ds_read_b128 v[{self.KM[kset]}:{self.KM[kset] + 3}], v28 offset:{i * KVB + KM_OFF[head]}')
        if head == 0:
            r = self.K2[i & 1]
            k(f'ds_read_b64 v[{r}:{r + 1}], v29 offset:{i * KVB + KT_OFF}')

    def ld_v(self, half, i, head):
        k = self.k
        off = i * KVB + V_OFF[head] + 768 * half
        b = self.VF + 4 * half
        k(f'ds_read_b64_tr_b16 v[{b}:{b + 1}], v30 offset:{off}')
        k(f'ds_read_b64_tr_b16 v[{b + 2}:{b + 3}], v30 offset:{off + 384}')

    def m_sa(self, sset, kset, head, C):
        S = self.SS[sset]
        self.k(f'v_mfma_f32_32x32x16_bf16 v[{S}:{S + 15}], v[{self.KM[kset]}:{self.KM[kset] + 3}], v[{self.QM[head]}:{self.QM[head] + 3}], {C}')

    def m_sb(self, sset, i, head):
        S = self.SS[sset]
        r = self.K2[i & 1]
        self.k(f'v_mfma_f32_32x32x16_bf16 v[{S}:{S + 15}], v[{r}:{r + 3}], v[{self.Q2[head]}:{self.Q2[head] + 3}], v[{S}:{S + 15}]')

    def m_pv(self, half, head, first):
        O = self.OO[head]
        b, p = self.VF + 4 * half, self.PP + 4 * half
        self.k(f'v_mfma_f32_32x32x16_bf16 v[{O}:{O + 15}], v[{b}:{b + 3}], v[{p}:{p + 3}], {"0" if first else f"v[{O}:{O + 15}]"}')

    def cmask(self, i):
        return f'v[{self.CD}:{self.CD + 15}]' if i == 8 else (f'v[{self.CO}:{self.CO + 15}]' if i == 0 else '0')

    def attn_steps(self, seq, firsts):
        k = self.k
        n = len(seq)
        self.ld_v(0, *seq[0])
        self.ld_v(1, *seq[0])
        self.m_sa(0, 0, seq[0][1], self.cmask(seq[0][0]))
        self.m_sb(0, *seq[0])
        for t in range(n):
            i, h = seq[t]
            S = self.SS[t & 1]

            def e(*xs):
                for x in xs:
                    k(f'v_exp_f32 v{S + x}, v{S + x}')

            def c(x):
                k(f'v_cvt_pk_bf16_f32 v{self.PP + x}, v{S + 2 * x}, v{S + 2 * x + 1}')
            nx = t + 1 < n
            if nx:
                self.m_sa((t + 1) & 1, (t + 1) & 1, seq[t + 1][1], self.cmask(seq[t + 1][0]))
            if t + 2 < n:
                self.ld_k(t & 1, *seq[t + 2])
            e(0, 1, 2, 3)
            if t:
                self.m_pv(1, seq[t - 1][1], False)
                self.ld_v(1, i, h)
            c(0); e(4, 5); c(1); e(6, 7)
            if nx:
                self.m_sb((t + 1) & 1, *seq[t + 1])
            c(2); c(3); e(8, 9, 10, 11)
            self.m_pv(0, h, firsts and t < 2)
            if nx:
                self.ld_v(0, *seq[t + 1])
            c(4); e(12, 13); c(5); e(14, 15); c(6); c(7)
        self.m_pv(1, seq[n - 1][1], False)

    def attention(self):
        k = self.k
        for h in range(2):
            self.ld_k(h, 8, h)
        for r in self.K2:
            k(f'v_mov_b32 v{r + 2}, 0x3f80')
            k(f'v_mov_b32 v{r + 3}, 0')
        for h in range(2):
            k(f'v_mov_b32 v{self.Q2[h] + 2}, 0')
            k(f'v_mov_b32 v{self.Q2[h] + 3}, 0')
        self.m_sa(0, 0, 0, '0')
        for i in range(12):
            k(f'v_mul_f32 v{80 + i}, {f2u(QSCALE):#x}, v{80 + i}')
        for i in range(4):
            k(f'v_cvt_pk_bf16_f32 v{self.QM[1] + i}, v{84 + 2 * i}, v{85 + 2 * i}')
        for i in range(2):
            k(f'v_cvt_pk_bf16_f32 v{92 + i}, v{80 + 2 * i}, v{81 + 2 * i}')
        for i in range(2):
            k(f'v_cndmask_b32 v{self.Q2[0] + i}, 0, v{92 + i}, s[48:49]')
            k(f'v_cndmask_b32 v{self.Q2[1] + i}, v{92 + i}, 0, s[48:49]')
        self.m_sb(0, 8, 0)
        self.m_sa(1, 1, 1, '0')
        self.m_sb(1, 8, 1)
        k('v_bfe_u32 v6, v3, 4, 1')
        k('v_mul_u32_u24 v6, 20480, v6')
        k('v_and_b32 v7, 15, v3')
        k('v_lshl_add_u32 v6, v7, 4, v6')
        k('v_lshrrev_b32 v7, 5, v3')
        k('v_lshl_add_u32 v8, v7, 8, v6')
        k('v_cndmask_b32 v9, v2, v6, s[48:49]')
        if not self.o.kvgap:
            self.kv_flag()
        self.stamp('kvpub')
        self.put_units(self.take(self.nbg[2]))
        for h in range(2):
            S = self.SS[h]
            k(f'v_max3_f32 v{S}, v{S}, v{S + 1}, v{S + 2}')
            for i in range(3, 15, 2):
                k(f'v_max3_f32 v{S}, v{S}, v{S + i}, v{S + i + 1}')
            k(f'v_max_f32 v{S}, v{S}, v{S + 15}')
            k(f'v_mov_b32 v{S + 1}, v{S}')
        for h in range(2):
            S = self.SS[h]
            k(f'v_permlane32_swap_b32 v{S}, v{S + 1}')
        for h in range(2):
            S = self.SS[h]
            k(f'v_max_f32 v{S}, v{S}, v{S + 1}')
            k(f'v_cvt_pk_bf16_f32 v{S}, -v{S}, 0')
            k(f'v_cndmask_b32 v{self.Q2[h] + 2}, 0, v{S}, s[48:49]')
        k.begin()
        self.attn_steps([(8, 0), (8, 1)], True)
        k.put(Sched(k.end()).result())
        self.stamp('diag')
        if 'm2' in self.o.order.split(','):
            self.halo()
            self.wo_prep()
            self.put_units(self.early_units + self.take(self.nbg[3]))
        else:
            self.wo_prep()
            self.mod_pass(True, between=lambda: (self.halo(), self.put_units(self.early_units + self.take(self.nbg[3]))))
        self.stamp('mod2')
        k.wait_vm('halo1')
        k.barrier()
        self.stamp('halo')
        seq = [(i, h) for i in range(7, -1, -1) for h in range(2)]
        k.begin()
        self.ld_k(0, *seq[0])
        self.ld_k(1, *seq[1])
        self.attn_steps(seq, False)
        w = Sched(k.end())
        k.begin()
        k.wait_vm('halo2')
        k('s_barrier')
        w.pre(2 + 3 + 4 * 5, k.end())
        assert sum(self.nbg[2:5]) >= 25
        w.spread(self.take(self.nbg[4]), self.o.bg_start, w.n - self.o.bg_quiet)
        k.put(w.result())
        self.stamp('steps')
        k(f's_mov_b32 s72, {f2u(2.0 ** -90):#x}')
        k(f's_mov_b32 s73, {f2u(2.0 ** 64):#x}')
        la, lb = self.OO[0] + 12, self.OO[1] + 12
        k(f'v_cmp_nlt_f32 vcc, s72, v{la}')
        k(f'v_cmp_ngt_f32 s[76:77], s73, v{la}')
        k(f'v_cmp_nlt_f32 s[74:75], s72, v{lb}')
        k(f'v_cmp_ngt_f32 s[78:79], s73, v{lb}')
        k('s_or_b64 vcc, vcc, s[74:75]')
        k('s_or_b64 s[76:77], s[76:77], s[78:79]')
        k('s_or_b64 vcc, vcc, s[76:77]')
        k.wait_lgkm_all()
        if self.o.force_fb:
            k('s_branch .Lfallback')
        else:
            k('s_cbranch_scc1 .Lfallback')
        k.label('.Lfb_ret')
        for h in range(2):
            k(f'v_rcp_f32 v{64 + h}, v{self.OO[h] + 12}')
        for h in range(2):
            O = self.OO[h]
            for i in range(0, 12, 2):
                k(f'v_pk_mul_f32 v[{O + i}:{O + i + 1}], v[{O + i}:{O + i + 1}], v[64:65] {"op_sel:[0,1]" if h else "op_sel_hi:[1,0]"}')
            for i in range(4):
                k(f'v_cvt_pk_bf16_f32 v{68 + 4 * h + i}, v{O + 2 * i}, v{O + 2 * i + 1}')
            for i in range(2):
                k(f'v_cvt_pk_bf16_f32 v{76 + 2 * h + i}, v{O + 8 + 2 * i}, v{O + 9 + 2 * i}')
            k(f'buffer_store_dwordx4 v[{68 + 4 * h}:{71 + 4 * h}], v8, {WS}, s80 offen offset:{512 * h}', 'o')
        k(f'buffer_store_dwordx4 v[76:79], v9, {WS}, s80 offen offset:1024', 'o')
        if self.o.fine:
            self.stamp('ost')
        self.put_units(self.take(self.nbg[7]))

    def fallback(self):
        k = self.k
        k.label('.Lfallback')
        k.fence_hazards()
        k('s_nop 15')
        k('s_waitcnt vmcnt(0)')
        k(f's_lshl2_add_u32 s74, {sCL}, {sW}')
        k('s_min_u32 s75, s74, 7')
        k(f'v_mov_b32 v69, {f2u(NEG):#x}')
        self.masks(True, False)
        S = self.SS[0]

        def run(body):
            k(f'v_add_u32 v80, {8 * KVB}, v28')
            k(f'v_add_u32 v81, {8 * KVB}, v29')
            k(f'v_add_u32 v82, {8 * KVB}, v30')

            def step():
                for r in (80, 81, 82):
                    k(f'v_add_u32 v{r}, {-KVB & 0xffffffff:#x}, v{r}')
            body(self.cmask(8))
            step()
            lab, out, done = k.newlabel('al'), k.newlabel('alx'), k.newlabel('ald')
            k('s_mov_b32 s77, s75')
            k('s_cmp_eq_u32 s77, 0')
            k.wait_lgkm_all()
            k.fence_hazards()
            k(f's_cbranch_scc1 {out}')
            k.label(lab)
            body('0')
            step()
            k('s_sub_u32 s77, s77, 1')
            k('s_cmp_lg_u32 s77, 0')
            k.wait_lgkm_all()
            k.fence_hazards()
            k(f's_cbranch_scc1 {lab}')
            k.label(out)
            k('s_cmp_lt_u32 s74, 8')
            k(f's_cbranch_scc1 {done}')
            body(self.cmask(0))
            k.wait_lgkm_all()
            k.fence_hazards()
            k.label(done)
        for h in range(2):
            k(f'v_mov_b32 v{self.Q2[h] + 2}, 0')
            k(f'v_mov_b32 v83, {f2u(-3.0e38):#x}')

            def score(C):
                k(f'ds_read_b128 v[{self.KM[0]}:{self.KM[0] + 3}], v80 offset:{KM_OFF[h]}')
                k(f'ds_read_b64 v[{self.K2[0]}:{self.K2[0] + 1}], v81 offset:{KT_OFF}')
                self.m_sa(0, 0, h, C)
                self.m_sb(0, 0, h)

            def p1(C):
                score(C)
                for i in range(0, 16, 2):
                    k(f'v_max3_f32 v83, v83, v{S + i}, v{S + i + 1}')
            run(p1)
            k('v_mov_b32 v84, v83')
            k('v_permlane32_swap_b32 v83, v84')
            k('v_max_f32 v83, v83, v84')
            k('v_cvt_pk_bf16_f32 v84, -v83, 0')
            k(f'v_cndmask_b32 v{self.Q2[h] + 2}, 0, v84, s[48:49]')
            for i in range(16):
                k(f'v_mov_b32 v{self.OO[h] + i}, 0')

            def p2(C):
                score(C)
                for t in range(4):
                    k(f'ds_read_b64_tr_b16 v[{self.VF + 2 * t}:{self.VF + 2 * t + 1}], v82 offset:{V_OFF[h] + 384 * t}')
                for i in range(16):
                    k(f'v_exp_f32 v{S + i}, v{S + i}')
                for i in range(8):
                    k(f'v_cvt_pk_bf16_f32 v{self.PP + i}, v{S + 2 * i}, v{S + 2 * i + 1}')
                self.m_pv(0, h, False)
                self.m_pv(1, h, False)
            run(p2)
        k.fence_hazards()
        k('s_branch .Lfb_ret')

    def unpack10(self, src, dst):
        k = self.k
        for i in range(10):
            k(f'v_lshlrev_b32 v{dst + 2 * i}, 16, v{src + i}')
            k(f'v_and_b32 v{dst + 2 * i + 1}, 0xffff0000, v{src + i}')

    def lds_cols(self, base, dst, vA, vB):
        k = self.k
        k(f'ds_read_b128 v[{dst}:{dst + 3}], {vA} offset:{base}')
        k(f'ds_read_b128 v[{dst + 4}:{dst + 7}], {vA} offset:{base + 64}')
        k(f'ds_read_b64 v[{dst + 8}:{dst + 9}], {vB} offset:{base + 128}')

    X1 = 22

    def rowmajor(self, a, b):
        k = self.k
        k(f'v_and_b32 v{a}, 15, v3')
        k(f'v_mul_u32_u24 v{a}, 1280, v{a}')
        k(f'v_lshrrev_b32 v{b}, 4, v3')
        k(f'v_lshl_add_u32 v{a}, v{b}, 4, v{a}')
        k(f'v_lshlrev_b32 v{b}, 3, v{b}')
        k(f'v_sub_u32 v{b}, v{a}, v{b}')

    def vec_addr(self):
        k = self.k
        k('v_lshrrev_b32 v19, 4, v3')
        k('v_lshlrev_b32 v18, 4, v19')
        k('v_lshlrev_b32 v19, 3, v19')
        k(f'v_add_u32 v18, {L_P}, v18')
        k(f'v_add_u32 v19, {L_P}, v19')

    def wo_prep(self):
        k = self.k
        o = self.o
        k(f's_lshl2_add_u32 s91, {sCL}, {sW}')
        k(f's_lshl1_add_u32 s91, s91, {sTH}')
        k('s_mul_i32 s92, s91, 20480')
        k(f's_mul_i32 s72, {sJC}, 2560')
        k('s_add_u32 s92, s92, s72')
        k(f's_add_u32 s92, s92, {WS_Z}')
        k('s_lshl_b32 s93, s91, 10')
        k(f's_lshr_b32 s72, {sJC}, 1')
        k('s_lshl_b32 s72, s72, 8')
        k('s_add_u32 s93, s93, s72')
        k(f's_and_b32 s72, {sJC}, 1')
        k('s_lshl3_add_u32 s93, s72, s93')
        k(f's_add_u32 s93, s93, {WS_ST}')
        k(f's_mul_i32 s82, {sCL}, 393216')
        k(f's_lshl2_add_u32 s72, {sJ}, {sW}')
        k('s_mul_i32 s72, s72, 768')
        k('s_add_u32 s82, s82, s72')
        k(f's_add_u32 s82, s82, {WS_HH}')
        k(f's_mul_i32 s94, {sCL}, {O_CL}')
        k(f's_mul_i32 s72, {sTH}, 20480')
        k('s_add_u32 s94, s94, s72')
        k(f's_mul_i32 s72, {sW}, 5120')
        k('s_add_u32 s94, s94, s72')
        k(f's_add_u32 s94, s94, {WS_O}')
        us = []
        tl = [('s92', 1, 20, 128, 42)] if o.touchz and 'z' not in k.wt else []
        if 'to' not in o.order.replace('+', ',').split(','):
            if 'z' not in k.wt and 'ts' not in o.order.split(','):
                tl += [('s93', 1, 2, 128, 44)]
            if 'hh' not in k.wt:
                tl += [('s82', 6, 48, 49152, 46)]
        for so, per, n, stride, t in tl:
            k.begin()
            self.touch(so, per, n, stride, t)
            it = k.end()
            k.put(it[:-1])
            us.append(it[-1:])
        self.early_units = us
        self.wd_setup()
        self.nwd = 0

    def mm5(self, a, wregs, B, NS, chain):
        k = self.k
        order = [(s, ft) for ft in range(5) for s in range(NS)] if chain else [(s, ft) for s in range(NS) for ft in range(5)]
        for s, ft in order:
            d = a + 4 * ft
            k(f'v_mfma_f32_16x16x32_bf16 v[{d}:{d + 3}], {ur(wregs[s * 5 + ft])}, {ur(B[s])}, {"0" if s == 0 else f"v[{d}:{d + 3}]"}')

    def wo(self):
        k = self.k
        X1 = self.X1
        self.vec_addr()
        k(f's_mul_i32 s72, {sJC}, 160')
        k('v_add_u32 v20, s72, v18')
        k('v_add_u32 v21, s72, v19')
        self.lds_cols(P_GA - L_P, 84, 'v18', 'v19')
        self.lds_cols(P_G2 - L_P, X1, 'v20', 'v21')
        k('v_and_b32 v20, 15, v3')
        k('v_mul_u32_u24 v20, 160, v20')
        k(f's_mul_i32 s72, {sW}, 2560')
        k(f's_sub_u32 s72, s72, {L_P - L_X}')
        k('v_add3_u32 v21, v20, s72, v19')
        k('v_add3_u32 v20, v20, s72, v18')
        self.lds_cols(0, 32, 'v20', 'v21')
        self.unpack10(32, 120)
        self.publish(PH_O, 'o')
        self.stamp('attn')
        self.unpack10(84, 140)
        for i in range(10):
            r = [72, 76, 112, 116, 12][i // 2] + 2 * (i % 2)
            k(f'v_lshlrev_b32 v{r}, 16, v{X1 + i}')
            k(f'v_and_b32 v{r + 1}, 0xffff0000, v{X1 + i}')
        k('v_and_b32 v20, 15, v3')
        k('v_lshlrev_b32 v20, 4, v20')
        k('v_bfe_u32 v21, v3, 4, 1')
        k('v_lshl_add_u32 v21, v21, 3, v20')
        k('v_lshrrev_b32 v64, 5, v3')
        k('v_lshl_add_u32 v21, v64, 8, v21')
        k('v_bfe_u32 v64, v3, 4, 1')
        k('v_lshl_add_u32 v20, v64, 2, v20')
        k('v_cndmask_b32 v20, v2, v20, s[48:49]')
        k(f's_mul_i32 s76, {sW}, 15360')
        k('v_add_u32 v9, s76, v1')
        for t in range(4):
            k(f's_add_u32 s72, {sW}, {t + 1}')
            k('s_and_b32 s72, s72, 3')
            k(f's_mul_i32 s{60 + t}, s72, 40960')
            k(f's_add_u32 s{60 + t}, s{60 + t}, s94')
            if t < 3:
                k('s_mul_i32 s72, s72, 15360')
                k(f'v_add_u32 v{16 + t}, s72, v1')
        self.flag_off('s74', PH_O)
        self.poll('v10', 's74', 64, 'o')
        self.stamp('oflag')
        AG = [480 + 4 * i for i in range(7)]
        B = [AG[:5], [80, 84, 88, 92, 96], AG[5:] + [100, 104, 108], AG[:5]]
        ol = sum((self.units_frags(B[t], f's{60 + t}') for t in range(4)), [])
        self.put_units(ol[:self.o.oup])
        acc = [32, 52]
        k.begin()
        for t in range(4):
            self.mm5(acc[t & 1], self.WO_W, B[t], 5, t > 0)
        w = Sched(k.end())
        wg = [[27, 30, 33, 36, 39], [42, 46, 50, 54, 58], [62, 66, 71, 76, 81]]
        for t in range(3):
            for ft in range(5):
                k.begin()
                a = acc[t & 1] + 4 * ft
                k(f'ds_write_b128 v{16 + t}, v[{a}:{a + 3}] offset:{L_RED + t * 5120 + ft * 1024}', f'red{t}')
                w.at(wg[t][ft], k.end())
        for gap, t in ((63, 1), (86, 2)):
            k.begin()
            k.wait_lgkm(f'red{t}')
            k('s_barrier')
            w.pre(gap, k.end())

        def rdp(t, dst):
            k.begin()
            for ft in range(5):
                k(f'ds_read_b128 v[{dst + 4 * ft}:{dst + 4 * ft + 3}], v9 offset:{L_RED + t * 5120 + ft * 1024}')
            return k.end()
        w.spread(ol[self.o.oup:15], 0, 14)
        w.spread(ol[15:], 25, 44, (3, 1))
        if self.o.raw == 'wo':
            self.rawstamps(w, range(0, 88, 12), 'r')
        assert len(self.bg) - self.nbg[5] >= 4
        self.nwd = self.nbg[6]
        if self.nbg[5] + self.nwd:
            w.spread(self.take(self.nbg[5]) + self.wd[:self.nwd], self.o.wo_start, self.o.wo_quiet)
        w.fill(rdp(0, 80), first=63, last=69)
        k.begin()
        for i in range(20):
            k(f'v_fmac_f32 v{120 + i}, v{140 + i}, v{80 + i}')
        w.fill(k.end() + rdp(1, 80), first=72, last=92)
        w.fill(rdp(2, 32), first=87, last=94)
        k.put(w.result())
        self.stamp('ks3')
        a = 52
        G2 = [72, 76, 112, 116, 12]
        for i in range(0, 20, 2):
            k(f'v_pk_add_f32 v[{80 + i}:{81 + i}], v[{80 + i}:{81 + i}], v[{32 + i}:{33 + i}]')
        for i in range(0, 20, 2):
            r = G2[i // 4] + i % 4
            k(f'v_pk_add_f32 v[{a + i}:{a + i + 1}], v[{a + i}:{a + i + 1}], v[{80 + i}:{81 + i}]')
            k(f'v_pk_fma_f32 v[{a + i}:{a + i + 1}], v[{a + i}:{a + i + 1}], v[{140 + i}:{141 + i}], v[{120 + i}:{121 + i}]')
            k(f'v_pk_mul_f32 v[{r}:{r + 1}], v[{r}:{r + 1}], v[{a + i}:{a + i + 1}]')
            k(f'v_cvt_pk_bf16_f32 v{100 + i // 2}, v{r}, v{r + 1}')
            if i == 6:
                k(f'buffer_store_dwordx4 v[100:103], v1, {WS}, s92 offen', 'z')
            if i == 14:
                k(f'buffer_store_dwordx4 v[104:107], v1, {WS}, s92 offen offset:1024', 'z')
        k(f'buffer_store_dwordx2 v[108:109], v21, {WS}, s92 offen offset:2048', 'z')
        k(f'v_pk_add_f32 v[84:85], v[{a}:{a + 1}], v[{a + 2}:{a + 3}]')
        k(f'v_pk_mul_f32 v[86:87], v[{a}:{a + 1}], v[{a}:{a + 1}]')
        k(f'v_pk_fma_f32 v[86:87], v[{a + 2}:{a + 3}], v[{a + 2}:{a + 3}], v[86:87]')
        for i in range(4, 20, 2):
            k(f'v_pk_add_f32 v[84:85], v[84:85], v[{a + i}:{a + i + 1}]')
            k(f'v_pk_fma_f32 v[86:87], v[{a + i}:{a + i + 1}], v[{a + i}:{a + i + 1}], v[86:87]')
        k('v_add_f32 v84, v84, v85')
        k('v_add_f32 v85, v86, v87')
        k('v_permlane16_swap_b32 v84, v85')
        k('v_add_f32 v84, v84, v85')
        k('v_mov_b32 v85, v84')
        k('v_permlane32_swap_b32 v84, v85')
        k('v_add_f32 v84, v84, v85')
        k(f'buffer_store_dword v84, v20, {WS}, s93 offen', 'z')
        if self.o.fine:
            self.stamp('wst')
        nz = self.nbg[8]
        us = self.take(nz)
        more = self.wd[self.nwd:self.nwd + nz - len(us)]
        assert self.nwd + len(more) <= 10
        self.nwd += len(more)
        self.put_units(us + more)
        for i in range(10):
            k(f'v_cvt_pk_bf16_f32 v{X1 + i}, v{a + 2 * i}, v{a + 2 * i + 1}')

    def csbias(self):
        k = self.k
        k.begin()
        k('v_and_b32 v32, 1, v3')
        k('v_mul_u32_u24 v32, 1280, v32')
        k('v_lshrrev_b32 v33, 4, v3')
        k('v_lshlrev_b32 v33, 4, v33')
        k(f'v_add_u32 v33, {P_G2}, v33')
        k('v_sub_u32 v32, v33, v32')
        for s in range(20):
            k(f'ds_read_b128 v[{160 + 4 * s}:{163 + 4 * s}], v32 offset:{64 * s}')
        return k.end()

    CSA = 140
    EXA = 128
    EXB = 96
    L_TS = 73728

    def cs_mm(self, s):
        for ft in range(3):
            d = self.CSA + 4 * ft
            self.k(f'v_mfma_f32_16x16x32_bf16 v[{d}:{d + 3}], v[{160 + 4 * s}:{163 + 4 * s}], {ur(256 + 12 * s + 4 * ft)}, {"0" if s == 0 else f"v[{d}:{d + 3}]"}')

    def cs_fin(self):
        k = self.k
        k.begin()
        for ft in range(3):
            c, e = self.CSA + 4 * ft, self.EXA + 4 * ft
            k(f'v_cvt_pk_bf16_f32 v{e + 3}, v{c}, v{c + 1}')
            k(f'v_lshlrev_b32 v{c + 2}, 16, v{e + 3}')
            k(f'v_and_b32 v{c + 3}, 0xffff0000, v{e + 3}')
            k(f'v_sub_f32 v{c}, v{c}, v{c + 2}')
            k(f'v_sub_f32 v{c + 1}, v{c + 1}, v{c + 3}')
            k(f'v_cvt_pk_bf16_f32 v{e}, v{c + 2}, v{c + 2}')
            k(f'v_cvt_pk_bf16_f32 v{e + 1}, v{c}, v{c + 3}')
            k(f'v_cvt_pk_bf16_f32 v{e + 2}, v{c + 3}, v{c + 1}')
            for i in range(3):
                k(f'v_cndmask_b32 v{e + i}, 0, v{e + i}, s[50:51]')
            k(f'v_mov_b32 v{e + 3}, 0')
        return k.end()

    WD_REG = ([256 + 32 + 4 * i for i in range(10)] + [152 + 4 * i for i in range(26)] + [496, 500, 504, 508] +
              [124, 140, 144, 148] + [256 + 72 + 4 * i for i in range(8)] + [256 + 4 * i for i in range(8)])
    HH_B = [[256 + 104 + 4 * i for i in range(12)], [256 + 152 + 4 * i for i in range(12)],
            [256 + 200 + 4 * i for i in range(10)] + [112, 116]]

    def wd_setup(self):
        k = self.k
        k(f's_mul_i32 s86, {sJC}, {WD_J}')
        k(f's_mul_i32 s72, {sW}, {61440 + OD_W}')
        k('s_add_u32 s86, s86, s72')
        k(f's_add_u32 s86, s86, {WS_WD}')
        k(f's_lshl_b32 s95, {sW}, 13')
        k(f's_mul_i32 s81, {sW}, 10240')
        us = self.units_frags(self.WD_REG, 's86', tag='wd')
        for i in list(range(10)) + list(range(44, 52)):
            k.begin()
            if i and i % 4 == 0:
                k('s_add_u32 s86, s86, 4096')
            base = L_B + 1024 * i if i < 10 else 40960 + 1024 * (i - 44)
            k(f's_add_u32 m0, {"s81" if i < 10 else "s95"}, {base - 1024 * (i % 4)}')
            if 'nobg' not in self.o.x:
                k(f'buffer_load_dwordx4 v1, {WS}, s86 offen offset:{1024 * (i % 4)} sc1{self.ntw} lds', 'wdl')
            us[i] = k.end()
        self.wd = us

    def hh_publish(self, q):
        k = self.k
        k.begin()
        k('v_add_u32 v5, 1, v5')
        self.publish(PH_HH, f'hh{q}')
        return k.end()

    def hh_flagload(self):
        k = self.k
        k.begin()
        k(f'buffer_load_dword v12, v13, {WS}, s74 offen sc1')
        return k.end()

    def hh_check(self, need):
        k = self.k
        k.begin()
        k(f's_add_u32 s75, {sTAG}, {need}')

        def test():
            k('v_subrev_u32 v12, s75, v12')
            k(f'v_cmp_lt_u32 vcc, {7 - need}, v12')
        test()

        def body():
            k(f'buffer_load_dword v12, v13, {WS}, s74 offen sc1')
            k('s_waitcnt vmcnt(0)')
            test()
        self.recheck(body)
        self.acquire('hh')
        return k.end()

    def gu_epilogue(self, q, a, packed):
        k = self.k
        epi = []
        for tt in range(2):
            k.begin()
            c = self.EXB + 8 * tt + 4
            t0, t1 = 112 + 2 * tt, 113 + 2 * tt
            for ft in range(3):
                d = a + 12 * tt + 4 * ft
                if packed:
                    k(f'v_pk_mul_f32 v[{t0}:{t1}], v[{d}:{d + 1}], v[{d}:{d + 1}]')
                    k(f'v_pk_fma_f32 v[{t0}:{t1}], v[{t0}:{t1}], v[{c}:{c + 1}], v[{c}:{c + 1}] op_sel:[0,1,0] op_sel_hi:[1,1,0]')
                    k(f'v_pk_mul_f32 v[{t0}:{t1}], v[{t0}:{t1}], v[{d}:{d + 1}]')
                    k(f'v_exp_f32 v{t0}, v{t0}')
                    k(f'v_exp_f32 v{t1}, v{t1}')
                    k(f'v_pk_mul_f32 v[{d}:{d + 1}], v[{d}:{d + 1}], v[{d + 2}:{d + 3}]')
                    k(f'v_pk_fma_f32 v[{t0}:{t1}], v[{t0}:{t1}], v[{c + 2}:{c + 3}], v[{c + 2}:{c + 3}] op_sel_hi:[1,0,0]')
                    k(f'v_rcp_f32 v{t0}, v{t0}')
                    k(f'v_rcp_f32 v{t1}, v{t1}')
                    k(f'v_pk_mul_f32 v[{d}:{d + 1}], v[{d}:{d + 1}], v[{t0}:{t1}]')
                else:
                    k(f'v_mul_f32 v{t0}, v{d}, v{d}')
                    k(f'v_mul_f32 v{t1}, v{d + 1}, v{d + 1}')
                    k(f'v_fma_f32 v{t0}, v{t0}, v{c + 1}, v{c}')
                    k(f'v_fma_f32 v{t1}, v{t1}, v{c + 1}, v{c}')
                    k(f'v_mul_f32 v{t0}, v{t0}, v{d}')
                    k(f'v_mul_f32 v{t1}, v{t1}, v{d + 1}')
                    k(f'v_exp_f32 v{t0}, v{t0}')
                    k(f'v_exp_f32 v{t1}, v{t1}')
                    k(f'v_mul_f32 v{d}, v{d}, v{d + 2}')
                    k(f'v_fma_f32 v{t0}, v{t0}, v{c + 2}, v{c + 2}')
                    k(f'v_fma_f32 v{t1}, v{t1}, v{c + 2}, v{c + 2}')
                    k(f'v_rcp_f32 v{t0}, v{t0}')
                    k(f'v_rcp_f32 v{t1}, v{t1}')
                    k(f'v_mul_f32 v{d + 1}, v{d + 1}, v{d + 3}')
                    k(f'v_mul_f32 v{d}, v{d}, v{t0}')
                    k(f'v_mul_f32 v{d + 1}, v{d + 1}, v{t1}')
                dst = (16 + 2 * tt + ft) if ft < 2 else (6 + tt)
                k(f'v_cvt_pk_bf16_f32 v{dst}, v{d}, v{d + 1}')
            epi.append(k.end())
        k.begin()
        k('v_permlane32_swap_b32 v16, v18')
        k('v_permlane32_swap_b32 v17, v19')
        k('v_permlane16_swap_b32 v6, v7')
        k('v_permlane16_swap_b32 v16, v17')
        k('v_permlane16_swap_b32 v18, v19')
        k(f'buffer_store_dwordx2 v[6:7], v21, {WS}, s82 offen offset:512', f'hh{q}')
        k(f'buffer_store_dwordx4 v[16:19], v20, {WS}, s82 offen', f'hh{q}')
        if q < 3:
            k('s_add_u32 s82, s82, 98304')
        fin = k.end()
        return zipper(epi[0], epi[1], 0 if packed else 8), fin

    def gu(self):
        k = self.k
        o = self.o
        slots = [L_A, 0, L_A, 0]
        addr = ['v8', 'v1', 'v8', 'v1']
        K1 = (60 - len(self.bg)) // 3
        C1 = -2.0 * 0.7978845608028654 * 1.4426950408889634
        k.begin()
        k(f'v_add_u32 v8, {L_A}, v1')
        k('v_and_b32 v20, 15, v3')
        k('v_lshlrev_b32 v14, 5, v20')
        k(f'v_add_u32 v14, {self.L_TS}, v14')
        k(f's_lshl_b32 s72, {sW}, 10')
        k('v_add_u32 v15, s72, v14')
        k('v_lshlrev_b32 v20, 4, v20')
        k('v_lshrrev_b32 v12, 5, v3')
        k('v_bfe_u32 v13, v3, 4, 1')
        k('s_mov_b32 s72, 49152')
        k('v_mad_u32_u24 v21, v13, s72, v20')
        k('v_lshl_add_u32 v21, v12, 3, v21')
        k('v_mad_u32_u24 v20, v12, s72, v20')
        k('v_lshl_add_u32 v20, v13, 8, v20')
        k('v_and_b32 v13, 60, v10')
        k('s_mov_b64 s[50:51], 0xffff')
        k(f's_mul_i32 s94, {sCL}, 163840')
        k(f's_add_u32 s94, s94, {WS_Z}')
        k(f's_lshl2_add_u32 s76, {sCL}, {sW}')
        k('s_lshl_b32 s76, s76, 11')
        k(f's_add_u32 s76, s76, {WS_ST}')
        k(f's_mul_i32 s60, {sCL}, 393216')
        k(f's_mul_i32 s72, {sTH}, 49152')
        k('s_add_u32 s60, s60, s72')
        k(f's_mul_i32 s72, {sW}, 12288')
        k('s_add_u32 s60, s60, s72')
        k(f's_add_u32 s60, s60, {WS_HH}')
        for t in range(1, 4):
            k(f's_add_u32 s{60 + t}, s60, {98304 * t}')
        self.flag_off('s74', PH_Z)
        setup = k.end()
        csr = self.csbias()
        c1 = min(o.cs1, K1)
        k.put(csr[:6 + c1])
        k.put(setup[:o.zpub])
        if o.fine:
            self.stamp('wset')
        self.publish(PH_Z, 'z')
        self.stamp('wo')
        k.begin()
        for s in range(c1):
            self.cs_mm(s)
        w = Sched(k.end())
        w.fill(csr[6 + c1:], first=0)
        for i, it in enumerate(setup[o.zpub:]):
            w.post(min(8 + i // 2, w.n - 1), [it])
        k.put(w.result())
        self.poll('v10', 's74', 64, 'z')
        self.stamp('zflag')
        zd = [self.units_dma('s94', 40960 * q, slots[q], 40, f'z{q}') for q in range(4)]
        self.put_units(zd[0][:6])
        k.begin()
        for s in range(c1, K1):
            self.cs_mm(s)
        w = Sched(k.end())
        w.spread(zd[0][6:] + self.units_frags([96, 104], 's76'), 0, min(18, w.n - 1))
        k.put(w.result())
        self.flag_off('s74', PH_HH)
        k(f's_lshl_b32 s72, {sW}, 6')
        k('s_add_u32 s74, s74, s72')
        k('v_add_u32 v10, s95, v1')
        k(f's_add_u32 s72, s81, {L_B}')
        k('v_add_u32 v9, s72, v1')
        self.hl = [self.units_frags(self.HH_B[t % 3], f's{60 + t}') for t in range(4)]
        sts = []
        for T in range(2):
            k.begin()
            b = 96 + 8 * T
            k(f'v_add_f32 v{b}, v{b}, v{b + 2}')
            k(f'v_add_f32 v{b + 1}, v{b + 1}, v{b + 3}')
            k(f'v_permlane16_swap_b32 v{b}, v{b + 1}')
            k(f'v_add_f32 v{b}, v{b}, v{b + 1}')
            k(f'v_mov_b32 v{b + 1}, v{b}')
            k(f'v_permlane32_swap_b32 v{b}, v{b + 1}')
            k(f'v_add_f32 v{b}, v{b}, v{b + 1}')
            k(f'v_mul_f32 v{b + 2}, {f2u(-1 / 640):#x}, v{b}')
            k(f'v_mul_f32 v{b + 6}, {f2u(-1 / 640):#x}, v{b}')
            k(f'v_permlane16_swap_b32 v{b + 2}, v{b + 6}')
            k(f'v_fma_f32 v{b + 6}, -v{b + 2}, v{b + 2}, -v{b + 6}')
            k(f'v_max_f32 v{b + 6}, 0, v{b + 6}')
            k(f'v_add_f32 v{b + 6}, {f2u(1e-5):#x}, v{b + 6}')
            k(f'v_rsq_f32 v{b + 4}, v{b + 6}')
            k(f'v_mul_f32 v{b + 3}, v{b + 6}, v{b + 4}')
            k(f'v_mul_f32 v{b + 5}, v{b + 4}, v{b + 4}')
            k(f'v_mul_f32 v{b + 4}, {f2u(C1):#x}, v{b + 4}')
            k(f'v_mul_f32 v{b + 5}, v{b + 5}, v{b + 4}')
            k(f'v_mul_f32 v{b + 5}, {f2u(0.044715):#x}, v{b + 5}')
            k(f'v_cvt_pk_bf16_f32 v{b + 1}, v{b + 2}, v{b + 3}')
            k(f'v_lshlrev_b32 v{b}, 16, v{b + 1}')
            k(f'v_and_b32 v{b + 7}, 0xffff0000, v{b + 1}')
            k(f'v_sub_f32 v{b + 2}, v{b + 2}, v{b}')
            k(f'v_sub_f32 v{b + 3}, v{b + 3}, v{b + 7}')
            k(f'v_cvt_pk_bf16_f32 v{b}, v{b}, v{b + 2}')
            k(f'v_cvt_pk_bf16_f32 v{b + 2}, v{b + 3}, v{b + 7}')
            k(f'v_mov_b32 v{b + 3}, 0')
            sts.append(k.end())
        tsw = []
        for i in range(4):
            k.begin()
            k('s_mov_b64 exec, s[50:51]')
            k(f'ds_write_b128 v15, v[{96 + 4 * i}:{99 + 4 * i}] offset:{512 * (i >> 1) + 16 * (i & 1)}', 'ts')
            k('s_mov_b64 exec, -1')
            tsw.append(k.end())
        acc = [32, 56]
        FRL = [80, 84, 88, 92, 116, 120]
        LA = o.gula
        k.wait_vm('z0')
        k.barrier()
        self.stamp('g0')
        seq = [(q, s, tt) for q in range(4) for s in range(20) for tt in range(2)]
        k.begin()

        def rd(i):
            q, s, tt = seq[i]
            k(f'ds_read_b128 {ur(FRL[i % 6])}, {addr[q]} offset:{20480 * tt + 1024 * s}')

        def extra(q):
            for tt in range(2):
                for ft in range(3):
                    d = acc[q & 1] + 12 * tt + 4 * ft
                    e, x = self.EXA + 4 * ft, self.EXB + 8 * tt
                    k(f'v_mfma_f32_16x16x32_bf16 v[{d}:{d + 3}], v[{e}:{e + 3}], v[{x}:{x + 3}], v[{d}:{d + 3}]')
        for i in range(LA):
            rd(i)
        gap_of, n, X = [], 0, {}
        for i, (q, s, tt) in enumerate(seq):
            gap_of.append(n)
            for ft in range(3):
                d = acc[q & 1] + 12 * tt + 4 * ft
                k(f'v_mfma_f32_16x16x32_bf16 v[{d}:{d + 3}], {ur(256 + 12 * s + 4 * ft)}, {ur(FRL[i % 6])}, {"0" if s == 0 else f"v[{d}:{d + 3}]"}')
                if ft == 0 and i + LA < len(seq):
                    rd(i + LA)
            n += 3
            if q == 0 and tt == 0 and s >= K1:
                self.cs_mm(s)
                n += 3
            if (q == 1 and i % 40 == 7) or (q >= 1 and i % 40 == 39):
                qq = 0 if i % 40 == 7 else q
                X[qq] = n
                extra(qq)
                n += 6
        Q = [gap_of[40 * q] for q in range(4)] + [n]
        w = Sched(k.end())
        for q in range(1, 4):
            k.begin()
            k.wait_vm(f'z{q}')
            if q == 1:
                k.wait_lgkm('ts')
            k('s_barrier')
            if o.fine:
                self.stamp(f'g{q}')
            w.pre(gap_of[40 * q - LA], k.end())
        for q in (1, 2):
            k.begin()
            k('s_barrier')
            w.pre(Q[q] + 4, k.end())
        for q in range(4):
            for i in range(4):
                k.begin()
                r = self.EXB + 4 * i
                k(f'ds_read_b128 v[{r}:{r + 3}], v14 offset:{1024 * q + 512 * (i >> 1) + 16 * (i & 1)}')
                w.at(X[q] - 14 + 3 * i, k.end())
        M = (3, 0)
        wd = self.wd[self.nwd:]
        off = self.nwd
        rest = self.take(len(self.bg))
        n0 = o.wdq[0] - off
        n1 = o.wdq[1] - off
        w.spread(rest + zd[1] + wd[:n0], 0, Q[1] + 3, M)
        w.spread(zd[2] + wd[n0:n1], Q[1] + 5, Q[2] + 3, M)
        w.spread(zd[3] + wd[n1:52 - off], Q[2] + 5, Q[3] + 12, M)
        w.spread(wd[52 - off:], Q[3] + 18, Q[3] + 56, M)
        k.begin()
        k.wait_vm('wdl')
        w.pre(Q[3] + 57, k.end())
        lr = []
        for i in list(range(10)) + list(range(44, 52)):
            k.begin()
            if i < 10:
                k(f'ds_read_b128 {ur(self.WD_REG[i])}, v9 offset:{1024 * i}')
            else:
                k(f'ds_read_b128 {ur(self.WD_REG[i])}, v10 offset:{40960 + 1024 * (i - 44)}')
            lr.append(k.end())
        w.spread(lr[:7], Q[3] + 57, Q[3] + 78, M)
        w.spread(lr[7:], Q[3] + 88, Q[4] - 1, (3, 1))
        w.post(Q[2] + o.pubgap, self.hh_publish(0))
        w.post(Q[3] + o.pubgap, self.hh_publish(1))
        w.at(Q[3] + 8, self.hh_flagload())
        w.post(Q[3] + 77, self.hh_check(1))
        w.spread(self.hl[0][:10], Q[3] + 79, Q[4] - 1, M)
        w.at(Q[3] + 104, self.hh_flagload())
        for i in range(4):
            w.at(Q[1] - 44 + 6 * i, tsw[i])
        w.fill(zipper(sts[0], sts[1], 4), first=24, last=Q[1] - 46)
        print('gu stats tail', w.ntail, 'K1', K1)
        w.fill(self.cs_fin(), first=Q[1] + (3 if K1 < 20 else -60), last=X[0] - 2)
        print('gu cs tail', w.ntail)
        for q in range(3):
            e, fin = self.gu_epilogue(q, acc[q & 1], False)
            w.fill(e + fin, first=X[q] + 8, last=X[q + 1] - 15)
            print('gu quarter', q, 'tail', w.ntail, 'ends', w.lastgap - Q[q + 1])
        if o.raw == 'gu':
            print('Q', Q, 'X', X)
            self.rawstamps(w, range(2, n - 12, 18), 'r')
        res = w.result()
        xs = o.x.split(',')

        def keep(it):
            if not isinstance(it, Ins):
                return True
            if 'g_noval' in xs and it.kind in ('valu', 'trans') and not it.mn.startswith('v_cmp') and 'v12' not in it.text and 'v5' not in it.text.split():
                return False
            if 'g_nobar' in xs and it.mn == 's_barrier':
                return False
            if 'g_nodma' in xs and it.meta == 'dma':
                return False
            if 'g_nost' in xs and it.kind == 'vmem' and '_store_dwordx' in it.mn:
                return False
            if 'g_nods' in xs and it.kind == 'ds':
                return False
            return True
        k.put([it for it in res if keep(it)])
        self.stamp('g4')
        e, fin = self.gu_epilogue(3, acc[1], True)
        self.put_units(self.hl[0][10:])
        k.put(e[:len(e) // 3])
        k.put(self.hh_check(2))
        self.put_units(self.hl[1][:6])
        k.put(e[len(e) // 3:])
        k.put(fin)
        self.stamp('g5')

    def down(self):
        k = self.k
        X1 = self.X1
        W = self.WD_REG
        acc = [32, 52]
        k(f's_mul_i32 s76, {sW}, 5120')
        k(f's_add_u32 s76, s76, {L_A}')
        k('v_add_u32 v8, s76, v1')
        k(f's_mul_i32 s76, {sW}, 20480')
        k(f's_add_u32 s76, s76, {L_A}')
        k('v_add_u32 v9, s76, v1')
        k.begin()
        for t in range(4):
            self.mm5(acc[t & 1], W, self.HH_B[t % 3], 12, self.o.chain or (t == 3 and self.o.chain3))
        w = Sched(k.end())
        k.begin()
        k('s_barrier')
        w.pre(61, k.end())

        def wr(t):
            us = []
            for ft in range(5):
                k.begin()
                a = acc[t & 1] + 4 * ft
                off = t * 20480 + ft * 1024
                if off > 65535 - 16:
                    k(f'ds_write_b128 v6, v[{a}:{a + 3}] offset:{off - 40960}', f'dw{t}{ft}')
                else:
                    k(f'ds_write_b128 v8, v[{a}:{a + 3}] offset:{off}', f'dw{t}{ft}')
                us.append(k.end())
            return us
        o = self.o
        for t in range(3):
            w.spread(wr(t), 60 * (t + 1) + 8, 60 * (t + 1) + (50 if t < 2 else 16))
        d = o.dn
        w.spread(self.hl[1][6:], 0, 24)
        w.post(d[0], self.hh_publish(2))
        w.post(d[1], self.hh_publish(3))
        w.at(d[2], self.hh_flagload())
        w.post(d[3], self.hh_check(3))
        w.spread(self.hl[2], d[3] + 1, d[3] + d[6])
        w.at(d[4], self.hh_flagload())
        w.post(d[5], self.hh_check(4))
        w.spread(self.hl[3], d[5] + 1, d[5] + d[7])
        k.begin()
        k('v_add_u32 v6, 40960, v8')
        self.rowmajor(16, 17)
        self.vec_addr()
        self.lds_cols(P_GB - L_P, 128, 'v18', 'v19')
        self.unpack10(128, 92)
        self.unpack10(X1, 72)
        w.fill(k.end(), first=135, last=200)
        w3 = wr(3)
        for ft in range(4):
            w.at(180 + 12 * ft + 18, w3[ft])
        k.begin()
        k.wait_lgkm('dw31')
        k('s_barrier')
        w.pre(216, k.end())
        RD = [[32, 36, 40, 44], [48, 112, 116, 128], [160, 164, 168, 172], [176, 180, 184, 188], [192, 196, 200, 204]]

        def rdq(ft):
            for t in range(4):
                k(f'ds_read_b128 v[{RD[ft][t]}:{RD[ft][t] + 3}], v9 offset:{t * 5120 + ft * 1024}')
        k.begin()
        rdq(0)
        rdq(1)
        w.fill(k.end(), first=217, last=226)
        if o.raw == 'dn':
            self.rawstamps(w, range(0, 228, 12), 'r')
        k.put(w.result())
        self.stamp('ks3')
        k.put(w3[4])

        def fin(ft):
            r = RD[ft]
            for h in (0, 2):
                k(f'v_pk_add_f32 v[{r[0] + h}:{r[0] + h + 1}], v[{r[0] + h}:{r[0] + h + 1}], v[{r[1] + h}:{r[1] + h + 1}]')
                k(f'v_pk_add_f32 v[{r[2] + h}:{r[2] + h + 1}], v[{r[2] + h}:{r[2] + h + 1}], v[{r[3] + h}:{r[3] + h + 1}]')
            for h in (0, 2):
                k(f'v_pk_add_f32 v[{r[0] + h}:{r[0] + h + 1}], v[{r[0] + h}:{r[0] + h + 1}], v[{r[2] + h}:{r[2] + h + 1}]')
            for h in (0, 2):
                i = 4 * ft + h
                k(f'v_pk_fma_f32 v[{r[0] + h}:{r[0] + h + 1}], v[{r[0] + h}:{r[0] + h + 1}], v[{92 + i}:{93 + i}], v[{72 + i}:{73 + i}]')
            for h in (0, 2):
                k(f'v_cvt_pk_bf16_f32 v{X1 + 2 * ft + h // 2}, v{r[0] + h}, v{r[0] + h + 1}')
        k.barrier()
        if o.fine:
            self.stamp('dbar')
        rdq(2)
        rdq(3)
        rdq(4)
        fin(0)
        fin(1)
        k(f'buffer_store_dwordx4 v[{X1}:{X1 + 3}], v16, {OUTS}, s90 offen', 'out')
        fin(2)
        fin(3)
        k(f'buffer_store_dwordx4 v[{X1 + 4}:{X1 + 7}], v16, {OUTS}, s90 offen offset:64', 'out')
        fin(4)
        k(f'buffer_store_dwordx2 v[{X1 + 8}:{X1 + 9}], v17, {OUTS}, s90 offen offset:128', 'out')
        if o.fine:
            self.stamp('dst')

    def padspin(self, t):
        k = self.k
        lab = k.newlabel('pad')
        k.wait_lgkm_all()
        k.label(lab)
        k('s_memrealtime s[100:101]')
        k('s_sub_u32 s100, s100, s98')
        k(f's_cmp_lt_u32 s100, {t}')
        k(f's_cbranch_scc1 {lab}')

    def finish(self):
        k = self.k
        if self.o.padto and self.o.padat == 'end':
            self.padspin(self.o.padto)
        if self.o.stamps:
            k.wait_vm_all()
            self.stamp('end')
            k.wait_lgkm_all()
            k('s_memtime s[98:99]')
            k('v_writelane_b32 v11, s98, 62')
            k(f'v_writelane_b32 v11, {sFAST}, 63')
            k(f's_lshl2_add_u32 s72, s2, {sW}')
            k('s_lshl_b32 s72, s72, 8')
            k(f's_add_u32 s72, s72, {WS_DBG}')
            k('v_lshlrev_b32 v64, 2, v3')
            k(f'buffer_store_dword v11, v64, {WS}, s72 offen')
            if self.o.dbg:
                sel = [self.stampnames.index(n) + 1 for n in self.o.dbg.split(',')]
                k(f's_lshl2_add_u32 s72, s2, {sW}')
                k(f's_cmp_lg_u32 s72, {self.o.dbgwave}')
                k('s_cbranch_scc1 .Lend')
                k('s_mov_b64 s[28:29], s[68:69]')
                k('s_mov_b32 s30, 256')
                k('v_readlane_b32 s72, v11, 0')
                k('v_mov_b32 v64, 0')
                for i, n in enumerate(sel):
                    k(f'v_readlane_b32 s73, v11, {n}')
                    k('s_sub_u32 s73, s73, s72')
                    k('v_mov_b32 v65, s73')
                    k(f'buffer_store_dword v65, v64, {CS}, 0 offen offset:{4 * i}')
        k.label('.Lend')
        k('s_endpgm')

    def islands(self, body):
        import subprocess, re
        lines = body.split('\n')
        stub = '\n'.join(f'.Lchain{w}:' for w in range(4))
        src = '.amdgcn_target "amdgcn-amd-amdhsa--gfx950"\n.text\n' + body + '\n' + stub + '\n.Lcode_end:\n'
        open('isl.s', 'w').write(src)
        subprocess.check_call(['clang', '-x', 'assembler', '-target', 'amdgcn-amd-amdhsa', '-mcpu=gfx950', '-c', 'isl.s', '-o', 'isl.o'])
        dis = subprocess.check_output(['llvm-objdump', '-d', '-z', '--mcpu=gfx950', 'isl.o']).decode()
        sizes = [(int(m.group(1), 16), 4 * len(m.group(2).split())) for m in re.finditer(r'// ([0-9A-F]{12}): ((?:[0-9A-F]{8} ?)+)', dis)]
        p0 = lines.index('.Lpage0:')
        ret = lines.index('.Lwarm_ret:')
        end = lines.index('.Lend:')
        isins = lambda l: l.startswith('    ') and not l.strip().startswith(';')
        after = [i for i in range(p0, len(lines)) if isins(lines[i])]
        tail = sizes[-len(after):]
        assert tail[0][0] % 4096 == 0
        offs = [int(x) for x in self.o.isl.split(',')]
        pos, addr, nxt, out = [], 0, 0, lines[:p0 + 1]
        targets = [4096 * p + o_ for p in range(1, 20) for o_ in offs]
        sz = {i: s for i, (_, s) in zip(after, tail)}
        prev = ''
        for i in range(p0 + 1, len(lines)):
            l = lines[i]
            if isins(l):
                if i > ret and i < end and addr >= targets[nxt] and not prev.strip().startswith('s_cbranch_vccz'):
                    good = prev.strip().startswith('v_mfma') and not l.strip().startswith('s_')
                    if good or addr >= targets[nxt] + 40:
                        out.append(f'@ISL{len(pos)}')
                        pos.append(addr)
                        addr += 4
                        nxt += 1
                while i <= ret and addr >= targets[nxt]:
                    nxt += 1
                addr += sz[i]
                prev = l
            out.append(l)
        n = len(pos)
        per = (n + 3) // 4
        res = []
        for l in out:
            if l.startswith('@ISL'):
                j = int(l[4:])
                if j % per == 0:
                    res.append(f'.Lchain{j // per}:')
                res.append(f'.Lisl{j}:')
                last = (j + 1) % per == 0 or j + 1 == n
                res.append(f'    s_cbranch_execz {".Lwarm_ret" if last else f".Lisl{j + 1}"}')
            else:
                res.append(l)
                if l == '.Lwarm_ret:':
                    res += [f'.Lchain{w}:' for w in range(4) if w * per >= n]
        print('islands', [hex(p) for p in pos])
        return '\n'.join(res)

    def build(self):
        o = self.o
        def pre():
            fns = dict(wqi=self.st_wq_issue, xi=self.st_x_issue, mod=self.st_mod, mc=self.st_modc, a1=self.st_addr,
                       wqp=self.st_wq_process, pq=lambda: (self.wg_flag('wqst', WS_PQ), self.stamp('pq')),
                       th=lambda: None if 'h' in self.k.wt else self.touch('s86', 1, 20, 512, 8), norm=self.st_norm,
                       li=lambda: self.late_mod(self.mod_issue), lc=lambda: self.late_mod(self.mod_core),
                       rq=self.st_rest_prep, ri=lambda: self.put_units(self.rest_units(36, 38)), a2=self.st_addr2,
                       rr=self.rest_reads, rs=lambda: (self.put_units(self.rest_stores()), self.stamp('rs')),
                       pr=lambda: (self.wg_flag('pre', WS_PR), self.stamp('pr')), bar=self.k.barrier,
                       to=self.touch_arena, x2=self.x2_issue, b=self.st_bases, pqp=self.pq_poll, m2=lambda: self.mod_pass(True, split=True), al=self.align_page, wm=self.warm, ts=self.touch_small, pqs=self.pq_sample, pqe=self.pq_early,
                       h=self.make_h, hp=lambda: (self.publish(PH_H, 'h'), self.stamp('hpub')))
            for c in range(5):
                fns[f'c{c}'] = lambda c=c: self.put_units(self.wq_chunk(c))
            self.st_entry()
            for n in o.order.split(','):
                if n.startswith('m1'):
                    sub = n.split('+')
                    self.mod_pass(False, between=lambda: [fns[x]() for x in sub[1:]], withpq=sub[0] == 'm1q',
                                  onmiss=fns['ri'] if sub[0] == 'm1d' else None)
                else:
                    fns[n]()
        steps = [
            ('pre', pre),
            ('qkv', self.qkv),
            ('attn', self.attention),
            ('wo', self.wo),
            ('gu', self.gu),
            ('down', self.down),
        ]
        for name, fn in steps:
            self.k.comment(f'==================== {name}')
            fn()
            if o.stop == name:
                break
        self.finish()
        if o.stop not in ('pre', 'qkv'):
            self.k.assume_vm_empty()
            self.fallback()
        for fn in self.ool:
            self.k.assume_vm_empty()
            self.k.fence_hazards()
            fn()
        body = self.k.finalize()
        if 'wm' in o.order.split(','):
            body = self.islands(body)
        hdr = open('cdna_kernels/' + NAME + '.s.ref').read().split('\n')
        top = [l for l in hdr if l.startswith(';') and '@launch' not in l]
        txt = '\n'.join(top) + f'''
; @launch grid=(256,1,1) block=(256,1,1) lds={LDS_BYTES}
.amdgcn_target "amdgcn-amd-amdhsa--gfx950"
.text
.globl {NAME}_kernel
.p2align 8
.type {NAME}_kernel,@function
{NAME}_kernel:
{body}
.Lcode_end:
.section .rodata,"a"
.p2align 6
.amdhsa_kernel {NAME}_kernel
  .amdhsa_next_free_vgpr 512
  .amdhsa_next_free_sgpr 102
  .amdhsa_accum_offset 256
  .amdhsa_group_segment_fixed_size 0
  .amdhsa_kernarg_size 96
  .amdhsa_user_sgpr_count 2
  .amdhsa_user_sgpr_kernarg_segment_ptr 1
  .amdhsa_system_sgpr_workgroup_id_x 1
.end_amdhsa_kernel
'''
        return txt


if __name__ == '__main__':
    ap = argparse.ArgumentParser()
    ap.add_argument('-o', default='cdna_kernels/' + NAME + '.s')
    ap.add_argument('--stop', default=None)
    ap.add_argument('--stamps', action='store_true')
    ap.add_argument('--force-slow', dest='force_slow', action='store_true')
    ap.add_argument('--dbg', default=None)
    ap.add_argument('--dbgwave', type=int, default=401)
    ap.add_argument('--x', default='')
    ap.add_argument('--cyc', action='store_true')
    ap.add_argument('--order', default='wqi,xi,al,mod,rq,ts,a1,b,a2,mc,wqp,ri,norm,wm,m1+pq+rr+rs,h,m2,hp,bar,x2')
    ap.add_argument('--wqlook', type=int, default=14)
    ap.add_argument('--wgu-q', dest='wgu_q', type=int, default=8)
    ap.add_argument('--bg-quiet', dest='bg_quiet', type=int, default=10)
    ap.add_argument('--bg-attn', dest='bg_attn', type=int, default=45)
    ap.add_argument('--gubud', type=int, default=8)
    ap.add_argument('--dnlook', type=int, default=16)
    ap.add_argument('--force-fb', dest='force_fb', action='store_true')
    ap.add_argument('--fine', action='store_true')
    ap.add_argument('--chain', type=int, default=0)
    ap.add_argument('--pub3', type=int, default=36)
    ap.add_argument('--prgap', type=int, default=92)
    ap.add_argument('--wgu-q1', dest='wgu_q1', type=int, default=0)
    ap.add_argument('--wgu-q1end', dest='wgu_q1end', type=int, default=112)
    ap.add_argument('--prflag', type=int, default=1)
    ap.add_argument('--rsgap', type=int, default=30)
    ap.add_argument('--late', type=int, default=240)
    ap.add_argument('--rspos', type=int, default=20)
    ap.add_argument('--wlead', type=int, default=6)
    ap.add_argument('--remend', type=int, default=56)
    ap.add_argument('--rigap', type=int, default=58)
    ap.add_argument('--wend', type=int, default=60)
    ap.add_argument('--hend', type=int, default=90)
    ap.add_argument('--t3end', type=int, default=90)
    ap.add_argument('--bg', default='8,12,6,4,28,17,0,6,8')
    ap.add_argument('--bg-start', dest='bg_start', type=int, default=6)
    ap.add_argument('--wo-quiet', dest='wo_quiet', type=int, default=98)
    ap.add_argument('--cs1', type=int, default=10)
    ap.add_argument('--q0a', type=int, default=84)
    ap.add_argument('--touchz', type=int, default=0)
    ap.add_argument('--wt', default='hh,o,h')
    ap.add_argument('--split', type=int, default=1)
    ap.add_argument('--wdq', type=lambda s: [int(x) for x in s.split(',')], default=[13, 32])
    ap.add_argument('--pubgap', type=int, default=50)
    ap.add_argument('--chk4', type=int, default=100)
    ap.add_argument('--gula', type=int, default=5)
    ap.add_argument('--nearly', type=int, default=2)
    ap.add_argument('--x2gap', type=int, default=92)
    ap.add_argument('--drop', default='')
    ap.add_argument('--ntst', default='')
    ap.add_argument('--dn', type=lambda s: [int(x) for x in s.split(',')], default=[12, 50, 44, 76, 98, 130, 32, 32])
    ap.add_argument('--raw', default='')
    ap.add_argument('--isl', default='0')
    ap.add_argument('--padto', type=int, default=0)
    ap.add_argument('--padat', default='end')
    ap.add_argument('--m2pos', type=int, default=10)
    ap.add_argument('--kvgap', type=int, default=156)
    ap.add_argument('--wo-start', dest='wo_start', type=int, default=46)
    ap.add_argument('--oup', type=int, default=11)
    ap.add_argument('--zpub', type=int, default=6)
    ap.add_argument('--chain3', type=int, default=1)
    ap.add_argument('--up', type=lambda s: [int(x) for x in s.split(',')], default=[12, 8])
    ap.add_argument('--spin', type=int, default=20000)
    opt = ap.parse_args()
    g = Gen(opt)
    txt = g.build()
    open(opt.o, 'w').write(txt)
    if opt.stamps:
        open(opt.o + '.stamps', 'w').write(' '.join(g.stampnames))
    print('written', opt.o, 'lines', txt.count('\n'), g.k.stats, g.stampnames)
```

```python
import os, sys, struct, argparse
sys.path.insert(0, 'dev')
from asmb import Builder, Sched, Ins

NAME = 'adaLN_cond__sliding_block__glu_gated_geglu__prompt'

WS_EPOCH = 0
WS_HELLO = 0x400
WS_PQ = 0x1000
WS_PR = 0x1400
WS_KVF = 0x8000
WS_FLAG = 0x40000
WS_MODG = 0x10000
WS_ST = 0x20000
WS_WQ = 0x100000
WS_WO = 0x3C0000
WS_WGU = 0x4C0000
WS_WD = 0x900000
PAD = int(os.environ.get('PAD', '1280'))
WQ_T = 40960 + PAD
WQ_J = 4 * WQ_T + PAD
WGU_S = 61440 + PAD
OD_W = PAD
WO_J = 20 * 5120 + 5 * PAD
WD_J = 48 * 5120 + 5 * PAD
WS_H = 0xB40000
WS_O = 0xDC0000
WS_Z = 0x1040000
WS_KV = 0x12C0000
WS_HH = 0x1840000
O_CL = 163840
if 'NOARENA' not in os.environ:
    WS_Z = WS_H
    WS_O = WS_HH
    O_CL = 393216
WS_DBG = 0x1E40000
WS_SIZE = 0x1F00000
WS_BASE = int(os.environ.get('WSBASE', '0'), 0)
OOB = 0x40000000
PH_H, PH_O, PH_Z, PH_HH = range(4)
SF = 52
VF_FAST, VF_SLOW = 4, 0

KVB = 5632
L_C = 0
L_KVOWN = 8 * KVB
L_Q = 12 * KVB
L_P = L_Q + 10240
L_A = 81920
L_B = 122880
LDS_BYTES = 163840
L_X = L_Q
L_MOD = L_C
L_WQS = L_C + 20480
L_MV = L_KVOWN + 16384
L_STAT = L_C + 40960
L_SC = L_C + 41472
L_GUS = L_KVOWN
L_ODS = [L_X, L_GUS]
KM_OFF = [0, 1024]
KT_OFF = 2048
V_OFF = [2560, 4096]
P_SB = L_P
P_G2 = L_P + 1280
P_GA = L_P + 2560
P_GB = L_P + 2720
P_DUMMY = L_P + 3072
L_RED = 0

sW = 's3'
WS = 's[4:7]'; XS = 's[8:11]'; WQS = 's[12:15]'; ODS = 's[16:19]'; WGS = 's[20:23]'; WUS = 's[24:27]'
CS = 's[28:31]'; WMS = 's[32:35]'; OUTS = 's[36:39]'
sCL, sJ, sTAG, sFAST = 's40', 's41', 's42', 's43'
sJC, sTH = 's46', 's47'

DUMMY = 47
QSCALE = 20 ** -0.5 * 1.4426950408889634 * float(os.environ.get('QERR', '1'))
NEG = -1.0e30


def f2u(x):
    return struct.unpack('<I', struct.pack('<f', x))[0]


def vr(a, n=1, t='v'):
    return f'{t}{a}' if n == 1 else f'{t}[{a}:{a + n - 1}]'


def ur(a, n=4):
    return vr(a, n, 'v') if a < 256 else vr(a - 256, n, 'a')


def zipper(a, b, lead):
    out = list(a[:lead])
    a = a[lead:]
    for i in range(max(len(a), len(b))):
        out += a[i:i + 1] + b[i:i + 1]
    return out


class TagBuilder(Builder):
    wt = ()

    def __call__(self, text, tag=None):
        if tag is not None and tag.rstrip('0123') in self.wt and text.startswith('buffer_store'):
            text += ' sc1'
        if tag in self.drop and text.startswith('buffer_'):
            return
        if tag in self.ntst and text.startswith('buffer_store'):
            text += ' nt'
        super().__call__(text, tag)


class Gen:
    def __init__(self, opt):
        self.o = opt
        self.k = TagBuilder()
        self.k.wt = opt.wt.split(',')
        self.k.drop = opt.drop.split(',')
        self.k.ntst = opt.ntst.split(',')
        self.nstamp = 0
        self.stampnames = []
        self.ool = []
        self.ntw = ' nt' if 'ntw' in opt.x else ''
        self.ntx = ' nt' if 'ntx' in opt.x else ''
        self.nt = '' if 'nont' in opt.x else ' nt'

    def stamp(self, name):
        if self.o.padto and self.o.padat == name:
            self.padspin(self.o.padto)
        if not self.o.stamps:
            return
        k = self.k
        n = self.nstamp
        assert n < 60
        self.nstamp += 1
        self.stampnames.append(name)
        k('s_memtime s[100:101]' if self.o.cyc else 's_memrealtime s[100:101]')
        k(f'v_writelane_b32 v11, s100, {n + 1}')

    def rawstamps(self, w, gaps, prefix):
        k = self.k
        for gp in gaps:
            n = self.nstamp
            self.nstamp += 1
            self.stampnames.append(f'{prefix}{gp}')
            k.begin()
            k.raw('    s_memtime s[98:99]')
            w.pre(gp, k.end())
            k.begin()
            k.raw(f'    v_writelane_b32 v11, s98, {n + 1}')
            w.post(gp + (10 if w.cap(gp) == 2 else 5), k.end())

    def dma(self, srd, voff, soff, lds, imm=0, tag=None, sc1=False):
        k = self.k
        k(f's_mov_b32 m0, {lds}')
        k(f'buffer_load_dwordx4 {voff}, {srd}, {soff} offen offset:{imm}{" sc1" if sc1 else ""} lds', tag)

    def bf16_round_keep(self, regs, tmp):
        k = self.k
        for i in range(0, len(regs), 2):
            k(f'v_cvt_pk_bf16_f32 v{tmp}, v{regs[i]}, v{regs[i + 1]}')
            k(f'v_lshlrev_b32 v{regs[i]}, 16, v{tmp}')
            k(f'v_and_b32 v{regs[i + 1]}, 0xffff0000, v{tmp}')

    def flag_off(self, sdst, phase, scl=sCL):
        k = self.k
        k(f's_add_u32 {sdst}, s{SF + phase // 2}, {(phase % 2) * 2048}')

    def publish(self, phase, tag):
        k = self.k
        if tag.rstrip('0123') in k.wt:
            k.wait_vm(tag)
            k(f'buffer_store_dword v5, v{VF_FAST}, {WS}, s{SF + phase // 2} offen offset:{(phase % 2) * 2048}')
            k(f'buffer_store_dword v5, v{VF_SLOW}, {WS}, s{SF + phase // 2} offen offset:{(phase % 2) * 2048} sc1')
            return
        k.wait_vm(tag)
        k(f'buffer_store_dword v5, v{VF_FAST}, {WS}, s{SF + phase // 2} offen offset:{(phase % 2) * 2048}')
        back, slow = k.newlabel('pubb'), k.newlabel('pubs')
        k(f's_cmp_eq_u32 {sFAST}, 0')
        k(f's_cbranch_scc1 {slow}')
        k.label(back)

        def ool():
            k.label(slow)
            k('buffer_wbl2 sc1')
            k('s_waitcnt vmcnt(0)')
            k(f'buffer_store_dword v5, v{VF_SLOW}, {WS}, s{SF + phase // 2} offen offset:{(phase % 2) * 2048} sc1')
            k(f's_branch {back}')
        self.ool.append(ool)

    def recheck(self, body):
        k = self.k
        back, slow = k.newlabel('rcb'), k.newlabel('rcs')
        k('s_cmp_lg_u64 vcc, 0')
        k(f's_cbranch_scc1 {slow}')
        k.label(back)

        def ool():
            k.label(slow)
            self.spin(body)
            k.fence_hazards()
            k(f's_branch {back}')
        self.ool.append(ool)

    def acquire(self, tag):
        k = self.k
        if tag in k.wt:
            return
        back, slow = k.newlabel('acb'), k.newlabel('acs')
        k(f's_cmp_eq_u32 {sFAST}, 0')
        k(f's_cbranch_scc1 {slow}')
        k.label(back)

        def ool():
            k.label(slow)
            k('buffer_inv sc1')
            k('s_waitcnt vmcnt(0)')
            k(f's_branch {back}')
        self.ool.append(ool)

    def spin(self, body, onmiss=None):
        k = self.k
        lab, out = k.newlabel('poll'), k.newlabel('pollx')
        k('s_mov_b32 s73, 0')
        k.fence_hazards()
        k.label(lab)
        k('s_add_u32 s73, s73, 1')
        body()
        k(f's_cmp_ge_u32 s73, {self.o.spin}')
        k(f's_cbranch_scc1 {out}')
        if onmiss is None:
            k('s_cmp_lg_u64 vcc, 0')
            k(f's_cbranch_scc1 {lab}')
        else:
            k('s_cmp_eq_u64 vcc, 0')
            k(f's_cbranch_scc1 {out}')
            k('s_cmp_lg_u32 s73, 1')
            k(f's_cbranch_scc1 {lab}')
            onmiss()
            k(f's_branch {lab}')
        k.label(out)
        k.assume_vm_empty()

    def allcheck(self, regs, t):
        k = self.k
        if len(regs) == 1:
            k(f'v_cmp_ne_u32 vcc, {sTAG}, v{regs[0]}')
            return
        k(f'v_xor_b32 v{t}, {sTAG}, v{regs[0]}')
        rest = regs[1:]
        while rest:
            k(f'v_xor_b32 v{t + 1}, {sTAG}, v{rest[0]}')
            if len(rest) > 1:
                k(f'v_xor_b32 v{t + 2}, {sTAG}, v{rest[1]}')
                k(f'v_or3_b32 v{t}, v{t}, v{t + 1}, v{t + 2}')
            else:
                k(f'v_or_b32 v{t}, v{t}, v{t + 1}')
            rest = rest[2:]
        k(f'v_cmp_ne_u32 vcc, 0, v{t}')

    def poll(self, voff, soff, vt, local):
        k = self.k

        def body():
            k(f'buffer_load_dword v{vt}, {voff}, {WS}, {soff} offen sc1')
            k('s_waitcnt vmcnt(0)')
            self.allcheck([vt], vt)
        self.spin(body)
        if local:
            self.acquire(local)

    def units_frags(self, regs, sbase, voff='v1', tag=None, first=0):
        k = self.k
        out = []
        for n, r in enumerate(regs):
            i = n + first
            k.begin()
            if i and i % 4 == 0:
                k(f's_add_u32 {sbase}, {sbase}, 4096')
            if not ('nobg' in self.o.x and tag in ('wgu', 'wo', 'wd')):
                k(f'buffer_load_dwordx4 {ur(r)}, {voff}, {WS}, {sbase} offen offset:{1024 * (i % 4)} sc1{self.ntw if tag in ("wgu", "wo", "wd") else ""}', tag)
            out.append(k.end())
        return out

    def units_dma(self, ssrc, srcadd, ldsbase, n, tag, voff='v1'):
        k = self.k
        c = (n + 3) // 4
        out = []
        for i in range(c):
            k.begin()
            if i == 0:
                k(f's_mul_i32 s88, {sW}, {c}')
                if c * 4 != n:
                    k(f's_min_u32 s88, s88, {n - c}')
                k('s_lshl_b32 s88, s88, 10')
                k(f's_add_u32 s87, {ssrc}, s88')
                if srcadd:
                    k(f's_add_u32 s87, s87, {srcadd}')
                k(f's_add_u32 m0, s88, {ldsbase}')
            elif i % 4 == 0:
                k('s_add_u32 s87, s87, 4096')
                k('s_add_u32 m0, m0, 4096')
            k(f'buffer_load_dwordx4 {voff}, {WS}, s87 offen offset:{1024 * (i % 4)} sc1 lds', tag)
            out.append(k.end())
        return out

    def take(self, n):
        out, self.bg = self.bg[:n], self.bg[n:]
        return out

    def put_units(self, units):
        for u in units:
            self.k.put(u)

    def rowsum(self, r, t):
        k = self.k
        k(f'v_mov_b32 v{t}, v{r}')
        k(f'v_permlane16_swap_b32 v{r}, v{t}')
        k(f'v_add_f32 v{r}, v{r}, v{t}')
        k(f'v_mov_b32 v{t}, v{r}')
        k(f'v_permlane32_swap_b32 v{r}, v{t}')
        k(f'v_add_f32 v{r}, v{r}, v{t}')

    def touch(self, soff, per, n, stride, t, dst=DUMMY):
        k = self.k
        if 'notouch' in self.o.x:
            return
        magic = (65536 + per - 1) // per
        assert all((l * magic) >> 16 == l // per for l in range(64))
        if per == 1:
            k(f'v_mul_u32_u24 v{t}, {stride}, v3')
        else:
            k(f'v_mul_u32_u24 v{t}, {magic}, v3')
            k(f'v_lshrrev_b32 v{t}, 16, v{t}')
            k(f'v_mul_u32_u24 v{t}, {stride - per * 128}, v{t}')
            k(f'v_lshl_add_u32 v{t}, v3, 7, v{t}')
        k(f'v_sub_u32 v{t + 1}, {n - 1}, v3')
        k(f'v_and_b32 v{t + 1}, {OOB}, v{t + 1}')
        k(f'v_or_b32 v{t}, v{t}, v{t + 1}')
        k(f'buffer_load_dword v{dst}, v{t}, {WS}, {soff} offen{" nt" if "ntt" in self.o.x else " sc1"}')


    def st_entry(self):
        k = self.k
        o = self.o
        k('s_load_dwordx8 s[64:71], s[0:1], 64')
        k('s_load_dwordx16 s[48:63], s[0:1], 0')
        k(f's_cmp_ge_u32 s2, {0 if "exit0" in o.x else 256}')
        k('s_cbranch_scc1 .Lend')
        if o.stamps:
            k('s_memrealtime s[100:101]')
            k('s_memtime s[98:99]')
        if o.padto:
            k('s_memrealtime s[98:99]')
        k('s_getpc_b64 s[44:45]')
        k.label('.Lpc0')
        k('v_mov_b32 v37, v0')
        k('s_bfe_u32 s72, s2, 0x30003')
        k('v_lshrrev_b32 v2, 2, v37')
        k('v_lshl_add_u32 v2, s72, 6, v2')
        k('v_lshlrev_b32 v2, 7, v2')
        k('v_min_u32 v2, .Lcode_end-.Lpc0-4, v2')
        k('global_load_dword v95, v2, s[44:45]')
        k('v_lshrrev_b32 v2, 6, v37')
        k('v_and_b32 v3, 63, v37')
        k('v_readfirstlane_b32 s3, v2')
        k('s_mov_b32 s34, 4915200')
        k('s_mov_b32 s35, 0x20000')
        k('s_movk_i32 s30, 1280')
        k('s_mov_b32 s31, 0x20000')
        k('s_sub_u32 s74, s2, 16')
        k('s_cmp_lt_u32 s2, 240')
        k('s_cselect_b32 s74, s2, s74')
        k('s_lshr_b32 s75, s74, 2')
        k('s_and_b32 s76, s74, 3')
        k('v_lshrrev_b32 v6, 3, v3')
        k('v_and_b32 v7, 7, v3')
        k('v_lshlrev_b32 v7, 4, v7')
        k('s_movk_i32 s72, 7680')
        k('v_mad_u32_u24 v39, v6, s72, v7')
        k('s_mul_i32 s77, s76, 160')
        k(f's_lshl3_add_u32 s77, {sW}, s77')
        k('s_mul_i32 s77, s77, 7680')
        k('s_lshl_b32 s72, s75, 7')
        k('s_add_u32 s77, s77, s72')
        k('v_min_u32 v9, 79, v37')
        k('v_lshlrev_b32 v9, 2, v9')
        k('s_mul_i32 s79, s76, 320')
        k.wait_lgkm_all()
        if o.stamps:
            k('v_mov_b32 v11, s100')
            k('v_writelane_b32 v11, s98, 61')
        k('s_mov_b64 s[32:33], s[64:65]')
        k('s_mov_b64 s[28:29], s[62:63]')
        if WS_BASE:
            k(f's_add_u32 s70, s70, {WS_BASE}')
            k('s_addc_u32 s71, s71, 0')
        k('s_load_dword s42, s[70:71], 0')
        k(f'buffer_load_dword v10, v9, {CS}, s79 offen')
        k('s_mov_b32 s95, s77')
        lab = k.newlabel('me')
        k(f's_cmp_ge_u32 s2, {o.late}')
        k(f's_cbranch_scc1 {lab}')
        k.cond_begin()
        self.mod_issue('mod')
        k.cond_end()
        k.label(lab)
        self.stamp('modiss')
        for srd, size, p in ((4, WS_SIZE, 70), (8, 2621440, 48), (12, 2457600, 50), (20, 1966080, 56), (24, 1966080, 58), (36, 2621440, 66)):
            k(f's_mov_b64 s[{srd}:{srd + 1}], s[{p}:{p + 1}]')
            k(f's_mov_b32 s{srd + 2}, {size}')
            k(f's_mov_b32 s{srd + 3}, 0x20000')
        k('s_mov_b32 s19, 0x20000')
        if o.split == 1:
            k('s_and_b32 s72, s2, 7')
            k('s_lshr_b32 s73, s2, 3')
            k(f's_and_b32 {sJ}, s73, 15')
            k('s_lshr_b32 s73, s73, 4')
            k(f's_lshl1_add_u32 {sCL}, s72, s73')
        else:
            k('s_bfe_u32 s72, s2, 0x20001')
            k('s_lshr_b32 s73, s2, 6')
            k(f's_lshl2_add_u32 {sCL}, s72, s73')
            k('s_bfe_u32 s72, s2, 0x30003')
            k('s_and_b32 s73, s2, 1')
            k(f's_lshl1_add_u32 {sJ}, s72, s73')
        k(f's_and_b32 {sJC}, {sJ}, 7')
        k(f's_lshr_b32 {sTH}, {sJ}, 3')
        k('v_lshlrev_b32 v1, 4, v3')
        k(f'v_mov_b32 v2, {OOB}')
        k('s_mul_i32 s80, s74, 171')
        k('s_lshr_b32 s80, s80, 9')
        k('s_mul_i32 s81, s80, 3')
        k('s_sub_u32 s81, s74, s81')

    def mod_issue(self, tag):
        k = self.k
        k(f's_lshl_b32 s72, {sW}, 10')
        k(f's_add_u32 m0, s72, {L_MOD}')
        for t in range(5):
            k(f'buffer_load_dwordx4 v39, {WMS}, s95 offen{self.nt} lds', tag)
            if t < 4:
                k(f's_add_u32 s95, s95, {32 * 7680}')
                k('s_add_u32 m0, m0, 4096')

    def mod_core(self, tag):
        k = self.k
        k('s_mov_b32 s73, 0x07060503')
        k('s_mov_b32 s77, 0x07060502')
        k('s_mov_b32 s78, 0x07060501')
        k.wait_vm(tag)
        k.barrier()
        for s in range(5):
            k(f'ds_read_b64_tr_b16 v[{200 + 4 * s}:{201 + 4 * s}], v17 offset:{L_MOD + 4096 * s}')
            k(f'ds_read_b64_tr_b16 v[{202 + 4 * s}:{203 + 4 * s}], v17 offset:{L_MOD + 4096 * s + 512}')
            k(f'ds_read_b128 v[{220 + 4 * s}:{223 + 4 * s}], v18 offset:{L_SC + 64 * s}')
        for s in range(5):
            k(f'v_mfma_f32_16x16x32_bf16 v[80:83], v[{200 + 4 * s}:{203 + 4 * s}], v[{220 + 4 * s}:{223 + 4 * s}], {"0" if s == 0 else "v[80:83]"}')
        k('v_perm_b32 v80, v80, v83, s73')
        k('v_perm_b32 v81, v81, v83, s77')
        k('v_perm_b32 v82, v82, v83, s78')
        k('v_mov_b32 v83, s42')
        k(f'buffer_store_dwordx4 v[80:83], v15, {WS}, s96 offen sc1')
        k.fence_hazards()

    def st_wq_issue(self):
        k = self.k
        k('s_movk_i32 s72, 3840')
        k('v_mad_u32_u24 v8, v6, s72, v7')
        k('s_mul_i32 s77, s80, 30720')
        k('s_mul_i32 s72, s81, 1280')
        k('s_add_u32 s77, s77, s72')
        k(f's_mul_i32 s78, {sW}, 3072')
        k(f's_add_u32 m0, s78, {L_WQS}')
        k(f's_add_u32 s82, {sW}, 8')
        k('s_min_u32 s82, s82, 9')
        k(f's_lshl_b32 s72, {sW}, 7')
        k('s_add_u32 s72, s72, s77')
        k(f'buffer_load_dwordx4 v8, {WQS}, s72 offen{self.nt} lds', 'wq')
        k('s_add_u32 s72, s72, 512')
        k('s_add_u32 m0, m0, 1024')
        k(f'buffer_load_dwordx4 v8, {WQS}, s72 offen{self.nt} lds', 'wq')
        k('s_lshl_b32 s72, s82, 7')
        k('s_add_u32 s72, s72, s77')
        k('s_add_u32 m0, m0, 1024')
        k(f'buffer_load_dwordx4 v8, {WQS}, s72 offen{self.nt} lds', 'wq')

    def st_addr(self):
        k = self.k
        k('s_lshl_b32 s97, s80, 9')
        k(f's_add_u32 s97, s97, {WS_WQ}')
        k('s_mul_i32 s78, s81, 40')
        k('s_sub_u32 s78, s78, 40')
        k('s_cmp_eq_u32 s81, 0')
        k('s_cmov_b32 s78, 80')
        k(f's_mov_b32 s79, {WQ_J}')
        k(f's_mov_b32 s73, {WQ_T}')
        for t in range(3):
            if t < 2:
                k(f's_lshl_b32 s72, {sW}, 6')
                if t:
                    k('s_add_u32 s72, s72, 256')
            else:
                k('s_lshl_b32 s72, s82, 6')
            k('v_add_u32 v76, s72, v3')
            k('v_mul_u32_u24 v77, 205, v76')
            k('v_lshrrev_b32 v77, 13, v77')
            k('v_mul_u32_u24 v78, 40, v77')
            k('v_sub_u32 v76, v76, v78')
            k('v_add_u32 v76, s78, v76')
            k('v_lshrrev_b32 v78, 5, v76')
            k('v_and_b32 v76, 31, v76')
            k('v_lshlrev_b32 v76, 4, v76')
            k('v_mad_u32_u24 v76, v78, s73, v76')
            k(f'v_mad_u32_u24 v{20 + t}, v77, s79, v76')
        k(f's_cmp_ge_u32 {sW}, 2')
        k(f's_cselect_b32 s72, {OOB}, 0')
        k('v_or_b32 v22, s72, v22')
        k('s_cmp_ge_u32 s2, 240')
        k(f's_cselect_b32 s72, {OOB}, 0')
        for t in range(3):
            k(f'v_or_b32 v{20 + t}, s72, v{20 + t}')

    def st_wq_process(self):
        k = self.k
        k(f's_mul_i32 s72, {sW}, 3072')
        k('v_add_u32 v76, s72, v19')
        k.wait_vm('wq')
        for t in range(3):
            k(f'ds_read_b64_tr_b16 v[{64 + 4 * t}:{65 + 4 * t}], v76 offset:{L_WQS + 1024 * t}')
            k(f'ds_read_b64_tr_b16 v[{66 + 4 * t}:{67 + 4 * t}], v76 offset:{L_WQS + 1024 * t + 512}')
        for t in range(3):
            k(f'buffer_store_dwordx4 v[{64 + 4 * t}:{67 + 4 * t}], v{20 + t}, {WS}, s97 offen sc1', 'wqst')
        self.stamp('wqst')

    def st_x_issue(self):
        k = self.k
        k('v_mul_u32_u24 v36, 80, v7')
        k('v_lshl_add_u32 v36, v6, 4, v36')
        k('v_cmp_gt_u32 vcc, 32, v3')
        k('v_cndmask_b32 v38, v2, v36, vcc')
        k(f's_lshl4_add_u32 s72, {sCL}, {sJ}')
        k('s_mul_i32 s72, s72, 10240')
        k(f's_mul_i32 s73, {sW}, 320')
        k('s_add_u32 s72, s72, s73')
        k(f'buffer_load_dwordx4 v[24:27], v36, {XS}, s72 offen{self.ntx}')
        k(f'buffer_load_dwordx4 v[28:31], v36, {XS}, s72 offen offset:128{self.ntx}')
        k(f'buffer_load_dwordx4 v[32:35], v38, {XS}, s72 offen offset:256{self.ntx}')
        k(f's_mul_i32 s86, {sCL}, 163840')
        k(f's_lshr_b32 s72, {sJ}, 2')
        k('s_mul_i32 s72, s72, 40960')
        k('s_add_u32 s86, s86, s72')
        k(f's_and_b32 s72, {sJ}, 3')
        k('s_lshl_b32 s72, s72, 7')
        k('s_add_u32 s86, s86, s72')
        k(f's_mul_i32 s72, {sW}, 10240')
        k('s_add_u32 s86, s86, s72')
        k(f's_add_u32 s86, s86, {WS_H}')
        self.stamp('xiss')

    def st_mod(self):
        k = self.k
        k('s_getreg_b32 s49, hwreg(HW_REG_XCC_ID, 0, 3)')
        k('s_mul_i32 s42, s42, 0x9e3779b1')
        k('s_add_u32 s42, s42, 0x7f4a7c15')
        k('s_mov_b32 s50, s42')
        k('s_and_b32 s42, s42, -8')
        k('s_or_b32 s51, s42, s49')
        k(f's_lshl2_add_u32 s72, {sJ}, {sW}')
        k('s_lshl_b32 s72, s72, 2')
        k('v_mov_b32 v4, s72')
        k('v_cmp_eq_u32 vcc, 0, v3')
        k('v_cndmask_b32 v4, v2, v4, vcc')
        k('v_mov_b32 v5, s42')
        k('v_cmp_eq_u32 vcc, 0, v37')
        k('v_cndmask_b32 v12, v2, 0, vcc')
        k('v_mov_b32 v14, s51')
        k(f's_lshl_b32 s72, {sCL}, 7')
        k(f's_lshl2_add_u32 s72, {sJ}, s72')
        k(f'buffer_store_dword v14, v12, {WS}, s72 offen offset:{WS_HELLO} sc1')
        k('v_lshlrev_b32 v14, 16, v10')
        k('v_and_b32 v15, 0xffff0000, v10')
        for r in (14, 15):
            k(f'v_mul_f32 v{r + 2}, {f2u(-1.4426950408889634):#x}, v{r}')
        for r in (14, 15):
            k(f'v_exp_f32 v{r + 2}, v{r + 2}')
        for r in (14, 15):
            k(f'v_add_f32 v{r + 2}, 1.0, v{r + 2}')
        for r in (14, 15):
            k(f'v_rcp_f32 v{r + 2}, v{r + 2}')
        for r in (14, 15):
            k(f'v_mul_f32 v{r}, v{r}, v{r + 2}')
        k('v_cvt_pk_bf16_f32 v14, v14, v15')
        k(f'ds_write_b32 v9, v14 offset:{L_SC}')
        k('v_bfe_u32 v13, v3, 2, 2')
        k('v_lshlrev_b32 v13, 7, v13')
        k('v_and_b32 v14, 3, v3')
        k('v_lshl_add_u32 v15, v14, 3, v13')
        k('v_lshrrev_b32 v16, 4, v3')
        k('v_lshl_add_u32 v17, v16, 10, v15')
        k(f's_lshl_b32 s72, {sW}, 5')
        k('v_add_u32 v17, s72, v17')
        k('v_lshlrev_b32 v18, 4, v16')
        k('v_lshl_add_u32 v19, v16, 5, v15')
        k('v_lshlrev_b32 v15, 6, v16')
        k('v_and_b32 v76, 15, v3')
        k('v_cmp_eq_u32 vcc, 0, v76')
        k('v_cndmask_b32 v15, v2, v15, vcc')
        k(f's_lshl2_add_u32 s96, s75, {sW}')
        k('s_lshl_b32 s96, s96, 8')
        k('s_lshl4_add_u32 s96, s76, s96')
        k(f's_add_u32 s96, s96, {WS_MODG}')

    def st_modc(self):
        k = self.k
        lab = k.newlabel('mc')
        k(f's_cmp_ge_u32 s2, {self.o.late}')
        k(f's_cbranch_scc1 {lab}')
        k.cond_begin()
        self.mod_core('mod')
        k.cond_end()
        k.label(lab)
        self.stamp('modpub')

    def st_addr2(self):
        k = self.k
        k('s_lshr_b32 s58, s80, 2')
        k('s_mul_i32 s58, s58, 3072')
        k('s_and_b32 s72, s80, 3')
        k('s_lshl_b32 s72, s72, 8')
        k('s_add_u32 s58, s58, s72')
        k(f's_add_u32 s58, s58, {WS_WGU}')
        k('s_lshl_b32 s64, s81, 6')
        k(f's_lshl3_add_u32 s64, {sW}, s64')
        k('s_cmp_ge_u32 s2, 240')
        k(f's_cselect_b32 s59, {OOB}, 0')
        k('v_lshrrev_b32 v154, 1, v14')
        k('v_lshl_add_u32 v154, v154, 3, v13')
        k('v_and_b32 v156, 1, v14')
        k('v_lshl_add_u32 v154, v156, 10, v154')
        k('v_add_u32 v154, v154, v18')
        k(f's_lshl_b32 s77, {sW}, 12')
        k(f's_add_u32 s77, s77, {L_GUS}')
        k('v_add_u32 v154, s77, v154')
        k(f's_sub_u32 s78, 3, {sW}')
        k('s_lshl_b32 s78, s78, 10')
        k(f's_add_u32 s78, s78, {L_GUS}')
        k('v_add_u32 v155, s78, v19')
        k('v_and_b32 v156, 9, v3')
        k('v_bfe_u32 v157, v3, 1, 1')
        k('v_lshl_add_u32 v156, v157, 2, v156')
        k('v_bfe_u32 v157, v3, 2, 1')
        k('v_lshl_add_u32 v156, v157, 1, v156')
        k('v_lshlrev_b32 v156, 4, v156')
        k('v_or_b32 v156, s59, v156')
        k(f's_mov_b32 s73, {WGU_S - 3072}')
        for t in range(2):
            for hf in range(2):
                d = 144 + 2 * t + hf
                k(f's_add_u32 s77, s64, {32 * t + 4 * hf}')
                k('v_add_u32 v157, s77, v16')
                k('v_mul_u32_u24 v158, 171, v157')
                k('v_lshrrev_b32 v158, 9, v158')
                k('v_lshl_add_u32 v157, v157, 10, v156')
                k(f'v_mad_u32_u24 v{d}, v158, s73, v157')
        k(f's_cmp_lt_u32 {sW}, 2')
        k(f's_cselect_b32 s79, {OOB}, 0')
        for t in range(3):
            k(f's_sub_u32 s78, {3 + 4 * t}, {sW}')
            k('s_lshl_b32 s78, s78, 6')
            k('v_add_u32 v156, s78, v3')
            k('v_mul_u32_u24 v157, 205, v156')
            k('v_lshrrev_b32 v157, 14, v157')
            k('v_mul_u32_u24 v158, 80, v157')
            k('v_sub_u32 v156, v156, v158')
            k('v_bfe_u32 v158, v156, 3, 2')
            k('v_and_b32 v159, 3, v156')
            k('v_lshl_add_u32 v158, v158, 2, v159')
            k('v_bfe_u32 v159, v156, 2, 1')
            k('v_lshl_add_u32 v158, v159, 6, v158')
            k('v_cmp_gt_u32 vcc, 64, v156')
            k('v_and_b32 v159, 15, v156')
            k('v_lshrrev_b32 v156, 5, v156')
            k('v_cndmask_b32 v158, v159, v158, vcc')
            k('v_lshl_add_u32 v158, v156, 7, v158')
            k('v_lshlrev_b32 v158, 4, v158')
            if t == 2:
                k('v_or_b32 v158, s79, v158')
            k(f'v_mad_u32_u24 v{148 + t}, v157, s55, v158')
            k(f'v_mad_u32_u24 v{151 + t}, v157, s57, v158')

    def st_ones(self):
        k = self.k
        k('v_and_b32 v92, 32, v3')
        k('v_add_u32 v92, v92, v21')
        k('v_mov_b32 v94, 0x3f80')
        k('v_mov_b32 v95, 0')
        k(f'ds_write_b64 v92, v[94:95] offset:{L_KVOWN + V_OFF[0] + 40}')

    def st_norm(self):
        k = self.k
        X = list(range(40, 64))
        for i in range(12):
            k(f'v_lshlrev_b32 v{40 + 2 * i}, 16, v{24 + i}')
            k(f'v_and_b32 v{41 + 2 * i}, 0xffff0000, v{24 + i}')
        self.stamp('xin')
        k('v_pk_add_f32 v[76:77], v[40:41], v[42:43]')
        k('v_pk_mul_f32 v[78:79], v[40:41], v[40:41]')
        k('v_pk_fma_f32 v[78:79], v[42:43], v[42:43], v[78:79]')
        for i in range(2, 12):
            k(f'v_pk_add_f32 v[76:77], v[76:77], v[{40 + 2 * i}:{41 + 2 * i}]')
            k(f'v_pk_fma_f32 v[78:79], v[{40 + 2 * i}:{41 + 2 * i}], v[{40 + 2 * i}:{41 + 2 * i}], v[78:79]')
        k('v_add_f32 v76, v76, v77')
        k('v_add_f32 v77, v78, v79')
        k('v_add_f32_dpp v76, v76, v76 row_ror:8 row_mask:0xf bank_mask:0xf')
        k('v_add_f32_dpp v77, v77, v77 row_ror:8 row_mask:0xf bank_mask:0xf')
        self.rowsum(76, 78)
        self.rowsum(77, 79)
        k('v_lshlrev_b32 v78, 1, v7')
        k(f'v_add_u32 v78, {L_STAT}, v78')
        k(f's_lshl_b32 s72, {sW}, 3')
        k('v_add_u32 v79, s72, v78')
        k(f'ds_write_b64 v79, v[76:77]')
        k.barrier()
        k(f'ds_read_b128 v[88:91], v78')
        k(f'ds_read_b128 v[92:95], v78 offset:16')
        k('v_pk_add_f32 v[88:89], v[88:89], v[90:91]')
        k('v_pk_add_f32 v[92:93], v[92:93], v[94:95]')
        k('v_pk_add_f32 v[88:89], v[88:89], v[92:93]')
        k(f'v_mul_f32 v88, {f2u(1 / 640):#x}, v88')
        k(f'v_mul_f32 v89, {f2u(1 / 640):#x}, v89')
        k('v_fma_f32 v89, -v88, v88, v89')
        k('v_max_f32 v89, 0, v89')
        if 'nor0' not in self.o.x:
            self.bf16_round_keep([88, 89], 90)
        k(f'v_add_f32 v89, {f2u(1e-5):#x}, v89')
        if 'nor0' not in self.o.x:
            self.bf16_round_keep([88, 89], 90)
        k('v_sqrt_f32 v89, v89')
        if 'nor0' not in self.o.x:
            self.bf16_round_keep([88, 89], 90)
        k('v_rcp_f32 v89, v89')
        for i in range(12):
            k(f'v_pk_add_f32 v[{40 + 2 * i}:{41 + 2 * i}], v[{40 + 2 * i}:{41 + 2 * i}], v[88:89] op_sel_hi:[1,0] neg_lo:[0,1] neg_hi:[0,1]')
        if 'nor12' not in self.o.x:
            self.bf16_round_keep(X, 90)
        for i in range(12):
            k(f'v_pk_mul_f32 v[{40 + 2 * i}:{41 + 2 * i}], v[{40 + 2 * i}:{41 + 2 * i}], v[88:89] op_sel:[0,1]')
        if 'nor12' not in self.o.x:
            self.bf16_round_keep(X, 90)

    def wg_flag(self, tag, base):
        k = self.k
        k.wait_vm(tag)
        k.barrier()
        k('s_lshl_b32 s72, s2, 2')
        k(f's_add_u32 s72, s72, {base}')
        k(f'buffer_store_dword v5, v12, {WS}, s72 offen sc1')

    def late_mod(self, fn):
        k = self.k
        if self.o.late >= 240:
            return
        lab = k.newlabel('ml')
        k(f's_sub_u32 s72, s2, {self.o.late}')
        k(f's_cmp_ge_u32 s72, {240 - self.o.late}')
        k(f's_cbranch_scc1 {lab}')
        k.cond_begin()
        fn('modl')
        k.cond_end()
        k.label(lab)

    def st_rest_prep(self):
        k = self.k
        self.od_prep('s2', 0)
        k('s_add_u32 s48, s2, 16')
        self.od_prep('s48', 1)
        k('s_movk_i32 s72, 3072')
        k('v_mad_u32_u24 v36, v6, s72, v7')
        k('s_mul_i32 s65, s80, 24576')
        k('s_lshl_b32 s72, s81, 10')
        k('s_add_u32 s65, s65, s72')
        k(f's_lshl_b32 s72, {sW}, 7')
        k('s_add_u32 s65, s65, s72')

    def rest_units(self, vg, vo):
        k = self.k

        def od(which):
            so = f's{66 + which}'
            k(f's_sub_u32 s88, 3, {sW}')
            k('s_lshl_b32 s88, s88, 10')
            k(f's_add_u32 m0, s88, {L_ODS[which]}')
            k(f'buffer_load_dwordx4 v{vo + which}, {ODS}, {so} offen{self.nt} lds', 'rest')
            k(f's_add_u32 {so}, {so}, 512')
            k('s_add_u32 m0, m0, 4096')
            k(f'buffer_load_dwordx4 v{vo + which}, {ODS}, {so} offen{self.nt} lds', 'rest')
            lab = k.newlabel('od3')
            k(f's_cmp_lt_u32 {sW}, 2')
            k(f's_cbranch_scc1 {lab}')
            k.cond_begin()
            k(f's_add_u32 {so}, {so}, 512')
            k('s_add_u32 m0, m0, 4096')
            k(f'buffer_load_dwordx4 v{vo + which}, {ODS}, {so} offen{self.nt} lds', 'rest')
            k.cond_end()
            k.label(lab)
        k.begin()
        lab, done = k.newlabel('od2'), k.newlabel('rid')
        k('s_cmp_ge_u32 s2, 240')
        k(f's_cbranch_scc1 {lab}')
        k.cond_begin()
        k(f's_lshl_b32 s88, {sW}, 12')
        k(f's_add_u32 m0, s88, {L_GUS}')
        for t in range(2):
            k(f'buffer_load_dwordx4 v{vg}, {WGS}, s65 offen{self.nt} lds', 'rest')
            k('s_add_u32 m0, m0, 1024')
            k(f'buffer_load_dwordx4 v{vg}, {WUS}, s65 offen{self.nt} lds', 'rest')
            if t == 0:
                k('s_add_u32 m0, m0, 1024')
                k('s_add_u32 s65, s65, 512')
        k(f's_branch {done}')
        k.cond_end()
        k.label(lab)
        k.cond_begin()
        od(1)
        k.cond_end()
        k.label(done)
        u0 = k.end()
        k.begin()
        od(0)
        return [u0, k.end()]

    RA = 144

    def rest_reads(self):
        k = self.k
        k.wait_vm('rest')
        for t in range(2):
            for hf in range(2):
                b = 8 * t + 4 * hf
                k(f'ds_read_b64_tr_b16 a[{b}:{b + 1}], v{self.RA + 10} offset:{2048 * t + 64 * hf}')
                k(f'ds_read_b64_tr_b16 a[{b + 2}:{b + 3}], v{self.RA + 10} offset:{2048 * t + 64 * hf + 512}')
        for which in range(2):
            for t in range(3):
                b = 16 + 12 * which + 4 * t
                off = L_ODS[which] - L_GUS + 4096 * t
                k(f'ds_read_b64_tr_b16 a[{b}:{b + 1}], v{self.RA + 11} offset:{off}')
                k(f'ds_read_b64_tr_b16 a[{b + 2}:{b + 3}], v{self.RA + 11} offset:{off + 512}')

    def rest_stores(self):
        k = self.k
        us = []
        for i in range(4):
            k.begin()
            k(f'buffer_store_dwordx4 a[{4 * i}:{4 * i + 3}], v{self.RA + i}, {WS}, s58 offen sc1', 'pre')
            us.append(k.end())
        for t in range(3):
            k.begin()
            k(f'buffer_store_dwordx4 a[{16 + 4 * t}:{19 + 4 * t}], v{self.RA + 4 + t}, {WS}, s54 offen sc1', 'pre')
            us.append(k.end())
        k.begin()
        lab = k.newlabel('od2p')
        k('s_cmp_lt_u32 s2, 240')
        k(f's_cbranch_scc1 {lab}')
        k.cond_begin()
        for t in range(3):
            k(f'buffer_store_dwordx4 a[{28 + 4 * t}:{31 + 4 * t}], v{self.RA + 7 + t}, {WS}, s56 offen sc1', 'pre')
        k.cond_end()
        k.label(lab)
        us.append(k.end())
        return us

    def od_prep(self, sn, which):
        k = self.k
        sB, sJS = (f's{54 + 2 * which}', f's{55 + 2 * which}')
        if which == 0:
            k('s_mov_b32 s18, 819200')
        k(f's_mov_b32 {sJS}, {WO_J}')
        k('s_movk_i32 s73, 3277')
        k(f's_mov_b32 {sB}, {WS_WO}')
        k(f's_cmp_lt_u32 {sn}, 192')
        if which == 0:
            k('s_cselect_b64 s[16:17], s[60:61], s[52:53]')
            k('s_cmov_b32 s18, 1966080')
        k(f's_cmov_b32 {sJS}, {WD_J}')
        k('s_cmov_b32 s73, 1366')
        k(f's_cmov_b32 {sB}, {WS_WD}')
        k(f's_cselect_b32 s72, 0, 192')
        k(f's_sub_u32 s77, {sn}, s72')
        k('s_mul_i32 s73, s73, s77')
        k('s_lshr_b32 s73, s73, 16')
        k(f's_mul_i32 s73, s73, {OD_W}')
        k(f's_add_u32 {sB}, {sB}, s73')
        k('s_lshr_b32 s72, s77, 2')
        k('s_mul_i32 s72, s72, 5120')
        k(f's_add_u32 {sB}, {sB}, s72')
        k('s_and_b32 s72, s77, 3')
        k('s_lshl_b32 s72, s72, 8')
        k(f's_add_u32 {sB}, {sB}, s72')
        k('s_mul_i32 s72, s77, 205')
        k('s_lshr_b32 s72, s72, 10')
        k('s_mul_i32 s73, s72, 5')
        k('s_sub_u32 s73, s77, s73')
        k('s_mul_i32 s72, s72, 40')
        k('s_lshr_b32 s78, s73, 1')
        k('s_mul_i32 s78, s78, 20')
        k('s_and_b32 s79, s73, 1')
        k('s_lshl2_add_u32 s78, s79, s78')
        k('s_cmp_eq_u32 s73, 4')
        k('s_cselect_b32 s78, 16, s78')
        k('s_cselect_b32 s79, 20, 8')
        k('s_add_u32 s72, s72, s78')
        k('s_lshl_b32 s77, s77, 3')
        k(f's_cmp_lt_u32 {sn}, 192')
        k('s_cselect_b32 s77, s77, s72')
        k('s_cselect_b32 s79, 4, s79')
        k('s_mul_i32 s77, s77, 1280')
        k('v_lshrrev_b32 v76, 5, v3')
        k('v_and_b32 v77, 3, v6')
        k('v_mad_u32_u24 v76, v76, s79, v77')
        k('s_movk_i32 s72, 1280')
        k(f'v_mad_u32_u24 v{38 + which}, v76, s72, v7')
        k(f's_sub_u32 s72, 3, {sW}')
        k('s_lshl_b32 s72, s72, 7')
        k(f's_add_u32 s{66 + which}, s72, s77')

    def mod_pass(self, second, between=None, withpq=False, onmiss=None, split=False):
        k = self.k
        G = 64
        vecA = 3 if second else 0
        n = 6 if second else 5
        k(f's_mul_i32 s74, {sW}, 2560')
        k(f's_add_u32 s74, s74, {WS_MODG + vecA * 10240}')
        k(f's_add_u32 s75, s74, {7680 + 3072}')
        k('v_cmp_gt_u32 vcc, 32, v3')
        k('v_add_u32 v93, 7680, v1')
        k('v_cndmask_b32 v93, v93, v1, vcc')
        k('v_cndmask_b32 v94, 1.0, 0, vcc')
        if second:
            k('v_min_u32 v95, 624, v1')
            k(f's_lshr_b32 s76, {sW}, 1')
            k('s_mul_i32 s76, s76, 30720')
            k(f's_and_b32 s72, {sW}, 1')
            k(f's_lshl1_add_u32 s72, {sJC}, s72')
            k('s_mul_i32 s72, s72, 640')
            k('s_add_u32 s76, s76, s72')
            k(f's_add_u32 s76, s76, {WS_MODG + 2 * 10240}')
        else:
            k(f's_lshl_b32 s76, {sCL}, 7')
            k('v_and_b32 v95, 15, v3')
            k('v_lshlrev_b32 v95, 2, v95')
            k('s_mov_b32 s60, 0xaaaaaaaa')
            k('s_mov_b32 s61, s60')
            k('s_mov_b32 s62, 0xcccccccc')
            k('s_mov_b32 s63, s62')
            k(f's_mul_i32 s72, {sW}, 1280')
            k(f's_add_u32 s72, s72, {L_MV}')
            k('v_lshl_add_u32 v92, v3, 2, s72')
            k('v_lshl_add_u32 v17, v6, 5, s72')
            k('v_lshl_add_u32 v15, v6, 9, v7')
            k('v_cndmask_b32 v10, v2, v15, vcc')
            k('v_mov_b32 v101, 0')
        k(f's_movk_i32 s79, {WS_PQ}')
        k('s_mov_b32 s77, 0x04000c0c')
        k('s_mov_b32 s78, 0x0706000c')

        A, B, C = ('s60', 's61', 's62') if split else ('s74', 's75', 's76')
        if split:
            for d_, s_ in zip((A, B, C), ('s74', 's75', 's76')):
                k(f's_mov_b32 {d_}, {s_}')

        def loads():
            k(f'buffer_load_dwordx4 v[{G}:{G + 3}], v1, {WS}, {A} offen sc1')
            k(f'buffer_load_dwordx4 v[{G + 4}:{G + 7}], v1, {WS}, {A} offen offset:1024 sc1')
            k(f'buffer_load_dwordx4 v[{G + 8}:{G + 11}], v93, {WS}, {A} offen offset:2048 sc1')
            k(f'buffer_load_dwordx4 v[{G + 12}:{G + 15}], v1, {WS}, {B} offen sc1')
            k(f'buffer_load_dwordx4 v[{G + 16}:{G + 19}], v1, {WS}, {B} offen offset:1024 sc1')
            if second:
                k(f'buffer_load_dwordx4 v[{G + 20}:{G + 23}], v95, {WS}, {C} offen sc1')
            else:
                k(f'buffer_load_dword v{G + 22}, v95, {WS}, {C} offen offset:{WS_HELLO} sc1')
            if withpq:
                k(f'buffer_load_dwordx4 v[96:99], v1, {WS}, s79 offen sc1')

        def check():
            if not second:
                k(f'v_and_b32 v{G + 23}, -8, v{G + 22}')
            self.allcheck([G + 4 * i + 3 for i in range(6)] + ([96, 97, 98, 99] if withpq else []), 88)

        def body():
            loads()
            k('s_waitcnt vmcnt(0)')
            check()
            if second or withpq:
                k('s_cbranch_vccz 1')
                k('s_sleep 8')
        if split:
            loads()
            k.begin()
            check()
            self.recheck(body)
        else:
            self.spin(body, onmiss)
        if onmiss is not None:
            k('s_mov_b32 s93, s73')
        if not second:
            self.stamp('modin')
        if between is not None:
            between()
        if not second:
            k.begin()
            k(f'v_cmp_ne_u32 vcc, s51, v{G + 22}')
            k('s_cmp_eq_u64 vcc, 0')
            k(f's_cselect_b32 {sFAST}, {0 if self.o.force_slow else 1}, 0')
            k(f's_cmp_lg_u32 {sFAST}, 0')
            k(f's_cselect_b32 s72, {OOB}, 0')
            k(f'v_or_b32 v{VF_SLOW}, s72, v4')
            k(f's_cselect_b32 s72, 0, {OOB}')
            k(f'v_or_b32 v{VF_FAST}, s72, v4')
            k(f's_lshl_b32 s{SF}, {sCL}, 13')
            k(f's_add_u32 s{SF}, s{SF}, {WS_FLAG}')
            k(f's_add_u32 s{SF + 1}, s{SF}, 4096')
            self.fast_setup = k.end()
        for i in range(n):
            b = G + 4 * i
            k(f'v_perm_b32 v{b + 3}, v{b}, v{b + 1}, s77')
        for i in range(n):
            b = G + 4 * i
            k(f'v_perm_b32 v{b + 3}, v{b + 3}, v{b + 2}, s78')
        if second:
            for qp in ('[1,0,3,2]', '[2,3,0,1]'):
                for r in range(G, G + 4 * n):
                    k(f'v_add_f32_dpp v{r}, v{r}, v{r} quad_perm:{qp} row_mask:0xf bank_mask:0xf')
            k('v_lshrrev_b32 v88, 2, v3')
        if not second:
            D = ' row_mask:0xf bank_mask:0xf'
            for i in range(5):
                b = G + 4 * i
                k(f'v_cndmask_b32 v{96 + 2 * i}, v{b + 1}, v{b}, s[60:61]')
                k(f'v_cndmask_b32 v{97 + 2 * i}, v{b + 3}, v{b + 2}, s[60:61]')
                k(f'v_cndmask_b32 v{b}, v{b}, v{b + 1}, s[60:61]')
                k(f'v_cndmask_b32 v{b + 2}, v{b + 2}, v{b + 3}, s[60:61]')
            for i in range(5):
                b = G + 4 * i
                k(f'v_add_f32_dpp v{b}, v{96 + 2 * i}, v{b} quad_perm:[1,0,3,2]{D}')
                k(f'v_add_f32_dpp v{b + 2}, v{97 + 2 * i}, v{b + 2} quad_perm:[1,0,3,2]{D}')
            for i in range(5):
                b = G + 4 * i
                k(f'v_cndmask_b32 v{b + 1}, v{b + 2}, v{b}, s[62:63]')
                k(f'v_cndmask_b32 v{b}, v{b}, v{b + 2}, s[62:63]')
            for i in range(5):
                b = G + 4 * i
                k(f'v_add_f32_dpp v{96 + i}, v{b + 1}, v{b} quad_perm:[2,3,0,1]{D}')
            self.bf16_round_keep([96, 97, 98, 99, 100, 101], 89)
            k('v_add_f32 v98, v94, v98')
            k('v_add_f32 v99, 1.0, v99')
            k('v_add_f32 v100, 1.0, v100')
            self.bf16_round_keep([98, 99, 100, 101], 89)
            for i in range(5):
                k(f'ds_write_b32 v92, v{96 + i} offset:{256 * i}')
        else:
            k('v_lshlrev_b32 v88, 3, v88')
            k(f's_mul_i32 s72, {sW}, 80')
            k(f's_add_u32 s72, s72, {P_GA}')
            k('v_add_u32 v91, s72, v88')
            k(f'v_mov_b32 v92, {P_DUMMY}')
            k('v_cmp_gt_u32 vcc, 40, v3')
            k('v_cndmask_b32 v91, v92, v91, vcc')
            k(f's_mul_i32 s72, {sW}, 320')
            k(f's_add_u32 s72, s72, {L_P}')
            k('v_add_u32 v88, s72, v88')
            k('v_add_u32 v90, 960, v88')
            k('v_cmp_gt_u32 vcc, 32, v3')
            k('v_cndmask_b32 v90, v90, v88, vcc')
            for i in range(6):
                b = G + 4 * i
                if 2 <= i < 5:
                    self.bf16_round_keep([b, b + 1, b + 2, b + 3], 89)
                    for r in range(b, b + 4):
                        k(f'v_add_f32 v{r}, {"v94" if i == 2 else "1.0"}, v{r}')
                k(f'v_cvt_pk_bf16_f32 v{b}, v{b}, v{b + 1}')
                k(f'v_cvt_pk_bf16_f32 v{b + 1}, v{b + 2}, v{b + 3}')
                if i < 2:
                    k(f'ds_write_b64 v88, v[{b}:{b + 1}] offset:{128 * i}')
                elif i == 2:
                    k(f'ds_write_b64 v90, v[{b}:{b + 1}] offset:256')
                elif i < 5:
                    k(f'ds_write_b64 v88, v[{b}:{b + 1}] offset:{128 * i + 960}')
                else:
                    k(f'ds_write_b64 v91, v[{b}:{b + 1}]')
        if split:
            self.m2_rest = k.end()

    def make_h(self):
        k = self.k
        for i in range(3):
            for h in range(2):
                k(f'ds_read_b128 v[{96 + 16 * i + 4 * h}:{99 + 16 * i + 4 * h}], v17 offset:{256 * i + 16 * h + 640}')
            for h in range(2):
                k(f'ds_read_b128 v[{104 + 16 * i + 4 * h}:{107 + 16 * i + 4 * h}], v17 offset:{256 * i + 16 * h}')
        for i in range(3):
            xs = [40 + 8 * i + e for e in range(8)]
            for e in range(0, 8, 2):
                k(f'v_pk_mul_f32 v[{xs[e]}:{xs[e] + 1}], v[{xs[e]}:{xs[e] + 1}], v[{96 + 16 * i + e}:{97 + 16 * i + e}]')
            if 'nor3' not in self.o.x:
                self.bf16_round_keep(xs, 89)
            for e in range(0, 8, 2):
                k(f'v_pk_add_f32 v[{xs[e]}:{xs[e] + 1}], v[{xs[e]}:{xs[e] + 1}], v[{104 + 16 * i + e}:{105 + 16 * i + e}]')
            for e in range(0, 8, 2):
                k(f'v_cvt_pk_bf16_f32 v{24 + 4 * i + e // 2}, v{xs[e]}, v{xs[e] + 1}')
            k(f'buffer_store_dwordx4 v[{24 + 4 * i}:{27 + 4 * i}], {"v15" if i < 2 else "v10"}, {WS}, s86 offen', 'h')
            if i < 2:
                k('s_add_u32 s86, s86, 4096')
        self.stamp('hst')
        k.put(self.fast_setup)

    WO_W = [160 + 4 * i for i in range(24)] + [508]
    WGU_W = [256 + 4 * i for i in range(60)]

    def wq_pair(self, src, lds, voff, tag):
        k = self.k
        k.begin()
        k(f's_add_u32 s87, s92, {src}')
        k(f's_add_u32 m0, s91, {lds}')
        k(f'buffer_load_dwordx4 {voff}, {WS}, s87 offen sc1{self.ntw} lds', tag)
        u0 = k.end()
        k.begin()
        k(f'buffer_load_dwordx4 {voff}, {WS}, s87 offen offset:1024 sc1{self.ntw} lds', tag)
        return [u0, k.end()]

    def wq_chunk(self, c):
        slots = [L_A, L_C, L_B]
        return sum((self.wq_pair(WQ_T * t + 8192 * c, slots[t] + 8192 * c, 'v1', f'w{c}') for t in range(3)), [])

    def st_bases(self):
        k = self.k
        k(f's_lshl2_add_u32 s84, {sJ}, {sW}')
        k(f's_mul_i32 s84, s84, {WGU_S}')
        k(f's_add_u32 s84, s84, {WS_WGU}')
        k(f's_mul_i32 s85, {sJC}, {WO_J}')
        k(f's_mul_i32 s72, {sW}, {25 * 1024 + OD_W}')
        k('s_add_u32 s85, s85, s72')
        k(f's_add_u32 s85, s85, {WS_WO}')
        k(f's_lshl2_add_u32 s89, {sCL}, {sW}')
        k(f's_lshl1_add_u32 s90, s89, {sTH}')
        k('s_mul_i32 s90, s90, 20480')
        k(f's_mul_i32 s72, {sJC}, 160')
        k('s_add_u32 s90, s90, s72')
        k('s_mul_i32 s89, s89, 40960')
        k(f's_add_u32 s89, s89, {WS_H}')
        k(f's_mul_i32 s92, {sJ}, {WQ_J}')
        k(f's_lshl_b32 s91, {sW}, 11')
        k('s_add_u32 s92, s92, s91')
        k(f's_add_u32 s92, s92, {WS_WQ}')

    def touch_arena(self):
        k = self.k
        k(f's_lshl4_add_u32 s72, {sCL}, {sJ}')
        k(f's_lshl2_add_u32 s72, s72, {sW}')
        k('s_mul_i32 s73, s72, 6144')
        k(f's_add_u32 s73, s73, {WS_HH}')
        self.touch('s73', 1, 48, 128, 8)
        k('s_lshl_b32 s72, s72, 7')
        k(f's_add_u32 s72, s72, {WS_ST}')
        self.touch('s72', 1, 1, 128, 8)

    def x2_issue(self, t=8):
        k = self.k
        k(f's_mul_i32 s72, {sW}, 2560')
        k(f's_add_u32 m0, s72, {L_X}')
        k('s_movk_i32 s72, 1120')
        for p in range(3):
            k(f'v_add_u32 v{t}, {64 * p}, v3')
            k(f'v_mul_u32_u24 v{t + 1}, 205, v{t}')
            k(f'v_lshrrev_b32 v{t + 1}, 11, v{t + 1}')
            k(f'v_mad_u32_u24 v{t}, v{t + 1}, s72, v1')
            if p == 2:
                k('s_mov_b32 exec_hi, 0')
            k(f'buffer_load_dwordx4 v{t}, {XS}, s90 offen offset:{1024 * p} lds', 'x2')
        k('s_mov_b32 exec_hi, -1')

    def align_page(self):
        k = self.k
        k('s_branch .Lpage0')
        k.raw('.p2align 12')
        k.label('.Lpage0')

    def warm(self):
        k = self.k
        k.fence_hazards()
        k('s_mov_b64 exec, 0')
        for w in range(3):
            k(f's_cmp_eq_u32 {sW}, {w}')
            k(f's_cbranch_scc1 .Lchain{w}')
        k('s_branch .Lchain3')
        k.label('.Lwarm_ret')
        k('s_mov_b64 exec, -1')

    def touch_small(self):
        k = self.k
        k(f's_lshl_b32 s72, {sCL}, 13')
        k(f's_add_u32 s72, s72, {WS_FLAG}')
        self.touch('s72', 2, 8, 2048, 8, dst=95)
        k(f's_lshl4_add_u32 s72, {sCL}, {sJ}')
        k(f's_lshl2_add_u32 s72, s72, {sW}')
        k('s_lshl_b32 s72, s72, 7')
        k(f's_add_u32 s72, s72, {WS_ST}')
        k(f'v_and_b32 v8, {OOB}, v4')
        k(f'buffer_load_dword v95, v8, {WS}, s72 offen sc1')

    def pq_sample(self):
        self.k(f'buffer_load_dwordx4 v[160:163], v1, {WS}, s79 offen sc1')

    def pq_early(self):
        k = self.k
        lab = k.newlabel('pqe')
        self.allcheck([160, 161, 162, 163], 164)
        k('s_cmp_eq_u64 vcc, 0')
        k('s_cselect_b32 s94, 1, 0')
        k(f's_cbranch_scc0 {lab}')
        k.cond_begin()
        for c in range(self.o.nearly):
            self.put_units(self.wq_chunk(c))
        k.cond_end()
        k.label(lab)

    def pq_poll(self):
        k = self.k
        k(f's_movk_i32 s75, {WS_PQ}')

        def body():
            k(f'buffer_load_dwordx4 v[96:99], v1, {WS}, s75 offen sc1')
            k('s_waitcnt vmcnt(0)')
            self.allcheck([96, 97, 98, 99], 100)
            k('s_cbranch_vccz 1')
            k('s_sleep 8')
        self.spin(body)
        self.stamp('pqin')

    def qkv(self):
        k = self.k
        o = self.o
        order = o.order.replace('+', ',').split(',')
        HR = 96
        RING = 256 + 224
        k('v_lshlrev_b32 v10, 2, v3')
        k('v_and_b32 v7, 60, v10')
        k(f'v_add_u32 v8, {L_A}, v1')
        k(f'v_add_u32 v9, {L_B}, v1')
        k('v_and_b32 v40, 31, v3')
        k('v_cmp_gt_u32 vcc, 24, v40')
        k('v_cndmask_b32 v6, v2, v1, vcc')
        self.flag_off('s74', PH_H)
        k(f's_lshl_b32 s72, {sW}, 6')
        k('s_add_u32 s74, s74, s72')
        k(f's_movk_i32 s75, {WS_PQ}')
        k(f's_mul_i32 s80, {sCL}, {O_CL}')
        k(f's_mul_i32 s72, {sW}, 40960')
        k('s_add_u32 s80, s80, s72')
        k(f's_mul_i32 s72, {sJ}, 1280')
        k('s_add_u32 s80, s80, s72')
        k(f's_add_u32 s80, s80, {WS_O}')
        k(f's_lshl4_add_u32 s96, {sCL}, {sJ}')
        k(f's_mul_i32 s97, s96, {4 * KVB}')
        k(f's_add_u32 s97, s97, {WS_KV}')
        k(f's_mul_i32 s81, {sW}, {KVB}')
        k('s_add_u32 s82, s97, s81')
        k('s_add_u32 s83, s82, 2560')
        needpq = not ('pqp' in order or 'm1q' in order)

        def body():
            if needpq:
                k(f'buffer_load_dwordx4 v[40:43], v1, {WS}, s75 offen sc1')
            k(f'buffer_load_dword v44, v7, {WS}, s74 offen sc1')
            k('s_waitcnt vmcnt(0)')
            self.allcheck(([40, 41, 42, 43] if needpq else []) + [44], 45)
        self.spin(body)
        self.acquire('h')
        self.stamp('hflag')
        addr = ['v8', 'v1', 'v9']
        t3 = [(L_A, 'v8', 0), (L_A + 8192, 'v8', 8192), (L_B, 'v9', 0), (L_B + 8192, 'v9', 8192), (L_C, 'v1', 0)]
        pair = self.wq_pair
        hl = self.units_frags([HR + 4 * i for i in range(40)], 's89')
        wgu = self.units_frags(self.WGU_W, 's84', tag='wgu')
        done = [c for c in range(5) if f'c{c}' in order]
        dyn = 'm1d' in order
        if 'pqe' in order:
            lab = k.newlabel('pql')
            k('s_cmp_lg_u32 s94, 0')
            k(f's_cbranch_scc1 {lab}')
            k.cond_begin()
            for c in range(o.nearly):
                self.put_units(self.wq_chunk(c))
            k.cond_end()
            k.label(lab)
            allw = sum((self.wq_chunk(c) for c in range(o.nearly, 5)), [])
            lst = hl[:8]
            nh = 8
        else:
            allw = sum((self.wq_chunk(c) for c in range(5) if c not in done), [])
            nw, nh = o.up
            lst = allw[:6] + hl[:4] + allw[6:nw] + hl[4:nh]
            allw = allw[nw:]
        if 'rs' not in order and not dyn:
            lst = lst[:o.rspos] + self.rest_stores() + lst[o.rspos:]
        if 'm2' in order:
            self.put_units(lst[:o.m2pos])
            k.put(self.m2_rest)
            lst = lst[o.m2pos:]
        self.put_units(lst)
        if dyn:
            lab = k.newlabel('ril')
            k('s_cmp_lg_u32 s93, 1')
            k(f's_cbranch_scc1 {lab}')
            k.cond_begin()
            self.put_units(self.rest_units(36, 38))
            k.cond_end()
            k.label(lab)
            for i in range(12):
                k(f'v_mov_b32 v{80 + i}, v{144 + i}')
        lab = k.newlabel('ep')
        k('s_cmp_lg_u32 s2, 0')
        k(f's_cbranch_scc1 {lab}')
        k.cond_begin()
        k('v_mov_b32 v13, s50')
        k(f'buffer_store_dword v13, v12, {WS}, 0 offen sc1')
        k.cond_end()
        k.label(lab)
        k('v_mov_b32 v23, v12')
        seq = [(t, s, 1024 * s, addr[t]) for s in range(40) for t in range(3)]
        seq += [(3, s, t3[s // 8][2] + 1024 * (s % 8), t3[s // 8][1]) for s in range(40)]
        D = 6
        k.wait_vm('w0')
        k.barrier()
        self.stamp('c0')
        k.begin()

        def rd(i):
            k(f'ds_read_b128 {ur(RING + 4 * (i % 8))}, {seq[i][3]} offset:{seq[i][2]}')
        for i in range(D):
            rd(i)
        for i, (t, s, _, _) in enumerate(seq):
            a = 32 + 16 * t
            k(f'v_mfma_f32_32x32x16_bf16 v[{a}:{a + 15}], {ur(RING + 4 * (i % 8))}, v[{HR + 4 * s}:{HR + 4 * s + 3}], {"0" if s == 0 else f"v[{a}:{a + 15}]"}')
            if i + D < len(seq):
                rd(i + D)
        w = Sched(k.end())
        bars = [(24 * c - D, f'w{c}') for c in range(1, 6) if c not in done or c == 3] + ([] if 'pr' in order else [(o.prflag, 'pre')])
        for gap, tag in sorted(bars):
            k.begin()
            k.wait_vm(tag)
            k('s_barrier')
            if o.fine:
                self.stamp(f'c{gap}')
            if tag == 'pre':
                k('s_lshl_b32 s72, s2, 2')
                k(f's_add_u32 s72, s72, {WS_PR}')
                k(f'buffer_store_dword v5, v23, {WS}, s72 offen sc1')
            w.pre(gap, k.end())
        if allw:
            w.spread(allw, 0, o.wend)
        w.spread(hl[nh:], 1, o.hend)
        if dyn:
            self.RA = 80
            k.begin()
            self.rest_reads()
            rr = k.end()
            w.pre(o.rsgap - 8, rr[:1])
            w.fill(rr[1:], first=o.rsgap - 8, last=o.rsgap - 1)
            w.spread(self.rest_stores(), o.rsgap, o.rsgap + 9)
            k.begin()
            self.x2_issue(92)
            w.post(o.x2gap, k.end())
        w.spread(sum((pair(WQ_T * 3 + 8192 * i, t3[i][0], 'v6', 'w5') for i in range(5)), []), 67, o.t3end)
        k.begin()
        k(f'buffer_load_dwordx4 v[24:27], v1, {WS}, s75 offen offset:{WS_PR - WS_PQ} sc1')
        w.at(max(o.prgap - 19, 0), k.end())
        k.begin()
        if 'to' not in order and 'o' not in k.wt:
            self.touch('s80', 10, 20, 20480, 20)
        k('v_and_b32 v20, 31, v3')
        k('v_lshrrev_b32 v21, 5, v3')
        k('v_mul_u32_u24 v20, 48, v20')
        k('v_add_u32 v20, s81, v20')
        k('v_lshl_add_u32 v22, v21, 3, v20')
        k('v_mul_u32_u24 v21, 1504, v21')
        k('v_add_u32 v21, v20, v21')
        k('v_add_u32 v28, s81, v1')
        k('v_lshlrev_b32 v7, 3, v3')
        k('v_add_u32 v29, s81, v7')
        w.fill(k.end(), first=82, last=112)
        k.begin()
        self.st_ones()
        w.fill(k.end(), first=115, last=119)
        k.begin()
        OWN = L_KVOWN

        def pack(dst, src, n):
            for i in range(n):
                k(f'v_cvt_pk_bf16_f32 v{dst + i}, v{src + 2 * i}, v{src + 2 * i + 1}')
        for h, r in ((0, 32), (1, 44)):
            pack(r, r, 4)
            k(f'buffer_store_dwordx4 v[{r}:{r + 3}], v1, {WS}, s82 offen offset:{KM_OFF[h]} sc1', 'kv')
        for r, ad, off in ((52, 22, V_OFF[0]), (56, 22, V_OFF[0] + 16), (60, 21, V_OFF[0] + 32), (64, 22, V_OFF[1] + 8), (68, 22, V_OFF[1] + 24)):
            pack(r, r, 2)
            k(f'ds_write_b64 v{ad}, v[{r}:{r + 1}] offset:{OWN + off}')
        for t in range(3):
            k(f'ds_read_b128 v[{52 + 4 * t}:{55 + 4 * t}], v28 offset:{OWN + 2560 + 1024 * t}')
        pack(40, 40, 2)
        k(f'buffer_store_dwordx2 v[40:41], v7, {WS}, s82 offen offset:{KT_OFF} sc1', 'kv')
        k(f'ds_write_b64 v29, v[40:41] offset:{OWN + KT_OFF}')
        for t in range(3):
            k(f'buffer_store_dwordx4 v[{52 + 4 * t}:{55 + 4 * t}], v1, {WS}, s83 offen offset:{1024 * t} sc1', 'kv')
        for h, r in ((0, 32), (1, 44)):
            k(f'ds_write_b128 v28, v[{r}:{r + 3}] offset:{OWN + KM_OFF[h]}')
        for i in range(8):
            k(f'v_mul_f32 v{72 + i}, {f2u(QSCALE):#x}, v{72 + i}')
        pack(self.QM[0], 72, 4)
        self.attn_setup()
        epi = k.end()
        k.begin()
        self.allcheck([24, 25, 26, 27], 16)

        def body2():
            k('s_sleep 16')
            k(f'buffer_load_dwordx4 v[24:27], v1, {WS}, s75 offen offset:{WS_PR - WS_PQ} sc1')
            k('s_waitcnt vmcnt(0)')
            self.allcheck([24, 25, 26, 27], 16)
        self.recheck(body2)
        chk = k.end()
        self.nbg = [int(x) for x in o.bg.split(',')]
        w.post(o.prgap, chk)
        self.bg = wgu
        if self.nbg[0]:
            w.spread(self.take(self.nbg[0]), o.prgap + 1, 117)
        if self.nbg[1]:
            w.spread(self.take(self.nbg[1]), 138, 159)
        self.bg = self.units_frags(self.WO_W, 's85', tag='wo') + self.bg
        if o.kvgap:
            k.begin()
            self.kv_flag()
            w.post(o.kvgap, k.end())
        w.fill(epi, first=120, window=12)
        print('qkv pass2 tail', w.ntail, 'last gap', w.lastgap)
        if o.raw == 'qkv':
            self.rawstamps(w, range(0, 154, 6), 'r')
        k.put(w.result())
        self.stamp('qkv')

    def kv_flag(self):
        k = self.k
        k('s_lshl_b32 s72, s96, 7')
        k(f's_lshl_b32 s73, {sJ}, 4')
        k('s_sub_u32 s72, s72, s73')
        k(f's_add_u32 s72, s72, {WS_KVF}')
        k(f'v_and_b32 v6, v{VF_FAST}, v{VF_SLOW}')
        k.wait_vm('kv')
        k(f'buffer_store_dword v5, v6, {WS}, s72 offen sc1')

    def halo(self):
        k = self.k
        k(f's_min_u32 s75, {sCL}, 2')
        k('s_lshl_b32 s75, s75, 4')
        k('s_sub_u32 s75, s96, s75')
        k('s_lshl_b32 s75, s75, 7')
        k(f's_add_u32 s75, s75, {WS_KVF}')
        k(f's_cmp_ge_u32 {sCL}, 2')
        k('s_cselect_b32 s72, 2048, 0')
        k('v_and_b32 v6, 3, v3')
        k('v_lshlrev_b32 v6, 2, v6')
        k('v_bfe_u32 v7, v3, 2, 1')
        k('v_mad_u32_u24 v6, v7, s72, v6')
        self.poll('v6', 's75', 7, False)
        k('s_barrier')
        self.stamp('kvflag')
        for d in (1, 2):
            k(f's_cmp_ge_u32 {sCL}, {d}')
            k(f's_cselect_b32 s72, 0, {OOB}')
            k(f's_cselect_b32 s75, {d * 16 * 4 * KVB}, 0')
            k('v_add_u32 v6, s72, v1')
            k('s_sub_u32 s75, s97, s75')
            self.put_units(self.units_dma('s75', 0, L_C + (2 - d) * 4 * KVB, 22, f'halo{d}', voff='v6'))

    QM = [12, 16]; Q2 = [20, 24]
    CD, CO = 32, 48
    SS = [64, 80]
    OO = [96, 112]
    PP = 128
    KM = [136, 140]; K2 = [144, 148]
    VF = 152

    def attn_setup(self):
        k = self.k
        k('v_and_b32 v64, 31, v3')
        k('v_lshrrev_b32 v65, 5, v3')
        k('v_bfe_u32 v66, v3, 2, 2')
        k('v_lshl_add_u32 v66, v65, 2, v66')
        k('v_mul_u32_u24 v30, 48, v66')
        k('v_and_b32 v66, 3, v3')
        k('v_min_u32 v67, 1, v66')
        k('v_add_u32 v67, 4, v67')
        k('v_and_b32 v68, 16, v3')
        k('v_cmp_eq_u32 vcc, 0, v68')
        k('v_cmp_gt_u32 s[48:49], 32, v3')
        k('v_cndmask_b32 v66, v67, v66, vcc')
        k('v_lshl_add_u32 v30, v66, 3, v30')
        k('v_add_u32 v30, s81, v30')
        k('v_lshlrev_b32 v31, 2, v65')
        k('v_sub_u32 v31, v64, v31')
        k(f'v_mov_b32 v69, {f2u(NEG):#x}')
        self.masks(True, True)

    def masks(self, diag, old):
        k = self.k
        for i0 in range(0, 16, 4):
            for i in range(i0, i0 + 4):
                k(f'v_cmp_le_i32 s[{60 + 2 * (i % 4)}:{61 + 2 * (i % 4)}], {8 * (i >> 2) + (i & 3)}, v31')
            for i in range(i0, i0 + 4):
                m = f's[{60 + 2 * (i % 4)}:{61 + 2 * (i % 4)}]'
                if diag:
                    k(f'v_cndmask_b32 v{self.CD + i}, v69, 0, {m}')
                if old:
                    k(f'v_cndmask_b32 v{self.CO + i}, 0, v69, {m}')

    def ld_k(self, kset, i, head):
        k = self.k
        k(f'ds_read_b128 v[{self.KM[kset]}:{self.KM[kset] + 3}], v28 offset:{i * KVB + KM_OFF[head]}')
        if head == 0:
            r = self.K2[i & 1]
            k(f'ds_read_b64 v[{r}:{r + 1}], v29 offset:{i * KVB + KT_OFF}')

    def ld_v(self, half, i, head):
        k = self.k
        off = i * KVB + V_OFF[head] + 768 * half
        b = self.VF + 4 * half
        k(f'ds_read_b64_tr_b16 v[{b}:{b + 1}], v30 offset:{off}')
        k(f'ds_read_b64_tr_b16 v[{b + 2}:{b + 3}], v30 offset:{off + 384}')

    def m_sa(self, sset, kset, head, C):
        S = self.SS[sset]
        self.k(f'v_mfma_f32_32x32x16_bf16 v[{S}:{S + 15}], v[{self.KM[kset]}:{self.KM[kset] + 3}], v[{self.QM[head]}:{self.QM[head] + 3}], {C}')

    def m_sb(self, sset, i, head):
        S = self.SS[sset]
        r = self.K2[i & 1]
        self.k(f'v_mfma_f32_32x32x16_bf16 v[{S}:{S + 15}], v[{r}:{r + 3}], v[{self.Q2[head]}:{self.Q2[head] + 3}], v[{S}:{S + 15}]')

    def m_pv(self, half, head, first):
        O = self.OO[head]
        b, p = self.VF + 4 * half, self.PP + 4 * half
        self.k(f'v_mfma_f32_32x32x16_bf16 v[{O}:{O + 15}], v[{b}:{b + 3}], v[{p}:{p + 3}], {"0" if first else f"v[{O}:{O + 15}]"}')

    def cmask(self, i):
        return f'v[{self.CD}:{self.CD + 15}]' if i == 8 else (f'v[{self.CO}:{self.CO + 15}]' if i == 0 else '0')

    def attn_steps(self, seq, firsts):
        k = self.k
        n = len(seq)
        self.ld_v(0, *seq[0])
        self.ld_v(1, *seq[0])
        self.m_sa(0, 0, seq[0][1], self.cmask(seq[0][0]))
        self.m_sb(0, *seq[0])
        for t in range(n):
            i, h = seq[t]
            S = self.SS[t & 1]

            def e(*xs):
                for x in xs:
                    k(f'v_exp_f32 v{S + x}, v{S + x}')

            def c(x):
                k(f'v_cvt_pk_bf16_f32 v{self.PP + x}, v{S + 2 * x}, v{S + 2 * x + 1}')
            nx = t + 1 < n
            if nx:
                self.m_sa((t + 1) & 1, (t + 1) & 1, seq[t + 1][1], self.cmask(seq[t + 1][0]))
            if t + 2 < n:
                self.ld_k(t & 1, *seq[t + 2])
            e(0, 1, 2, 3)
            if t:
                self.m_pv(1, seq[t - 1][1], False)
                self.ld_v(1, i, h)
            c(0); e(4, 5); c(1); e(6, 7)
            if nx:
                self.m_sb((t + 1) & 1, *seq[t + 1])
            c(2); c(3); e(8, 9, 10, 11)
            self.m_pv(0, h, firsts and t < 2)
            if nx:
                self.ld_v(0, *seq[t + 1])
            c(4); e(12, 13); c(5); e(14, 15); c(6); c(7)
        self.m_pv(1, seq[n - 1][1], False)

    def attention(self):
        k = self.k
        for h in range(2):
            self.ld_k(h, 8, h)
        for r in self.K2:
            k(f'v_mov_b32 v{r + 2}, 0x3f80')
            k(f'v_mov_b32 v{r + 3}, 0')
        for h in range(2):
            k(f'v_mov_b32 v{self.Q2[h] + 2}, 0')
            k(f'v_mov_b32 v{self.Q2[h] + 3}, 0')
        self.m_sa(0, 0, 0, '0')
        for i in range(12):
            k(f'v_mul_f32 v{80 + i}, {f2u(QSCALE):#x}, v{80 + i}')
        for i in range(4):
            k(f'v_cvt_pk_bf16_f32 v{self.QM[1] + i}, v{84 + 2 * i}, v{85 + 2 * i}')
        for i in range(2):
            k(f'v_cvt_pk_bf16_f32 v{92 + i}, v{80 + 2 * i}, v{81 + 2 * i}')
        for i in range(2):
            k(f'v_cndmask_b32 v{self.Q2[0] + i}, 0, v{92 + i}, s[48:49]')
            k(f'v_cndmask_b32 v{self.Q2[1] + i}, v{92 + i}, 0, s[48:49]')
        self.m_sb(0, 8, 0)
        self.m_sa(1, 1, 1, '0')
        self.m_sb(1, 8, 1)
        k('v_bfe_u32 v6, v3, 4, 1')
        k('v_mul_u32_u24 v6, 20480, v6')
        k('v_and_b32 v7, 15, v3')
        k('v_lshl_add_u32 v6, v7, 4, v6')
        k('v_lshrrev_b32 v7, 5, v3')
        k('v_lshl_add_u32 v8, v7, 8, v6')
        k('v_cndmask_b32 v9, v2, v6, s[48:49]')
        if not self.o.kvgap:
            self.kv_flag()
        self.stamp('kvpub')
        self.put_units(self.take(self.nbg[2]))
        for h in range(2):
            S = self.SS[h]
            k(f'v_max3_f32 v{S}, v{S}, v{S + 1}, v{S + 2}')
            for i in range(3, 15, 2):
                k(f'v_max3_f32 v{S}, v{S}, v{S + i}, v{S + i + 1}')
            k(f'v_max_f32 v{S}, v{S}, v{S + 15}')
            k(f'v_mov_b32 v{S + 1}, v{S}')
        for h in range(2):
            S = self.SS[h]
            k(f'v_permlane32_swap_b32 v{S}, v{S + 1}')
        for h in range(2):
            S = self.SS[h]
            k(f'v_max_f32 v{S}, v{S}, v{S + 1}')
            k(f'v_cvt_pk_bf16_f32 v{S}, -v{S}, 0')
            k(f'v_cndmask_b32 v{self.Q2[h] + 2}, 0, v{S}, s[48:49]')
        k.begin()
        self.attn_steps([(8, 0), (8, 1)], True)
        k.put(Sched(k.end()).result())
        self.stamp('diag')
        if 'm2' in self.o.order.split(','):
            self.halo()
            self.wo_prep()
            self.put_units(self.early_units + self.take(self.nbg[3]))
        else:
            self.wo_prep()
            self.mod_pass(True, between=lambda: (self.halo(), self.put_units(self.early_units + self.take(self.nbg[3]))))
        self.stamp('mod2')
        k.wait_vm('halo1')
        k.barrier()
        self.stamp('halo')
        seq = [(i, h) for i in range(7, -1, -1) for h in range(2)]
        k.begin()
        self.ld_k(0, *seq[0])
        self.ld_k(1, *seq[1])
        self.attn_steps(seq, False)
        w = Sched(k.end())
        k.begin()
        k.wait_vm('halo2')
        k('s_barrier')
        w.pre(2 + 3 + 4 * 5, k.end())
        assert sum(self.nbg[2:5]) >= 25
        w.spread(self.take(self.nbg[4]), self.o.bg_start, w.n - self.o.bg_quiet)
        k.put(w.result())
        self.stamp('steps')
        k(f's_mov_b32 s72, {f2u(2.0 ** -90):#x}')
        k(f's_mov_b32 s73, {f2u(2.0 ** 64):#x}')
        la, lb = self.OO[0] + 12, self.OO[1] + 12
        k(f'v_cmp_nlt_f32 vcc, s72, v{la}')
        k(f'v_cmp_ngt_f32 s[76:77], s73, v{la}')
        k(f'v_cmp_nlt_f32 s[74:75], s72, v{lb}')
        k(f'v_cmp_ngt_f32 s[78:79], s73, v{lb}')
        k('s_or_b64 vcc, vcc, s[74:75]')
        k('s_or_b64 s[76:77], s[76:77], s[78:79]')
        k('s_or_b64 vcc, vcc, s[76:77]')
        k.wait_lgkm_all()
        if self.o.force_fb:
            k('s_branch .Lfallback')
        else:
            k('s_cbranch_scc1 .Lfallback')
        k.label('.Lfb_ret')
        for h in range(2):
            k(f'v_rcp_f32 v{64 + h}, v{self.OO[h] + 12}')
        for h in range(2):
            O = self.OO[h]
            for i in range(0, 12, 2):
                k(f'v_pk_mul_f32 v[{O + i}:{O + i + 1}], v[{O + i}:{O + i + 1}], v[64:65] {"op_sel:[0,1]" if h else "op_sel_hi:[1,0]"}')
            for i in range(4):
                k(f'v_cvt_pk_bf16_f32 v{68 + 4 * h + i}, v{O + 2 * i}, v{O + 2 * i + 1}')
            for i in range(2):
                k(f'v_cvt_pk_bf16_f32 v{76 + 2 * h + i}, v{O + 8 + 2 * i}, v{O + 9 + 2 * i}')
            k(f'buffer_store_dwordx4 v[{68 + 4 * h}:{71 + 4 * h}], v8, {WS}, s80 offen offset:{512 * h}', 'o')
        k(f'buffer_store_dwordx4 v[76:79], v9, {WS}, s80 offen offset:1024', 'o')
        if self.o.fine:
            self.stamp('ost')
        self.put_units(self.take(self.nbg[7]))

    def fallback(self):
        k = self.k
        k.label('.Lfallback')
        k.fence_hazards()
        k('s_nop 15')
        k('s_waitcnt vmcnt(0)')
        k(f's_lshl2_add_u32 s74, {sCL}, {sW}')
        k('s_min_u32 s75, s74, 7')
        k(f'v_mov_b32 v69, {f2u(NEG):#x}')
        self.masks(True, False)
        S = self.SS[0]

        def run(body):
            k(f'v_add_u32 v80, {8 * KVB}, v28')
            k(f'v_add_u32 v81, {8 * KVB}, v29')
            k(f'v_add_u32 v82, {8 * KVB}, v30')

            def step():
                for r in (80, 81, 82):
                    k(f'v_add_u32 v{r}, {-KVB & 0xffffffff:#x}, v{r}')
            body(self.cmask(8))
            step()
            lab, out, done = k.newlabel('al'), k.newlabel('alx'), k.newlabel('ald')
            k('s_mov_b32 s77, s75')
            k('s_cmp_eq_u32 s77, 0')
            k.wait_lgkm_all()
            k.fence_hazards()
            k(f's_cbranch_scc1 {out}')
            k.label(lab)
            body('0')
            step()
            k('s_sub_u32 s77, s77, 1')
            k('s_cmp_lg_u32 s77, 0')
            k.wait_lgkm_all()
            k.fence_hazards()
            k(f's_cbranch_scc1 {lab}')
            k.label(out)
            k('s_cmp_lt_u32 s74, 8')
            k(f's_cbranch_scc1 {done}')
            body(self.cmask(0))
            k.wait_lgkm_all()
            k.fence_hazards()
            k.label(done)
        for h in range(2):
            k(f'v_mov_b32 v{self.Q2[h] + 2}, 0')
            k(f'v_mov_b32 v83, {f2u(-3.0e38):#x}')

            def score(C):
                k(f'ds_read_b128 v[{self.KM[0]}:{self.KM[0] + 3}], v80 offset:{KM_OFF[h]}')
                k(f'ds_read_b64 v[{self.K2[0]}:{self.K2[0] + 1}], v81 offset:{KT_OFF}')
                self.m_sa(0, 0, h, C)
                self.m_sb(0, 0, h)

            def p1(C):
                score(C)
                for i in range(0, 16, 2):
                    k(f'v_max3_f32 v83, v83, v{S + i}, v{S + i + 1}')
            run(p1)
            k('v_mov_b32 v84, v83')
            k('v_permlane32_swap_b32 v83, v84')
            k('v_max_f32 v83, v83, v84')
            k('v_cvt_pk_bf16_f32 v84, -v83, 0')
            k(f'v_cndmask_b32 v{self.Q2[h] + 2}, 0, v84, s[48:49]')
            for i in range(16):
                k(f'v_mov_b32 v{self.OO[h] + i}, 0')

            def p2(C):
                score(C)
                for t in range(4):
                    k(f'ds_read_b64_tr_b16 v[{self.VF + 2 * t}:{self.VF + 2 * t + 1}], v82 offset:{V_OFF[h] + 384 * t}')
                for i in range(16):
                    k(f'v_exp_f32 v{S + i}, v{S + i}')
                for i in range(8):
                    k(f'v_cvt_pk_bf16_f32 v{self.PP + i}, v{S + 2 * i}, v{S + 2 * i + 1}')
                self.m_pv(0, h, False)
                self.m_pv(1, h, False)
            run(p2)
        k.fence_hazards()
        k('s_branch .Lfb_ret')

    def unpack10(self, src, dst):
        k = self.k
        for i in range(10):
            k(f'v_lshlrev_b32 v{dst + 2 * i}, 16, v{src + i}')
            k(f'v_and_b32 v{dst + 2 * i + 1}, 0xffff0000, v{src + i}')

    def lds_cols(self, base, dst, vA, vB):
        k = self.k
        k(f'ds_read_b128 v[{dst}:{dst + 3}], {vA} offset:{base}')
        k(f'ds_read_b128 v[{dst + 4}:{dst + 7}], {vA} offset:{base + 64}')
        k(f'ds_read_b64 v[{dst + 8}:{dst + 9}], {vB} offset:{base + 128}')

    X1 = 22

    def rowmajor(self, a, b):
        k = self.k
        k(f'v_and_b32 v{a}, 15, v3')
        k(f'v_mul_u32_u24 v{a}, 1280, v{a}')
        k(f'v_lshrrev_b32 v{b}, 4, v3')
        k(f'v_lshl_add_u32 v{a}, v{b}, 4, v{a}')
        k(f'v_lshlrev_b32 v{b}, 3, v{b}')
        k(f'v_sub_u32 v{b}, v{a}, v{b}')

    def vec_addr(self):
        k = self.k
        k('v_lshrrev_b32 v19, 4, v3')
        k('v_lshlrev_b32 v18, 4, v19')
        k('v_lshlrev_b32 v19, 3, v19')
        k(f'v_add_u32 v18, {L_P}, v18')
        k(f'v_add_u32 v19, {L_P}, v19')

    def wo_prep(self):
        k = self.k
        o = self.o
        k(f's_lshl2_add_u32 s91, {sCL}, {sW}')
        k(f's_lshl1_add_u32 s91, s91, {sTH}')
        k('s_mul_i32 s92, s91, 20480')
        k(f's_mul_i32 s72, {sJC}, 2560')
        k('s_add_u32 s92, s92, s72')
        k(f's_add_u32 s92, s92, {WS_Z}')
        k('s_lshl_b32 s93, s91, 10')
        k(f's_lshr_b32 s72, {sJC}, 1')
        k('s_lshl_b32 s72, s72, 8')
        k('s_add_u32 s93, s93, s72')
        k(f's_and_b32 s72, {sJC}, 1')
        k('s_lshl3_add_u32 s93, s72, s93')
        k(f's_add_u32 s93, s93, {WS_ST}')
        k(f's_mul_i32 s82, {sCL}, 393216')
        k(f's_lshl2_add_u32 s72, {sJ}, {sW}')
        k('s_mul_i32 s72, s72, 768')
        k('s_add_u32 s82, s82, s72')
        k(f's_add_u32 s82, s82, {WS_HH}')
        k(f's_mul_i32 s94, {sCL}, {O_CL}')
        k(f's_mul_i32 s72, {sTH}, 20480')
        k('s_add_u32 s94, s94, s72')
        k(f's_mul_i32 s72, {sW}, 5120')
        k('s_add_u32 s94, s94, s72')
        k(f's_add_u32 s94, s94, {WS_O}')
        us = []
        tl = [('s92', 1, 20, 128, 42)] if o.touchz and 'z' not in k.wt else []
        if 'to' not in o.order.replace('+', ',').split(','):
            if 'z' not in k.wt and 'ts' not in o.order.split(','):
                tl += [('s93', 1, 2, 128, 44)]
            if 'hh' not in k.wt:
                tl += [('s82', 6, 48, 49152, 46)]
        for so, per, n, stride, t in tl:
            k.begin()
            self.touch(so, per, n, stride, t)
            it = k.end()
            k.put(it[:-1])
            us.append(it[-1:])
        self.early_units = us
        self.wd_setup()
        self.nwd = 0

    def mm5(self, a, wregs, B, NS, chain):
        k = self.k
        order = [(s, ft) for ft in range(5) for s in range(NS)] if chain else [(s, ft) for s in range(NS) for ft in range(5)]
        for s, ft in order:
            d = a + 4 * ft
            k(f'v_mfma_f32_16x16x32_bf16 v[{d}:{d + 3}], {ur(wregs[s * 5 + ft])}, {ur(B[s])}, {"0" if s == 0 else f"v[{d}:{d + 3}]"}')

    def wo(self):
        k = self.k
        X1 = self.X1
        self.vec_addr()
        k(f's_mul_i32 s72, {sJC}, 160')
        k('v_add_u32 v20, s72, v18')
        k('v_add_u32 v21, s72, v19')
        self.lds_cols(P_GA - L_P, 84, 'v18', 'v19')
        self.lds_cols(P_G2 - L_P, X1, 'v20', 'v21')
        k('v_and_b32 v20, 15, v3')
        k('v_mul_u32_u24 v20, 160, v20')
        k(f's_mul_i32 s72, {sW}, 2560')
        k(f's_sub_u32 s72, s72, {L_P - L_X}')
        k('v_add3_u32 v21, v20, s72, v19')
        k('v_add3_u32 v20, v20, s72, v18')
        self.lds_cols(0, 32, 'v20', 'v21')
        self.unpack10(32, 120)
        self.publish(PH_O, 'o')
        self.stamp('attn')
        self.unpack10(84, 140)
        for i in range(10):
            r = [72, 76, 112, 116, 12][i // 2] + 2 * (i % 2)
            k(f'v_lshlrev_b32 v{r}, 16, v{X1 + i}')
            k(f'v_and_b32 v{r + 1}, 0xffff0000, v{X1 + i}')
        k('v_and_b32 v20, 15, v3')
        k('v_lshlrev_b32 v20, 4, v20')
        k('v_bfe_u32 v21, v3, 4, 1')
        k('v_lshl_add_u32 v21, v21, 3, v20')
        k('v_lshrrev_b32 v64, 5, v3')
        k('v_lshl_add_u32 v21, v64, 8, v21')
        k('v_bfe_u32 v64, v3, 4, 1')
        k('v_lshl_add_u32 v20, v64, 2, v20')
        k('v_cndmask_b32 v20, v2, v20, s[48:49]')
        k(f's_mul_i32 s76, {sW}, 15360')
        k('v_add_u32 v9, s76, v1')
        for t in range(4):
            k(f's_add_u32 s72, {sW}, {t + 1}')
            k('s_and_b32 s72, s72, 3')
            k(f's_mul_i32 s{60 + t}, s72, 40960')
            k(f's_add_u32 s{60 + t}, s{60 + t}, s94')
            if t < 3:
                k('s_mul_i32 s72, s72, 15360')
                k(f'v_add_u32 v{16 + t}, s72, v1')
        self.flag_off('s74', PH_O)
        self.poll('v10', 's74', 64, 'o')
        self.stamp('oflag')
        AG = [480 + 4 * i for i in range(7)]
        B = [AG[:5], [80, 84, 88, 92, 96], AG[5:] + [100, 104, 108], AG[:5]]
        ol = sum((self.units_frags(B[t], f's{60 + t}') for t in range(4)), [])
        self.put_units(ol[:self.o.oup])
        acc = [32, 52]
        k.begin()
        for t in range(4):
            self.mm5(acc[t & 1], self.WO_W, B[t], 5, t > 0)
        w = Sched(k.end())
        wg = [[27, 30, 33, 36, 39], [42, 46, 50, 54, 58], [62, 66, 71, 76, 81]]
        for t in range(3):
            for ft in range(5):
                k.begin()
                a = acc[t & 1] + 4 * ft
                k(f'ds_write_b128 v{16 + t}, v[{a}:{a + 3}] offset:{L_RED + t * 5120 + ft * 1024}', f'red{t}')
                w.at(wg[t][ft], k.end())
        for gap, t in ((63, 1), (86, 2)):
            k.begin()
            k.wait_lgkm(f'red{t}')
            k('s_barrier')
            w.pre(gap, k.end())

        def rdp(t, dst):
            k.begin()
            for ft in range(5):
                k(f'ds_read_b128 v[{dst + 4 * ft}:{dst + 4 * ft + 3}], v9 offset:{L_RED + t * 5120 + ft * 1024}')
            return k.end()
        w.spread(ol[self.o.oup:15], 0, 14)
        w.spread(ol[15:], 25, 44, (3, 1))
        if self.o.raw == 'wo':
            self.rawstamps(w, range(0, 88, 12), 'r')
        assert len(self.bg) - self.nbg[5] >= 4
        self.nwd = self.nbg[6]
        if self.nbg[5] + self.nwd:
            w.spread(self.take(self.nbg[5]) + self.wd[:self.nwd], self.o.wo_start, self.o.wo_quiet)
        w.fill(rdp(0, 80), first=63, last=69)
        k.begin()
        for i in range(20):
            k(f'v_fmac_f32 v{120 + i}, v{140 + i}, v{80 + i}')
        w.fill(k.end() + rdp(1, 80), first=72, last=92)
        w.fill(rdp(2, 32), first=87, last=94)
        k.put(w.result())
        self.stamp('ks3')
        a = 52
        G2 = [72, 76, 112, 116, 12]
        for i in range(0, 20, 2):
            k(f'v_pk_add_f32 v[{80 + i}:{81 + i}], v[{80 + i}:{81 + i}], v[{32 + i}:{33 + i}]')
        for i in range(0, 20, 2):
            r = G2[i // 4] + i % 4
            k(f'v_pk_add_f32 v[{a + i}:{a + i + 1}], v[{a + i}:{a + i + 1}], v[{80 + i}:{81 + i}]')
            k(f'v_pk_fma_f32 v[{a + i}:{a + i + 1}], v[{a + i}:{a + i + 1}], v[{140 + i}:{141 + i}], v[{120 + i}:{121 + i}]')
            k(f'v_pk_mul_f32 v[{r}:{r + 1}], v[{r}:{r + 1}], v[{a + i}:{a + i + 1}]')
            k(f'v_cvt_pk_bf16_f32 v{100 + i // 2}, v{r}, v{r + 1}')
            if i == 6:
                k(f'buffer_store_dwordx4 v[100:103], v1, {WS}, s92 offen', 'z')
            if i == 14:
                k(f'buffer_store_dwordx4 v[104:107], v1, {WS}, s92 offen offset:1024', 'z')
        k(f'buffer_store_dwordx2 v[108:109], v21, {WS}, s92 offen offset:2048', 'z')
        k(f'v_pk_add_f32 v[84:85], v[{a}:{a + 1}], v[{a + 2}:{a + 3}]')
        k(f'v_pk_mul_f32 v[86:87], v[{a}:{a + 1}], v[{a}:{a + 1}]')
        k(f'v_pk_fma_f32 v[86:87], v[{a + 2}:{a + 3}], v[{a + 2}:{a + 3}], v[86:87]')
        for i in range(4, 20, 2):
            k(f'v_pk_add_f32 v[84:85], v[84:85], v[{a + i}:{a + i + 1}]')
            k(f'v_pk_fma_f32 v[86:87], v[{a + i}:{a + i + 1}], v[{a + i}:{a + i + 1}], v[86:87]')
        k('v_add_f32 v84, v84, v85')
        k('v_add_f32 v85, v86, v87')
        k('v_permlane16_swap_b32 v84, v85')
        k('v_add_f32 v84, v84, v85')
        k('v_mov_b32 v85, v84')
        k('v_permlane32_swap_b32 v84, v85')
        k('v_add_f32 v84, v84, v85')
        k(f'buffer_store_dword v84, v20, {WS}, s93 offen', 'z')
        if self.o.fine:
            self.stamp('wst')
        nz = self.nbg[8]
        us = self.take(nz)
        more = self.wd[self.nwd:self.nwd + nz - len(us)]
        assert self.nwd + len(more) <= 10
        self.nwd += len(more)
        self.put_units(us + more)
        for i in range(10):
            k(f'v_cvt_pk_bf16_f32 v{X1 + i}, v{a + 2 * i}, v{a + 2 * i + 1}')

    def csbias(self):
        k = self.k
        k.begin()
        k('v_and_b32 v32, 1, v3')
        k('v_mul_u32_u24 v32, 1280, v32')
        k('v_lshrrev_b32 v33, 4, v3')
        k('v_lshlrev_b32 v33, 4, v33')
        k(f'v_add_u32 v33, {P_G2}, v33')
        k('v_sub_u32 v32, v33, v32')
        for s in range(20):
            k(f'ds_read_b128 v[{160 + 4 * s}:{163 + 4 * s}], v32 offset:{64 * s}')
        return k.end()

    CSA = 140
    EXA = 128
    EXB = 96
    L_TS = 73728

    def cs_mm(self, s):
        for ft in range(3):
            d = self.CSA + 4 * ft
            self.k(f'v_mfma_f32_16x16x32_bf16 v[{d}:{d + 3}], v[{160 + 4 * s}:{163 + 4 * s}], {ur(256 + 12 * s + 4 * ft)}, {"0" if s == 0 else f"v[{d}:{d + 3}]"}')

    def cs_fin(self):
        k = self.k
        k.begin()
        for ft in range(3):
            c, e = self.CSA + 4 * ft, self.EXA + 4 * ft
            k(f'v_cvt_pk_bf16_f32 v{e + 3}, v{c}, v{c + 1}')
            k(f'v_lshlrev_b32 v{c + 2}, 16, v{e + 3}')
            k(f'v_and_b32 v{c + 3}, 0xffff0000, v{e + 3}')
            k(f'v_sub_f32 v{c}, v{c}, v{c + 2}')
            k(f'v_sub_f32 v{c + 1}, v{c + 1}, v{c + 3}')
            k(f'v_cvt_pk_bf16_f32 v{e}, v{c + 2}, v{c + 2}')
            k(f'v_cvt_pk_bf16_f32 v{e + 1}, v{c}, v{c + 3}')
            k(f'v_cvt_pk_bf16_f32 v{e + 2}, v{c + 3}, v{c + 1}')
            for i in range(3):
                k(f'v_cndmask_b32 v{e + i}, 0, v{e + i}, s[50:51]')
            k(f'v_mov_b32 v{e + 3}, 0')
        return k.end()

    WD_REG = ([256 + 32 + 4 * i for i in range(10)] + [152 + 4 * i for i in range(26)] + [496, 500, 504, 508] +
              [124, 140, 144, 148] + [256 + 72 + 4 * i for i in range(8)] + [256 + 4 * i for i in range(8)])
    HH_B = [[256 + 104 + 4 * i for i in range(12)], [256 + 152 + 4 * i for i in range(12)],
            [256 + 200 + 4 * i for i in range(10)] + [112, 116]]

    def wd_setup(self):
        k = self.k
        k(f's_mul_i32 s86, {sJC}, {WD_J}')
        k(f's_mul_i32 s72, {sW}, {61440 + OD_W}')
        k('s_add_u32 s86, s86, s72')
        k(f's_add_u32 s86, s86, {WS_WD}')
        k(f's_lshl_b32 s95, {sW}, 13')
        k(f's_mul_i32 s81, {sW}, 10240')
        us = self.units_frags(self.WD_REG, 's86', tag='wd')
        for i in list(range(10)) + list(range(44, 52)):
            k.begin()
            if i and i % 4 == 0:
                k('s_add_u32 s86, s86, 4096')
            base = L_B + 1024 * i if i < 10 else 40960 + 1024 * (i - 44)
            k(f's_add_u32 m0, {"s81" if i < 10 else "s95"}, {base - 1024 * (i % 4)}')
            if 'nobg' not in self.o.x:
                k(f'buffer_load_dwordx4 v1, {WS}, s86 offen offset:{1024 * (i % 4)} sc1{self.ntw} lds', 'wdl')
            us[i] = k.end()
        self.wd = us

    def hh_publish(self, q):
        k = self.k
        k.begin()
        k('v_add_u32 v5, 1, v5')
        self.publish(PH_HH, f'hh{q}')
        return k.end()

    def hh_flagload(self):
        k = self.k
        k.begin()
        k(f'buffer_load_dword v12, v13, {WS}, s74 offen sc1')
        return k.end()

    def hh_check(self, need):
        k = self.k
        k.begin()
        k(f's_add_u32 s75, {sTAG}, {need}')

        def test():
            k('v_subrev_u32 v12, s75, v12')
            k(f'v_cmp_lt_u32 vcc, {7 - need}, v12')
        test()

        def body():
            k(f'buffer_load_dword v12, v13, {WS}, s74 offen sc1')
            k('s_waitcnt vmcnt(0)')
            test()
        self.recheck(body)
        self.acquire('hh')
        return k.end()

    def gu_epilogue(self, q, a, packed):
        k = self.k
        epi = []
        for tt in range(2):
            k.begin()
            c = self.EXB + 8 * tt + 4
            t0, t1 = 112 + 2 * tt, 113 + 2 * tt
            for ft in range(3):
                d = a + 12 * tt + 4 * ft
                if packed:
                    k(f'v_pk_mul_f32 v[{t0}:{t1}], v[{d}:{d + 1}], v[{d}:{d + 1}]')
                    k(f'v_pk_fma_f32 v[{t0}:{t1}], v[{t0}:{t1}], v[{c}:{c + 1}], v[{c}:{c + 1}] op_sel:[0,1,0] op_sel_hi:[1,1,0]')
                    k(f'v_pk_mul_f32 v[{t0}:{t1}], v[{t0}:{t1}], v[{d}:{d + 1}]')
                    k(f'v_exp_f32 v{t0}, v{t0}')
                    k(f'v_exp_f32 v{t1}, v{t1}')
                    k(f'v_pk_mul_f32 v[{d}:{d + 1}], v[{d}:{d + 1}], v[{d + 2}:{d + 3}]')
                    k(f'v_pk_fma_f32 v[{t0}:{t1}], v[{t0}:{t1}], v[{c + 2}:{c + 3}], v[{c + 2}:{c + 3}] op_sel_hi:[1,0,0]')
                    k(f'v_rcp_f32 v{t0}, v{t0}')
                    k(f'v_rcp_f32 v{t1}, v{t1}')
                    k(f'v_pk_mul_f32 v[{d}:{d + 1}], v[{d}:{d + 1}], v[{t0}:{t1}]')
                else:
                    k(f'v_mul_f32 v{t0}, v{d}, v{d}')
                    k(f'v_mul_f32 v{t1}, v{d + 1}, v{d + 1}')
                    k(f'v_fma_f32 v{t0}, v{t0}, v{c + 1}, v{c}')
                    k(f'v_fma_f32 v{t1}, v{t1}, v{c + 1}, v{c}')
                    k(f'v_mul_f32 v{t0}, v{t0}, v{d}')
                    k(f'v_mul_f32 v{t1}, v{t1}, v{d + 1}')
                    k(f'v_exp_f32 v{t0}, v{t0}')
                    k(f'v_exp_f32 v{t1}, v{t1}')
                    k(f'v_mul_f32 v{d}, v{d}, v{d + 2}')
                    k(f'v_fma_f32 v{t0}, v{t0}, v{c + 2}, v{c + 2}')
                    k(f'v_fma_f32 v{t1}, v{t1}, v{c + 2}, v{c + 2}')
                    k(f'v_rcp_f32 v{t0}, v{t0}')
                    k(f'v_rcp_f32 v{t1}, v{t1}')
                    k(f'v_mul_f32 v{d + 1}, v{d + 1}, v{d + 3}')
                    k(f'v_mul_f32 v{d}, v{d}, v{t0}')
                    k(f'v_mul_f32 v{d + 1}, v{d + 1}, v{t1}')
                dst = (16 + 2 * tt + ft) if ft < 2 else (6 + tt)
                k(f'v_cvt_pk_bf16_f32 v{dst}, v{d}, v{d + 1}')
            epi.append(k.end())
        k.begin()
        k('v_permlane32_swap_b32 v16, v18')
        k('v_permlane32_swap_b32 v17, v19')
        k('v_permlane16_swap_b32 v6, v7')
        k('v_permlane16_swap_b32 v16, v17')
        k('v_permlane16_swap_b32 v18, v19')
        k(f'buffer_store_dwordx2 v[6:7], v21, {WS}, s82 offen offset:512', f'hh{q}')
        k(f'buffer_store_dwordx4 v[16:19], v20, {WS}, s82 offen', f'hh{q}')
        if q < 3:
            k('s_add_u32 s82, s82, 98304')
        fin = k.end()
        return zipper(epi[0], epi[1], 0 if packed else 8), fin

    def gu(self):
        k = self.k
        o = self.o
        slots = [L_A, 0, L_A, 0]
        addr = ['v8', 'v1', 'v8', 'v1']
        K1 = (60 - len(self.bg)) // 3
        C1 = -2.0 * 0.7978845608028654 * 1.4426950408889634
        k.begin()
        k(f'v_add_u32 v8, {L_A}, v1')
        k('v_and_b32 v20, 15, v3')
        k('v_lshlrev_b32 v14, 5, v20')
        k(f'v_add_u32 v14, {self.L_TS}, v14')
        k(f's_lshl_b32 s72, {sW}, 10')
        k('v_add_u32 v15, s72, v14')
        k('v_lshlrev_b32 v20, 4, v20')
        k('v_lshrrev_b32 v12, 5, v3')
        k('v_bfe_u32 v13, v3, 4, 1')
        k('s_mov_b32 s72, 49152')
        k('v_mad_u32_u24 v21, v13, s72, v20')
        k('v_lshl_add_u32 v21, v12, 3, v21')
        k('v_mad_u32_u24 v20, v12, s72, v20')
        k('v_lshl_add_u32 v20, v13, 8, v20')
        k('v_and_b32 v13, 60, v10')
        k('s_mov_b64 s[50:51], 0xffff')
        k(f's_mul_i32 s94, {sCL}, 163840')
        k(f's_add_u32 s94, s94, {WS_Z}')
        k(f's_lshl2_add_u32 s76, {sCL}, {sW}')
        k('s_lshl_b32 s76, s76, 11')
        k(f's_add_u32 s76, s76, {WS_ST}')
        k(f's_mul_i32 s60, {sCL}, 393216')
        k(f's_mul_i32 s72, {sTH}, 49152')
        k('s_add_u32 s60, s60, s72')
        k(f's_mul_i32 s72, {sW}, 12288')
        k('s_add_u32 s60, s60, s72')
        k(f's_add_u32 s60, s60, {WS_HH}')
        for t in range(1, 4):
            k(f's_add_u32 s{60 + t}, s60, {98304 * t}')
        self.flag_off('s74', PH_Z)
        setup = k.end()
        csr = self.csbias()
        c1 = min(o.cs1, K1)
        k.put(csr[:6 + c1])
        k.put(setup[:o.zpub])
        if o.fine:
            self.stamp('wset')
        self.publish(PH_Z, 'z')
        self.stamp('wo')
        k.begin()
        for s in range(c1):
            self.cs_mm(s)
        w = Sched(k.end())
        w.fill(csr[6 + c1:], first=0)
        for i, it in enumerate(setup[o.zpub:]):
            w.post(min(8 + i // 2, w.n - 1), [it])
        k.put(w.result())
        self.poll('v10', 's74', 64, 'z')
        self.stamp('zflag')
        zd = [self.units_dma('s94', 40960 * q, slots[q], 40, f'z{q}') for q in range(4)]
        self.put_units(zd[0][:6])
        k.begin()
        for s in range(c1, K1):
            self.cs_mm(s)
        w = Sched(k.end())
        w.spread(zd[0][6:] + self.units_frags([96, 104], 's76'), 0, min(18, w.n - 1))
        k.put(w.result())
        self.flag_off('s74', PH_HH)
        k(f's_lshl_b32 s72, {sW}, 6')
        k('s_add_u32 s74, s74, s72')
        k('v_add_u32 v10, s95, v1')
        k(f's_add_u32 s72, s81, {L_B}')
        k('v_add_u32 v9, s72, v1')
        self.hl = [self.units_frags(self.HH_B[t % 3], f's{60 + t}') for t in range(4)]
        sts = []
        for T in range(2):
            k.begin()
            b = 96 + 8 * T
            k(f'v_add_f32 v{b}, v{b}, v{b + 2}')
            k(f'v_add_f32 v{b + 1}, v{b + 1}, v{b + 3}')
            k(f'v_permlane16_swap_b32 v{b}, v{b + 1}')
            k(f'v_add_f32 v{b}, v{b}, v{b + 1}')
            k(f'v_mov_b32 v{b + 1}, v{b}')
            k(f'v_permlane32_swap_b32 v{b}, v{b + 1}')
            k(f'v_add_f32 v{b}, v{b}, v{b + 1}')
            k(f'v_mul_f32 v{b + 2}, {f2u(-1 / 640):#x}, v{b}')
            k(f'v_mul_f32 v{b + 6}, {f2u(-1 / 640):#x}, v{b}')
            k(f'v_permlane16_swap_b32 v{b + 2}, v{b + 6}')
            k(f'v_fma_f32 v{b + 6}, -v{b + 2}, v{b + 2}, -v{b + 6}')
            k(f'v_max_f32 v{b + 6}, 0, v{b + 6}')
            k(f'v_add_f32 v{b + 6}, {f2u(1e-5):#x}, v{b + 6}')
            k(f'v_rsq_f32 v{b + 4}, v{b + 6}')
            k(f'v_mul_f32 v{b + 3}, v{b + 6}, v{b + 4}')
            k(f'v_mul_f32 v{b + 5}, v{b + 4}, v{b + 4}')
            k(f'v_mul_f32 v{b + 4}, {f2u(C1):#x}, v{b + 4}')
            k(f'v_mul_f32 v{b + 5}, v{b + 5}, v{b + 4}')
            k(f'v_mul_f32 v{b + 5}, {f2u(0.044715):#x}, v{b + 5}')
            k(f'v_cvt_pk_bf16_f32 v{b + 1}, v{b + 2}, v{b + 3}')
            k(f'v_lshlrev_b32 v{b}, 16, v{b + 1}')
            k(f'v_and_b32 v{b + 7}, 0xffff0000, v{b + 1}')
            k(f'v_sub_f32 v{b + 2}, v{b + 2}, v{b}')
            k(f'v_sub_f32 v{b + 3}, v{b + 3}, v{b + 7}')
            k(f'v_cvt_pk_bf16_f32 v{b}, v{b}, v{b + 2}')
            k(f'v_cvt_pk_bf16_f32 v{b + 2}, v{b + 3}, v{b + 7}')
            k(f'v_mov_b32 v{b + 3}, 0')
            sts.append(k.end())
        tsw = []
        for i in range(4):
            k.begin()
            k('s_mov_b64 exec, s[50:51]')
            k(f'ds_write_b128 v15, v[{96 + 4 * i}:{99 + 4 * i}] offset:{512 * (i >> 1) + 16 * (i & 1)}', 'ts')
            k('s_mov_b64 exec, -1')
            tsw.append(k.end())
        acc = [32, 56]
        FRL = [80, 84, 88, 92, 116, 120]
        LA = o.gula
        k.wait_vm('z0')
        k.barrier()
        self.stamp('g0')
        seq = [(q, s, tt) for q in range(4) for s in range(20) for tt in range(2)]
        k.begin()

        def rd(i):
            q, s, tt = seq[i]
            k(f'ds_read_b128 {ur(FRL[i % 6])}, {addr[q]} offset:{20480 * tt + 1024 * s}')

        def extra(q):
            for tt in range(2):
                for ft in range(3):
                    d = acc[q & 1] + 12 * tt + 4 * ft
                    e, x = self.EXA + 4 * ft, self.EXB + 8 * tt
                    k(f'v_mfma_f32_16x16x32_bf16 v[{d}:{d + 3}], v[{e}:{e + 3}], v[{x}:{x + 3}], v[{d}:{d + 3}]')
        for i in range(LA):
            rd(i)
        gap_of, n, X = [], 0, {}
        for i, (q, s, tt) in enumerate(seq):
            gap_of.append(n)
            for ft in range(3):
                d = acc[q & 1] + 12 * tt + 4 * ft
                k(f'v_mfma_f32_16x16x32_bf16 v[{d}:{d + 3}], {ur(256 + 12 * s + 4 * ft)}, {ur(FRL[i % 6])}, {"0" if s == 0 else f"v[{d}:{d + 3}]"}')
                if ft == 0 and i + LA < len(seq):
                    rd(i + LA)
            n += 3
            if q == 0 and tt == 0 and s >= K1:
                self.cs_mm(s)
                n += 3
            if (q == 1 and i % 40 == 7) or (q >= 1 and i % 40 == 39):
                qq = 0 if i % 40 == 7 else q
                X[qq] = n
                extra(qq)
                n += 6
        Q = [gap_of[40 * q] for q in range(4)] + [n]
        w = Sched(k.end())
        for q in range(1, 4):
            k.begin()
            k.wait_vm(f'z{q}')
            if q == 1:
                k.wait_lgkm('ts')
            k('s_barrier')
            if o.fine:
                self.stamp(f'g{q}')
            w.pre(gap_of[40 * q - LA], k.end())
        for q in (1, 2):
            k.begin()
            k('s_barrier')
            w.pre(Q[q] + 4, k.end())
        for q in range(4):
            for i in range(4):
                k.begin()
                r = self.EXB + 4 * i
                k(f'ds_read_b128 v[{r}:{r + 3}], v14 offset:{1024 * q + 512 * (i >> 1) + 16 * (i & 1)}')
                w.at(X[q] - 14 + 3 * i, k.end())
        M = (3, 0)
        wd = self.wd[self.nwd:]
        off = self.nwd
        rest = self.take(len(self.bg))
        n0 = o.wdq[0] - off
        n1 = o.wdq[1] - off
        w.spread(rest + zd[1] + wd[:n0], 0, Q[1] + 3, M)
        w.spread(zd[2] + wd[n0:n1], Q[1] + 5, Q[2] + 3, M)
        w.spread(zd[3] + wd[n1:52 - off], Q[2] + 5, Q[3] + 12, M)
        w.spread(wd[52 - off:], Q[3] + 18, Q[3] + 56, M)
        k.begin()
        k.wait_vm('wdl')
        w.pre(Q[3] + 57, k.end())
        lr = []
        for i in list(range(10)) + list(range(44, 52)):
            k.begin()
            if i < 10:
                k(f'ds_read_b128 {ur(self.WD_REG[i])}, v9 offset:{1024 * i}')
            else:
                k(f'ds_read_b128 {ur(self.WD_REG[i])}, v10 offset:{40960 + 1024 * (i - 44)}')
            lr.append(k.end())
        w.spread(lr[:7], Q[3] + 57, Q[3] + 78, M)
        w.spread(lr[7:], Q[3] + 88, Q[4] - 1, (3, 1))
        w.post(Q[2] + o.pubgap, self.hh_publish(0))
        w.post(Q[3] + o.pubgap, self.hh_publish(1))
        w.at(Q[3] + 8, self.hh_flagload())
        w.post(Q[3] + 77, self.hh_check(1))
        w.spread(self.hl[0][:10], Q[3] + 79, Q[4] - 1, M)
        w.at(Q[3] + 104, self.hh_flagload())
        for i in range(4):
            w.at(Q[1] - 44 + 6 * i, tsw[i])
        w.fill(zipper(sts[0], sts[1], 4), first=24, last=Q[1] - 46)
        print('gu stats tail', w.ntail, 'K1', K1)
        w.fill(self.cs_fin(), first=Q[1] + (3 if K1 < 20 else -60), last=X[0] - 2)
        print('gu cs tail', w.ntail)
        for q in range(3):
            e, fin = self.gu_epilogue(q, acc[q & 1], False)
            w.fill(e + fin, first=X[q] + 8, last=X[q + 1] - 15)
            print('gu quarter', q, 'tail', w.ntail, 'ends', w.lastgap - Q[q + 1])
        if o.raw == 'gu':
            print('Q', Q, 'X', X)
            self.rawstamps(w, range(2, n - 12, 18), 'r')
        res = w.result()
        xs = o.x.split(',')

        def keep(it):
            if not isinstance(it, Ins):
                return True
            if 'g_noval' in xs and it.kind in ('valu', 'trans') and not it.mn.startswith('v_cmp') and 'v12' not in it.text and 'v5' not in it.text.split():
                return False
            if 'g_nobar' in xs and it.mn == 's_barrier':
                return False
            if 'g_nodma' in xs and it.meta == 'dma':
                return False
            if 'g_nost' in xs and it.kind == 'vmem' and '_store_dwordx' in it.mn:
                return False
            if 'g_nods' in xs and it.kind == 'ds':
                return False
            return True
        k.put([it for it in res if keep(it)])
        self.stamp('g4')
        e, fin = self.gu_epilogue(3, acc[1], True)
        self.put_units(self.hl[0][10:])
        k.put(e[:len(e) // 3])
        k.put(self.hh_check(2))
        self.put_units(self.hl[1][:6])
        k.put(e[len(e) // 3:])
        k.put(fin)
        self.stamp('g5')

    def down(self):
        k = self.k
        X1 = self.X1
        W = self.WD_REG
        acc = [32, 52]
        k(f's_mul_i32 s76, {sW}, 5120')
        k(f's_add_u32 s76, s76, {L_A}')
        k('v_add_u32 v8, s76, v1')
        k(f's_mul_i32 s76, {sW}, 20480')
        k(f's_add_u32 s76, s76, {L_A}')
        k('v_add_u32 v9, s76, v1')
        k.begin()
        for t in range(4):
            self.mm5(acc[t & 1], W, self.HH_B[t % 3], 12, self.o.chain or (t == 3 and self.o.chain3))
        w = Sched(k.end())
        k.begin()
        k('s_barrier')
        w.pre(61, k.end())

        def wr(t):
            us = []
            for ft in range(5):
                k.begin()
                a = acc[t & 1] + 4 * ft
                off = t * 20480 + ft * 1024
                if off > 65535 - 16:
                    k(f'ds_write_b128 v6, v[{a}:{a + 3}] offset:{off - 40960}', f'dw{t}{ft}')
                else:
                    k(f'ds_write_b128 v8, v[{a}:{a + 3}] offset:{off}', f'dw{t}{ft}')
                us.append(k.end())
            return us
        o = self.o
        for t in range(3):
            w.spread(wr(t), 60 * (t + 1) + 8, 60 * (t + 1) + (50 if t < 2 else 16))
        d = o.dn
        w.spread(self.hl[1][6:], 0, 24)
        w.post(d[0], self.hh_publish(2))
        w.post(d[1], self.hh_publish(3))
        w.at(d[2], self.hh_flagload())
        w.post(d[3], self.hh_check(3))
        w.spread(self.hl[2], d[3] + 1, d[3] + d[6])
        w.at(d[4], self.hh_flagload())
        w.post(d[5], self.hh_check(4))
        w.spread(self.hl[3], d[5] + 1, d[5] + d[7])
        k.begin()
        k('v_add_u32 v6, 40960, v8')
        self.rowmajor(16, 17)
        self.vec_addr()
        self.lds_cols(P_GB - L_P, 128, 'v18', 'v19')
        self.unpack10(128, 92)
        self.unpack10(X1, 72)
        w.fill(k.end(), first=135, last=200)
        w3 = wr(3)
        for ft in range(4):
            w.at(180 + 12 * ft + 18, w3[ft])
        k.begin()
        k.wait_lgkm('dw31')
        k('s_barrier')
        w.pre(216, k.end())
        RD = [[32, 36, 40, 44], [48, 112, 116, 128], [160, 164, 168, 172], [176, 180, 184, 188], [192, 196, 200, 204]]

        def rdq(ft):
            for t in range(4):
                k(f'ds_read_b128 v[{RD[ft][t]}:{RD[ft][t] + 3}], v9 offset:{t * 5120 + ft * 1024}')
        k.begin()
        rdq(0)
        rdq(1)
        w.fill(k.end(), first=217, last=226)
        if o.raw == 'dn':
            self.rawstamps(w, range(0, 228, 12), 'r')
        k.put(w.result())
        self.stamp('ks3')
        k.put(w3[4])

        def fin(ft):
            r = RD[ft]
            for h in (0, 2):
                k(f'v_pk_add_f32 v[{r[0] + h}:{r[0] + h + 1}], v[{r[0] + h}:{r[0] + h + 1}], v[{r[1] + h}:{r[1] + h + 1}]')
                k(f'v_pk_add_f32 v[{r[2] + h}:{r[2] + h + 1}], v[{r[2] + h}:{r[2] + h + 1}], v[{r[3] + h}:{r[3] + h + 1}]')
            for h in (0, 2):
                k(f'v_pk_add_f32 v[{r[0] + h}:{r[0] + h + 1}], v[{r[0] + h}:{r[0] + h + 1}], v[{r[2] + h}:{r[2] + h + 1}]')
            for h in (0, 2):
                i = 4 * ft + h
                k(f'v_pk_fma_f32 v[{r[0] + h}:{r[0] + h + 1}], v[{r[0] + h}:{r[0] + h + 1}], v[{92 + i}:{93 + i}], v[{72 + i}:{73 + i}]')
            for h in (0, 2):
                k(f'v_cvt_pk_bf16_f32 v{X1 + 2 * ft + h // 2}, v{r[0] + h}, v{r[0] + h + 1}')
        k.barrier()
        if o.fine:
            self.stamp('dbar')
        rdq(2)
        rdq(3)
        rdq(4)
        fin(0)
        fin(1)
        k(f'buffer_store_dwordx4 v[{X1}:{X1 + 3}], v16, {OUTS}, s90 offen', 'out')
        fin(2)
        fin(3)
        k(f'buffer_store_dwordx4 v[{X1 + 4}:{X1 + 7}], v16, {OUTS}, s90 offen offset:64', 'out')
        fin(4)
        k(f'buffer_store_dwordx2 v[{X1 + 8}:{X1 + 9}], v17, {OUTS}, s90 offen offset:128', 'out')
        if o.fine:
            self.stamp('dst')

    def padspin(self, t):
        k = self.k
        lab = k.newlabel('pad')
        k.wait_lgkm_all()
        k.label(lab)
        k('s_memrealtime s[100:101]')
        k('s_sub_u32 s100, s100, s98')
        k(f's_cmp_lt_u32 s100, {t}')
        k(f's_cbranch_scc1 {lab}')

    def finish(self):
        k = self.k
        if self.o.padto and self.o.padat == 'end':
            self.padspin(self.o.padto)
        if self.o.stamps:
            k.wait_vm_all()
            self.stamp('end')
            k.wait_lgkm_all()
            k('s_memtime s[98:99]')
            k('v_writelane_b32 v11, s98, 62')
            k(f'v_writelane_b32 v11, {sFAST}, 63')
            k(f's_lshl2_add_u32 s72, s2, {sW}')
            k('s_lshl_b32 s72, s72, 8')
            k(f's_add_u32 s72, s72, {WS_DBG}')
            k('v_lshlrev_b32 v64, 2, v3')
            k(f'buffer_store_dword v11, v64, {WS}, s72 offen')
            if self.o.dbg:
                sel = [self.stampnames.index(n) + 1 for n in self.o.dbg.split(',')]
                k(f's_lshl2_add_u32 s72, s2, {sW}')
                k(f's_cmp_lg_u32 s72, {self.o.dbgwave}')
                k('s_cbranch_scc1 .Lend')
                k('s_mov_b64 s[28:29], s[68:69]')
                k('s_mov_b32 s30, 256')
                k('v_readlane_b32 s72, v11, 0')
                k('v_mov_b32 v64, 0')
                for i, n in enumerate(sel):
                    k(f'v_readlane_b32 s73, v11, {n}')
                    k('s_sub_u32 s73, s73, s72')
                    k('v_mov_b32 v65, s73')
                    k(f'buffer_store_dword v65, v64, {CS}, 0 offen offset:{4 * i}')
        k.label('.Lend')
        k('s_endpgm')

    def islands(self, body):
        import subprocess, re
        lines = body.split('\n')
        stub = '\n'.join(f'.Lchain{w}:' for w in range(4))
        src = '.amdgcn_target "amdgcn-amd-amdhsa--gfx950"\n.text\n' + body + '\n' + stub + '\n.Lcode_end:\n'
        open('isl.s', 'w').write(src)
        subprocess.check_call(['clang', '-x', 'assembler', '-target', 'amdgcn-amd-amdhsa', '-mcpu=gfx950', '-c', 'isl.s', '-o', 'isl.o'])
        dis = subprocess.check_output(['llvm-objdump', '-d', '-z', '--mcpu=gfx950', 'isl.o']).decode()
        sizes = [(int(m.group(1), 16), 4 * len(m.group(2).split())) for m in re.finditer(r'// ([0-9A-F]{12}): ((?:[0-9A-F]{8} ?)+)', dis)]
        p0 = lines.index('.Lpage0:')
        ret = lines.index('.Lwarm_ret:')
        end = lines.index('.Lend:')
        isins = lambda l: l.startswith('    ') and not l.strip().startswith(';')
        after = [i for i in range(p0, len(lines)) if isins(lines[i])]
        tail = sizes[-len(after):]
        assert tail[0][0] % 4096 == 0
        offs = [int(x) for x in self.o.isl.split(',')]
        pos, addr, nxt, out = [], 0, 0, lines[:p0 + 1]
        targets = [4096 * p + o_ for p in range(1, 20) for o_ in offs]
        sz = {i: s for i, (_, s) in zip(after, tail)}
        prev = ''
        for i in range(p0 + 1, len(lines)):
            l = lines[i]
            if isins(l):
                if i > ret and i < end and addr >= targets[nxt] and not prev.strip().startswith('s_cbranch_vccz'):
                    good = prev.strip().startswith('v_mfma') and not l.strip().startswith('s_')
                    if good or addr >= targets[nxt] + 40:
                        out.append(f'@ISL{len(pos)}')
                        pos.append(addr)
                        addr += 4
                        nxt += 1
                while i <= ret and addr >= targets[nxt]:
                    nxt += 1
                addr += sz[i]
                prev = l
            out.append(l)
        n = len(pos)
        per = (n + 3) // 4
        res = []
        for l in out:
            if l.startswith('@ISL'):
                j = int(l[4:])
                if j % per == 0:
                    res.append(f'.Lchain{j // per}:')
                res.append(f'.Lisl{j}:')
                last = (j + 1) % per == 0 or j + 1 == n
                res.append(f'    s_cbranch_execz {".Lwarm_ret" if last else f".Lisl{j + 1}"}')
            else:
                res.append(l)
                if l == '.Lwarm_ret:':
                    res += [f'.Lchain{w}:' for w in range(4) if w * per >= n]
        print('islands', [hex(p) for p in pos])
        return '\n'.join(res)

    def build(self):
        o = self.o
        def pre():
            fns = dict(wqi=self.st_wq_issue, xi=self.st_x_issue, mod=self.st_mod, mc=self.st_modc, a1=self.st_addr,
                       wqp=self.st_wq_process, pq=lambda: (self.wg_flag('wqst', WS_PQ), self.stamp('pq')),
                       th=lambda: None if 'h' in self.k.wt else self.touch('s86', 1, 20, 512, 8), norm=self.st_norm,
                       li=lambda: self.late_mod(self.mod_issue), lc=lambda: self.late_mod(self.mod_core),
                       rq=self.st_rest_prep, ri=lambda: self.put_units(self.rest_units(36, 38)), a2=self.st_addr2,
                       rr=self.rest_reads, rs=lambda: (self.put_units(self.rest_stores()), self.stamp('rs')),
                       pr=lambda: (self.wg_flag('pre', WS_PR), self.stamp('pr')), bar=self.k.barrier,
                       to=self.touch_arena, x2=self.x2_issue, b=self.st_bases, pqp=self.pq_poll, m2=lambda: self.mod_pass(True, split=True), al=self.align_page, wm=self.warm, ts=self.touch_small, pqs=self.pq_sample, pqe=self.pq_early,
                       h=self.make_h, hp=lambda: (self.publish(PH_H, 'h'), self.stamp('hpub')))
            for c in range(5):
                fns[f'c{c}'] = lambda c=c: self.put_units(self.wq_chunk(c))
            self.st_entry()
            for n in o.order.split(','):
                if n.startswith('m1'):
                    sub = n.split('+')
                    self.mod_pass(False, between=lambda: [fns[x]() for x in sub[1:]], withpq=sub[0] == 'm1q',
                                  onmiss=fns['ri'] if sub[0] == 'm1d' else None)
                else:
                    fns[n]()
        steps = [
            ('pre', pre),
            ('qkv', self.qkv),
            ('attn', self.attention),
            ('wo', self.wo),
            ('gu', self.gu),
            ('down', self.down),
        ]
        for name, fn in steps:
            self.k.comment(f'==================== {name}')
            fn()
            if o.stop == name:
                break
        self.finish()
        if o.stop not in ('pre', 'qkv'):
            self.k.assume_vm_empty()
            self.fallback()
        for fn in self.ool:
            self.k.assume_vm_empty()
            self.k.fence_hazards()
            fn()
        body = self.k.finalize()
        if 'wm' in o.order.split(','):
            body = self.islands(body)
        hdr = open('cdna_kernels/' + NAME + '.s.ref').read().split('\n')
        top = [l for l in hdr if l.startswith(';') and '@launch' not in l]
        txt = '\n'.join(top) + f'''
; @launch grid=(256,1,1) block=(256,1,1) lds={LDS_BYTES}
.amdgcn_target "amdgcn-amd-amdhsa--gfx950"
.text
.globl {NAME}_kernel
.p2align 8
.type {NAME}_kernel,@function
{NAME}_kernel:
{body}
.Lcode_end:
.section .rodata,"a"
.p2align 6
.amdhsa_kernel {NAME}_kernel
  .amdhsa_next_free_vgpr 512
  .amdhsa_next_free_sgpr 102
  .amdhsa_accum_offset 256
  .amdhsa_group_segment_fixed_size 0
  .amdhsa_kernarg_size 96
  .amdhsa_user_sgpr_count 2
  .amdhsa_user_sgpr_kernarg_segment_ptr 1
  .amdhsa_system_sgpr_workgroup_id_x 1
.end_amdhsa_kernel
'''
        return txt


if __name__ == '__main__':
    ap = argparse.ArgumentParser()
    ap.add_argument('-o', default='cdna_kernels/' + NAME + '.s')
    ap.add_argument('--stop', default=None)
    ap.add_argument('--stamps', action='store_true')
    ap.add_argument('--force-slow', dest='force_slow', action='store_true')
    ap.add_argument('--dbg', default=None)
    ap.add_argument('--dbgwave', type=int, default=401)
    ap.add_argument('--x', default='')
    ap.add_argument('--cyc', action='store_true')
    ap.add_argument('--order', default='wqi,xi,al,mod,rq,ts,a1,b,a2,mc,wqp,ri,norm,wm,m1+pq+rr+rs,h,m2,hp,bar,x2')
    ap.add_argument('--wqlook', type=int, default=14)
    ap.add_argument('--wgu-q', dest='wgu_q', type=int, default=8)
    ap.add_argument('--bg-quiet', dest='bg_quiet', type=int, default=10)
    ap.add_argument('--bg-attn', dest='bg_attn', type=int, default=45)
    ap.add_argument('--gubud', type=int, default=8)
    ap.add_argument('--dnlook', type=int, default=16)
    ap.add_argument('--force-fb', dest='force_fb', action='store_true')
    ap.add_argument('--fine', action='store_true')
    ap.add_argument('--chain', type=int, default=0)
    ap.add_argument('--pub3', type=int, default=36)
    ap.add_argument('--prgap', type=int, default=92)
    ap.add_argument('--wgu-q1', dest='wgu_q1', type=int, default=0)
    ap.add_argument('--wgu-q1end', dest='wgu_q1end', type=int, default=112)
    ap.add_argument('--prflag', type=int, default=1)
    ap.add_argument('--rsgap', type=int, default=30)
    ap.add_argument('--late', type=int, default=240)
    ap.add_argument('--rspos', type=int, default=20)
    ap.add_argument('--wlead', type=int, default=6)
    ap.add_argument('--remend', type=int, default=56)
    ap.add_argument('--rigap', type=int, default=58)
    ap.add_argument('--wend', type=int, default=60)
    ap.add_argument('--hend', type=int, default=90)
    ap.add_argument('--t3end', type=int, default=90)
    ap.add_argument('--bg', default='8,12,6,4,28,17,0,6,8')
    ap.add_argument('--bg-start', dest='bg_start', type=int, default=6)
    ap.add_argument('--wo-quiet', dest='wo_quiet', type=int, default=98)
    ap.add_argument('--cs1', type=int, default=10)
    ap.add_argument('--q0a', type=int, default=84)
    ap.add_argument('--touchz', type=int, default=0)
    ap.add_argument('--wt', default='hh,o,h')
    ap.add_argument('--split', type=int, default=1)
    ap.add_argument('--wdq', type=lambda s: [int(x) for x in s.split(',')], default=[13, 32])
    ap.add_argument('--pubgap', type=int, default=50)
    ap.add_argument('--chk4', type=int, default=100)
    ap.add_argument('--gula', type=int, default=5)
    ap.add_argument('--nearly', type=int, default=2)
    ap.add_argument('--x2gap', type=int, default=92)
    ap.add_argument('--drop', default='')
    ap.add_argument('--ntst', default='')
    ap.add_argument('--dn', type=lambda s: [int(x) for x in s.split(',')], default=[12, 50, 44, 76, 98, 130, 32, 32])
    ap.add_argument('--raw', default='')
    ap.add_argument('--isl', default='0')
    ap.add_argument('--padto', type=int, default=0)
    ap.add_argument('--padat', default='end')
    ap.add_argument('--m2pos', type=int, default=10)
    ap.add_argument('--kvgap', type=int, default=156)
    ap.add_argument('--wo-start', dest='wo_start', type=int, default=46)
    ap.add_argument('--oup', type=int, default=11)
    ap.add_argument('--zpub', type=int, default=6)
    ap.add_argument('--chain3', type=int, default=1)
    ap.add_argument('--up', type=lambda s: [int(x) for x in s.split(',')], default=[12, 8])
    ap.add_argument('--spin', type=int, default=20000)
    opt = ap.parse_args()
    g = Gen(opt)
    txt = g.build()
    open(opt.o, 'w').write(txt)
    if opt.stamps:
        open(opt.o + '.stamps', 'w').write(' '.join(g.stampnames))
    print('written', opt.o, 'lines', txt.count('\n'), g.k.stats, g.stampnames)
```

```python
import re

A0 = 256
S0 = 1000
VCC = (1106, 1107)
EXEC = (1126, 1127)
M0 = 1124

TRANS = ('v_exp_f32', 'v_log_f32', 'v_rcp_f32', 'v_rsq_f32', 'v_sqrt_f32', 'v_sin_f32', 'v_cos_f32', 'v_rcp_iflag_f32')
RMW_VALU = ('v_fmac_f32', 'v_dot2c_f32_bf16', 'v_pk_fmac_f16', 'v_writelane_b32')

_reg_re = re.compile(r'^(-|\|)?(?:abs\()?([vas])(?:(\d+)|\[(\d+):(\d+)\])\)?\|?$')


def regs_of(op):
    op = op.strip()
    if op == 'vcc':
        return set(VCC)
    if op == 'vcc_lo':
        return {VCC[0]}
    if op == 'vcc_hi':
        return {VCC[1]}
    if op == 'exec':
        return set(EXEC)
    if op == 'exec_lo':
        return {EXEC[0]}
    if op == 'exec_hi':
        return {EXEC[1]}
    if op == 'm0':
        return {M0}
    m = _reg_re.match(op)
    if not m:
        return set()
    base = {'v': 0, 'a': A0, 's': S0}[m.group(2)]
    if m.group(3) is not None:
        return {base + int(m.group(3))}
    lo, hi = int(m.group(4)), int(m.group(5))
    return set(range(base + lo, base + hi + 1))


def split_ops(s):
    out, depth, cur = [], 0, ''
    for ch in s:
        if ch in '[(':
            depth += 1
        if ch in '])':
            depth -= 1
        if ch == ',' and depth == 0:
            out.append(cur.strip())
            cur = ''
        else:
            cur += ch
    if cur.strip():
        out.append(cur.strip())
    return out


class Ins:
    __slots__ = ('text', 'mn', 'ops', 'mods', 'kind', 'rd', 'wr', 'tag', 'passes', 'A', 'B', 'C', 'D', 'sdata', 'dpp', 'meta')

    def __init__(self, text, tag=None):
        self.text = text
        self.tag = tag
        self.meta = None
        t = text.split(';')[0].strip()
        parts = t.split(None, 1)
        self.mn = mn = parts[0]
        rest = parts[1] if len(parts) > 1 else ''
        ops = split_ops(rest)
        mods = ''
        if ops:
            last = ops[-1]
            m = re.match(r'^(\S+(?:\([^)]*\))?)\s+(.*)$', last)
            if m and not last.startswith('hwreg'):
                ops[-1] = m.group(1)
                mods = m.group(2)
        self.ops, self.mods = ops, mods
        self.rd, self.wr = set(), set()
        self.passes = 0
        self.A = self.B = self.C = self.D = None
        self.sdata = set()
        self.dpp = ('quad_perm' in mods or 'row_' in mods or 'wave_' in mods or mn.endswith('_dpp'))
        R = [regs_of(o) for o in ops]
        base = mn
        for suf in ('_e32', '_e64', '_dpp', '_sdwa'):
            if base.endswith(suf):
                base = base[:-len(suf)]
        if mn.startswith('v_mfma'):
            self.kind = 'mfma'
            self.D, self.A, self.B, self.C = R[0], R[1], R[2], R[3]
            self.wr = set(R[0])
            self.rd = R[1] | R[2] | R[3]
            self.passes = 8 if '32x32' in mn else 4
        elif mn.startswith('v_'):
            self.kind = 'trans' if base in TRANS else 'valu'
            if base.startswith('v_cmpx'):
                self.wr = R[0] | set(EXEC)
                self.rd = set().union(*R[1:])
            elif base in ('v_permlane16_swap_b32', 'v_permlane32_swap_b32', 'v_swap_b32'):
                self.wr = R[0] | R[1]
                self.rd = R[0] | R[1]
            elif base in ('v_add_co_u32', 'v_sub_co_u32', 'v_addc_co_u32', 'v_subb_co_u32', 'v_mad_u64_u32'):
                self.wr = R[0] | R[1]
                self.rd = set().union(*R[2:])
            elif base == 'v_nop':
                pass
            else:
                self.wr = set(R[0])
                self.rd = set().union(*R[1:]) if len(R) > 1 else set()
                if base in RMW_VALU or self.dpp:
                    self.rd |= R[0]
                if base == 'v_cndmask_b32' and len(ops) == 3:
                    self.rd |= set(VCC)
        elif mn.startswith('ds_'):
            self.kind = 'ds'
            if mn.startswith('ds_read') or mn.startswith('ds_bpermute') or mn.startswith('ds_permute') or mn.startswith('ds_swizzle') or '_rtn' in mn:
                self.wr = set(R[0])
                self.rd = set().union(*R[1:])
            else:
                self.rd = set().union(*R)
        elif mn.startswith('buffer_wbl2') or mn.startswith('buffer_inv'):
            self.kind = 'vmem'
        elif mn.startswith('buffer_') or mn.startswith('global_'):
            self.kind = 'vmem'
            lds = bool(re.search(r'\blds\b', mods)) or '_lds_' in mn
            if lds:
                self.rd = set().union(*R) | {M0}
                self.meta = 'dma'
            elif '_load' in mn:
                self.wr = set(R[0])
                self.rd = set().union(*R[1:])
            elif '_store' in mn:
                self.rd = set().union(*R)
                data = R[0] if mn.startswith('buffer_') else R[1]
                if len(data) >= 3:
                    self.sdata = set(data)
            elif '_atomic' in mn:
                self.rd = set().union(*R)
                if 'sc0' in mods:
                    self.wr = set(R[0])
            else:
                raise ValueError(text)
        elif mn.startswith('s_load') or mn.startswith('s_buffer_load') or mn in ('s_memtime', 's_memrealtime') or mn.startswith('s_atomic'):
            self.kind = 'smem'
            self.wr = set(R[0])
            self.rd = set().union(*R[1:]) if len(R) > 1 else set()
            if mn.startswith('s_atomic'):
                self.rd |= R[0]
        elif mn in ('s_waitcnt', 's_nop', 's_barrier', 's_endpgm', 's_sleep', 's_setprio', 's_branch') or mn.startswith('s_cbranch'):
            self.kind = 'ctl'
        elif mn.startswith('s_cmp') or mn.startswith('s_bitcmp'):
            self.kind = 'salu'
            self.rd = set().union(*R)
        elif mn in ('s_setpc_b64',):
            self.kind = 'ctl'
            self.rd = set(R[0])
        elif mn.startswith('s_'):
            self.kind = 'salu'
            self.wr = set(R[0])
            self.rd = set().union(*R[1:]) if len(R) > 1 else set()
            if 'saveexec' in mn:
                self.wr |= set(EXEC)
            if mn in ('s_addk_i32', 's_mulk_i32', 's_cmov_b32', 's_cmov_b64'):
                self.rd |= R[0]
        else:
            raise ValueError('unknown instruction: ' + text)


class Pseudo:
    def __init__(self, what, arg=None):
        self.what, self.arg = what, arg


class Builder:
    def __init__(self):
        self.items = []
        self._stack = []
        self._lab = 0

    def __call__(self, text, tag=None):
        for line in text.split('\n'):
            line = line.strip()
            if not line or line.startswith(';'):
                continue
            self.items.append(Ins(line, tag))

    def newlabel(self, stem='L'):
        self._lab += 1
        return f'.L{stem}_{self._lab}'

    def label(self, name):
        self.items.append(Pseudo('label', name))

    def comment(self, s):
        self.items.append(Pseudo('comment', s))

    def wait_vm(self, tag):
        self.items.append(Pseudo('wait_vm', tag))

    def wait_vm_all(self):
        self.items.append(Pseudo('wait_vm', None))

    def wait_lgkm_all(self):
        self.items.append(Pseudo('wait_lgkm', None))

    def wait_lgkm(self, tag):
        self.items.append(Pseudo('wait_lgkm', tag))

    def barrier(self):
        self.wait_lgkm_all()
        self('s_barrier')

    def cond_begin(self):
        self.items.append(Pseudo('cond_begin'))

    def cond_end(self, certain=False):
        self.items.append(Pseudo('cond_end', certain))

    def fence_hazards(self):
        self.items.append(Pseudo('fence'))

    def assume_vm_empty(self):
        self.items.append(Pseudo('vm_empty'))

    def raw(self, s):
        self.items.append(Pseudo('raw', s))

    def begin(self):
        self._stack.append(self.items)
        self.items = []

    def end(self):
        out = self.items
        self.items = self._stack.pop()
        return out

    def put(self, items):
        self.items.extend(items)

    def finalize(self):
        out = []
        vmq, lgq = [], []
        cond_stack = []
        hist = []
        pos = [0]
        stats = dict(nops=0, waits=0)

        def emit(text, states=1, ins=None):
            out.append('    ' + text)
            if ins is not None:
                hist.append((ins, pos[0]))
                hist[:] = [(p, pp) for (p, pp) in hist if pos[0] - pp <= 24]
            pos[0] += states

        def do_wait(vm=None, lg=None):
            parts = []
            if vm is not None:
                parts.append(f'vmcnt({vm})')
            if lg is not None:
                parts.append(f'lgkmcnt({lg})')
            if parts:
                emit('s_waitcnt ' + ' '.join(parts))
                stats['waits'] += 1

        def need_count(q, idx, cap):
            n = sum(1 for e in q[idx + 1:] if e['certain'])
            return min(n, cap)

        def retire(q, n):
            keep, c = [], 0
            for e in reversed(q):
                if c >= n:
                    break
                keep.append(e)
                if e['certain']:
                    c += 1
            q[:] = list(reversed(keep))

        def hazard_need(ins):
            need = 0
            cur = pos[0]
            isvalu = ins.kind in ('valu', 'trans')
            base = ins.mn
            for p, ppos in hist:
                dist = cur - ppos - 1
                req = 0
                pv = p.kind in ('valu', 'trans')
                if p.kind == 'mfma':
                    big = {4: 8, 8: 12}[p.passes]
                    if ins.kind == 'mfma':
                        if p.D & (ins.A | ins.B):
                            req = max(req, big)
                        if p.D & ins.C:
                            if not (p.D == ins.C and p.passes == ins.passes):
                                req = max(req, {4: 6, 8: 10}[p.passes])
                        elif p.D & ins.D:
                            req = max(req, {4: 6, 8: 10}[p.passes])
                    elif isvalu or ins.kind in ('vmem', 'ds'):
                        if p.D & (ins.rd | ins.wr):
                            req = max(req, big)
                        if isvalu and (p.C & ins.wr):
                            req = max(req, {4: 3, 8: 7}[p.passes])
                if pv:
                    vw = {r for r in p.wr if r < S0}
                    sw = {r for r in p.wr if r >= S0}
                    if ins.kind == 'mfma' and (vw & ins.rd):
                        req = max(req, 2)
                    if ins.kind == 'mfma' and (set(EXEC) & sw):
                        req = max(req, 4)
                    if isvalu:
                        if p.kind == 'trans' and ins.kind != 'trans' and (vw & (ins.rd | ins.wr)):
                            req = max(req, 1)
                        if base.startswith('v_permlane') and (vw & ins.rd):
                            req = max(req, 2)
                        if ins.dpp and (vw & ins.rd):
                            req = max(req, 2)
                        if (base.startswith('v_readlane') or base.startswith('v_readfirstlane')) and (vw & ins.rd):
                            req = max(req, 1)
                        if sw & ins.rd:
                            req = max(req, 4 if (base.startswith('v_readlane') or base.startswith('v_writelane')) else 2)
                        if set(EXEC) & sw:
                            req = max(req, 5)
                        if ('op_sel' in p.mods or 'dst_sel' in p.mods) and not p.mn.startswith('v_pk') and not p.mn.startswith('v_fma_mix_f32') and (vw & (ins.rd | ins.wr)):
                            req = max(req, 1)
                    if p.kind == 'trans' and ins.kind in ('vmem', 'ds') and (vw & ins.rd):
                        req = max(req, 1)
                    if ins.kind == 'vmem' and (sw & ins.rd):
                        req = max(req, 5)
                    if ins.kind in ('salu', 'smem', 'ctl') and (sw & ins.rd):
                        req = max(req, 1)
                if p.kind == 'salu' and M0 in p.wr and ins.meta == 'dma':
                    req = max(req, 1)
                if p.kind == 'vmem' and p.sdata and (p.sdata & ins.wr):
                    req = max(req, 2 if (isvalu or ins.kind == 'mfma') else 1)
                if p.kind == 'ds' and not p.wr and len(p.rd) >= 4 and isvalu and (p.rd & ins.wr):
                    req = max(req, 1)
                if req > dist:
                    need = max(need, req - dist)
            return need

        def pad(n):
            while n > 0:
                k = min(n, 16)
                emit(f's_nop {k - 1}', states=k)
                stats['nops'] += 1
                n -= k

        for it in self.items:
            if isinstance(it, Pseudo):
                if it.what == 'label':
                    out.append(it.arg + ':')
                elif it.what == 'comment':
                    out.append('    ; ' + it.arg)
                elif it.what == 'raw':
                    out.append(it.arg)
                elif it.what == 'wait_vm':
                    idxs = [i for i, e in enumerate(vmq) if it.arg is None or e['tag'] == it.arg]
                    if idxs:
                        n = need_count(vmq, idxs[-1], 63)
                        do_wait(vm=n)
                        retire(vmq, n)
                elif it.what == 'wait_lgkm':
                    idxs = [i for i, e in enumerate(lgq) if it.arg is None or e['tag'] == it.arg]
                    if idxs:
                        n = 0 if any(e['smem'] for e in lgq) else need_count(lgq, idxs[-1], 15)
                        do_wait(lg=n)
                        retire(lgq, n)
                elif it.what == 'need':
                    vm = lg = None
                    idxs = [i for i, e in enumerate(vmq) if e['wr'] & it.arg]
                    if idxs:
                        vm = need_count(vmq, idxs[-1], 63)
                    idxs = [i for i, e in enumerate(lgq) if e['wr'] & it.arg]
                    if idxs:
                        lg = 0 if any(e['smem'] for e in lgq) else need_count(lgq, idxs[-1], 15)
                    do_wait(vm, lg)
                    if vm is not None:
                        retire(vmq, vm)
                    if lg is not None:
                        retire(lgq, lg)
                elif it.what == 'vm_empty':
                    vmq[:] = []
                elif it.what == 'cond_begin':
                    cond_stack.append((list(vmq), list(lgq), list(hist), pos[0]))
                elif it.what == 'cond_end':
                    v0, l0, h0, p0 = cond_stack.pop()
                    delta = pos[0] - p0
                    inner = [(p, pp) for (p, pp) in hist if pp >= p0]
                    hist[:] = [(p, pp + delta) for (p, pp) in h0] + inner
                    for q, q0 in ((vmq, v0), (lgq, l0)):
                        new = [e for e in q if not any(e is x for x in q0)]
                        for e in new:
                            if not (it.arg and q is vmq):
                                e['certain'] = False
                        q[:] = q0 + new
                elif it.what == 'fence':
                    need = 0
                    for p, ppos in hist:
                        dist = pos[0] - ppos - 1
                        req = 0
                        if p.kind == 'mfma':
                            req = {4: 8, 8: 12}[p.passes]
                        elif p.kind in ('valu', 'trans'):
                            req = 5 if any(r >= S0 for r in p.wr) else 2
                        elif p.kind == 'vmem' and p.sdata:
                            req = 2
                        elif p.kind == 'salu' and M0 in p.wr:
                            req = 1
                        need = max(need, req - dist)
                    pad(need)
                continue
            ins = it
            touch = ins.rd | ins.wr
            vm = lg = None
            tv = ins.rd if ins.kind == 'vmem' else touch
            idxs = [i for i, e in enumerate(vmq) if e['wr'] & tv]
            if idxs:
                vm = need_count(vmq, idxs[-1], 63)
            tl = ins.rd if ins.kind == 'ds' else touch
            idxs = [i for i, e in enumerate(lgq) if e['wr'] & tl]
            if idxs:
                lg = 0 if any(e['smem'] for e in lgq) else need_count(lgq, idxs[-1], 15)
            do_wait(vm, lg)
            if vm is not None:
                retire(vmq, vm)
            if lg is not None:
                retire(lgq, lg)
            if ins.mn == 's_waitcnt':
                m = re.search(r'vmcnt\((\d+)\)', ins.text)
                if m:
                    retire(vmq, int(m.group(1)))
                m = re.search(r'lgkmcnt\((\d+)\)', ins.text)
                if m and (int(m.group(1)) == 0 or not any(e['smem'] for e in lgq)):
                    retire(lgq, int(m.group(1)))
            pad(hazard_need(ins))
            states = 1
            if ins.mn == 's_nop':
                states = int(ins.ops[0], 0) + 1
            emit(ins.text, states=states, ins=ins)
            if ins.kind == 'vmem':
                vmq.append(dict(wr=set(ins.wr), tag=ins.tag, certain=True, smem=False))
            elif ins.kind == 'ds':
                lgq.append(dict(wr=set(ins.wr), tag=ins.tag, certain=True, smem=False))
            elif ins.kind == 'smem':
                lgq.append(dict(wr=set(ins.wr), tag=ins.tag, certain=True, smem=True))
        self.stats = stats
        return '\n'.join(out)


def interleave(main, fill, start=0, every=1, per=1):
    out, fi, n = [], 0, 0
    for it in main:
        out.append(it)
        if isinstance(it, Ins) and it.kind == 'mfma':
            if n >= start and (n - start) % every == 0:
                c = 0
                while fi < len(fill) and c < per:
                    f = fill[fi]
                    out.append(f)
                    fi += 1
                    if isinstance(f, Ins):
                        c += 2 if f.kind == 'trans' else 1
            n += 1
    out.extend(fill[fi:])
    return out


def n_mfma(main):
    return sum(1 for it in main if isinstance(it, Ins) and it.kind == 'mfma')


class Weave:
    def __init__(self, main):
        self.main = main
        self.n = n_mfma(main)
        self.slots = [[] for _ in range(self.n)]
        self.tail = []

    def spread(self, units, first=0, last=None):
        if last is None:
            last = self.n - 1
        m = len(units)
        for i, u in enumerate(units):
            pos = first + (i * (last - first + 1)) // m
            self.slots[pos].extend(u)

    def at(self, pos, items):
        self.slots[pos].extend(items)

    def fill(self, items, first=0, budget=8):
        def cost(it):
            if not isinstance(it, Ins):
                return 0
            if it.kind == 'trans':
                return 8
            if it.kind == 'salu':
                return 1
            return 4
        fi, carry = 0, 0
        for pos in range(first, self.n):
            carry = min(carry + budget, budget + 4)
            while fi < len(items) and cost(items[fi]) <= carry:
                carry -= cost(items[fi])
                self.slots[pos].append(items[fi])
                fi += 1
        self.tail.extend(items[fi:])

    def result(self):
        out, n = [], 0
        for it in self.main:
            out.append(it)
            if isinstance(it, Ins) and it.kind == 'mfma':
                out.extend(self.slots[n])
                n += 1
        out.extend(self.tail)
        return out


def slots_of(it):
    if not isinstance(it, Ins):
        return 0
    if it.kind == 'trans' or it.mn.startswith('v_permlane'):
        return 2
    if it.mn.startswith('ds_write_b128'):
        return 5
    if it.mn.startswith('ds_write_b64'):
        return 3
    if it.kind == 'vmem' and '_store' in it.mn:
        return 3
    return 1


def is_mem(it):
    return isinstance(it, Ins) and it.kind in ('ds', 'vmem')


class Sched:
    def __init__(self, main):
        self.head = []
        self.mf, self.mem, self.val = [], [], []
        for it in main:
            if isinstance(it, Ins) and it.kind == 'mfma':
                self.mf.append(it)
                self.mem.append([])
                self.val.append([])
            elif not self.mf:
                self.head.append(it)
            elif is_mem(it):
                self.mem[-1].append(it)
            else:
                self.val[-1].append(it)
        self.n = len(self.mf)
        self.tail = []

    def cap(self, g):
        return 6 if self.mf[g].passes == 8 else 2

    def used(self, g):
        u = sum(slots_of(i) for i in self.mem[g]) + sum(slots_of(i) for i in self.val[g])
        if self.mem[g] and isinstance(self.mem[g][0], Ins) and self.mem[g][0].kind == 'salu':
            u -= 1
        return u

    def at(self, g, unit):
        self.mem[g].extend(unit)

    def pre(self, g, unit):
        self.mem[g][0:0] = unit

    def post(self, g, unit):
        self.val[g].extend(unit)

    def spread(self, units, first=0, last=None, mod=None):
        if last is None:
            last = self.n - 1
        gaps = [g for g in range(first, last + 1) if mod is None or g % mod[0] == mod[1]]
        m = len(units)
        for i, u in enumerate(units):
            lst = self.mem[gaps[(i * len(gaps)) // m]]
            if u and isinstance(u[0], Ins) and u[0].kind == 'salu' and len(lst) == 1 and is_mem(lst[0]) and lst[0].kind == 'ds':
                j = 0
                while isinstance(u[j], Ins) and u[j].kind == 'salu' and j + 1 < len(u):
                    j += 1
                lst[0:0] = u[:j]
                lst.extend(u[j:])
            else:
                lst.extend(u)

    def fill(self, items, first=0, window=24, last=None, over=0):
        items = [it for it in items]
        assert all(isinstance(it, Ins) for it in items)
        n = len(items)
        SCC = 1200
        def rw(it):
            rd, wr = set(it.rd), set(it.wr)
            if it.kind == 'salu':
                rd.add(SCC); wr.add(SCC)
            return rd, wr
        RW = [rw(it) for it in items]
        preds = []
        for i in range(n):
            p = set()
            for j in range(i):
                if (RW[j][1] & (RW[i][0] | RW[i][1])) or (RW[j][0] & RW[i][1]) or (is_mem(items[i]) and is_mem(items[j])):
                    p.add(j)
            preds.append(p)
        where = [None] * n
        left = list(range(n))
        g = first
        end = self.n if last is None else last + 1
        while g < end and left:
            free = self.cap(g) + over - self.used(g)
            best = None
            for i in left[:window]:
                if any(where[j] is None for j in preds[i]):
                    continue
                it = items[i]
                c = slots_of(it)
                if is_mem(it):
                    if any(where[j] == (g, 'v') for j in preds[i]) or (c > free and self.used(g) > 0):
                        continue
                    score = 3
                else:
                    if c > free:
                        continue
                    if self.val[g]:
                        prev = self.val[g][-1]
                        if isinstance(prev, Ins) and (prev.wr & it.rd) and (prev.kind == 'trans' or it.mn.startswith('v_permlane')):
                            continue
                    score = 2 if c == 2 else 1
                if best is None or score > best[0]:
                    best = (score, i)
            if best is None:
                g += 1
                continue
            i = best[1]
            left.remove(i)
            if is_mem(items[i]):
                self.mem[g].append(items[i]); where[i] = (g, 'm')
            else:
                self.val[g].append(items[i]); where[i] = (g, 'v')
        (self.tail if last is None else self.val[last]).extend(items[i] for i in left)
        self.ntail = len(left)
        self.lastgap = g

    def result(self):
        out = list(self.head)
        for g in range(self.n):
            out.append(self.mf[g])
            if g + 1 < self.n:
                out.append(Pseudo('need', self.mf[g + 1].A | self.mf[g + 1].B))
            out.extend(self.mem[g])
            out.extend(self.val[g])
        out.extend(self.tail)
        return out
```

```python
import os, sys, struct, argparse
sys.path.insert(0, 'dev')
from asmb import Builder, Sched, Ins

NAME = 'adaLN_cond__sliding_block__glu_gated_geglu__prompt'

WS_EPOCH = 0
WS_HELLO = 0x400
WS_PQ = 0x2000
WS_PR = 0x4000
WS_KVF = 0x8000
WS_FLAG = 0x40000
WS_XF = 0x60000
WS_MODG = 0x10000
WS_ST = 0x20000
WS_WQ = 0x100000
WS_WO = 0x3C0000
WS_WGU = 0x4C0000
WS_WD = 0x900000
PAD = int(os.environ.get('PAD', '1280'))
WQ_J = 163840 + 5 * PAD
WGU_S = 61440 + PAD
OD_W = PAD
WO_J = 20 * 5120 + 5 * PAD
WD_J = 48 * 5120 + 5 * PAD
WS_H = 0xB40000
WS_O = 0xDC0000
WS_Z = 0x1040000
WS_KV = 0x12C0000
WS_HH = 0x1840000
O_CL = 163840
if 'NOARENA' not in os.environ:
    WS_Z = WS_H
    WS_O = WS_HH
    O_CL = 393216
WS_DBG = 0x1E40000
WS_SIZE = 0x1F00000
WS_BASE = int(os.environ.get('WSBASE', '0'), 0)
OOB = 0x40000000
PH_H, PH_O, PH_Z, PH_HH = range(4)
SF = 52
VF_FAST, VF_SLOW = 4, 0

KVB = 5632
L_C = 0
L_KVOWN = 8 * KVB
L_Q = 12 * KVB
L_P = L_Q + 10240
L_A = 81920
L_B = 122880
LDS_BYTES = 163840
L_X = L_Q
L_MOD = L_C
L_WQS = L_C + 20480
L_MV = L_KVOWN + 16384
L_STAT = L_C + 40960
L_SC = L_C + 41472
L_GUS = L_KVOWN
L_ODS = [L_X, L_GUS]
KM_OFF = [0, 1024]
KT_OFF = 2048
V_OFF = [2560, 4096]
P_SB = L_P
P_G2 = L_P + 1280
P_GA = L_P + 2560
P_GB = L_P + 2720
P_DUMMY = L_P + 3072
L_RED = 0

sW = 's3'
WS = 's[4:7]'; XS = 's[8:11]'; WQS = 's[12:15]'; ODS = 's[16:19]'; WGS = 's[20:23]'; WUS = 's[24:27]'
CS = 's[28:31]'; WMS = 's[32:35]'; OUTS = 's[36:39]'
sCL, sJ, sTAG, sFAST = 's40', 's41', 's42', 's43'
sJC, sTH = 's46', 's47'

DUMMY = 47
QSCALE = 20 ** -0.5 * 1.4426950408889634 * float(os.environ.get('QERR', '1'))
NEG = -1.0e30


def f2u(x):
    return struct.unpack('<I', struct.pack('<f', x))[0]


def vr(a, n=1, t='v'):
    return f'{t}{a}' if n == 1 else f'{t}[{a}:{a + n - 1}]'


def ur(a, n=4):
    return vr(a, n, 'v') if a < 256 else vr(a - 256, n, 'a')


def zipper(a, b, lead):
    out = list(a[:lead])
    a = a[lead:]
    for i in range(max(len(a), len(b))):
        out += a[i:i + 1] + b[i:i + 1]
    return out


class TagBuilder(Builder):
    wt = ()
    plain = ()

    def is_wt(self, tag):
        return tag is not None and tag.rstrip('0123') in self.wt and tag not in self.plain

    def __call__(self, text, tag=None):
        if self.is_wt(tag) and text.startswith('buffer_store'):
            text += ' sc1'
        if tag in self.drop and text.startswith('buffer_'):
            return
        if tag in self.ntst and text.startswith('buffer_store'):
            text += ' nt'
        if text.startswith('buffer_'):
            cls = None
            t = (tag or '').rstrip('0123456')
            if text.startswith('buffer_store') and ' sc1' in text:
                cls = 'st'
            elif t in ('w', 'wgu', 'wo', 'wd', 'wdl'):
                cls = 'w'
            elif text.startswith('buffer_load_dwordx4') and 's[4:7]' in text:
                cls = 'a'
            elif text.startswith('buffer_load_dword ') and 's[4:7]' in text:
                cls = 'f'
            if cls in self.bits:
                text = text.replace(' sc1', self.bits[cls])
        super().__call__(text, tag)


class Gen:
    def __init__(self, opt):
        self.o = opt
        self.k = TagBuilder()
        self.k.wt = opt.wt.split(',')
        self.k.plain = opt.plain.split(',')
        self.k.drop = opt.drop.split(',')
        self.k.ntst = opt.ntst.split(',')
        self.k.bits = {kv.split('=')[0]: kv.split('=')[1].replace('_', ' ') for kv in opt.bits.split(',') if kv}
        self.nstamp = 0
        self.stampnames = []
        self.ool = []
        self.ntw = ' nt' if 'ntw' in opt.x else ''
        self.ntx = ' sc0 sc1'
        self.ntc = ' sc0 sc1'
        self.nt2 = {'x2sc': ' sc0 sc1', 'x2nt': ' nt'}.get(opt.x2b, '')
        self.ntm = '' if 'nont' in opt.x else (' sc0 sc1 nt' if 'allnt' in opt.x else ' sc1 nt')
        self.nt = 0
        self.D = 'h' in opt.order.split(',')
        self.X = 'xi0' in opt.order.split(',')
        self.RA = 24 if self.X else 240
        self.RT = 56 if self.X else 252
        self.MC = 64 if self.X else 200

    def stamp(self, name):
        if self.o.padto and self.o.padat == name:
            self.padspin(self.o.padto)
        if not self.o.stamps or (self.o.only and name not in self.o.only.split(',')):
            return
        k = self.k
        n = self.nstamp
        assert n < 60
        self.nstamp += 1
        self.stampnames.append(name)
        k('s_memtime s[100:101]' if self.o.cyc else 's_memrealtime s[100:101]')
        k(f'v_writelane_b32 v11, s100, {n + 1}')

    def rawstamps(self, w, gaps, prefix):
        k = self.k
        for gp in gaps:
            n = self.nstamp
            self.nstamp += 1
            self.stampnames.append(f'{prefix}{gp}')
            k.begin()
            k.raw('    s_memtime s[98:99]')
            w.pre(gp, k.end())
            k.begin()
            k.raw(f'    v_writelane_b32 v11, s98, {n + 1}')
            w.post(gp + (10 if w.cap(gp) == 2 else 5), k.end())

    def dma(self, srd, voff, soff, lds, imm=0, tag=None, sc1=False):
        k = self.k
        k(f's_mov_b32 m0, {lds}')
        k(f'buffer_load_dwordx4 {voff}, {srd}, {soff} offen offset:{imm}{" sc1" if sc1 else ""} lds', tag)

    def bf16_round_keep(self, regs, tmp):
        k = self.k
        for i in range(0, len(regs), 2):
            k(f'v_cvt_pk_bf16_f32 v{tmp}, v{regs[i]}, v{regs[i + 1]}')
            k(f'v_lshlrev_b32 v{regs[i]}, 16, v{tmp}')
            k(f'v_and_b32 v{regs[i + 1]}, 0xffff0000, v{tmp}')

    def flag_off(self, sdst, phase, scl=sCL):
        k = self.k
        k(f's_add_u32 {sdst}, s{SF + phase // 2}, {(phase % 2) * 2048}')

    def publish(self, phase, tag):
        k = self.k
        if k.is_wt(tag):
            k.wait_vm(tag)
            k(f'buffer_store_dword v5, v{VF_FAST}, {WS}, s{SF + phase // 2} offen offset:{(phase % 2) * 2048}')
            k(f'buffer_store_dword v5, v{VF_SLOW}, {WS}, s{SF + phase // 2} offen offset:{(phase % 2) * 2048} sc1')
            return
        k.wait_vm(tag)
        k(f'buffer_store_dword v5, v{VF_FAST}, {WS}, s{SF + phase // 2} offen offset:{(phase % 2) * 2048}')
        back, slow = k.newlabel('pubb'), k.newlabel('pubs')
        k(f's_cmp_eq_u32 {sFAST}, 0')
        k(f's_cbranch_scc1 {slow}')
        k.label(back)

        def ool():
            k.label(slow)
            k('buffer_wbl2 sc1')
            k('s_waitcnt vmcnt(0)')
            k(f'buffer_store_dword v5, v{VF_SLOW}, {WS}, s{SF + phase // 2} offen offset:{(phase % 2) * 2048} sc1')
            k(f's_branch {back}')
        self.ool.append(ool)

    def recheck(self, body):
        k = self.k
        back, slow = k.newlabel('rcb'), k.newlabel('rcs')
        k('s_cmp_lg_u64 vcc, 0')
        k(f's_cbranch_scc1 {slow}')
        k.label(back)

        def ool():
            k.label(slow)
            self.spin(body)
            k.fence_hazards()
            k(f's_branch {back}')
        self.ool.append(ool)

    def acquire(self, tag):
        k = self.k
        if k.is_wt(tag):
            return
        back, slow = k.newlabel('acb'), k.newlabel('acs')
        k(f's_cmp_eq_u32 {sFAST}, 0')
        k(f's_cbranch_scc1 {slow}')
        k.label(back)

        def ool():
            k.label(slow)
            k('buffer_inv sc1')
            k('s_waitcnt vmcnt(0)')
            k(f's_branch {back}')
        self.ool.append(ool)

    def spin(self, body, onmiss=None):
        k = self.k
        lab, out = k.newlabel('poll'), k.newlabel('pollx')
        k('s_mov_b32 s73, 0')
        k.fence_hazards()
        k.label(lab)
        k('s_add_u32 s73, s73, 1')
        body()
        k(f's_cmp_ge_u32 s73, {self.o.spin}')
        k(f's_cbranch_scc1 {out}')
        if onmiss is None:
            k('s_cmp_lg_u64 vcc, 0')
            k(f's_cbranch_scc1 {lab}')
        else:
            k('s_cmp_eq_u64 vcc, 0')
            k(f's_cbranch_scc1 {out}')
            k('s_cmp_lg_u32 s73, 1')
            k(f's_cbranch_scc1 {lab}')
            onmiss()
            k(f's_branch {lab}')
        k.label(out)
        k.assume_vm_empty()

    def allcheck(self, regs, t):
        k = self.k
        if len(regs) == 1:
            k(f'v_cmp_ne_u32 vcc, {sTAG}, v{regs[0]}')
            return
        k(f'v_xor_b32 v{t}, {sTAG}, v{regs[0]}')
        rest = regs[1:]
        while rest:
            k(f'v_xor_b32 v{t + 1}, {sTAG}, v{rest[0]}')
            if len(rest) > 1:
                k(f'v_xor_b32 v{t + 2}, {sTAG}, v{rest[1]}')
                k(f'v_or3_b32 v{t}, v{t}, v{t + 1}, v{t + 2}')
            else:
                k(f'v_or_b32 v{t}, v{t}, v{t + 1}')
            rest = rest[2:]
        k(f'v_cmp_ne_u32 vcc, 0, v{t}')

    def poll(self, voff, soff, vt, local):
        k = self.k

        def body():
            k(f'buffer_load_dword v{vt}, {voff}, {WS}, {soff} offen sc1')
            k('s_waitcnt vmcnt(0)')
            self.allcheck([vt], vt)
        self.spin(body)
        if local:
            self.acquire(local)

    def units_frags(self, regs, sbase, voff='v1', tag=None, first=0):
        k = self.k
        out = []
        for n, r in enumerate(regs):
            i = n + first
            k.begin()
            if i and i % 4 == 0:
                k(f's_add_u32 {sbase}, {sbase}, 4096')
            if not ('nobg' in self.o.x and tag in ('wgu', 'wo', 'wd')):
                k(f'buffer_load_dwordx4 {ur(r)}, {voff}, {WS}, {sbase} offen offset:{1024 * (i % 4)} sc1{self.ntw if tag in ("wgu", "wo", "wd") else ""}', tag)
            out.append(k.end())
        return out

    def units_dma(self, ssrc, srcadd, ldsbase, n, tag, voff='v1', woff=None):
        k = self.k
        c = (n + 3) // 4
        out = []
        for i in range(c):
            k.begin()
            if i == 0 and woff:
                k(f's_add_u32 s87, {ssrc}, {srcadd}')
                k(f's_add_u32 m0, {woff}, {ldsbase}')
            elif i == 0:
                k(f's_mul_i32 s88, {sW}, {c}')
                if c * 4 != n:
                    k(f's_min_u32 s88, s88, {n - c}')
                k('s_lshl_b32 s88, s88, 10')
                k(f's_add_u32 s87, {ssrc}, s88')
                if srcadd:
                    k(f's_add_u32 s87, s87, {srcadd}')
                k(f's_add_u32 m0, s88, {ldsbase}')
            elif i % 4 == 0:
                k('s_add_u32 s87, s87, 4096')
                k('s_add_u32 m0, m0, 4096')
            k(f'buffer_load_dwordx4 {voff}, {WS}, s87 offen offset:{1024 * (i % 4)} sc1 lds', tag)
            out.append(k.end())
        return out

    def take(self, n):
        out, self.bg = self.bg[:n], self.bg[n:]
        return out

    def put_units(self, units):
        for u in units:
            self.k.put(u)

    def rowsum(self, r, t):
        k = self.k
        k(f'v_mov_b32 v{t}, v{r}')
        k(f'v_permlane16_swap_b32 v{r}, v{t}')
        k(f'v_add_f32 v{r}, v{r}, v{t}')
        k(f'v_mov_b32 v{t}, v{r}')
        k(f'v_permlane32_swap_b32 v{r}, v{t}')
        k(f'v_add_f32 v{r}, v{r}, v{t}')

    def touch(self, soff, per, n, stride, t, dst=DUMMY):
        k = self.k
        if 'notouch' in self.o.x:
            return
        magic = (65536 + per - 1) // per
        assert all((l * magic) >> 16 == l // per for l in range(64))
        if per == 1:
            k(f'v_mul_u32_u24 v{t}, {stride}, v3')
        else:
            k(f'v_mul_u32_u24 v{t}, {magic}, v3')
            k(f'v_lshrrev_b32 v{t}, 16, v{t}')
            k(f'v_mul_u32_u24 v{t}, {stride - per * 128}, v{t}')
            k(f'v_lshl_add_u32 v{t}, v3, 7, v{t}')
        k(f'v_sub_u32 v{t + 1}, {n - 1}, v3')
        k(f'v_and_b32 v{t + 1}, {OOB}, v{t + 1}')
        k(f'v_or_b32 v{t}, v{t}, v{t + 1}')
        k(f'buffer_load_dword v{dst}, v{t}, {WS}, {soff} offen{" nt" if "ntt" in self.o.x else " sc1"}')


    def st_entry(self):
        k = self.k
        o = self.o
        k('s_load_dwordx8 s[64:71], s[0:1], 64')
        k('s_load_dwordx16 s[48:63], s[0:1], 0')
        k(f's_cmp_ge_u32 s2, {0 if "exit0" in o.x else 256}')
        k('s_cbranch_scc1 .Lend')
        if o.stamps:
            k('s_memrealtime s[100:101]')
            k('s_memtime s[98:99]')
        if o.padto:
            k('s_memrealtime s[98:99]')
        k('s_getpc_b64 s[44:45]')
        k.label('.Lpc0')
        k('v_mov_b32 v37, v0')
        k('s_bfe_u32 s72, s2, 0x30003')
        k('v_lshrrev_b32 v2, 2, v37')
        k('v_lshl_add_u32 v2, s72, 6, v2')
        k('v_lshlrev_b32 v2, 7, v2')
        k('v_min_u32 v2, .Lcode_end-.Lpc0-4, v2')
        k(f'global_load_dword v199, v2, s[44:45]{self.ntc}')
        k('v_lshrrev_b32 v2, 6, v37')
        k('v_and_b32 v3, 63, v37')
        k('v_readfirstlane_b32 s3, v2')
        k('s_mov_b32 s34, 4915200')
        k('s_mov_b32 s35, 0x20000')
        k('s_movk_i32 s30, 1280')
        k('s_mov_b32 s31, 0x20000')
        k('s_sub_u32 s74, s2, 16')
        k('s_cmp_lt_u32 s2, 240')
        k('s_cselect_b32 s74, s2, s74')
        k('s_lshr_b32 s75, s74, 2')
        k('s_and_b32 s76, s74, 3')
        k('v_lshrrev_b32 v6, 3, v3')
        k('v_and_b32 v7, 7, v3')
        k('v_lshlrev_b32 v7, 4, v7')
        k('s_movk_i32 s72, 7680')
        k('v_mad_u32_u24 v39, v6, s72, v7')
        k('s_mul_i32 s77, s76, 160')
        k(f's_lshl3_add_u32 s77, {sW}, s77')
        k('s_mul_i32 s77, s77, 7680')
        k('s_lshl_b32 s72, s75, 7')
        k('s_add_u32 s77, s77, s72')
        k('v_min_u32 v9, 79, v37')
        k('v_lshlrev_b32 v9, 2, v9')
        k('s_mul_i32 s79, s76, 320')
        k.wait_lgkm_all()
        if o.stamps:
            k('v_mov_b32 v11, s100')
            k('v_writelane_b32 v11, s98, 61')
        k('s_mov_b64 s[32:33], s[64:65]')
        k('s_mov_b64 s[28:29], s[62:63]')
        if WS_BASE:
            k(f's_add_u32 s70, s70, {WS_BASE}')
            k('s_addc_u32 s71, s71, 0')
        k('s_load_dword s42, s[70:71], 0')
        k(f'buffer_load_dword v10, v9, {CS}, s79 offen sc0 sc1')
        k('s_mov_b32 s95, s77')
        if o.xfirst:
            self.st_ids()
            k('s_mov_b64 s[8:9], s[48:49]')
            k('s_mov_b32 s10, 2621440')
            k('s_mov_b32 s11, 0x20000')
            self.xd_touch() if self.X else self.st_x_issue()
        if o.late >= 240:
            self.mod_issue('mod')
        else:
            lab = k.newlabel('me')
            k(f's_cmp_ge_u32 s2, {o.late}')
            k(f's_cbranch_scc1 {lab}')
            k.cond_begin()
            self.mod_issue('mod')
            k.cond_end()
            k.label(lab)
        self.stamp('modiss')
        for srd, size, p in ((4, WS_SIZE, 70), (8, 2621440, 48), (12, 2457600, 50), (20, 1966080, 56), (24, 1966080, 58), (36, 2621440, 66)):
            k(f's_mov_b64 s[{srd}:{srd + 1}], s[{p}:{p + 1}]')
            k(f's_mov_b32 s{srd + 2}, {size}')
            k(f's_mov_b32 s{srd + 3}, 0x20000')
        k('s_mov_b32 s19, 0x20000')
        if not o.xfirst:
            self.st_ids()
        k('s_mul_i32 s80, s74, 171')
        k('s_lshr_b32 s80, s80, 9')
        k('s_mul_i32 s81, s80, 3')
        k('s_sub_u32 s81, s74, s81')

    def st_ids(self):
        k = self.k
        o = self.o
        if o.split == 1:
            k('s_and_b32 s72, s2, 7')
            k('s_lshr_b32 s73, s2, 3')
            k(f's_and_b32 {sJ}, s73, 15')
            k('s_lshr_b32 s73, s73, 4')
            k(f's_lshl1_add_u32 {sCL}, s72, s73')
        else:
            k('s_bfe_u32 s72, s2, 0x20001')
            k('s_lshr_b32 s73, s2, 6')
            k(f's_lshl2_add_u32 {sCL}, s72, s73')
            k('s_bfe_u32 s72, s2, 0x30003')
            k('s_and_b32 s73, s2, 1')
            k(f's_lshl1_add_u32 {sJ}, s72, s73')
        k(f's_and_b32 {sJC}, {sJ}, 7')
        k(f's_lshr_b32 {sTH}, {sJ}, 3')
        k('v_lshlrev_b32 v1, 4, v3')
        k(f'v_mov_b32 v2, {OOB}')

    def mod_issue(self, tag):
        k = self.k
        k(f's_lshl_b32 s72, {sW}, 10')
        k(f's_add_u32 m0, s72, {L_MOD}')
        for t in range(5):
            k(f'buffer_load_dwordx4 v39, {WMS}, s95 offen{self.ntm} lds', tag)
            if t < 4:
                k(f's_add_u32 s95, s95, {32 * 7680}')
                k('s_add_u32 m0, m0, 4096')

    def mod_core(self, tag):
        k = self.k
        k('s_mov_b32 s73, 0x07060503')
        k('s_mov_b32 s77, 0x07060502')
        k('s_mov_b32 s78, 0x07060501')
        k.wait_vm(tag)
        k.barrier()
        for s in range(5):
            k(f'ds_read_b64_tr_b16 v[{200 + 4 * s}:{201 + 4 * s}], v17 offset:{L_MOD + 4096 * s}')
            k(f'ds_read_b64_tr_b16 v[{202 + 4 * s}:{203 + 4 * s}], v17 offset:{L_MOD + 4096 * s + 512}')
            k(f'ds_read_b128 v[{220 + 4 * s}:{223 + 4 * s}], v18 offset:{L_SC + 64 * s}')
        for s in range(5):
            k(f'v_mfma_f32_16x16x32_bf16 v[80:83], v[{200 + 4 * s}:{203 + 4 * s}], v[{220 + 4 * s}:{223 + 4 * s}], {"0" if s == 0 else "v[80:83]"}')
        k('v_perm_b32 v80, v80, v83, s73')
        k('v_perm_b32 v81, v81, v83, s77')
        k('v_perm_b32 v82, v82, v83, s78')
        k('v_mov_b32 v83, s42')
        k(f'buffer_store_dwordx4 v[80:83], v15, {WS}, s96 offen sc1')
        k.fence_hazards()

    def st_wq_issue(self):
        k = self.k
        k('s_movk_i32 s72, 3840')
        k('v_mad_u32_u24 v8, v6, s72, v7')
        k('s_mul_i32 s77, s80, 30720')
        k('s_mul_i32 s72, s81, 1280')
        k('s_add_u32 s77, s77, s72')
        k(f's_mul_i32 s78, {sW}, 3072')
        k(f's_add_u32 m0, s78, {L_WQS}')
        k(f's_add_u32 s82, {sW}, 8')
        k('s_min_u32 s82, s82, 9')
        k(f's_lshl_b32 s72, {sW}, 7')
        k('s_add_u32 s72, s72, s77')
        k(f'buffer_load_dwordx4 v8, {WQS}, s72 offen{self.ntm} lds', 'wq')
        k('s_add_u32 s72, s72, 512')
        k('s_add_u32 m0, m0, 1024')
        k(f'buffer_load_dwordx4 v8, {WQS}, s72 offen{self.ntm} lds', 'wq')
        k('s_lshl_b32 s72, s82, 7')
        k('s_add_u32 s72, s72, s77')
        k('s_add_u32 m0, m0, 1024')
        k(f'buffer_load_dwordx4 v8, {WQS}, s72 offen{self.ntm} lds', 'wq')

    def st_addr(self):
        k = self.k
        k('s_lshr_b32 s72, s80, 2')
        k('s_mul_i32 s97, s72, 5120')
        k('s_mul_i32 s72, s72, 3072')
        k('s_add_u32 s72, s72, 102400')
        k('s_cmp_eq_u32 s81, 0')
        k('s_cmov_b32 s97, s72')
        k('s_and_b32 s72, s80, 3')
        k('s_lshl_b32 s72, s72, 8')
        k('s_add_u32 s97, s97, s72')
        k(f's_add_u32 s97, s97, {WS_WQ}')
        k('s_cmp_eq_u32 s81, 2')
        k('s_cselect_b32 s77, 192, 0')
        k('s_movk_i32 s78, 112')
        k('s_cmov_b32 s78, 116')
        k(f's_mov_b32 s79, {WQ_J}')
        for t in range(3):
            if t < 2:
                k(f's_lshl_b32 s72, {sW}, 6')
                if t:
                    k('s_add_u32 s72, s72, 256')
            else:
                k('s_lshl_b32 s72, s82, 6')
            k('v_add_u32 v76, s72, v3')
            k('v_mul_u32_u24 v77, 205, v76')
            k('v_lshrrev_b32 v77, 12, v77')
            k('v_mul_u32_u24 v78, 20, v77')
            k('v_sub_u32 v76, v76, v78')
            k('v_and_b32 v78, 1, v77')
            k('v_lshrrev_b32 v77, 1, v77')
            k('v_lshl_add_u32 v79, v78, 6, s77')
            k('v_lshl_add_u32 v78, v78, 3, s78')
            k('v_cmp_gt_u32 vcc, 16, v76')
            k('v_cndmask_b32 v78, v78, v79, vcc')
            k('v_add_lshl_u32 v76, v76, v78, 4')
            k(f'v_mad_u32_u24 v{20 + t}, v77, s79, v76')
            k(f'v_cndmask_b32 v{160 + t}, 0, v2, vcc')
        k(f's_cmp_ge_u32 {sW}, 2')
        k(f's_cselect_b32 s72, {OOB}, 0')
        k('v_or_b32 v22, s72, v22')
        k('s_cmp_ge_u32 s2, 240')
        k(f's_cselect_b32 s72, {OOB}, 0')
        for t in range(3):
            k(f'v_or_b32 v{20 + t}, s72, v{20 + t}')
        k('s_cmp_lg_u32 s81, 0')
        k(f's_cselect_b32 s72, {OOB}, 0')
        for t in range(3):
            k(f'v_or3_b32 v{160 + t}, v{160 + t}, s72, v{20 + t}')

    def st_wq_process(self):
        k = self.k
        k(f's_mul_i32 s72, {sW}, 3072')
        k('v_add_u32 v76, s72, v19')
        k.wait_vm('wq')
        for t in range(3):
            k(f'ds_read_b64_tr_b16 v[{64 + 4 * t}:{65 + 4 * t}], v76 offset:{L_WQS + 1024 * t}')
            k(f'ds_read_b64_tr_b16 v[{66 + 4 * t}:{67 + 4 * t}], v76 offset:{L_WQS + 1024 * t + 512}')
        for t in range(3):
            k(f'buffer_store_dwordx4 v[{64 + 4 * t}:{67 + 4 * t}], v{20 + t}, {WS}, s97 offen sc1', 'wqst')
            k(f'buffer_store_dwordx4 v[{64 + 4 * t}:{67 + 4 * t}], v{160 + t}, {WS}, s97 offen offset:64 sc1', 'wqst')
        self.stamp('wqst')

    def st_x_issue(self):
        k = self.k
        k('v_mul_u32_u24 v36, 80, v7')
        k('v_lshl_add_u32 v36, v6, 4, v36')
        k('v_cmp_gt_u32 vcc, 32, v3')
        k('v_cndmask_b32 v38, v2, v36, vcc')
        k(f's_lshl4_add_u32 s72, {sCL}, {sJ}')
        k('s_mul_i32 s72, s72, 10240')
        k(f's_mul_i32 s73, {sW}, 320')
        k('s_add_u32 s72, s72, s73')
        k(f'buffer_load_dwordx4 v[24:27], v36, {XS}, s72 offen{self.ntx}', 'x')
        k(f'buffer_load_dwordx4 v[28:31], v36, {XS}, s72 offen offset:128{self.ntx}', 'x')
        k(f'buffer_load_dwordx4 v[32:35], v38, {XS}, s72 offen offset:256{self.ntx}', 'x')
        self.stamp('xiss')

    def st_lp(self):
        k = self.k
        k(f's_lshl2_add_u32 s72, {sJ}, {sW}')
        k('s_lshl_b32 s72, s72, 2')
        k('v_mov_b32 v4, s72')
        k('v_cmp_eq_u32 vcc, 0, v3')
        k('v_cndmask_b32 v4, v2, v4, vcc')
        k('v_cmp_eq_u32 vcc, 0, v37')
        k('v_cndmask_b32 v12, v2, 0, vcc')
        k('v_bfe_u32 v13, v3, 2, 2')
        k('v_lshlrev_b32 v13, 7, v13')
        k('v_and_b32 v14, 3, v3')
        k('v_lshl_add_u32 v15, v14, 3, v13')
        k('v_lshrrev_b32 v16, 4, v3')
        k('v_lshl_add_u32 v17, v16, 10, v15')
        k(f's_lshl_b32 s72, {sW}, 5')
        k('v_add_u32 v17, s72, v17')
        k('v_lshlrev_b32 v18, 4, v16')
        k('v_lshl_add_u32 v19, v16, 5, v15')
        k('v_lshlrev_b32 v15, 6, v16')
        k('v_and_b32 v76, 15, v3')
        k('v_cmp_eq_u32 vcc, 0, v76')
        k('v_cndmask_b32 v15, v2, v15, vcc')
        k('s_cmp_ge_u32 s2, 240')
        k(f's_cselect_b32 s72, {OOB}, 0')
        k('v_or_b32 v15, s72, v15')
        k(f's_lshl2_add_u32 s96, s75, {sW}')
        k('s_lshl_b32 s96, s96, 8')
        k('s_lshl4_add_u32 s96, s76, s96')
        k(f's_add_u32 s96, s96, {WS_MODG}')

    def st_mod(self):
        k = self.k
        k('s_getreg_b32 s49, hwreg(HW_REG_XCC_ID, 0, 3)')
        k('s_mul_i32 s42, s42, 0x9e3779b1')
        k('s_add_u32 s42, s42, 0x7f4a7c15')
        k('s_mov_b32 s50, s42')
        k('s_and_b32 s42, s42, -8')
        k('s_or_b32 s51, s42, s49')
        k('v_mov_b32 v5, s42')
        k('v_mov_b32 v80, s51')
        k(f's_lshl_b32 s72, {sCL}, 7')
        k(f's_lshl2_add_u32 s72, {sJ}, s72')
        k(f'buffer_store_dword v80, v12, {WS}, s72 offen offset:{WS_HELLO} sc1')
        k('v_lshlrev_b32 v76, 16, v10')
        k('v_and_b32 v77, 0xffff0000, v10')
        for r in (76, 77):
            k(f'v_mul_f32 v{r + 2}, {f2u(-1.4426950408889634):#x}, v{r}')
        for r in (76, 77):
            k(f'v_exp_f32 v{r + 2}, v{r + 2}')
        for r in (76, 77):
            k(f'v_add_f32 v{r + 2}, 1.0, v{r + 2}')
        for r in (76, 77):
            k(f'v_rcp_f32 v{r + 2}, v{r + 2}')
        for r in (76, 77):
            k(f'v_mul_f32 v{r}, v{r}, v{r + 2}')
        k('v_cvt_pk_bf16_f32 v76, v76, v77')
        k(f'ds_write_b32 v9, v76 offset:{L_SC}')

    def st_modc(self):
        k = self.k
        if self.o.late >= 240:
            self.mod_core('mod')
            self.stamp('modpub')
            return
        lab = k.newlabel('mc')
        k(f's_cmp_ge_u32 s2, {self.o.late}')
        k(f's_cbranch_scc1 {lab}')
        k.cond_begin()
        self.mod_core('mod')
        k.cond_end()
        k.label(lab)
        self.stamp('modpub')

    def st_addr2(self):
        k = self.k
        k('s_lshr_b32 s58, s80, 2')
        k('s_mul_i32 s58, s58, 3072')
        k('s_and_b32 s72, s80, 3')
        k('s_lshl_b32 s72, s72, 8')
        k('s_add_u32 s58, s58, s72')
        k(f's_add_u32 s58, s58, {WS_WGU}')
        k('s_lshl_b32 s64, s81, 6')
        k(f's_lshl3_add_u32 s64, {sW}, s64')
        k('s_cmp_ge_u32 s2, 240')
        k(f's_cselect_b32 s59, {OOB}, 0')
        k(f'v_lshrrev_b32 v{self.RA + 10}, 1, v14')
        k(f'v_lshl_add_u32 v{self.RA + 10}, v{self.RA + 10}, 3, v13')
        k(f'v_and_b32 v{self.RT + 0}, 1, v14')
        k(f'v_lshl_add_u32 v{self.RA + 10}, v{self.RT + 0}, 10, v{self.RA + 10}')
        k(f'v_add_u32 v{self.RA + 10}, v{self.RA + 10}, v18')
        k(f's_lshl_b32 s77, {sW}, 12')
        k(f's_add_u32 s77, s77, {L_GUS}')
        k(f'v_add_u32 v{self.RA + 10}, s77, v{self.RA + 10}')
        k(f's_sub_u32 s78, 3, {sW}')
        k('s_lshl_b32 s78, s78, 10')
        k(f's_add_u32 s78, s78, {L_GUS}')
        k(f'v_add_u32 v{self.RA + 11}, s78, v19')
        k(f'v_and_b32 v{self.RT + 0}, 9, v3')
        k(f'v_bfe_u32 v{self.RT + 1}, v3, 1, 1')
        k(f'v_lshl_add_u32 v{self.RT + 0}, v{self.RT + 1}, 2, v{self.RT + 0}')
        k(f'v_bfe_u32 v{self.RT + 1}, v3, 2, 1')
        k(f'v_lshl_add_u32 v{self.RT + 0}, v{self.RT + 1}, 1, v{self.RT + 0}')
        k(f'v_lshlrev_b32 v{self.RT + 0}, 4, v{self.RT + 0}')
        k(f'v_or_b32 v{self.RT + 0}, s59, v{self.RT + 0}')
        k(f's_mov_b32 s73, {WGU_S - 3072}')
        for t in range(2):
            for hf in range(2):
                d = self.RA + 2 * t + hf
                k(f's_add_u32 s77, s64, {32 * t + 4 * hf}')
                k(f'v_add_u32 v{self.RT + 1}, s77, v16')
                k(f'v_mul_u32_u24 v{self.RT + 2}, 171, v{self.RT + 1}')
                k(f'v_lshrrev_b32 v{self.RT + 2}, 9, v{self.RT + 2}')
                k(f'v_lshl_add_u32 v{self.RT + 1}, v{self.RT + 1}, 10, v{self.RT + 0}')
                k(f'v_mad_u32_u24 v{d}, v{self.RT + 2}, s73, v{self.RT + 1}')
        k(f's_cmp_lt_u32 {sW}, 2')
        k(f's_cselect_b32 s79, {OOB}, 0')
        for t in range(3):
            k(f's_sub_u32 s78, {3 + 4 * t}, {sW}')
            k('s_lshl_b32 s78, s78, 6')
            k(f'v_add_u32 v{self.RT + 0}, s78, v3')
            k(f'v_mul_u32_u24 v{self.RT + 1}, 205, v{self.RT + 0}')
            k(f'v_lshrrev_b32 v{self.RT + 1}, 14, v{self.RT + 1}')
            k(f'v_mul_u32_u24 v{self.RT + 2}, 80, v{self.RT + 1}')
            k(f'v_sub_u32 v{self.RT + 0}, v{self.RT + 0}, v{self.RT + 2}')
            k(f'v_bfe_u32 v{self.RT + 2}, v{self.RT + 0}, 3, 2')
            k(f'v_and_b32 v{self.RT + 3}, 3, v{self.RT + 0}')
            k(f'v_lshl_add_u32 v{self.RT + 2}, v{self.RT + 2}, 2, v{self.RT + 3}')
            k(f'v_bfe_u32 v{self.RT + 3}, v{self.RT + 0}, 2, 1')
            k(f'v_lshl_add_u32 v{self.RT + 2}, v{self.RT + 3}, 6, v{self.RT + 2}')
            k(f'v_cmp_gt_u32 vcc, 64, v{self.RT + 0}')
            k(f'v_and_b32 v{self.RT + 3}, 15, v{self.RT + 0}')
            k(f'v_lshrrev_b32 v{self.RT + 0}, 5, v{self.RT + 0}')
            k(f'v_cndmask_b32 v{self.RT + 2}, v{self.RT + 3}, v{self.RT + 2}, vcc')
            k(f'v_lshl_add_u32 v{self.RT + 2}, v{self.RT + 0}, 7, v{self.RT + 2}')
            k(f'v_lshlrev_b32 v{self.RT + 2}, 4, v{self.RT + 2}')
            if t == 2:
                k(f'v_or_b32 v{self.RT + 2}, s79, v{self.RT + 2}')
            k(f'v_mad_u32_u24 v{self.RA + 4 + t}, v{self.RT + 1}, s55, v{self.RT + 2}')
            k(f'v_mad_u32_u24 v{self.RA + 7 + t}, v{self.RT + 1}, s57, v{self.RT + 2}')

    def st_ones(self):
        k = self.k
        k('v_and_b32 v92, 32, v3')
        k('v_add_u32 v92, v92, v21')
        k('v_mov_b32 v94, 0x3f80')
        k('v_mov_b32 v95, 0')
        k(f'ds_write_b64 v92, v[94:95] offset:{L_KVOWN + V_OFF[0] + 40}')

    def st_norm(self):
        k = self.k
        X = list(range(40, 64))
        for i in range(12):
            k(f'v_lshlrev_b32 v{40 + 2 * i}, 16, v{24 + i}')
            k(f'v_and_b32 v{41 + 2 * i}, 0xffff0000, v{24 + i}')
        self.stamp('xin')
        k('v_pk_add_f32 v[76:77], v[40:41], v[42:43]')
        k('v_pk_mul_f32 v[78:79], v[40:41], v[40:41]')
        k('v_pk_fma_f32 v[78:79], v[42:43], v[42:43], v[78:79]')
        for i in range(2, 12):
            k(f'v_pk_add_f32 v[76:77], v[76:77], v[{40 + 2 * i}:{41 + 2 * i}]')
            k(f'v_pk_fma_f32 v[78:79], v[{40 + 2 * i}:{41 + 2 * i}], v[{40 + 2 * i}:{41 + 2 * i}], v[78:79]')
        k('v_add_f32 v76, v76, v77')
        k('v_add_f32 v77, v78, v79')
        k('v_add_f32_dpp v76, v76, v76 row_ror:8 row_mask:0xf bank_mask:0xf')
        k('v_add_f32_dpp v77, v77, v77 row_ror:8 row_mask:0xf bank_mask:0xf')
        self.rowsum(76, 78)
        self.rowsum(77, 79)
        k('v_lshlrev_b32 v78, 1, v7')
        k(f'v_add_u32 v78, {L_STAT}, v78')
        k(f's_lshl_b32 s72, {sW}, 3')
        k('v_add_u32 v79, s72, v78')
        k(f'ds_write_b64 v79, v[76:77]')
        k.barrier()
        k(f's_mul_i32 s86, {sCL}, 163840')
        k(f's_lshr_b32 s72, {sJ}, 2')
        k('s_mul_i32 s72, s72, 40960')
        k('s_add_u32 s86, s86, s72')
        k(f's_and_b32 s72, {sJ}, 1')
        k('s_lshl_b32 s72, s72, 7')
        k('s_add_u32 s86, s86, s72')
        k(f's_and_b32 s72, {sJ}, 2')
        k('s_lshl_b32 s72, s72, 9')
        k('s_add_u32 s86, s86, s72')
        k(f's_mul_i32 s72, {sW}, 10240')
        k('s_add_u32 s86, s86, s72')
        k(f's_add_u32 s86, s86, {WS_H}')
        k(f'ds_read_b128 v[88:91], v78')
        k(f'ds_read_b128 v[92:95], v78 offset:16')
        k('v_pk_add_f32 v[88:89], v[88:89], v[90:91]')
        k('v_pk_add_f32 v[92:93], v[92:93], v[94:95]')
        k('v_pk_add_f32 v[88:89], v[88:89], v[92:93]')
        k('v_and_b32 v92, 4, v6')
        k('v_add_u32 v92, v92, v6')
        k('v_lshl_add_u32 v92, v92, 8, v7')
        k('v_cmp_gt_u32 vcc, 32, v3')
        k('v_cndmask_b32 v93, v2, v92, vcc')
        k(f'v_mul_f32 v90, {f2u(1 / 640):#x}, v88')
        k(f'v_mul_f32 v89, {f2u(1 / 640):#x}, v89')
        k('v_fma_f32 v89, -v90, v90, v89')
        k('v_max_f32 v89, 0, v89')
        k(f'v_add_f32 v89, {f2u(1e-5):#x}, v89')
        k('v_rsq_f32 v88, v89')
        k('v_mul_f32 v89, -v90, v88')
        for i in range(3):
            for e in range(4):
                r = 40 + 8 * i + 2 * e
                k(f'v_pk_fma_f32 v[{r}:{r + 1}], v[{r}:{r + 1}], v[88:89], v[88:89] op_sel:[0,0,1] op_sel_hi:[1,0,1]')
            if self.D:
                continue
            for e in range(4):
                r = 40 + 8 * i + 2 * e
                k(f'v_cvt_pk_f16_f32 v{24 + 4 * i + e}, v{r}, v{r + 1}')
            k(f'buffer_store_dwordx4 v[{24 + 4 * i}:{27 + 4 * i}], {"v92" if i < 2 else "v93"}, {WS}, s86 offen sc1', 'xn')
            if i < 2:
                k('s_add_u32 s86, s86, 4096')
        if self.D:
            k('v_mov_b32 v15, v92')
            k('v_mov_b32 v10, v93')
        self.stamp('xst')

    def make_h(self):
        k = self.k
        for i in range(3):
            for h in range(2):
                k(f'ds_read_b128 v[{96 + 16 * i + 4 * h}:{99 + 16 * i + 4 * h}], v17 offset:{256 * i + 16 * h + 640}')
            for h in range(2):
                k(f'ds_read_b128 v[{104 + 16 * i + 4 * h}:{107 + 16 * i + 4 * h}], v17 offset:{256 * i + 16 * h}')
        for i in range(3):
            for e in range(0, 8, 2):
                x = 40 + 8 * i + e
                k(f'v_pk_fma_f32 v[{x}:{x + 1}], v[{x}:{x + 1}], v[{96 + 16 * i + e}:{97 + 16 * i + e}], v[{104 + 16 * i + e}:{105 + 16 * i + e}]')
                k(f'v_cvt_pk_bf16_f32 v{24 + 4 * i + e // 2}, v{x}, v{x + 1}')
            k(f'buffer_store_dwordx4 v[{24 + 4 * i}:{27 + 4 * i}], {"v15" if i < 2 else "v10"}, {WS}, s86 offen', 'h')
            if i < 2:
                k('s_add_u32 s86, s86, 4096')
        self.stamp('hst')
        k.put(self.fast_setup)
        self.nt = 20

    def h_poll(self):
        k = self.k
        k('v_lshlrev_b32 v33, 2, v3')
        k('v_and_b32 v33, 60, v33')
        self.flag_off('s74', PH_H)
        k(f's_lshl_b32 s72, {sW}, 6')
        k('s_add_u32 s74, s74, s72')
        self.quarter_addr(31, 40)

        def body():
            k(f'buffer_load_dword v40, v31, {WS}, s75 offen sc1')
            k(f'buffer_load_dword v44, v33, {WS}, s74 offen sc1')
            k('s_waitcnt vmcnt(0)')
            self.allcheck([40, 44], 45)
        self.spin(body)
        self.acquire('h')
        self.xn_loads(self.o.hpre)
        k('s_barrier')
        self.stamp('hflag')

    def xd_touch(self):
        k = self.k
        k('v_lshlrev_b32 v8, 7, v3')
        k('v_cmp_gt_u32 vcc, 20, v3')
        k('v_cndmask_b32 v8, v2, v8, vcc')
        k(f's_lshl4_add_u32 s72, {sCL}, {sJ}')
        k(f's_lshl2_add_u32 s72, s72, {sW}')
        k('s_mul_i32 s72, s72, 2560')
        k(f'buffer_load_dword v95, v8, {XS}, s72 offen')

    def xd_issue(self, tt):
        k = self.k
        if tt == 0:
            k('v_and_b32 v61, 7, v3')
            k('v_xor_b32 v61, v61, v6')
            k('v_lshlrev_b32 v61, 4, v61')
            k('s_movk_i32 s72, 1280')
            k('v_mad_u32_u24 v61, v6, s72, v61')
            k(f's_lshl2_add_u32 s86, {sCL}, {sW}')
            k('s_mul_i32 s86, s86, 40960')
            k(f's_mul_i32 s91, {sW}, 20480')
            k(f's_add_u32 s91, s91, {L_A}')
        for hb in range(2):
            k(f's_add_u32 m0, s91, {10240 * hb}')
            for cb in range(10):
                k(f'buffer_load_dwordx4 v61, {XS}, s86 offen offset:{128 * cb} lds', f'xd{tt}')
                if cb < 9:
                    k('s_add_u32 m0, m0, 896')
            k('s_add_u32 s86, s86, 10240')
        self.stamp(f'xi{tt}')

    def xd_read(self, tt):
        k = self.k
        if tt == 0:
            k('v_and_b32 v62, 7, v3')
            k('v_lshrrev_b32 v63, 4, v3')
            k('v_xor_b32 v63, v63, v62')
            k('v_lshlrev_b32 v63, 4, v63')
            k('v_lshl_add_u32 v62, v62, 7, v63')
            k('v_bfe_u32 v63, v3, 3, 1')
            k('s_movk_i32 s72, 10240')
            k('v_mad_u32_u24 v62, v63, s72, v62')
            k('v_add_u32 v62, s91, v62')
            k('v_xor_b32 v63, 64, v62')
        k.wait_vm(f'xd{tt}')
        for s in range(20):
            r = 96 + 8 * s + 4 * tt
            k(f'ds_read_b128 v[{r}:{r + 3}], v{62 + (s & 1)} offset:{1024 * (s >> 1)}')
        k.wait_lgkm_all()
        self.stamp(f'xr{tt}')

    def xd_norm(self, tt):
        k = self.k
        for i in range(4):
            k(f'v_mov_b32 v{40 + i}, 0x3f803f80')
        for s in range(20):
            r = 96 + 8 * s + 4 * tt
            k(f'v_mfma_f32_16x16x32_bf16 v[44:47], v[40:43], v[{r}:{r + 3}], {"0" if s == 0 else "v[44:47]"}')
            k(f'v_mfma_f32_16x16x32_bf16 v[48:51], v[{r}:{r + 3}], v[{r}:{r + 3}], {"0" if s == 0 else "v[48:51]"}')
        k('s_mov_b32 s60, 0xaaaaaaaa')
        k('s_mov_b32 s61, s60')
        k('s_mov_b32 s62, 0xcccccccc')
        k('s_mov_b32 s63, s62')
        k('s_mov_b32 s72, 0x00f0000f')
        k('s_mov_b32 s73, 0xf0000f00')
        k('v_cndmask_b32 v48, v48, v49, s[60:61]')
        k('v_cndmask_b32 v50, v50, v51, s[60:61]')
        k('v_cndmask_b32 v48, v48, v50, s[62:63]')
        k('v_cndmask_b32 v48, 0, v48, s[72:73]')
        self.rowsum(48, 49)
        k(f'v_mul_f32 v46, {f2u(1 / 640):#x}, v44')
        k(f'v_mul_f32 v45, {f2u(1 / 640):#x}, v48')
        k('v_fma_f32 v45, -v46, v46, v45')
        k('v_max_f32 v45, 0, v45')
        k(f'v_add_f32 v45, {f2u(1e-5):#x}, v45')
        k('v_rsq_f32 v44, v45')
        k('v_mul_f32 v45, -v46, v44')
        k('s_mov_b32 s72, 0xffff0000')
        for s in range(20):
            r = 96 + 8 * s + 4 * tt
            for d in range(4):
                k(f'v_lshlrev_b32 v{48 + 2 * d}, 16, v{r + d}')
                k(f'v_and_b32 v{49 + 2 * d}, s72, v{r + d}')
            for d in range(4):
                t = 48 + 2 * d
                k(f'v_pk_fma_f32 v[{t}:{t + 1}], v[{t}:{t + 1}], v[44:45], v[44:45] op_sel:[0,0,1] op_sel_hi:[1,0,1]')
            for d in range(4):
                k(f'v_cvt_pk_f16_f32 v{r + d}, v{48 + 2 * d}, v{49 + 2 * d}')
        self.hl0, self.nh = [], 40
        self.stamp(f'xn{tt}')

    def xn_flag(self):
        k = self.k
        k(f's_lshl4_add_u32 s72, {sCL}, {sJ}')
        k('s_lshl_b32 s72, s72, 7')
        k(f's_lshl_b32 s73, {sJ}, 4')
        k('s_sub_u32 s72, s72, s73')
        k(f's_add_u32 s72, s72, {WS_XF}')
        k.wait_vm('xn')
        k(f'buffer_store_dword v5, v4, {WS}, s72 offen sc1')
        self.stamp('xf')

    def xn_addr(self):
        k = self.k
        k('v_bfe_u32 v32, v3, 2, 2')
        k('v_and_b32 v33, 3, v3')
        k('v_lshlrev_b32 v33, 2, v33')
        k('v_lshl_add_u32 v33, v32, 7, v33')
        k(f's_lshl2_add_u32 s93, {sCL}, {sW}')
        k('s_lshl_b32 s93, s93, 9')
        k(f's_add_u32 s93, s93, {WS_XF}')

    def xn_poll(self):
        self.xn_addr()
        self.poll('v33', 's93', 32, False)
        self.stamp('xp')

    def xn_loads(self, n):
        if not hasattr(self, 'hl0'):
            self.hl0 = self.units_frags([96 + 4 * i for i in range(40)], 's89')
            self.nh = 0
        self.put_units(self.hl0[self.nh:self.nh + n])
        self.nh += n

    def modulate(self, s, G, S, T):
        k = self.k
        off = (s // 5) * 1280 + (s % 5) * 128
        k.begin()
        for q in range(2):
            k(f'ds_read_b128 v[{G[q]}:{G[q] + 3}], v7 offset:{off + 640 + 16 * q}')
            k(f'ds_read_b128 v[{S[q]}:{S[q] + 3}], v7 offset:{off + 16 * q}')
        rd = k.end()
        k.begin()
        for d in range(4):
            g_, s_, t_ = G[d // 2] + 2 * (d % 2), S[d // 2] + 2 * (d % 2), T + (2 * (d % 2) if T != 20 else 0)
            x0, x1 = 96 + 8 * s + d, 100 + 8 * s + d
            k(f'v_fma_mix_f32 v{t_}, v{x0}, v{g_}, v{s_} op_sel_hi:[1,0,0]')
            k(f'v_fma_mix_f32 v{t_ + 1}, v{x0}, v{g_ + 1}, v{s_ + 1} op_sel:[1,0,0] op_sel_hi:[1,0,0]')
            k(f'v_fma_mix_f32 v{s_}, v{x1}, v{g_}, v{s_} op_sel_hi:[1,0,0]')
            k(f'v_fma_mix_f32 v{s_ + 1}, v{x1}, v{g_ + 1}, v{s_ + 1} op_sel:[1,0,0] op_sel_hi:[1,0,0]')
            k(f'v_cvt_pk_bf16_f32 v{x0}, v{t_}, v{t_ + 1}')
            k(f'v_cvt_pk_bf16_f32 v{x1}, v{s_}, v{s_ + 1}')
        return rd, k.end()

    def mod_run(self, lo, hi, sets):
        parts = [self.modulate(s, *sets[(s - lo) % len(sets)]) for s in range(lo, hi)]
        la = len(sets) - 1
        out = []
        for i in range(min(la, len(parts))):
            out += parts[i][0]
        for i in range(len(parts)):
            if i + la < len(parts):
                out += parts[i + la][0]
            out += parts[i][1]
        return out

    def pre_mod(self, n):
        sets = [([b, b + 4], [b + 8, b + 12], 56) for b in (24, 40)] if self.X else [([b, b + 4], [b + 8, b + 12], 16) for b in (32, 48)]
        self.k.put(self.mod_run(self.nt, self.nt + n, sets))
        self.nt += n

    def wg_flag(self, tag, base):
        k = self.k
        k.wait_vm(tag)
        k.barrier()
        self.wg_slot(base)
        k(f'buffer_store_dword v5, v12, {WS}, s72 offen sc1')

    def wg_slot(self, base):
        k = self.k
        k('s_and_b32 s72, s2, 0xfc')
        k('s_mul_i32 s72, s72, 28')
        k('s_lshl2_add_u32 s72, s2, s72')
        k(f's_add_u32 s72, s72, {base}')

    def quarter_addr(self, v, t):
        k = self.k
        k(f'v_and_b32 v{t}, 0xfc, v3')
        k(f'v_mul_u32_u24 v{t}, 28, v{t}')
        k(f'v_lshl_add_u32 v{v}, v3, 2, v{t}')
        k(f's_lshl_b32 s75, {sW}, 11')
        k(f's_add_u32 s75, s75, {WS_PQ}')

    def late_mod(self, fn):
        k = self.k
        if self.o.late >= 240:
            return
        lab = k.newlabel('ml')
        k(f's_sub_u32 s72, s2, {self.o.late}')
        k(f's_cmp_ge_u32 s72, {240 - self.o.late}')
        k(f's_cbranch_scc1 {lab}')
        k.cond_begin()
        fn('modl')
        k.cond_end()
        k.label(lab)

    def st_rest_prep(self):
        k = self.k
        self.od_prep('s2', 0)
        k('s_add_u32 s48, s2, 16')
        self.od_prep('s48', 1)
        k('s_movk_i32 s72, 3072')
        k('v_mad_u32_u24 v36, v6, s72, v7')
        k('s_mul_i32 s65, s80, 24576')
        k('s_lshl_b32 s72, s81, 10')
        k('s_add_u32 s65, s65, s72')
        k(f's_lshl_b32 s72, {sW}, 7')
        k('s_add_u32 s65, s65, s72')

    def rest_units(self, vg, vo):
        k = self.k

        def od(which):
            so = f's{66 + which}'
            k(f's_sub_u32 s88, 3, {sW}')
            k('s_lshl_b32 s88, s88, 10')
            k(f's_add_u32 m0, s88, {L_ODS[which]}')
            k(f'buffer_load_dwordx4 v{vo + which}, {ODS}, {so} offen{self.ntm} lds', 'rest')
            k(f's_add_u32 {so}, {so}, 512')
            k('s_add_u32 m0, m0, 4096')
            k(f'buffer_load_dwordx4 v{vo + which}, {ODS}, {so} offen{self.ntm} lds', 'rest')
            k(f's_cmp_lt_u32 {sW}, 2')
            k('s_cselect_b32 s88, 0, 512')
            k(f's_add_u32 {so}, {so}, s88')
            k('s_lshl3_add_u32 m0, s88, m0')
            k(f'buffer_load_dwordx4 v{vo + which}, {ODS}, {so} offen{self.ntm} lds', 'rest')
            if which:
                k(f'buffer_load_dwordx4 v{vo + which}, {ODS}, {so} offen{self.ntm} lds', 'rest')
        k.begin()
        lab, done = k.newlabel('od2'), k.newlabel('rid')
        k('s_cmp_ge_u32 s2, 240')
        k(f's_cbranch_scc1 {lab}')
        k.cond_begin()
        k(f's_lshl_b32 s88, {sW}, 12')
        k(f's_add_u32 m0, s88, {L_GUS}')
        for t in range(2):
            k(f'buffer_load_dwordx4 v{vg}, {WGS}, s65 offen{self.ntm} lds', 'rest')
            k('s_add_u32 m0, m0, 1024')
            k(f'buffer_load_dwordx4 v{vg}, {WUS}, s65 offen{self.ntm} lds', 'rest')
            if t == 0:
                k('s_add_u32 m0, m0, 1024')
                k('s_add_u32 s65, s65, 512')
        k(f's_branch {done}')
        k.cond_end()
        k.label(lab)
        k.cond_begin()
        od(1)
        k.cond_end(certain=True)
        k.label(done)
        u0 = k.end()
        k.begin()
        od(0)
        return [u0, k.end()]


    def rest_reads(self):
        k = self.k
        k.wait_vm('rest')
        for t in range(2):
            for hf in range(2):
                b = 8 * t + 4 * hf
                k(f'ds_read_b64_tr_b16 a[{b}:{b + 1}], v{self.RA + 10} offset:{2048 * t + 64 * hf}')
                k(f'ds_read_b64_tr_b16 a[{b + 2}:{b + 3}], v{self.RA + 10} offset:{2048 * t + 64 * hf + 512}')
        for which in range(2):
            for t in range(3):
                b = 16 + 12 * which + 4 * t
                off = L_ODS[which] - L_GUS + 4096 * t
                k(f'ds_read_b64_tr_b16 a[{b}:{b + 1}], v{self.RA + 11} offset:{off}')
                k(f'ds_read_b64_tr_b16 a[{b + 2}:{b + 3}], v{self.RA + 11} offset:{off + 512}')

    def rest_stores(self):
        k = self.k
        us = []
        for i in range(4):
            k.begin()
            k(f'buffer_store_dwordx4 a[{4 * i}:{4 * i + 3}], v{self.RA + i}, {WS}, s58 offen sc1', 'pre')
            us.append(k.end())
        for t in range(3):
            k.begin()
            k(f'buffer_store_dwordx4 a[{16 + 4 * t}:{19 + 4 * t}], v{self.RA + 4 + t}, {WS}, s54 offen sc1', 'pre')
            us.append(k.end())
        k.begin()
        lab = k.newlabel('od2p')
        k('s_cmp_lt_u32 s2, 240')
        k(f's_cbranch_scc1 {lab}')
        k.cond_begin()
        for t in range(3):
            k(f'buffer_store_dwordx4 a[{28 + 4 * t}:{31 + 4 * t}], v{self.RA + 7 + t}, {WS}, s56 offen sc1', 'pre')
        k.cond_end()
        k.label(lab)
        us.append(k.end())
        return us

    def od_prep(self, sn, which):
        k = self.k
        sB, sJS = (f's{54 + 2 * which}', f's{55 + 2 * which}')
        if which == 0:
            k('s_mov_b32 s18, 819200')
        k(f's_mov_b32 {sJS}, {WO_J}')
        k('s_movk_i32 s73, 3277')
        k(f's_mov_b32 {sB}, {WS_WO}')
        k(f's_cmp_lt_u32 {sn}, 192')
        if which == 0:
            k('s_cselect_b64 s[16:17], s[60:61], s[52:53]')
            k('s_cmov_b32 s18, 1966080')
        k(f's_cmov_b32 {sJS}, {WD_J}')
        k('s_cmov_b32 s73, 1366')
        k(f's_cmov_b32 {sB}, {WS_WD}')
        k(f's_cselect_b32 s72, 0, 192')
        k(f's_sub_u32 s77, {sn}, s72')
        k('s_mul_i32 s73, s73, s77')
        k('s_lshr_b32 s73, s73, 16')
        k(f's_mul_i32 s73, s73, {OD_W}')
        k(f's_add_u32 {sB}, {sB}, s73')
        k('s_lshr_b32 s72, s77, 2')
        k('s_mul_i32 s72, s72, 5120')
        k(f's_add_u32 {sB}, {sB}, s72')
        k('s_and_b32 s72, s77, 3')
        k('s_lshl_b32 s72, s72, 8')
        k(f's_add_u32 {sB}, {sB}, s72')
        k('s_mul_i32 s72, s77, 205')
        k('s_lshr_b32 s72, s72, 10')
        k('s_mul_i32 s73, s72, 5')
        k('s_sub_u32 s73, s77, s73')
        k('s_mul_i32 s72, s72, 40')
        k('s_lshr_b32 s78, s73, 1')
        k('s_mul_i32 s78, s78, 20')
        k('s_and_b32 s79, s73, 1')
        k('s_lshl2_add_u32 s78, s79, s78')
        k('s_cmp_eq_u32 s73, 4')
        k('s_cselect_b32 s78, 16, s78')
        k('s_cselect_b32 s79, 20, 8')
        k('s_add_u32 s72, s72, s78')
        k('s_lshl_b32 s77, s77, 3')
        k(f's_cmp_lt_u32 {sn}, 192')
        k('s_cselect_b32 s77, s77, s72')
        k('s_cselect_b32 s79, 4, s79')
        k('s_mul_i32 s77, s77, 1280')
        k('v_lshrrev_b32 v76, 5, v3')
        k('v_and_b32 v77, 3, v6')
        k('v_mad_u32_u24 v76, v76, s79, v77')
        k('s_movk_i32 s72, 1280')
        k(f'v_mad_u32_u24 v{38 + which}, v76, s72, v7')
        k(f's_sub_u32 s72, 3, {sW}')
        k('s_lshl_b32 s72, s72, 7')
        k(f's_add_u32 s{66 + which}, s72, s77')

    def mod_pass(self, second, between=None, withpq=False, onmiss=None, split=False):
        k = self.k
        G = 64
        vecA = 3 if second else 0
        n = 6 if second else 5
        k(f's_mul_i32 s74, {sW}, 2560')
        k(f's_add_u32 s74, s74, {WS_MODG + vecA * 10240}')
        k(f's_add_u32 s75, s74, {7680 + 3072}')
        k('v_cmp_gt_u32 vcc, 32, v3')
        k('v_add_u32 v93, 7680, v1')
        k('v_cndmask_b32 v93, v93, v1, vcc')
        k('v_cndmask_b32 v94, 1.0, 0, vcc')
        if second:
            k('v_min_u32 v95, 624, v1')
            k(f's_lshr_b32 s76, {sW}, 1')
            k('s_mul_i32 s76, s76, 30720')
            k(f's_and_b32 s72, {sW}, 1')
            k(f's_lshl1_add_u32 s72, {sJC}, s72')
            k('s_mul_i32 s72, s72, 640')
            k('s_add_u32 s76, s76, s72')
            k(f's_add_u32 s76, s76, {WS_MODG + 2 * 10240}')
        else:
            k(f's_lshl_b32 s76, {sCL}, 7')
            k('v_and_b32 v95, 15, v3')
            k('v_lshlrev_b32 v95, 2, v95')
            k('s_mov_b32 s60, 0xaaaaaaaa')
            k('s_mov_b32 s61, s60')
            k('s_mov_b32 s62, 0xcccccccc')
            k('s_mov_b32 s63, s62')
            k(f's_mul_i32 s72, {sW}, 1280')
            k(f's_add_u32 s72, s72, {L_MV}')
            k('v_lshl_add_u32 v92, v3, 2, s72')
            TB = 144 if self.D else 40
            k(f'v_mov_b32 v{TB + 17}, 0')
            k('v_lshl_add_u32 v17, v6, 5, s72')
            if withpq:
                self.xn_addr()
        k(f's_movk_i32 s79, {WS_PQ}')
        k('s_mov_b32 s77, 0x04000c0c')
        k('s_mov_b32 s78, 0x0706000c')

        A, B, C = ('s60', 's61', 's62') if split else ('s74', 's75', 's76')
        if split:
            for d_, s_ in zip((A, B, C), ('s74', 's75', 's76')):
                k(f's_mov_b32 {d_}, {s_}')

        def loads():
            k(f'buffer_load_dwordx4 v[{G}:{G + 3}], v1, {WS}, {A} offen sc1')
            k(f'buffer_load_dwordx4 v[{G + 4}:{G + 7}], v1, {WS}, {A} offen offset:1024 sc1')
            k(f'buffer_load_dwordx4 v[{G + 8}:{G + 11}], v93, {WS}, {A} offen offset:2048 sc1')
            k(f'buffer_load_dwordx4 v[{G + 12}:{G + 15}], v1, {WS}, {B} offen sc1')
            k(f'buffer_load_dwordx4 v[{G + 16}:{G + 19}], v1, {WS}, {B} offen offset:1024 sc1')
            if second:
                k(f'buffer_load_dwordx4 v[{G + 20}:{G + 23}], v95, {WS}, {C} offen sc1')
            else:
                k(f'buffer_load_dword v{G + 22}, v95, {WS}, {C} offen offset:{WS_HELLO} sc1')
            if withpq:
                k(f'buffer_load_dword v32, v33, {WS}, s93 offen sc1')
            if withpq == 2:
                k(f'buffer_load_dwordx4 v[24:27], v1, {WS}, s79 offen sc1')

        def check():
            if not second:
                k(f'v_and_b32 v{G + 23}, -8, v{G + 22}')
            self.allcheck([G + 4 * i + 3 for i in range(6)] + ([32] if withpq else []) + ([24, 25, 26, 27] if withpq == 2 else []), 88)

        def body():
            loads()
            k('s_waitcnt vmcnt(0)')
            check()
            if second or self.o.psleep:
                k('s_cbranch_vccz 1')
                k(f's_sleep {self.o.psleep or 8}')
        if split:
            loads()
            k.begin()
            check()
            self.recheck(body)
        else:
            self.spin(body, onmiss)
        if onmiss is not None:
            k('s_mov_b32 s93, s73')
        if not second:
            self.stamp('modin')
        if between is not None:
            between()
        if not second:
            k.begin()
            k(f'v_cmp_ne_u32 vcc, s51, v{G + 22}')
            k('s_cmp_eq_u64 vcc, 0')
            k(f's_cselect_b32 {sFAST}, {0 if self.o.force_slow else 1}, 0')
            k(f's_cmp_lg_u32 {sFAST}, 0')
            k(f's_cselect_b32 s72, {OOB}, 0')
            k(f'v_or_b32 v{VF_SLOW}, s72, v4')
            k(f's_cselect_b32 s72, 0, {OOB}')
            k(f'v_or_b32 v{VF_FAST}, s72, v4')
            k(f's_lshl_b32 s{SF}, {sCL}, 13')
            k(f's_add_u32 s{SF}, s{SF}, {WS_FLAG}')
            k(f's_add_u32 s{SF + 1}, s{SF}, 4096')
            self.fast_setup = k.end()
        for i in range(n):
            b = G + 4 * i
            k(f'v_perm_b32 v{b + 3}, v{b}, v{b + 1}, s77')
        for i in range(n):
            b = G + 4 * i
            k(f'v_perm_b32 v{b + 3}, v{b + 3}, v{b + 2}, s78')
        if second:
            for qp in ('[1,0,3,2]', '[2,3,0,1]'):
                for r in range(G, G + 4 * n):
                    k(f'v_add_f32_dpp v{r}, v{r}, v{r} quad_perm:{qp} row_mask:0xf bank_mask:0xf')
            k('v_lshrrev_b32 v88, 2, v3')
        if not second:
            D = ' row_mask:0xf bank_mask:0xf'
            for i in range(5):
                b = G + 4 * i
                k(f'v_cndmask_b32 v{TB + 2 * i}, v{b + 1}, v{b}, s[60:61]')
                k(f'v_cndmask_b32 v{TB + 1 + 2 * i}, v{b + 3}, v{b + 2}, s[60:61]')
                k(f'v_cndmask_b32 v{b}, v{b}, v{b + 1}, s[60:61]')
                k(f'v_cndmask_b32 v{b + 2}, v{b + 2}, v{b + 3}, s[60:61]')
            for i in range(5):
                b = G + 4 * i
                k(f'v_add_f32_dpp v{b}, v{TB + 2 * i}, v{b} quad_perm:[1,0,3,2]{D}')
                k(f'v_add_f32_dpp v{b + 2}, v{TB + 1 + 2 * i}, v{b + 2} quad_perm:[1,0,3,2]{D}')
            for i in range(5):
                b = G + 4 * i
                k(f'v_cndmask_b32 v{b + 1}, v{b + 2}, v{b}, s[62:63]')
                k(f'v_cndmask_b32 v{b}, v{b}, v{b + 2}, s[62:63]')
            for i in range(5):
                b = G + 4 * i
                k(f'v_add_f32_dpp v{TB + 12 + i}, v{b + 1}, v{b} quad_perm:[2,3,0,1]{D}')
            self.bf16_round_keep([TB + 12 + e for e in range(6)], 89)
            k(f'v_add_f32 v{TB + 14}, v94, v{TB + 14}')
            k(f'v_add_f32 v{TB + 15}, 1.0, v{TB + 15}')
            k(f'v_add_f32 v{TB + 16}, 1.0, v{TB + 16}')
            self.bf16_round_keep([TB + 14 + e for e in range(4)], 89)
            for i in range(5):
                k(f'ds_write_b32 v92, v{TB + 12 + i} offset:{256 * i}')
            if self.D:
                return
            k.put(self.fast_setup)
            k('v_and_b32 v7, 48, v3')
            k('v_lshlrev_b32 v7, 1, v7')
            k(f'v_add_u32 v7, {L_MV}, v7')
            k.barrier()
            self.stamp('mv')
        else:
            k('v_lshlrev_b32 v88, 3, v88')
            k(f's_mul_i32 s72, {sW}, 80')
            k(f's_add_u32 s72, s72, {P_GA}')
            k('v_add_u32 v91, s72, v88')
            k(f'v_mov_b32 v92, {P_DUMMY}')
            k('v_cmp_gt_u32 vcc, 40, v3')
            k('v_cndmask_b32 v91, v92, v91, vcc')
            k(f's_mul_i32 s72, {sW}, 320')
            k(f's_add_u32 s72, s72, {L_P}')
            k('v_add_u32 v88, s72, v88')
            k('v_add_u32 v90, 960, v88')
            k('v_cmp_gt_u32 vcc, 32, v3')
            k('v_cndmask_b32 v90, v90, v88, vcc')
            for i in range(6):
                b = G + 4 * i
                if 2 <= i < 5:
                    self.bf16_round_keep([b, b + 1, b + 2, b + 3], 89)
                    for r in range(b, b + 4):
                        k(f'v_add_f32 v{r}, {"v94" if i == 2 else "1.0"}, v{r}')
                k(f'v_cvt_pk_bf16_f32 v{b}, v{b}, v{b + 1}')
                k(f'v_cvt_pk_bf16_f32 v{b + 1}, v{b + 2}, v{b + 3}')
                if i < 2:
                    k(f'ds_write_b64 v88, v[{b}:{b + 1}] offset:{128 * i}')
                elif i == 2:
                    k(f'ds_write_b64 v90, v[{b}:{b + 1}] offset:256')
                elif i < 5:
                    k(f'ds_write_b64 v88, v[{b}:{b + 1}] offset:{128 * i + 960}')
                else:
                    k(f'ds_write_b64 v91, v[{b}:{b + 1}]')
        if split:
            self.m2_rest = k.end()

    WO_W = [160 + 4 * i for i in range(24)] + [508]
    WGU_W = [256 + 4 * i for i in range(60)]

    def wq_chunk(self, c):
        return self.units_dma('s71', 20480 * c, L_A + 20480 * c if c < 4 else L_C, 20, f'w{c}', woff='s70')

    def st_bases(self):
        k = self.k
        k(f's_lshl2_add_u32 s84, {sJ}, {sW}')
        k(f's_mul_i32 s84, s84, {WGU_S}')
        k(f's_add_u32 s84, s84, {WS_WGU}')
        k(f's_mul_i32 s85, {sJC}, {WO_J}')
        k(f's_mul_i32 s72, {sW}, {25 * 1024 + OD_W}')
        k('s_add_u32 s85, s85, s72')
        k(f's_add_u32 s85, s85, {WS_WO}')
        k(f's_lshl2_add_u32 s89, {sCL}, {sW}')
        k(f's_lshl1_add_u32 s90, s89, {sTH}')
        k('s_mul_i32 s90, s90, 20480')
        k(f's_mul_i32 s72, {sJC}, 160')
        k('s_add_u32 s90, s90, s72')
        k('s_mul_i32 s89, s89, 40960')
        k(f's_add_u32 s89, s89, {WS_H}')
        k(f's_mul_i32 s92, {sJ}, {WQ_J}')
        k(f's_add_u32 s92, s92, {WS_WQ}')
        k(f's_mul_i32 s70, {sW}, 5120')
        k('s_add_u32 s71, s92, s70')

    def touch_arena(self):
        k = self.k
        k(f's_lshl4_add_u32 s72, {sCL}, {sJ}')
        k(f's_lshl2_add_u32 s72, s72, {sW}')
        k('s_mul_i32 s73, s72, 6144')
        k(f's_add_u32 s73, s73, {WS_HH}')
        self.touch('s73', 1, 48, 128, 8)
        k('s_lshl_b32 s72, s72, 7')
        k(f's_add_u32 s72, s72, {WS_ST}')
        self.touch('s72', 1, 1, 128, 8)

    def x2_issue(self, t=8):
        k = self.k
        k(f's_mul_i32 s72, {sW}, 2560')
        k(f's_add_u32 m0, s72, {L_X}')
        k('s_movk_i32 s72, 1120')
        for p in range(3):
            k(f'v_add_u32 v{t}, {64 * p}, v3')
            k(f'v_mul_u32_u24 v{t + 1}, 205, v{t}')
            k(f'v_lshrrev_b32 v{t + 1}, 11, v{t + 1}')
            k(f'v_mad_u32_u24 v{t}, v{t + 1}, s72, v1')
            if p == 2:
                k('s_mov_b32 exec_hi, 0')
            k(f'buffer_load_dwordx4 v{t}, {XS}, s90 offen offset:{1024 * p}{self.nt2} lds', 'x2')
        k('s_mov_b32 exec_hi, -1')

    def align_page(self):
        k = self.k
        k('s_branch .Lpage0')
        k.raw('.p2align 12')
        k.label('.Lpage0')

    def warm(self):
        k = self.k
        k.fence_hazards()
        k('s_mov_b64 exec, 0')
        for w in range(3):
            k(f's_cmp_eq_u32 {sW}, {w}')
            k(f's_cbranch_scc1 .Lchain{w}')
        k('s_branch .Lchain3')
        k.label('.Lwarm_ret')
        k('s_mov_b64 exec, -1')

    def touch_small(self):
        k = self.k
        k(f's_lshl_b32 s72, {sCL}, 13')
        k(f's_add_u32 s72, s72, {WS_FLAG}')
        self.touch('s72', 2, 8, 2048, 78, dst=199)
        k(f's_lshl4_add_u32 s72, {sCL}, {sJ}')
        k(f's_lshl2_add_u32 s72, s72, {sW}')
        k('s_lshl_b32 s72, s72, 7')
        k(f's_add_u32 s72, s72, {WS_ST}')
        k(f'v_and_b32 v78, {OOB}, v4')
        k(f'buffer_load_dword v199, v78, {WS}, s72 offen sc1')

    def rr_rs(self):
        k = self.k
        self.rest_reads()
        self.put_units(self.rest_stores())
        k.wait_lgkm_all()

    def rr_rs_late(self):
        k = self.k
        lab = k.newlabel('rsl')
        k('s_cmp_lg_u32 s93, 1')
        k(f's_cbranch_scc1 {lab}')
        k.cond_begin()
        self.rr_rs()
        k.cond_end()
        k.label(lab)

    def pq_sample(self):
        k = self.k
        self.quarter_addr(31, 40)
        k(f's_movk_i32 s72, {WS_PQ}')
        k(f's_movk_i32 s73, {WS_PQ + 4096}')
        for i in range(4):
            k(f'buffer_load_dword v{164 + i}, v31, {WS}, s{72 + i // 2} offen offset:{2048 * (i % 2)} sc1')

    def pq_early(self):
        k = self.k
        lab = k.newlabel('pqe')
        self.allcheck([164, 165, 166, 167], 168)
        k('s_cmp_eq_u64 vcc, 0')
        k('s_cselect_b32 s94, 1, 0')
        k(f's_cbranch_scc0 {lab}')
        k.cond_begin()
        for c in range(self.o.nearly):
            self.put_units(self.wq_chunk(c))
        k.cond_end()
        k.label(lab)

    def pq_late(self):
        k = self.k
        lab = k.newlabel('pql')
        k('s_cmp_lg_u32 s94, 0')
        k(f's_cbranch_scc1 {lab}')
        k.cond_begin()
        for c in range(self.o.nearly):
            self.put_units(self.wq_chunk(c))
        k.cond_end()
        k.label(lab)

    def pq_poll(self):
        k = self.k
        self.quarter_addr(22, 21)
        self.poll('v22', 's75', 21, False)
        k('s_barrier')
        self.stamp('pqin')

    def qkv(self):
        k = self.k
        o = self.o
        order = o.order.replace('+', ',').split(',')
        HR = 96
        RING = 256 + 224
        k('v_lshlrev_b32 v10, 2, v3')
        k(f'v_add_u32 v8, {L_A}, v1')
        k(f'v_add_u32 v9, {L_A + 61440}, v1')
        self.quarter_addr(30, 21)
        k(f's_add_u32 s75, s75, {WS_PR - WS_PQ}')
        k(f's_mul_i32 s80, {sCL}, {O_CL}')
        k(f's_mul_i32 s72, {sW}, 40960')
        k('s_add_u32 s80, s80, s72')
        k(f's_mul_i32 s72, {sJ}, 1280')
        k('s_add_u32 s80, s80, s72')
        k(f's_add_u32 s80, s80, {WS_O}')
        k(f's_lshl4_add_u32 s96, {sCL}, {sJ}')
        k(f's_mul_i32 s97, s96, {4 * KVB}')
        k(f's_add_u32 s97, s97, {WS_KV}')
        k(f's_mul_i32 s81, {sW}, {KVB}')
        k('s_add_u32 s82, s97, s81')
        k('s_add_u32 s83, s82, 2560')
        self.halo_addr()
        hl, nh = self.hl0, self.nh
        wgu = self.units_frags(self.WGU_W, 's84', tag='wgu')
        issued = [c for c in range(5) if f'c{c}' in order or ('pql' in order and c < o.nearly)]
        done = []
        allw = sum((self.wq_chunk(c) for c in range(5) if c not in issued), [])
        lab = k.newlabel('ep')
        k('s_cmp_lg_u32 s2, 0')
        k(f's_cbranch_scc1 {lab}')
        k.cond_begin()
        k('v_mov_b32 v13, s50')
        k(f'buffer_store_dword v13, v12, {WS}, 0 offen sc1')
        k.cond_end()
        k.label(lab)
        k('v_mov_b32 v23, v12')

        def loc(t, s):
            if t < 5:
                b_ = 5120 * s + 1024 * t
                return ('v8', b_) if s < 12 else (('v9', b_ - 61440) if s < 16 else ('v1', b_ - 81920))
            b_ = 3072 * s + 1024 * (t - 5)
            return 'v8', b_
        seq = [(t, s) for s in range(20) for t in range(5)]
        XS_ = o.xs
        seq += [(t, s) for s in range(XS_) for t in (7, 5, 6)] + [(t, s) for t in (7, 5, 6) for s in range(XS_, 20)]
        D = 6
        k.wait_vm('w0')
        k.barrier()
        self.stamp('c0')
        k.begin()

        def rd(i):
            ad, off = loc(*seq[i])
            k(f'ds_read_b128 {ur(RING + 4 * (i % 8))}, {ad} offset:{off}')
        for i in range(D):
            rd(i)
        for i, (t, s) in enumerate(seq):
            for tt in range(2):
                a = 32 + 8 * t + 4 * tt
                x = HR + 8 * s + 4 * tt
                k(f'v_mfma_f32_16x16x32_bf16 v[{a}:{a + 3}], {ur(RING + 4 * (i % 8))}, v[{x}:{x + 3}], {"0" if s == 0 else f"v[{a}:{a + 3}]"}')
                if tt == 0 and i + D < len(seq):
                    rd(i + D)
        w = Sched(k.end())
        M = (2, 0)
        bars = [(40 * c - 2 * D, f'w{c}') for c in range(1, 6)] + ([] if 'pr' in order else [(o.prflag, 'pre')])
        YB = 200 + 6 * XS_ - 2 * D
        bars.append((YB, 'w6'))
        for gap, tag in sorted(bars):
            k.begin()
            k.wait_vm(tag)
            k('s_barrier')
            if o.fine:
                self.stamp(f'c{gap}')
            if tag == 'pre':
                self.wg_slot(WS_PR)
                k(f'buffer_store_dword v5, v23, {WS}, s72 offen sc1')
            u_ = k.end()
            if tag == 'w6' and not o.kvgap:
                k.begin()
                self.kv_flag()
                u_ = k.end() + u_
            w.pre(gap, u_)
        w.spread(allw, 0, o.wend, M)
        if nh < 40:
            w.spread(hl[nh:], 0, o.hend, M)
        assert XS_ % 4 == 0 and XS_ <= 12
        w.spread(self.units_dma('s92', 102400, L_A, 3 * XS_, 'w5'), max(110, o.wend + 2, o.t3start), o.t3end, M)
        yu = self.units_dma('s92', 102400 + 3072 * XS_, L_A + 3072 * XS_, 60 - 3 * XS_, 'w6')
        if 'rs' not in order and 'rl' not in order:
            k.begin()
            self.rest_reads()
            rr = k.end()
            if 'rr' not in order:
                w.pre(o.rsgap - 24, rr[:1])
                w.fill(rr[1:], first=o.rsgap - 24, last=o.rsgap - 1)
            w.spread(self.rest_stores(), o.rsgap, o.rsgap + 30, (2, 1))
        if 'x2' not in order:
            k.begin()
            self.x2_issue(28)
            w.post(o.x2gap, k.end())
        sets = [([72, 76], [80, 84], 20), ([12, 24], [88, 92], 20)]
        parts = [self.modulate(s, *sets[s % 2]) for s in range(self.nt, 20)]
        np_ = len(parts)
        step = (o.mend - o.mstart) / max(np_, 1)
        gp = [int(o.mstart + i * step) for i in range(np_ + 2)] if np_ else [0]
        for i, (rd_, va) in enumerate(parts):
            assert gp[i + 2] < 10 * (self.nt + i) - 1 and gp[i + 1] > gp[i], (i, gp)
            w.spread([[x] for x in rd_], gp[i], gp[i + 1] - 1, M)
        for i, (rd_, va) in enumerate(parts):
            n_ = gp[i + 2] - gp[i + 1]
            for e, it in enumerate(va):
                w.post(gp[i + 1] + (e * n_) // len(va), [it])
        k.begin()
        k(f'buffer_load_dword v31, v30, {WS}, s75 offen sc1')
        w.at(o.prgap - 36, k.end())
        k.begin()
        k('v_and_b32 v20, 31, v3')
        k('v_lshrrev_b32 v21, 5, v3')
        k('v_mul_u32_u24 v20, 48, v20')
        k('v_add_u32 v20, s81, v20')
        k('v_lshl_add_u32 v22, v21, 4, v20')
        k('v_mul_u32_u24 v21, 1536, v21')
        k('v_add_u32 v21, v20, v21')
        k('v_add_u32 v28, s81, v1')
        k('v_lshlrev_b32 v6, 3, v3')
        k('v_add_u32 v29, s81, v6')
        k('v_mov_b32 v12, 0x3f80')
        k('v_mov_b32 v13, 0')
        k(f'ds_write_b64 v21, v[12:13] offset:{L_KVOWN + V_OFF[0] + 40}')
        w.fill(k.end(), first=max(189, gp[-1] + 1), last=201)
        k.begin()
        OWN = L_KVOWN

        def pack(dst, src, scale=False):
            if scale:
                for i in range(8):
                    k(f'v_mul_f32 v{src + i}, {f2u(QSCALE):#x}, v{src + i}')
            for i in range(4):
                k(f'v_cvt_pk_bf16_f32 v{dst + i}, v{src + 2 * i}, v{src + 2 * i + 1}')
            k(f'v_permlane16_swap_b32 v{dst}, v{dst + 2}')
            k(f'v_permlane16_swap_b32 v{dst + 1}, v{dst + 3}')
        self.pack = pack
        VB_ = (52, 60, 68)
        pack(48, 48)
        k(f'ds_write_b64 v21, v[50:51] offset:{OWN + V_OFF[0] + 32}')
        for h, r in ((0, 56), (1, 64)):
            pack(r, r)
            k(f'ds_write_b128 v22, v[{r}:{r + 3}] offset:{OWN + V_OFF[h]}')
        for t in range(3):
            k(f'ds_read_b128 v[{VB_[t]}:{VB_[t] + 3}], v28 offset:{OWN + 2560 + 1024 * t}')
        k(f'buffer_store_dwordx2 v[48:49], v6, {WS}, s82 offen offset:{KT_OFF} sc1', 'kv')
        for h, r in ((0, 32), (1, 40)):
            pack(r, r)
            k(f'buffer_store_dwordx4 v[{r}:{r + 3}], v1, {WS}, s82 offen offset:{KM_OFF[h]} sc1', 'kv')
        for t in range(3):
            k(f'buffer_store_dwordx4 v[{VB_[t]}:{VB_[t] + 3}], v1, {WS}, s83 offen offset:{1024 * t} sc1', 'kv')
        epi0 = k.end()
        k.begin()
        k(f'ds_write_b64 v29, v[48:49] offset:{OWN + KT_OFF}')
        for h, r in ((0, 32), (1, 40)):
            k(f'ds_write_b128 v28, v[{r}:{r + 3}] offset:{OWN + KM_OFF[h]}')
        epi = k.end()
        k.begin()
        self.attn_setup()
        epi2 = k.end()
        k.begin()
        pack(88, 88, True)
        epi4 = k.end()
        k.begin()
        pack(self.QM[0], 72, True)
        epi3 = k.end()
        k.begin()
        self.allcheck([31], 16)

        def body2():
            k('s_sleep 4')
            k(f'buffer_load_dword v31, v30, {WS}, s75 offen sc1')
            k('s_waitcnt vmcnt(0)')
            self.allcheck([31], 16)
        self.recheck(body2)
        chk = k.end()
        self.nbg = [int(x) for x in o.bg.split(',')]
        w.post(o.prgap, chk)
        nb_ = min(gp_ for gp_, _ in bars if gp_ > o.prgap)
        assert o.prgap < 204
        self.bg = wgu
        w.fill(epi0, first=202, window=16, over=o.over)
        e0 = w.lastgap
        if o.yearly:
            w.spread(yu, max(o.t3end + 2, 150), 200, M)
        else:
            w.spread(yu, e0 + 1, min(e0 + 2 + 4 * len(yu), YB - 2), M)
        w.fill(epi, first=e0 + 1, window=12)
        e1 = w.lastgap
        if self.nbg[0]:
            w.spread(self.take(self.nbg[0]), nb_ + 1, 202, M)
        if self.nbg[1]:
            w.spread(self.take(self.nbg[1]), max(o.bg1, nb_ + 1), o.bg1end, M)
        self.bg = self.units_frags(self.WO_W, 's85', tag='wo') + self.bg
        if o.kvgap:
            k.begin()
            self.kv_flag()
            w.post(o.kvgap, k.end())
        w.fill(epi3, first=325 - 2 * (20 - XS_), window=12)
        w.fill(epi4, first=325 - 4 * (20 - XS_), window=12)
        w.fill(epi2, first=e1 + 1, window=12)
        print('qkv kv stores end', e0, 'YB', YB, 'epilogue ends', e1, 'tail', w.ntail, 'last gap', w.lastgap)
        if o.raw == 'qkv':
            self.rawstamps(w, range(0, 308, 12), 'r')
        k.put(w.result())
        self.stamp('qkv')

    def kv_flag(self):
        k = self.k
        k('s_lshl_b32 s72, s96, 7')
        k(f's_lshl_b32 s73, {sJ}, 4')
        k('s_sub_u32 s72, s72, s73')
        k(f's_add_u32 s72, s72, {WS_KVF}')
        k(f'v_and_b32 v7, v{VF_FAST}, v{VF_SLOW}')
        k.wait_vm('kv')
        k(f'buffer_store_dword v5, v7, {WS}, s72 offen sc1')

    def halo_addr(self):
        k = self.k
        k(f's_min_u32 s93, {sCL}, 2')
        k('s_lshl_b32 s93, s93, 4')
        k('s_sub_u32 s93, s96, s93')
        k('s_lshl_b32 s93, s93, 7')
        k(f's_add_u32 s93, s93, {WS_KVF}')
        k(f's_cmp_ge_u32 {sCL}, 2')
        k('s_cselect_b32 s72, 2048, 0')
        k('v_and_b32 v19, 3, v3')
        k('v_lshlrev_b32 v19, 2, v19')
        k('v_bfe_u32 v18, v3, 2, 1')
        k('v_mad_u32_u24 v19, v18, s72, v19')
        for d in (1, 2):
            k(f's_cmp_ge_u32 {sCL}, {d}')
            k(f's_cselect_b32 s72, 0, {OOB}')
            k(f's_cselect_b32 s{93 + d}, {d * 16 * 4 * KVB}, 0')
            k(f'v_add_u32 v{16 + d}, s72, v1')
            k(f's_sub_u32 s{93 + d}, s97, s{93 + d}')

    def halo(self):
        k = self.k
        self.poll('v255', 's93', 252, False)
        self.stamp('kvflag')
        hu = [self.units_dma(f's{93 + d}', 0, L_C + (2 - d) * 4 * KVB, 22, f'halo{d}', voff=f'v{252 + d}') for d in (1, 2)]
        self.put_units(hu[0])
        self.halo2 = hu[1]

    QM = [12, 16]; Q2 = [20, 24]
    CD, CO = 32, 48
    SS = [64, 80]
    OO = [96, 112]
    PP = 128
    KM = [136, 140]; K2 = [144, 148]
    VF = 152

    def attn_setup(self):
        k = self.k
        k('v_and_b32 v64, 31, v3')
        k('v_lshrrev_b32 v65, 5, v3')
        k('v_bfe_u32 v66, v3, 2, 2')
        k('v_lshl_add_u32 v66, v65, 2, v66')
        k('v_mul_u32_u24 v30, 48, v66')
        k('v_and_b32 v66, 3, v3')
        k('v_min_u32 v67, 1, v66')
        k('v_add_u32 v67, 4, v67')
        k('v_and_b32 v68, 16, v3')
        k('v_cmp_eq_u32 vcc, 0, v68')
        k('v_cmp_gt_u32 s[48:49], 32, v3')
        k('v_cndmask_b32 v66, v67, v66, vcc')
        k('v_lshl_add_u32 v30, v66, 3, v30')
        k('v_add_u32 v30, s81, v30')
        k('v_lshlrev_b32 v31, 2, v65')
        k('v_sub_u32 v31, v64, v31')
        k(f'v_mov_b32 v69, {f2u(NEG):#x}')
        self.masks(True, True)

    def masks(self, diag, old):
        k = self.k
        for i0 in range(0, 16, 4):
            for i in range(i0, i0 + 4):
                k(f'v_cmp_le_i32 s[{60 + 2 * (i % 4)}:{61 + 2 * (i % 4)}], {8 * (i >> 2) + (i & 3)}, v31')
            for i in range(i0, i0 + 4):
                m = f's[{60 + 2 * (i % 4)}:{61 + 2 * (i % 4)}]'
                if diag:
                    k(f'v_cndmask_b32 v{self.CD + i}, v69, 0, {m}')
                if old:
                    k(f'v_cndmask_b32 v{self.CO + i}, 0, v69, {m}')

    def ld_k(self, kset, i, head):
        k = self.k
        k(f'ds_read_b128 v[{self.KM[kset]}:{self.KM[kset] + 3}], v28 offset:{i * KVB + KM_OFF[head]}')
        if head == 0:
            r = self.K2[i & 1]
            k(f'ds_read_b64 v[{r}:{r + 1}], v29 offset:{i * KVB + KT_OFF}')

    def ld_v(self, half, i, head):
        k = self.k
        off = i * KVB + V_OFF[head] + 768 * half
        b = self.VF + 4 * half
        k(f'ds_read_b64_tr_b16 v[{b}:{b + 1}], v30 offset:{off}')
        k(f'ds_read_b64_tr_b16 v[{b + 2}:{b + 3}], v30 offset:{off + 384}')

    def m_sa(self, sset, kset, head, C):
        S = self.SS[sset]
        self.k(f'v_mfma_f32_32x32x16_bf16 v[{S}:{S + 15}], v[{self.KM[kset]}:{self.KM[kset] + 3}], v[{self.QM[head]}:{self.QM[head] + 3}], {C}')

    def m_sb(self, sset, i, head):
        S = self.SS[sset]
        r = self.K2[i & 1]
        self.k(f'v_mfma_f32_32x32x16_bf16 v[{S}:{S + 15}], v[{r}:{r + 3}], v[{self.Q2[head]}:{self.Q2[head] + 3}], v[{S}:{S + 15}]')

    def m_pv(self, half, head, first):
        O = self.OO[head]
        b, p = self.VF + 4 * half, self.PP + 4 * half
        self.k(f'v_mfma_f32_32x32x16_bf16 v[{O}:{O + 15}], v[{b}:{b + 3}], v[{p}:{p + 3}], {"0" if first else f"v[{O}:{O + 15}]"}')

    def cmask(self, i):
        return f'v[{self.CD}:{self.CD + 15}]' if i == 8 else (f'v[{self.CO}:{self.CO + 15}]' if i == 0 else '0')

    def attn_steps(self, seq, firsts):
        k = self.k
        n = len(seq)
        self.ld_v(0, *seq[0])
        self.ld_v(1, *seq[0])
        self.m_sa(0, 0, seq[0][1], self.cmask(seq[0][0]))
        self.m_sb(0, *seq[0])
        for t in range(n):
            i, h = seq[t]
            S = self.SS[t & 1]

            def e(*xs):
                for x in xs:
                    k(f'v_exp_f32 v{S + x}, v{S + x}')

            def c(x):
                k(f'v_cvt_pk_bf16_f32 v{self.PP + x}, v{S + 2 * x}, v{S + 2 * x + 1}')
            nx = t + 1 < n
            if nx:
                self.m_sa((t + 1) & 1, (t + 1) & 1, seq[t + 1][1], self.cmask(seq[t + 1][0]))
            if t + 2 < n:
                self.ld_k(t & 1, *seq[t + 2])
            e(0, 1, 2, 3)
            if t:
                self.m_pv(1, seq[t - 1][1], False)
                self.ld_v(1, i, h)
            c(0); e(4, 5); c(1); e(6, 7)
            if nx:
                self.m_sb((t + 1) & 1, *seq[t + 1])
            c(2); c(3); e(8, 9, 10, 11)
            self.m_pv(0, h, firsts and t < 2)
            if nx:
                self.ld_v(0, *seq[t + 1])
            c(4); e(12, 13); c(5); e(14, 15); c(6); c(7)
        self.m_pv(1, seq[n - 1][1], False)

    def attention(self):
        k = self.k
        for i in range(1, 4):
            k(f'v_mov_b32 v{252 + i}, v{16 + i}')
        if self.o.hpos == 0:
            self.halo()
        for h in range(2):
            self.ld_k(h, 8, h)
        for r in self.K2:
            k(f'v_mov_b32 v{r + 2}, 0x3f80')
            k(f'v_mov_b32 v{r + 3}, 0')
        for h in range(2):
            k(f'v_mov_b32 v{self.Q2[h] + 2}, 0')
            k(f'v_mov_b32 v{self.Q2[h] + 3}, 0')
        for i in range(2):
            k(f'v_cndmask_b32 v{self.Q2[0] + i}, 0, v{88 + i}, s[48:49]')
            k(f'v_cndmask_b32 v{self.Q2[1] + i}, v{88 + i}, 0, s[48:49]')
        self.m_sa(0, 0, 0, '0')
        self.m_sb(0, 8, 0)
        self.pack(self.QM[1], 80, True)
        self.m_sa(1, 1, 1, '0')
        self.m_sb(1, 8, 1)
        if self.o.hpos == 0:
            self.put_units(self.halo2)
        k('v_bfe_u32 v6, v3, 4, 1')
        k('v_mul_u32_u24 v6, 20480, v6')
        k('v_and_b32 v7, 15, v3')
        k('v_lshl_add_u32 v6, v7, 4, v6')
        k('v_lshrrev_b32 v7, 5, v3')
        k('v_lshl_add_u32 v8, v7, 8, v6')
        k('v_cndmask_b32 v9, v2, v6, s[48:49]')
        self.stamp('kvpub')
        self.put_units(self.take(self.nbg[2]))
        for h in range(2):
            S = self.SS[h]
            k(f'v_max3_f32 v{S}, v{S}, v{S + 1}, v{S + 2}')
            for i in range(3, 15, 2):
                k(f'v_max3_f32 v{S}, v{S}, v{S + i}, v{S + i + 1}')
            k(f'v_max_f32 v{S}, v{S}, v{S + 15}')
            k(f'v_mov_b32 v{S + 1}, v{S}')
        for h in range(2):
            S = self.SS[h]
            k(f'v_permlane32_swap_b32 v{S}, v{S + 1}')
        for h in range(2):
            S = self.SS[h]
            k(f'v_max_f32 v{S}, v{S}, v{S + 1}')
            k(f'v_cvt_pk_bf16_f32 v{S}, -v{S}, 0')
            k(f'v_cndmask_b32 v{self.Q2[h] + 2}, 0, v{S}, s[48:49]')
        if self.o.hpos == 1:
            self.halo()
        k.begin()
        self.attn_steps([(8, 0), (8, 1)], True)
        w = Sched(k.end())
        if self.o.hpos == 1:
            w.spread(self.halo2, 1, 6)
        k.put(w.result())
        self.stamp('diag')
        self.wo_prep()
        self.put_units(self.early_units + self.take(self.nbg[3]))
        self.stamp('mod2')
        k.wait_vm('halo1')
        k.barrier()
        self.stamp('halo')
        seq = [(i, h) for i in range(7, -1, -1) for h in range(2)]
        k.begin()
        self.ld_k(0, *seq[0])
        self.ld_k(1, *seq[1])
        self.attn_steps(seq, False)
        w = Sched(k.end())
        k.begin()
        k.wait_vm('halo2')
        k('s_barrier')
        w.pre(2 + 3 + 4 * 5, k.end())
        assert sum(self.nbg[2:5]) >= 25
        w.spread(self.take(self.nbg[4]), self.o.bg_start, w.n - self.o.bg_quiet)
        k.put(w.result())
        self.stamp('steps')
        k(f's_mov_b32 s72, {f2u(2.0 ** -90):#x}')
        k(f's_mov_b32 s73, {f2u(2.0 ** 64):#x}')
        la, lb = self.OO[0] + 12, self.OO[1] + 12
        k(f'v_cmp_nlt_f32 vcc, s72, v{la}')
        k(f'v_cmp_ngt_f32 s[76:77], s73, v{la}')
        k(f'v_cmp_nlt_f32 s[74:75], s72, v{lb}')
        k(f'v_cmp_ngt_f32 s[78:79], s73, v{lb}')
        k('s_or_b64 vcc, vcc, s[74:75]')
        k('s_or_b64 s[76:77], s[76:77], s[78:79]')
        k('s_or_b64 vcc, vcc, s[76:77]')
        k.wait_lgkm_all()
        if self.o.force_fb:
            k('s_branch .Lfallback')
        else:
            k('s_cbranch_scc1 .Lfallback')
        k.label('.Lfb_ret')
        for h in range(2):
            k(f'v_rcp_f32 v{64 + h}, v{self.OO[h] + 12}')
        for h in range(2):
            O = self.OO[h]
            for i in range(0, 12, 2):
                k(f'v_pk_mul_f32 v[{O + i}:{O + i + 1}], v[{O + i}:{O + i + 1}], v[64:65] {"op_sel:[0,1]" if h else "op_sel_hi:[1,0]"}')
            for i in range(4):
                k(f'v_cvt_pk_bf16_f32 v{68 + 4 * h + i}, v{O + 2 * i}, v{O + 2 * i + 1}')
            for i in range(2):
                k(f'v_cvt_pk_bf16_f32 v{76 + 2 * h + i}, v{O + 8 + 2 * i}, v{O + 9 + 2 * i}')
            k(f'buffer_store_dwordx4 v[{68 + 4 * h}:{71 + 4 * h}], v8, {WS}, s80 offen offset:{512 * h}', 'o')
        k(f'buffer_store_dwordx4 v[76:79], v9, {WS}, s80 offen offset:1024', 'o')
        if self.o.fine:
            self.stamp('ost')
        self.put_units(self.take(self.nbg[7]))

    def fallback(self):
        k = self.k
        k.label('.Lfallback')
        k.fence_hazards()
        k('s_nop 15')
        k('s_waitcnt vmcnt(0)')
        k(f's_lshl2_add_u32 s74, {sCL}, {sW}')
        k('s_min_u32 s75, s74, 7')
        k(f'v_mov_b32 v69, {f2u(NEG):#x}')
        self.masks(True, False)
        S = self.SS[0]

        def run(body):
            k(f'v_add_u32 v80, {8 * KVB}, v28')
            k(f'v_add_u32 v81, {8 * KVB}, v29')
            k(f'v_add_u32 v82, {8 * KVB}, v30')

            def step():
                for r in (80, 81, 82):
                    k(f'v_add_u32 v{r}, {-KVB & 0xffffffff:#x}, v{r}')
            body(self.cmask(8))
            step()
            lab, out, done = k.newlabel('al'), k.newlabel('alx'), k.newlabel('ald')
            k('s_mov_b32 s77, s75')
            k('s_cmp_eq_u32 s77, 0')
            k.wait_lgkm_all()
            k.fence_hazards()
            k(f's_cbranch_scc1 {out}')
            k.label(lab)
            body('0')
            step()
            k('s_sub_u32 s77, s77, 1')
            k('s_cmp_lg_u32 s77, 0')
            k.wait_lgkm_all()
            k.fence_hazards()
            k(f's_cbranch_scc1 {lab}')
            k.label(out)
            k('s_cmp_lt_u32 s74, 8')
            k(f's_cbranch_scc1 {done}')
            body(self.cmask(0))
            k.wait_lgkm_all()
            k.fence_hazards()
            k.label(done)
        for h in range(2):
            k(f'v_mov_b32 v{self.Q2[h] + 2}, 0')
            k(f'v_mov_b32 v83, {f2u(-3.0e38):#x}')

            def score(C):
                k(f'ds_read_b128 v[{self.KM[0]}:{self.KM[0] + 3}], v80 offset:{KM_OFF[h]}')
                k(f'ds_read_b64 v[{self.K2[0]}:{self.K2[0] + 1}], v81 offset:{KT_OFF}')
                self.m_sa(0, 0, h, C)
                self.m_sb(0, 0, h)

            def p1(C):
                score(C)
                for i in range(0, 16, 2):
                    k(f'v_max3_f32 v83, v83, v{S + i}, v{S + i + 1}')
            run(p1)
            k('v_mov_b32 v84, v83')
            k('v_permlane32_swap_b32 v83, v84')
            k('v_max_f32 v83, v83, v84')
            k('v_cvt_pk_bf16_f32 v84, -v83, 0')
            k(f'v_cndmask_b32 v{self.Q2[h] + 2}, 0, v84, s[48:49]')
            for i in range(16):
                k(f'v_mov_b32 v{self.OO[h] + i}, 0')

            def p2(C):
                score(C)
                for t in range(4):
                    k(f'ds_read_b64_tr_b16 v[{self.VF + 2 * t}:{self.VF + 2 * t + 1}], v82 offset:{V_OFF[h] + 384 * t}')
                for i in range(16):
                    k(f'v_exp_f32 v{S + i}, v{S + i}')
                for i in range(8):
                    k(f'v_cvt_pk_bf16_f32 v{self.PP + i}, v{S + 2 * i}, v{S + 2 * i + 1}')
                self.m_pv(0, h, False)
                self.m_pv(1, h, False)
            run(p2)
        k.fence_hazards()
        k('s_branch .Lfb_ret')

    def unpack10(self, src, dst):
        k = self.k
        for i in range(10):
            k(f'v_lshlrev_b32 v{dst + 2 * i}, 16, v{src + i}')
            k(f'v_and_b32 v{dst + 2 * i + 1}, 0xffff0000, v{src + i}')

    def lds_cols(self, base, dst, vA, vB):
        k = self.k
        k(f'ds_read_b128 v[{dst}:{dst + 3}], {vA} offset:{base}')
        k(f'ds_read_b128 v[{dst + 4}:{dst + 7}], {vA} offset:{base + 64}')
        k(f'ds_read_b64 v[{dst + 8}:{dst + 9}], {vB} offset:{base + 128}')

    X1 = 22

    def rowmajor(self, a, b):
        k = self.k
        k(f'v_and_b32 v{a}, 15, v3')
        k(f'v_mul_u32_u24 v{a}, 1280, v{a}')
        k(f'v_lshrrev_b32 v{b}, 4, v3')
        k(f'v_lshl_add_u32 v{a}, v{b}, 4, v{a}')
        k(f'v_lshlrev_b32 v{b}, 3, v{b}')
        k(f'v_sub_u32 v{b}, v{a}, v{b}')

    def vec_addr(self):
        k = self.k
        k('v_lshrrev_b32 v19, 4, v3')
        k('v_lshlrev_b32 v18, 4, v19')
        k('v_lshlrev_b32 v19, 3, v19')
        k(f'v_add_u32 v18, {L_P}, v18')
        k(f'v_add_u32 v19, {L_P}, v19')

    def wo_prep(self):
        k = self.k
        o = self.o
        k(f's_lshl2_add_u32 s91, {sCL}, {sW}')
        k(f's_lshl1_add_u32 s91, s91, {sTH}')
        k('s_mul_i32 s92, s91, 20480')
        k(f's_mul_i32 s72, {sJC}, 2560')
        k('s_add_u32 s92, s92, s72')
        k(f's_add_u32 s92, s92, {WS_Z}')
        k('s_lshl_b32 s93, s91, 10')
        k(f's_lshr_b32 s72, {sJC}, 1')
        k('s_lshl_b32 s72, s72, 8')
        k('s_add_u32 s93, s93, s72')
        k(f's_and_b32 s72, {sJC}, 1')
        k('s_lshl3_add_u32 s93, s72, s93')
        k(f's_add_u32 s93, s93, {WS_ST}')
        k(f's_mul_i32 s82, {sCL}, 393216')
        k(f's_lshl2_add_u32 s72, {sJ}, {sW}')
        k('s_mul_i32 s72, s72, 768')
        k('s_add_u32 s82, s82, s72')
        k(f's_add_u32 s82, s82, {WS_HH + 98304}')
        k(f's_mul_i32 s94, {sCL}, {O_CL}')
        k(f's_mul_i32 s72, {sTH}, 20480')
        k('s_add_u32 s94, s94, s72')
        k(f's_mul_i32 s72, {sW}, 5120')
        k('s_add_u32 s94, s94, s72')
        k(f's_add_u32 s94, s94, {WS_O}')
        us = []
        tl = [('s92', 1, 20, 128, 42)] if o.touchz and 'z' not in k.wt else []
        if 'to' not in o.order.replace('+', ',').split(','):
            if 'z' not in k.wt and 'ts' not in o.order.split(','):
                tl += [('s93', 1, 2, 128, 44)]
            if 'hh' not in k.wt:
                tl += [('s82', 6, 48, 49152, 46)]
        for so, per, n, stride, t in tl:
            k.begin()
            self.touch(so, per, n, stride, t)
            it = k.end()
            k.put(it[:-1])
            us.append(it[-1:])
        self.early_units = us
        self.wd_setup()
        self.nwd = 0

    def mm5(self, a, wregs, B, NS, chain):
        k = self.k
        order = [(s, ft) for ft in range(5) for s in range(NS)] if chain else [(s, ft) for s in range(NS) for ft in range(5)]
        for s, ft in order:
            d = a + 4 * ft
            k(f'v_mfma_f32_16x16x32_bf16 v[{d}:{d + 3}], {ur(wregs[s * 5 + ft])}, {ur(B[s])}, {"0" if s == 0 else f"v[{d}:{d + 3}]"}')

    def wo(self):
        k = self.k
        X1 = self.X1
        self.vec_addr()
        k(f's_mul_i32 s72, {sJC}, 160')
        k('v_add_u32 v20, s72, v18')
        k('v_add_u32 v21, s72, v19')
        self.lds_cols(P_GA - L_P, 84, 'v18', 'v19')
        self.lds_cols(P_G2 - L_P, X1, 'v20', 'v21')
        k('v_and_b32 v20, 15, v3')
        k('v_mul_u32_u24 v20, 160, v20')
        k(f's_mul_i32 s72, {sW}, 2560')
        k(f's_sub_u32 s72, s72, {L_P - L_X}')
        k('v_add3_u32 v21, v20, s72, v19')
        k('v_add3_u32 v20, v20, s72, v18')
        self.lds_cols(0, 32, 'v20', 'v21')
        self.unpack10(32, 120)
        self.publish(PH_O, 'o')
        self.stamp('attn')
        self.unpack10(84, 140)
        for i in range(10):
            r = [72, 76, 112, 116, 12][i // 2] + 2 * (i % 2)
            k(f'v_lshlrev_b32 v{r}, 16, v{X1 + i}')
            k(f'v_and_b32 v{r + 1}, 0xffff0000, v{X1 + i}')
        k('v_and_b32 v20, 15, v3')
        k('v_lshlrev_b32 v20, 4, v20')
        k('v_bfe_u32 v21, v3, 4, 1')
        k('v_lshl_add_u32 v21, v21, 3, v20')
        k('v_lshrrev_b32 v64, 5, v3')
        k('v_lshl_add_u32 v21, v64, 8, v21')
        k('v_bfe_u32 v64, v3, 4, 1')
        k('v_lshl_add_u32 v20, v64, 2, v20')
        k('v_cndmask_b32 v20, v2, v20, s[48:49]')
        k(f's_mul_i32 s76, {sW}, 15360')
        k('v_add_u32 v9, s76, v1')
        for t in range(4):
            k(f's_add_u32 s72, {sW}, {t + 1}')
            k('s_and_b32 s72, s72, 3')
            k(f's_mul_i32 s{60 + t}, s72, 40960')
            k(f's_add_u32 s{60 + t}, s{60 + t}, s94')
            if t < 3:
                k('s_mul_i32 s72, s72, 15360')
                k(f'v_add_u32 v{16 + t}, s72, v1')
        self.flag_off('s74', PH_O)
        if self.o.fineflag:
            k(f's_lshl_b32 s72, {sW}, 6')
            k('s_add_u32 s74, s74, s72')
            k('v_and_b32 v65, 60, v10')
            k('s_barrier')
            self.poll('v65', 's74', 64, 'o')
        else:
            self.poll('v10', 's74', 64, 'o')
        self.stamp('oflag')
        AG = [480 + 4 * i for i in range(7)]
        B = [AG[:5], [80, 84, 88, 92, 96], AG[5:] + [100, 104, 108], AG[:5]]
        ol = sum((self.units_frags(B[t], f's{60 + t}') for t in range(4)), [])
        self.put_units(ol[:self.o.oup])
        acc = [32, 52]
        k.begin()
        for t in range(4):
            self.mm5(acc[t & 1], self.WO_W, B[t], 5, t > 0)
        w = Sched(k.end())
        wg = [[27, 30, 33, 36, 39], [42, 46, 50, 54, 58], [62, 66, 71, 76, 81]]
        for t in range(3):
            for ft in range(5):
                k.begin()
                a = acc[t & 1] + 4 * ft
                k(f'ds_write_b128 v{16 + t}, v[{a}:{a + 3}] offset:{L_RED + t * 5120 + ft * 1024}', f'red{t}')
                w.at(wg[t][ft], k.end())
        for gap, t in ((63, 1), (86, 2)):
            k.begin()
            k.wait_lgkm(f'red{t}')
            k('s_barrier')
            w.pre(gap, k.end())

        def rdp(t, dst):
            k.begin()
            for ft in range(5):
                k(f'ds_read_b128 v[{dst + 4 * ft}:{dst + 4 * ft + 3}], v9 offset:{L_RED + t * 5120 + ft * 1024}')
            return k.end()
        w.spread(ol[self.o.oup:15], 0, 14)
        w.spread(ol[15:], 25, 44, (3, 1))
        if self.o.raw == 'wo':
            self.rawstamps(w, range(0, 88, 12), 'r')
        assert len(self.bg) - self.nbg[5] >= 4
        self.nwd = self.nbg[6]
        if self.nbg[5] + self.nwd:
            w.spread(self.take(self.nbg[5]) + self.wd[:self.nwd], self.o.wo_start, self.o.wo_quiet)
        w.fill(rdp(0, 80), first=63, last=69)
        k.begin()
        for i in range(20):
            k(f'v_fmac_f32 v{120 + i}, v{140 + i}, v{80 + i}')
        w.fill(k.end() + rdp(1, 80), first=72, last=92)
        w.fill(rdp(2, 32), first=87, last=94)
        k.put(w.result())
        self.stamp('ks3')
        a = 52
        G2 = [72, 76, 112, 116, 12]
        for i in range(0, 20, 2):
            k(f'v_pk_add_f32 v[{80 + i}:{81 + i}], v[{80 + i}:{81 + i}], v[{32 + i}:{33 + i}]')
        for i in range(0, 20, 2):
            r = G2[i // 4] + i % 4
            k(f'v_pk_add_f32 v[{a + i}:{a + i + 1}], v[{a + i}:{a + i + 1}], v[{80 + i}:{81 + i}]')
            k(f'v_pk_fma_f32 v[{a + i}:{a + i + 1}], v[{a + i}:{a + i + 1}], v[{140 + i}:{141 + i}], v[{120 + i}:{121 + i}]')
            k(f'v_pk_mul_f32 v[{r}:{r + 1}], v[{r}:{r + 1}], v[{a + i}:{a + i + 1}]')
            k(f'v_cvt_pk_bf16_f32 v{100 + i // 2}, v{r}, v{r + 1}')
            if i == 6:
                k(f'buffer_store_dwordx4 v[100:103], v1, {WS}, s92 offen', 'z')
            if i == 14:
                k(f'buffer_store_dwordx4 v[104:107], v1, {WS}, s92 offen offset:1024', 'z')
        k(f'buffer_store_dwordx2 v[108:109], v21, {WS}, s92 offen offset:2048', 'z')
        k(f'v_pk_add_f32 v[84:85], v[{a}:{a + 1}], v[{a + 2}:{a + 3}]')
        k(f'v_pk_mul_f32 v[86:87], v[{a}:{a + 1}], v[{a}:{a + 1}]')
        k(f'v_pk_fma_f32 v[86:87], v[{a + 2}:{a + 3}], v[{a + 2}:{a + 3}], v[86:87]')
        for i in range(4, 20, 2):
            k(f'v_pk_add_f32 v[84:85], v[84:85], v[{a + i}:{a + i + 1}]')
            k(f'v_pk_fma_f32 v[86:87], v[{a + i}:{a + i + 1}], v[{a + i}:{a + i + 1}], v[86:87]')
        k('v_add_f32 v84, v84, v85')
        k('v_add_f32 v85, v86, v87')
        k('v_permlane16_swap_b32 v84, v85')
        k('v_add_f32 v84, v84, v85')
        k('v_mov_b32 v85, v84')
        k('v_permlane32_swap_b32 v84, v85')
        k('v_add_f32 v84, v84, v85')
        k(f'buffer_store_dword v84, v20, {WS}, s93 offen', 'z')
        if self.o.fine:
            self.stamp('wst')
        nz = self.nbg[8]
        us = self.take(nz)
        more = self.wd[self.nwd:self.nwd + nz - len(us)]
        assert self.nwd + len(more) <= 10
        self.nwd += len(more)
        self.put_units(us + more)
        for i in range(10):
            k(f'v_cvt_pk_bf16_f32 v{X1 + i}, v{a + 2 * i}, v{a + 2 * i + 1}')

    def csbias(self):
        k = self.k
        k.begin()
        k('v_and_b32 v32, 1, v3')
        k('v_mul_u32_u24 v32, 1280, v32')
        k('v_lshrrev_b32 v33, 4, v3')
        k('v_lshlrev_b32 v33, 4, v33')
        k(f'v_add_u32 v33, {P_G2}, v33')
        k('v_sub_u32 v32, v33, v32')
        for s in range(20):
            k(f'ds_read_b128 v[{160 + 4 * s}:{163 + 4 * s}], v32 offset:{64 * s}')
        return k.end()

    CSA = 140
    EXA = 128
    EXB = 96
    L_TS = 73728

    def cs_mm(self, s):
        for ft in range(3):
            d = self.CSA + 4 * ft
            self.k(f'v_mfma_f32_16x16x32_bf16 v[{d}:{d + 3}], v[{160 + 4 * s}:{163 + 4 * s}], {ur(256 + 12 * s + 4 * ft)}, {"0" if s == 0 else f"v[{d}:{d + 3}]"}')

    def cs_fin(self):
        k = self.k
        k.begin()
        for ft in range(3):
            c, e = self.CSA + 4 * ft, self.EXA + 4 * ft
            k(f'v_cvt_pk_bf16_f32 v{e + 3}, v{c}, v{c + 1}')
            k(f'v_lshlrev_b32 v{c + 2}, 16, v{e + 3}')
            k(f'v_and_b32 v{c + 3}, 0xffff0000, v{e + 3}')
            k(f'v_sub_f32 v{c}, v{c}, v{c + 2}')
            k(f'v_sub_f32 v{c + 1}, v{c + 1}, v{c + 3}')
            k(f'v_cvt_pk_bf16_f32 v{e}, v{c + 2}, v{c + 2}')
            k(f'v_cvt_pk_bf16_f32 v{e + 1}, v{c}, v{c + 3}')
            k(f'v_cvt_pk_bf16_f32 v{e + 2}, v{c + 3}, v{c + 1}')
            for i in range(3):
                k(f'v_cndmask_b32 v{e + i}, 0, v{e + i}, s[50:51]')
            k(f'v_mov_b32 v{e + 3}, 0')
        return k.end()

    WD_REG = ([256 + 32 + 4 * i for i in range(10)] + [152 + 4 * i for i in range(26)] + [496, 500, 504, 508] +
              [124, 140, 144, 148] + [256 + 72 + 4 * i for i in range(8)] + [256 + 4 * i for i in range(8)])
    HH_B = [[256 + 104 + 4 * i for i in range(12)], [256 + 152 + 4 * i for i in range(12)],
            [256 + 200 + 4 * i for i in range(10)] + [112, 116]]

    def wd_setup(self):
        k = self.k
        k(f's_mul_i32 s86, {sJC}, {WD_J}')
        k(f's_mul_i32 s72, {sW}, {61440 + OD_W}')
        k('s_add_u32 s86, s86, s72')
        k(f's_add_u32 s86, s86, {WS_WD}')
        k(f's_lshl_b32 s95, {sW}, 13')
        k(f's_mul_i32 s81, {sW}, 10240')
        us = self.units_frags(self.WD_REG, 's86', tag='wd')
        for i in list(range(10)) + list(range(44, 52)):
            k.begin()
            if i and i % 4 == 0:
                k('s_add_u32 s86, s86, 4096')
            base = L_B + 1024 * i if i < 10 else 40960 + 1024 * (i - 44)
            if i % 4 == 0 or i < 10:
                k(f's_add_u32 m0, {"s81" if i < 10 else "s95"}, {base - 1024 * (i % 4)}')
            if 'nobg' not in self.o.x:
                k(f'buffer_load_dwordx4 v1, {WS}, s86 offen offset:{1024 * (i % 4)} sc1{self.ntw} lds', 'wdl')
            us[i] = k.end()
        self.wd = us

    def hh_publish(self, q):
        k = self.k
        k.begin()
        k('v_add_u32 v5, 1, v5')
        self.publish(PH_HH, f'hh{q}')
        return k.end()

    def hh_flagload(self):
        k = self.k
        k.begin()
        k(f'buffer_load_dword v12, v13, {WS}, s74 offen sc1')
        return k.end()

    def hh_check(self, need):
        k = self.k
        k.begin()
        k(f's_add_u32 s75, {sTAG}, {need}')

        def test():
            k('v_subrev_u32 v12, s75, v12')
            k(f'v_cmp_lt_u32 vcc, {7 - need}, v12')
        test()

        def body():
            k(f'buffer_load_dword v12, v13, {WS}, s74 offen sc1')
            k('s_waitcnt vmcnt(0)')
            test()
        self.recheck(body)
        self.acquire(f'hh{need - 1}')
        return k.end()

    def gu_epilogue(self, q, a, packed):
        k = self.k
        epi = []
        for tt in range(2):
            k.begin()
            c = self.EXB + 8 * tt + 4
            t0, t1 = 112 + 2 * tt, 113 + 2 * tt
            for ft in range(3):
                d = a + 12 * tt + 4 * ft
                if packed:
                    k(f'v_pk_mul_f32 v[{t0}:{t1}], v[{d}:{d + 1}], v[{d}:{d + 1}]')
                    k(f'v_pk_fma_f32 v[{t0}:{t1}], v[{t0}:{t1}], v[{c}:{c + 1}], v[{c}:{c + 1}] op_sel:[0,1,0] op_sel_hi:[1,1,0]')
                    k(f'v_pk_mul_f32 v[{t0}:{t1}], v[{t0}:{t1}], v[{d}:{d + 1}]')
                    k(f'v_exp_f32 v{t0}, v{t0}')
                    k(f'v_exp_f32 v{t1}, v{t1}')
                    k(f'v_pk_mul_f32 v[{d}:{d + 1}], v[{d}:{d + 1}], v[{d + 2}:{d + 3}]')
                    k(f'v_pk_fma_f32 v[{t0}:{t1}], v[{t0}:{t1}], v[{c + 2}:{c + 3}], v[{c + 2}:{c + 3}] op_sel_hi:[1,0,0]')
                    k(f'v_rcp_f32 v{t0}, v{t0}')
                    k(f'v_rcp_f32 v{t1}, v{t1}')
                    k(f'v_pk_mul_f32 v[{d}:{d + 1}], v[{d}:{d + 1}], v[{t0}:{t1}]')
                else:
                    k(f'v_mul_f32 v{t0}, v{d}, v{d}')
                    k(f'v_mul_f32 v{t1}, v{d + 1}, v{d + 1}')
                    k(f'v_fma_f32 v{t0}, v{t0}, v{c + 1}, v{c}')
                    k(f'v_fma_f32 v{t1}, v{t1}, v{c + 1}, v{c}')
                    k(f'v_mul_f32 v{t0}, v{t0}, v{d}')
                    k(f'v_mul_f32 v{t1}, v{t1}, v{d + 1}')
                    k(f'v_exp_f32 v{t0}, v{t0}')
                    k(f'v_exp_f32 v{t1}, v{t1}')
                    k(f'v_mul_f32 v{d}, v{d}, v{d + 2}')
                    k(f'v_fma_f32 v{t0}, v{t0}, v{c + 2}, v{c + 2}')
                    k(f'v_fma_f32 v{t1}, v{t1}, v{c + 2}, v{c + 2}')
                    k(f'v_rcp_f32 v{t0}, v{t0}')
                    k(f'v_rcp_f32 v{t1}, v{t1}')
                    k(f'v_mul_f32 v{d + 1}, v{d + 1}, v{d + 3}')
                    k(f'v_mul_f32 v{d}, v{d}, v{t0}')
                    k(f'v_mul_f32 v{d + 1}, v{d + 1}, v{t1}')
                dst = (16 + 2 * tt + ft) if ft < 2 else (6 + tt)
                k(f'v_cvt_pk_bf16_f32 v{dst}, v{d}, v{d + 1}')
            epi.append(k.end())
        k.begin()
        k('v_permlane32_swap_b32 v16, v18')
        k('v_permlane32_swap_b32 v17, v19')
        k('v_permlane16_swap_b32 v6, v7')
        k('v_permlane16_swap_b32 v16, v17')
        k('v_permlane16_swap_b32 v18, v19')
        k(f'buffer_store_dwordx2 v[6:7], v21, {WS}, s82 offen offset:512', f'hh{q}')
        k(f'buffer_store_dwordx4 v[16:19], v20, {WS}, s82 offen', f'hh{q}')
        if q < 2:
            k('s_add_u32 s82, s82, 98304')
        if q == 2:
            k(f's_sub_u32 s82, s82, {3 * 98304}')
        fin = k.end()
        return zipper(epi[0], epi[1], 0 if packed else 8), fin

    def gu(self):
        k = self.k
        o = self.o
        slots = [L_A, 0, L_A, 0]
        addr = ['v8', 'v1', 'v8', 'v1']
        K1 = (60 - len(self.bg)) // 3
        C1 = -2.0 * 0.7978845608028654 * 1.4426950408889634
        k.begin()
        k(f'v_add_u32 v8, {L_A}, v1')
        k('v_and_b32 v20, 15, v3')
        k('v_lshlrev_b32 v14, 5, v20')
        k(f'v_add_u32 v14, {self.L_TS}, v14')
        k(f's_lshl_b32 s72, {sW}, 10')
        k('v_lshrrev_b32 v15, 4, v3')
        k('v_lshl_add_u32 v15, v15, 3, v14')
        k('v_add_u32 v15, s72, v15')
        k('s_mov_b32 s64, 0xffff')
        k('s_mov_b32 s65, 0xffff')
        k('v_lshlrev_b32 v20, 4, v20')
        k('v_lshrrev_b32 v12, 5, v3')
        k('v_bfe_u32 v13, v3, 4, 1')
        k('s_mov_b32 s72, 49152')
        k('v_mad_u32_u24 v21, v13, s72, v20')
        k('v_lshl_add_u32 v21, v12, 3, v21')
        k('v_mad_u32_u24 v20, v12, s72, v20')
        k('v_lshl_add_u32 v20, v13, 8, v20')
        k('v_and_b32 v13, 60, v10')
        k('s_mov_b64 s[50:51], 0xffff')
        k(f's_mul_i32 s94, {sCL}, 163840')
        k(f's_add_u32 s94, s94, {WS_Z}')
        k('s_add_u32 s94, s94, s81')
        k(f's_lshl2_add_u32 s76, {sCL}, {sW}')
        k('s_lshl_b32 s76, s76, 11')
        k(f's_add_u32 s76, s76, {WS_ST}')
        k(f's_mul_i32 s60, {sCL}, 393216')
        k(f's_mul_i32 s72, {sTH}, 49152')
        k('s_add_u32 s60, s60, s72')
        k(f's_mul_i32 s72, {sW}, 12288')
        k('s_add_u32 s60, s60, s72')
        k(f's_add_u32 s63, s60, {WS_HH}')
        for t in range(3):
            k(f's_add_u32 s{60 + t}, s63, {98304 * (t + 1)}')
        self.flag_off('s74', PH_Z)
        setup = k.end()
        csr = self.csbias()
        c1 = min(o.cs1, K1)
        k.put(csr[:6 + c1])
        k.put(setup[:o.zpub])
        if o.fine:
            self.stamp('wset')
        self.publish(PH_Z, 'z')
        self.stamp('wo')
        k.begin()
        for s in range(c1):
            self.cs_mm(s)
        w = Sched(k.end())
        w.fill(csr[6 + c1:], first=0)
        for i, it in enumerate(setup[o.zpub:]):
            w.post(min(8 + i // 2, w.n - 1), [it])
        k.put(w.result())
        self.poll('v10', 's74', 64, 'z')
        self.stamp('zflag')
        zd = [self.units_dma('s94', 40960 * q, slots[q], 40, f'z{q}', woff='s81') for q in range(4)]
        self.put_units(zd[0][:6])
        k.begin()
        for s in range(c1, K1):
            self.cs_mm(s)
        w = Sched(k.end())
        w.spread(zd[0][6:] + self.units_frags([96, 104], 's76'), 0, min(18, w.n - 1))
        k.put(w.result())
        self.flag_off('s74', PH_HH)
        k(f's_lshl_b32 s72, {sW}, 6')
        k('s_add_u32 s74, s74, s72')
        k('v_add_u32 v10, s95, v1')
        k(f's_add_u32 s72, s81, {L_B}')
        k('v_add_u32 v9, s72, v1')
        self.hl = [self.units_frags(self.HH_B[t % 3], f's{60 + t}') for t in range(4)]
        sts = []
        for T in range(2):
            k.begin()
            b = 96 + 8 * T
            k(f'v_add_f32 v{b}, v{b}, v{b + 2}')
            k(f'v_add_f32 v{b + 1}, v{b + 1}, v{b + 3}')
            k(f'v_permlane16_swap_b32 v{b}, v{b + 1}')
            k(f'v_add_f32 v{b}, v{b}, v{b + 1}')
            k(f'v_mov_b32 v{b + 1}, v{b}')
            k(f'v_permlane32_swap_b32 v{b}, v{b + 1}')
            k(f'v_add_f32 v{b}, v{b}, v{b + 1}')
            k(f'v_mul_f32 v{b + 2}, {f2u(-1 / 640):#x}, v{b}')
            k(f'v_mul_f32 v{b + 6}, {f2u(-1 / 640):#x}, v{b}')
            k(f'v_permlane16_swap_b32 v{b + 2}, v{b + 6}')
            k(f'v_fma_f32 v{b + 6}, -v{b + 2}, v{b + 2}, -v{b + 6}')
            k(f'v_max_f32 v{b + 6}, 0, v{b + 6}')
            k(f'v_add_f32 v{b + 6}, {f2u(1e-5):#x}, v{b + 6}')
            k(f'v_rsq_f32 v{b + 4}, v{b + 6}')
            k(f'v_mul_f32 v{b + 3}, v{b + 6}, v{b + 4}')
            k(f'v_mul_f32 v{b + 5}, v{b + 4}, v{b + 4}')
            k(f'v_mul_f32 v{b + 4}, {f2u(C1):#x}, v{b + 4}')
            k(f'v_mul_f32 v{b + 5}, v{b + 5}, v{b + 4}')
            k(f'v_mul_f32 v{b + 5}, {f2u(0.044715):#x}, v{b + 5}')
            k(f'v_cvt_pk_bf16_f32 v{b + 1}, v{b + 2}, v{b + 3}')
            k(f'v_lshlrev_b32 v{b}, 16, v{b + 1}')
            k(f'v_and_b32 v{b + 7}, 0xffff0000, v{b + 1}')
            k(f'v_sub_f32 v{b + 2}, v{b + 2}, v{b}')
            k(f'v_sub_f32 v{b + 3}, v{b + 3}, v{b + 7}')
            k(f'v_cvt_pk_bf16_f32 v{b}, v{b}, v{b + 2}')
            k(f'v_cvt_pk_bf16_f32 v{b + 2}, v{b + 3}, v{b + 7}')
            k(f'v_mov_b32 v{b + 3}, 0')
            for e in range(2):
                k(f'v_cndmask_b32 v{b + e}, v{b + 2 + e}, v{b + e}, s[64:65]')
                k(f'v_cndmask_b32 v{b + 4 + e}, v{b + 6 + e}, v{b + 4 + e}, s[64:65]')
            for e in range(2):
                k(f'v_cndmask_b32 v{b + e}, v{b + 4 + e}, v{b + e}, s[48:49]')
            k(f'ds_write_b64 v15, v[{b}:{b + 1}] offset:{512 * T}', 'ts')
            sts.append(k.end())
        acc = [32, 56]
        FRL = [80, 84, 88, 92, 116, 120]
        LA = o.gula
        k.wait_vm('z0')
        k.barrier()
        self.stamp('g0')
        seq = [(q, s, tt) for q in range(4) for s in range(20) for tt in range(2)]
        k.begin()

        def rd(i):
            q, s, tt = seq[i]
            k(f'ds_read_b128 {ur(FRL[i % 6])}, {addr[q]} offset:{20480 * tt + 1024 * s}')

        def extra(q):
            for tt in range(2):
                for ft in range(3):
                    d = acc[q & 1] + 12 * tt + 4 * ft
                    e, x = self.EXA + 4 * ft, self.EXB + 8 * tt
                    k(f'v_mfma_f32_16x16x32_bf16 v[{d}:{d + 3}], v[{e}:{e + 3}], v[{x}:{x + 3}], v[{d}:{d + 3}]')
        for i in range(LA):
            rd(i)
        gap_of, n, X = [], 0, {}
        for i, (q, s, tt) in enumerate(seq):
            gap_of.append(n)
            for ft in range(3):
                d = acc[q & 1] + 12 * tt + 4 * ft
                k(f'v_mfma_f32_16x16x32_bf16 v[{d}:{d + 3}], {ur(256 + 12 * s + 4 * ft)}, {ur(FRL[i % 6])}, {"0" if s == 0 else f"v[{d}:{d + 3}]"}')
                if ft == 0 and i + LA < len(seq):
                    rd(i + LA)
            n += 3
            if q == 0 and tt == 0 and s >= K1:
                self.cs_mm(s)
                n += 3
            x0 = 7 if K1 < 20 else 1
            if (q == 1 and i % 40 == x0) or (q >= 1 and i % 40 == 39):
                qq = 0 if i % 40 == x0 else q
                X[qq] = n
                extra(qq)
                n += 6
        Q = [gap_of[40 * q] for q in range(4)] + [n]
        w = Sched(k.end())
        for q in range(1, 4):
            k.begin()
            k.wait_vm(f'z{q}')
            if q == 1:
                k.wait_lgkm('ts')
            k('s_barrier')
            if o.fine:
                self.stamp(f'g{q}')
            w.pre(gap_of[40 * q - LA], k.end())
        for q in (1, 2):
            k.begin()
            k('s_barrier')
            w.pre(Q[q] + 4, k.end())
        for q in range(4):
            for i in range(4):
                k.begin()
                r = self.EXB + 4 * i
                k(f'ds_read_b128 v[{r}:{r + 3}], v14 offset:{1024 * q + 512 * (i >> 1) + 16 * (i & 1)}')
                w.at(X[q] - 14 + 3 * i, k.end())
        M = (3, 0)
        wd = self.wd[self.nwd:]
        off = self.nwd
        rest = self.take(len(self.bg))
        n0 = o.wdq[0] - off
        n1 = o.wdq[1] - off
        w.spread(rest + zd[1] + wd[:n0], 0, Q[1] + 3, M)
        w.spread(zd[2] + wd[n0:n1], Q[1] + 5, Q[2] + 3, M)
        w.spread(zd[3] + wd[n1:52 - off], Q[2] + 5, Q[3] + 12, M)
        w.spread(wd[52 - off:], Q[3] + 18, Q[3] + 56, M)
        k.begin()
        k.wait_vm('wdl')
        w.pre(Q[3] + 57, k.end())
        lr = []
        for i in list(range(10)) + list(range(44, 52)):
            k.begin()
            if i < 10:
                k(f'ds_read_b128 {ur(self.WD_REG[i])}, v9 offset:{1024 * i}')
            else:
                k(f'ds_read_b128 {ur(self.WD_REG[i])}, v10 offset:{40960 + 1024 * (i - 44)}')
            lr.append(k.end())
        w.spread(lr[:7], Q[3] + 57, Q[3] + 78, M)
        w.spread(lr[7:], Q[3] + 88, Q[4] - 1, (3, 1))
        w.post(Q[2] + o.pubgap, self.hh_publish(0))
        w.post(Q[3] + o.pubgap, self.hh_publish(1))
        w.at(Q[3] + 8, self.hh_flagload())
        w.post(Q[3] + 77, self.hh_check(1))
        w.spread(self.hl[0][:10], Q[3] + 79, Q[4] - 1, M)
        w.at(Q[3] + 104, self.hh_flagload())
        w.fill(zipper(sts[0], sts[1], 4), first=30, last=Q[1] - 24)
        print('gu stats tail', w.ntail, 'K1', K1)
        w.fill(self.cs_fin(), first=Q[1] + 3 if K1 < 20 else 2, last=X[0] - 2)
        print('gu cs tail', w.ntail)
        for q in range(3):
            e, fin = self.gu_epilogue(q, acc[q & 1], False)
            w.fill(e + fin, first=X[q] + 8, last=X[q + 1] - 15)
            print('gu quarter', q, 'tail', w.ntail, 'ends', w.lastgap - Q[q + 1])
        if o.raw == 'gu':
            print('Q', Q, 'X', X)
            self.rawstamps(w, range(2, n - 12, 18), 'r')
        res = w.result()
        xs = o.x.split(',')

        def keep(it):
            if not isinstance(it, Ins):
                return True
            if 'g_noval' in xs and it.kind in ('valu', 'trans') and not it.mn.startswith('v_cmp') and 'v12' not in it.text and 'v5' not in it.text.split():
                return False
            if 'g_nobar' in xs and it.mn == 's_barrier':
                return False
            if 'g_nodma' in xs and it.meta == 'dma':
                return False
            if 'g_nost' in xs and it.kind == 'vmem' and '_store_dwordx' in it.mn:
                return False
            if 'g_nods' in xs and it.kind == 'ds':
                return False
            return True
        k.put([it for it in res if keep(it)])
        self.stamp('g4')
        self.put_units(self.hl[0][10:])
        if o.g5in:
            e, fin = self.gu_epilogue(3, acc[1], False)
            self.e3 = e + fin
        else:
            e, fin = self.gu_epilogue(3, acc[1], True)
            k.put(e[:len(e) // 3])
            k.put(self.hh_check(2))
            self.put_units(self.hl[1][:6])
            k.put(e[len(e) // 3:])
            k.put(fin)
        self.stamp('g5')

    def down(self):
        k = self.k
        X1 = self.X1
        W = self.WD_REG
        acc = [32, 52]
        k(f's_mul_i32 s76, {sW}, 5120')
        k(f's_add_u32 s76, s76, {L_A}')
        k('v_lshrrev_b32 v9, 2, v3')
        k('v_and_b32 v9, 12, v9')
        k('v_add_u32 v9, v9, v3')
        k('v_and_b32 v9, 15, v9')
        k('v_and_or_b32 v9, v3, 48, v9')
        k('v_lshl_add_u32 v8, v9, 4, s76')
        k(f's_mul_i32 s76, {sW}, 20480')
        k(f's_add_u32 s76, s76, {L_A}')
        k.begin()
        for t in range(4):
            self.mm5(acc[t & 1], W, self.HH_B[t % 3], 12, self.o.chain or (t == 3 and self.o.chain3))
        w = Sched(k.end())
        k.begin()
        k('s_barrier')
        w.pre(61, k.end())

        def wr(t):
            us = []
            for ft in range(5):
                k.begin()
                a = acc[t & 1] + 4 * ft
                off = t * 20480 + ft * 1024
                if off > 65535 - 16:
                    k(f'ds_write_b128 v6, v[{a}:{a + 3}] offset:{off - 40960}', f'dw{t}{ft}')
                else:
                    k(f'ds_write_b128 v8, v[{a}:{a + 3}] offset:{off}', f'dw{t}{ft}')
                us.append(k.end())
            return us
        o = self.o
        for t in range(3):
            w.spread(wr(t), 60 * (t + 1) + 8, 60 * (t + 1) + (50 if t < 2 else 16))
        d = o.dn
        if o.g5in:
            w.post(2, self.hh_check(2))
            w.spread(self.hl[1], 3, 46)
        else:
            w.spread(self.hl[1][6:], 0, 24)
        w.post(d[0], self.hh_publish(2))
        w.post(d[1], self.hh_publish(3))
        w.at(d[2], self.hh_flagload())
        w.post(d[3], self.hh_check(3))
        w.spread(self.hl[2], d[3] + 1, d[3] + d[6])
        w.at(d[4], self.hh_flagload())
        w.post(d[5], self.hh_check(4))
        w.spread(self.hl[3], d[5] + 1, d[5] + d[7])
        if o.g5in:
            w.fill(self.e3, first=3, last=58, over=o.g5in - 1)
            print('last epilogue ends', w.lastgap, 'tail', w.ntail)
            assert d[3] + d[6] * 10 // 12 > 58 and d[1] > w.lastgap
        k.begin()
        k('v_add_u32 v6, 40960, v8')
        k('v_lshrrev_b32 v16, 2, v3')
        k('v_and_b32 v19, 3, v3')
        k('v_lshl_add_u32 v9, v19, 2, v16')
        k('v_and_b32 v9, 15, v9')
        k('v_lshl_add_u32 v9, v19, 4, v9')
        k('v_lshl_add_u32 v9, v9, 4, s76')
        k('v_lshl_add_u32 v7, v19, 4, v16')
        k('v_lshlrev_b32 v7, 2, v7')
        for i in range(10):
            k(f'ds_bpermute_b32 v{X1 + i}, v7, v{X1 + i}')
        k('v_mul_u32_u24 v16, 1280, v16')
        k('v_lshlrev_b32 v18, 4, v19')
        k('v_lshlrev_b32 v19, 3, v19')
        k('v_add_u32 v17, v16, v19')
        k('v_add_u32 v16, v16, v18')
        k(f'v_add_u32 v18, {L_P}, v18')
        k(f'v_add_u32 v19, {L_P}, v19')
        self.lds_cols(P_GB - L_P, 128, 'v18', 'v19')
        self.unpack10(128, 92)
        self.unpack10(X1, 72)
        w.fill(k.end(), first=135, last=200)
        w3 = wr(3)
        for ft in range(4):
            w.at(180 + 12 * ft + 18, w3[ft])
        k.begin()
        k.wait_lgkm('dw31')
        k('s_barrier')
        w.pre(216, k.end())
        RD = [[32, 36, 40, 44], [48, 112, 116, 128], [160, 164, 168, 172], [176, 180, 184, 188], [192, 196, 200, 204]]

        def rdq(ft):
            for t in range(4):
                k(f'ds_read_b128 v[{RD[ft][t]}:{RD[ft][t] + 3}], v9 offset:{t * 5120 + ft * 1024}')
        k.begin()
        rdq(0)
        rdq(1)
        w.fill(k.end(), first=217, last=226)
        if o.raw == 'dn':
            self.rawstamps(w, range(0, 228, 12), 'r')
        k.put(w.result())
        self.stamp('ks3')
        k.put(w3[4])

        def fin(ft):
            r = RD[ft]
            for h in (0, 2):
                k(f'v_pk_add_f32 v[{r[0] + h}:{r[0] + h + 1}], v[{r[0] + h}:{r[0] + h + 1}], v[{r[1] + h}:{r[1] + h + 1}]')
                k(f'v_pk_add_f32 v[{r[2] + h}:{r[2] + h + 1}], v[{r[2] + h}:{r[2] + h + 1}], v[{r[3] + h}:{r[3] + h + 1}]')
            for h in (0, 2):
                k(f'v_pk_add_f32 v[{r[0] + h}:{r[0] + h + 1}], v[{r[0] + h}:{r[0] + h + 1}], v[{r[2] + h}:{r[2] + h + 1}]')
            for h in (0, 2):
                i = 4 * ft + h
                k(f'v_pk_fma_f32 v[{r[0] + h}:{r[0] + h + 1}], v[{r[0] + h}:{r[0] + h + 1}], v[{92 + i}:{93 + i}], v[{72 + i}:{73 + i}]')
            for h in (0, 2):
                k(f'v_cvt_pk_bf16_f32 v{X1 + 2 * ft + h // 2}, v{r[0] + h}, v{r[0] + h + 1}')
        k.barrier()
        if o.fine:
            self.stamp('dbar')
        rdq(2)
        rdq(3)
        rdq(4)
        fin(0)
        fin(1)
        k(f'buffer_store_dwordx4 v[{X1}:{X1 + 3}], v16, {OUTS}, s90 offen', 'out')
        fin(2)
        fin(3)
        k(f'buffer_store_dwordx4 v[{X1 + 4}:{X1 + 7}], v16, {OUTS}, s90 offen offset:64', 'out')
        fin(4)
        k(f'buffer_store_dwordx2 v[{X1 + 8}:{X1 + 9}], v17, {OUTS}, s90 offen offset:128', 'out')
        if o.fine:
            self.stamp('dst')

    def padspin(self, t):
        k = self.k
        lab = k.newlabel('pad')
        k.wait_lgkm_all()
        k.label(lab)
        k('s_memrealtime s[100:101]')
        k('s_sub_u32 s100, s100, s98')
        k(f's_cmp_lt_u32 s100, {t}')
        k(f's_cbranch_scc1 {lab}')

    def finish(self):
        k = self.k
        if self.o.padto and self.o.padat == 'end':
            self.padspin(self.o.padto)
        if self.o.stamps:
            k.wait_vm_all()
            self.stamp('end')
            k.wait_lgkm_all()
            k('s_memtime s[98:99]')
            k('v_writelane_b32 v11, s98, 62')
            k(f'v_writelane_b32 v11, {sFAST}, 63')
            k(f's_lshl2_add_u32 s72, s2, {sW}')
            k('s_lshl_b32 s72, s72, 8')
            k(f's_add_u32 s72, s72, {WS_DBG}')
            k('v_lshlrev_b32 v64, 2, v3')
            k(f'buffer_store_dword v11, v64, {WS}, s72 offen')
            if self.o.dbg:
                sel = [self.stampnames.index(n) + 1 for n in self.o.dbg.split(',')]
                k(f's_lshl2_add_u32 s72, s2, {sW}')
                k(f's_cmp_lg_u32 s72, {self.o.dbgwave}')
                k('s_cbranch_scc1 .Lend')
                k('s_mov_b64 s[28:29], s[68:69]')
                k('s_mov_b32 s30, 256')
                k('v_readlane_b32 s72, v11, 0')
                k('v_mov_b32 v64, 0')
                for i, n in enumerate(sel):
                    k(f'v_readlane_b32 s73, v11, {n}')
                    k('s_sub_u32 s73, s73, s72')
                    k('v_mov_b32 v65, s73')
                    k(f'buffer_store_dword v65, v64, {CS}, 0 offen offset:{4 * i}')
        k.label('.Lend')
        k('s_endpgm')

    def islands(self, body):
        import subprocess, re
        lines = body.split('\n')
        stub = '\n'.join(f'.Lchain{w}:' for w in range(4))
        src = '.amdgcn_target "amdgcn-amd-amdhsa--gfx950"\n.text\n' + body + '\n' + stub + '\n.Lcode_end:\n'
        open('isl.s', 'w').write(src)
        subprocess.check_call(['clang', '-x', 'assembler', '-target', 'amdgcn-amd-amdhsa', '-mcpu=gfx950', '-c', 'isl.s', '-o', 'isl.o'])
        dis = subprocess.check_output(['llvm-objdump', '-d', '-z', '--mcpu=gfx950', 'isl.o']).decode()
        sizes = [(int(m.group(1), 16), 4 * len(m.group(2).split())) for m in re.finditer(r'// ([0-9A-F]{12}): ((?:[0-9A-F]{8} ?)+)', dis)]
        p0 = lines.index('.Lpage0:')
        ret = lines.index('.Lwarm_ret:')
        end = lines.index('.Lend:')
        isins = lambda l: l.startswith('    ') and not l.strip().startswith(';')
        after = [i for i in range(p0, len(lines)) if isins(lines[i])]
        tail = sizes[-len(after):]
        assert tail[0][0] % 4096 == 0
        offs = [int(x) for x in self.o.isl.split(',')]
        pos, addr, nxt, out = [], 0, 0, lines[:p0 + 1]
        targets = [4096 * p + o_ for p in range(1, 20) for o_ in offs]
        sz = {i: s for i, (_, s) in zip(after, tail)}
        prev = ''
        for i in range(p0 + 1, len(lines)):
            l = lines[i]
            if isins(l):
                if i > ret and i < end and addr >= targets[nxt] and not prev.strip().startswith('s_cbranch_vccz'):
                    good = prev.strip().startswith('v_mfma') and not l.strip().startswith('s_')
                    if good or addr >= targets[nxt] + 40:
                        out.append(f'@ISL{len(pos)}')
                        pos.append(addr)
                        addr += 4
                        nxt += 1
                while i <= ret and addr >= targets[nxt]:
                    nxt += 1
                addr += sz[i]
                prev = l
            out.append(l)
        n = len(pos)
        per = (n + 3) // 4
        res = []
        for l in out:
            if l.startswith('@ISL'):
                j = int(l[4:])
                if j % per == 0:
                    res.append(f'.Lchain{j // per}:')
                res.append(f'.Lisl{j}:')
                last = (j + 1) % per == 0 or j + 1 == n
                res.append(f'    s_cbranch_execz {".Lwarm_ret" if last else f".Lisl{j + 1}"}')
            else:
                res.append(l)
                if l == '.Lwarm_ret:':
                    res += [f'.Lchain{w}:' for w in range(4) if w * per >= n]
        print('islands', [hex(p) for p in pos])
        return '\n'.join(res)

    def build(self):
        o = self.o
        def pre():
            fns = dict(wqi=self.st_wq_issue, xi=self.st_x_issue, mod=self.st_mod, lp=self.st_lp, xw=lambda: self.k.wait_vm('x'), mc=self.st_modc, a1=self.st_addr,
                       wqp=self.st_wq_process, pq=lambda: (self.wg_flag('wqst', WS_PQ), self.stamp('pq')),
                       norm=self.st_norm,
                       li=lambda: self.late_mod(self.mod_issue), lc=lambda: self.late_mod(self.mod_core),
                       rq=self.st_rest_prep, ri=lambda: (self.put_units(self.rest_units(36, 38)), self.stamp('ri')), a2=self.st_addr2,
                       rr=self.rest_reads, rs=lambda: (self.put_units(self.rest_stores()), self.stamp('rs')),
                       pr=lambda: (self.wg_flag('pre', WS_PR), self.stamp('pr')), bar=self.k.barrier,
                       to=self.touch_arena, x2=self.x2_issue, b=self.st_bases, pqp=self.pq_poll, rl=self.rr_rs_late, m2=lambda: self.mod_pass(True, split=True), al=self.align_page, wm=self.warm, ts=self.touch_small, pqs=self.pq_sample, pqe=self.pq_early, pql=self.pq_late,
                       h=self.make_h, hp=lambda: (self.publish(PH_H, 'h'), self.stamp('hpub')), hf=self.h_poll, xi0=lambda: self.xd_issue(0), xi1=lambda: self.xd_issue(1), xr0=lambda: self.xd_read(0), xr1=lambda: self.xd_read(1),
                       xn0=lambda: self.xd_norm(0), xn1=lambda: self.xd_norm(1), xf=self.xn_flag, xp=self.xn_poll, m2v=lambda: self.k.put(self.m2_rest))
            for n_ in range(1, 41):
                fns[f'l{n_}'] = lambda n_=n_: self.xn_loads(n_)
                fns[f't{n_}'] = lambda n_=n_: (self.pre_mod(n_), self.stamp(f't{self.nt}'))
            for c in range(5):
                fns[f'c{c}'] = lambda c=c: self.put_units(self.wq_chunk(c))
            self.st_entry()
            for n in o.order.split(','):
                if n.startswith('m1'):
                    sub = n.split('+')
                    self.mod_pass(False, between=lambda: [fns[x]() for x in sub[1:]], withpq={'m1x': 1, 'm1a': 2}.get(sub[0], 0),
                                  onmiss={'m1d': fns['ri'], 'm1e': self.rr_rs}.get(sub[0]))
                else:
                    fns[n]()
        steps = [
            ('pre', pre),
            ('qkv', self.qkv),
            ('attn', self.attention),
            ('wo', self.wo),
            ('gu', self.gu),
            ('down', self.down),
        ]
        for name, fn in steps:
            self.k.comment(f'==================== {name}')
            fn()
            if o.stop == name:
                break
        self.finish()
        if o.stop not in ('pre', 'qkv'):
            self.k.assume_vm_empty()
            self.fallback()
        for fn in self.ool:
            self.k.assume_vm_empty()
            self.k.fence_hazards()
            fn()
        body = self.k.finalize()
        if 'wm' in o.order.split(','):
            body = self.islands(body)
        ref = 'cdna_kernels/' + NAME + '.s.ref'
        hdr = open(ref).read().split('\n') if os.path.exists(ref) else []
        top = [l for l in hdr if l.startswith(';') and '@launch' not in l]
        txt = '\n'.join(top) + f'''
; @launch grid=(256,1,1) block=(256,1,1) lds={LDS_BYTES}
.amdgcn_target "amdgcn-amd-amdhsa--gfx950"
.text
.globl {NAME}_kernel
.p2align 8
.type {NAME}_kernel,@function
{NAME}_kernel:
{body}
.Lcode_end:
.section .rodata,"a"
.p2align 6
.amdhsa_kernel {NAME}_kernel
  .amdhsa_next_free_vgpr 512
  .amdhsa_next_free_sgpr 102
  .amdhsa_accum_offset 256
  .amdhsa_group_segment_fixed_size 0
  .amdhsa_kernarg_size 96
  .amdhsa_user_sgpr_count 2
  .amdhsa_user_sgpr_kernarg_segment_ptr 1
  .amdhsa_system_sgpr_workgroup_id_x 1
.end_amdhsa_kernel
'''
        return txt


def parser():
    ap = argparse.ArgumentParser()
    ap.add_argument('--only', default='')
    ap.add_argument('-o', default='cdna_kernels/' + NAME + '.s')
    ap.add_argument('--stop', default=None)
    ap.add_argument('--stamps', action='store_true')
    ap.add_argument('--force-slow', dest='force_slow', action='store_true')
    ap.add_argument('--dbg', default=None)
    ap.add_argument('--dbgwave', type=int, default=401)
    ap.add_argument('--x', default='')
    ap.add_argument('--cyc', action='store_true')
    ap.add_argument('--order', default='wqi,xi,al,lp,rq,a1,b,a2,ts,mod,mc,ri,wqp,norm,wm,m1+pq+rr+rs,h,m2,bar,x2,hp,m2v,hf,c0,l2,c1,l4')
    ap.add_argument('--wqlook', type=int, default=14)
    ap.add_argument('--wgu-q', dest='wgu_q', type=int, default=8)
    ap.add_argument('--bg-quiet', dest='bg_quiet', type=int, default=6)
    ap.add_argument('--bg-attn', dest='bg_attn', type=int, default=45)
    ap.add_argument('--gubud', type=int, default=8)
    ap.add_argument('--dnlook', type=int, default=16)
    ap.add_argument('--force-fb', dest='force_fb', action='store_true')
    ap.add_argument('--fine', action='store_true')
    ap.add_argument('--chain', type=int, default=0)
    ap.add_argument('--pub3', type=int, default=36)
    ap.add_argument('--prgap', type=int, default=186)
    ap.add_argument('--wgu-q1', dest='wgu_q1', type=int, default=0)
    ap.add_argument('--wgu-q1end', dest='wgu_q1end', type=int, default=112)
    ap.add_argument('--prflag', type=int, default=1)
    ap.add_argument('--rsgap', type=int, default=60)
    ap.add_argument('--late', type=int, default=240)
    ap.add_argument('--rspos', type=int, default=20)
    ap.add_argument('--wlead', type=int, default=6)
    ap.add_argument('--remend', type=int, default=56)
    ap.add_argument('--rigap', type=int, default=58)
    ap.add_argument('--wend', type=int, default=116)
    ap.add_argument('--hend', type=int, default=170)
    ap.add_argument('--t3end', type=int, default=156)
    ap.add_argument('--bg', default='0,16,0,2,36,17,0,8,10')
    ap.add_argument('--bg-start', dest='bg_start', type=int, default=0)
    ap.add_argument('--wo-quiet', dest='wo_quiet', type=int, default=98)
    ap.add_argument('--cs1', type=int, default=8)
    ap.add_argument('--q0a', type=int, default=84)
    ap.add_argument('--touchz', type=int, default=0)
    ap.add_argument('--wt', default='hh,o,h')
    ap.add_argument('--split', type=int, default=1)
    ap.add_argument('--wdq', type=lambda s: [int(x) for x in s.split(',')], default=[16, 34])
    ap.add_argument('--pubgap', type=int, default=50)
    ap.add_argument('--chk4', type=int, default=100)
    ap.add_argument('--gula', type=int, default=5)
    ap.add_argument('--nearly', type=int, default=2)
    ap.add_argument('--x2gap', type=int, default=141)
    ap.add_argument('--drop', default='')
    ap.add_argument('--ntst', default='')
    ap.add_argument('--dn', type=lambda s: [int(x) for x in s.split(',')], default=[28, 66, 60, 84, 106, 130, 30, 30])
    ap.add_argument('--raw', default='')
    ap.add_argument('--isl', default='0')
    ap.add_argument('--padto', type=int, default=0)
    ap.add_argument('--padat', default='end')
    ap.add_argument('--m2pos', type=int, default=10)
    ap.add_argument('--kvgap', type=int, default=294)
    ap.add_argument('--wo-start', dest='wo_start', type=int, default=30)
    ap.add_argument('--oup', type=int, default=11)
    ap.add_argument('--zpub', type=int, default=6)
    ap.add_argument('--chain3', type=int, default=1)
    ap.add_argument('--up', type=lambda s: [int(x) for x in s.split(',')], default=[12, 8])
    ap.add_argument('--xfirst', type=int, default=0)
    ap.add_argument('--mstart', type=int, default=2)
    ap.add_argument('--mend', type=int, default=160)
    ap.add_argument('--bg1', type=int, default=230)
    ap.add_argument('--psleep', type=int, default=0)
    ap.add_argument('--ylate', type=int, default=1)
    ap.add_argument('--kvs', type=int, default=0)
    ap.add_argument('--bg1end', type=int, default=312)
    ap.add_argument('--bits', default='')
    ap.add_argument('--x2b', default='')
    ap.add_argument('--xs', type=int, default=8)
    ap.add_argument('--over', type=int, default=3)
    ap.add_argument('--hpos', type=int, default=1)
    ap.add_argument('--t3start', type=int, default=118)
    ap.add_argument('--yearly', type=int, default=1)
    ap.add_argument('--g5in', type=int, default=3)
    ap.add_argument('--fineflag', type=int, default=1)
    ap.add_argument('--plain', default='hh3')
    ap.add_argument('--hpre', type=int, default=4)
    ap.add_argument('--spin', type=int, default=20000)
    return ap


if __name__ == '__main__':
    opt = parser().parse_args()
    g = Gen(opt)
    txt = g.build()
    open(opt.o, 'w').write(txt)
    if opt.stamps:
        open(opt.o + '.stamps', 'w').write(' '.join(g.stampnames))
    print('written', opt.o, 'lines', txt.count('\n'), g.k.stats, g.stampnames)
```

```python
import re

A0 = 256
S0 = 1000
VCC = (1106, 1107)
EXEC = (1126, 1127)
M0 = 1124

TRANS = ('v_exp_f32', 'v_log_f32', 'v_rcp_f32', 'v_rsq_f32', 'v_sqrt_f32', 'v_sin_f32', 'v_cos_f32', 'v_rcp_iflag_f32')
RMW_VALU = ('v_fmac_f32', 'v_dot2c_f32_bf16', 'v_pk_fmac_f16', 'v_writelane_b32')

_reg_re = re.compile(r'^(-|\|)?(?:abs\()?([vas])(?:(\d+)|\[(\d+):(\d+)\])\)?\|?$')


def regs_of(op):
    op = op.strip()
    if op == 'vcc':
        return set(VCC)
    if op == 'vcc_lo':
        return {VCC[0]}
    if op == 'vcc_hi':
        return {VCC[1]}
    if op == 'exec':
        return set(EXEC)
    if op == 'exec_lo':
        return {EXEC[0]}
    if op == 'exec_hi':
        return {EXEC[1]}
    if op == 'm0':
        return {M0}
    m = _reg_re.match(op)
    if not m:
        return set()
    base = {'v': 0, 'a': A0, 's': S0}[m.group(2)]
    if m.group(3) is not None:
        return {base + int(m.group(3))}
    lo, hi = int(m.group(4)), int(m.group(5))
    return set(range(base + lo, base + hi + 1))


def split_ops(s):
    out, depth, cur = [], 0, ''
    for ch in s:
        if ch in '[(':
            depth += 1
        if ch in '])':
            depth -= 1
        if ch == ',' and depth == 0:
            out.append(cur.strip())
            cur = ''
        else:
            cur += ch
    if cur.strip():
        out.append(cur.strip())
    return out


class Ins:
    __slots__ = ('text', 'mn', 'ops', 'mods', 'kind', 'rd', 'wr', 'tag', 'passes', 'A', 'B', 'C', 'D', 'sdata', 'dpp', 'meta')

    def __init__(self, text, tag=None):
        self.text = text
        self.tag = tag
        self.meta = None
        t = text.split(';')[0].strip()
        parts = t.split(None, 1)
        self.mn = mn = parts[0]
        rest = parts[1] if len(parts) > 1 else ''
        ops = split_ops(rest)
        mods = ''
        if ops:
            last = ops[-1]
            m = re.match(r'^(\S+(?:\([^)]*\))?)\s+(.*)$', last)
            if m and not last.startswith('hwreg'):
                ops[-1] = m.group(1)
                mods = m.group(2)
        self.ops, self.mods = ops, mods
        self.rd, self.wr = set(), set()
        self.passes = 0
        self.A = self.B = self.C = self.D = None
        self.sdata = set()
        self.dpp = ('quad_perm' in mods or 'row_' in mods or 'wave_' in mods or mn.endswith('_dpp'))
        R = [regs_of(o) for o in ops]
        base = mn
        for suf in ('_e32', '_e64', '_dpp', '_sdwa'):
            if base.endswith(suf):
                base = base[:-len(suf)]
        if mn.startswith('v_mfma'):
            self.kind = 'mfma'
            self.D, self.A, self.B, self.C = R[0], R[1], R[2], R[3]
            self.wr = set(R[0])
            self.rd = R[1] | R[2] | R[3]
            self.passes = 8 if '32x32' in mn else 4
        elif mn.startswith('v_'):
            self.kind = 'trans' if base in TRANS else 'valu'
            if base.startswith('v_cmpx'):
                self.wr = R[0] | set(EXEC)
                self.rd = set().union(*R[1:])
            elif base in ('v_permlane16_swap_b32', 'v_permlane32_swap_b32', 'v_swap_b32'):
                self.wr = R[0] | R[1]
                self.rd = R[0] | R[1]
            elif base in ('v_add_co_u32', 'v_sub_co_u32', 'v_addc_co_u32', 'v_subb_co_u32', 'v_mad_u64_u32'):
                self.wr = R[0] | R[1]
                self.rd = set().union(*R[2:])
            elif base == 'v_nop':
                pass
            else:
                self.wr = set(R[0])
                self.rd = set().union(*R[1:]) if len(R) > 1 else set()
                if base in RMW_VALU or self.dpp:
                    self.rd |= R[0]
                if base == 'v_cndmask_b32' and len(ops) == 3:
                    self.rd |= set(VCC)
        elif mn.startswith('ds_'):
            self.kind = 'ds'
            if mn.startswith('ds_read') or mn.startswith('ds_bpermute') or mn.startswith('ds_permute') or mn.startswith('ds_swizzle') or '_rtn' in mn:
                self.wr = set(R[0])
                self.rd = set().union(*R[1:])
            else:
                self.rd = set().union(*R)
        elif mn.startswith('buffer_wbl2') or mn.startswith('buffer_inv'):
            self.kind = 'vmem'
        elif mn.startswith('buffer_') or mn.startswith('global_'):
            self.kind = 'vmem'
            lds = bool(re.search(r'\blds\b', mods)) or '_lds_' in mn
            if lds:
                self.rd = set().union(*R) | {M0}
                self.meta = 'dma'
            elif '_load' in mn:
                self.wr = set(R[0])
                self.rd = set().union(*R[1:])
            elif '_store' in mn:
                self.rd = set().union(*R)
                data = R[0] if mn.startswith('buffer_') else R[1]
                if len(data) >= 3:
                    self.sdata = set(data)
            elif '_atomic' in mn:
                self.rd = set().union(*R)
                if 'sc0' in mods:
                    self.wr = set(R[0])
            else:
                raise ValueError(text)
        elif mn.startswith('s_load') or mn.startswith('s_buffer_load') or mn in ('s_memtime', 's_memrealtime') or mn.startswith('s_atomic'):
            self.kind = 'smem'
            self.wr = set(R[0])
            self.rd = set().union(*R[1:]) if len(R) > 1 else set()
            if mn.startswith('s_atomic'):
                self.rd |= R[0]
        elif mn in ('s_waitcnt', 's_nop', 's_barrier', 's_endpgm', 's_sleep', 's_setprio', 's_branch') or mn.startswith('s_cbranch'):
            self.kind = 'ctl'
        elif mn.startswith('s_cmp') or mn.startswith('s_bitcmp'):
            self.kind = 'salu'
            self.rd = set().union(*R)
        elif mn in ('s_setpc_b64',):
            self.kind = 'ctl'
            self.rd = set(R[0])
        elif mn.startswith('s_'):
            self.kind = 'salu'
            self.wr = set(R[0])
            self.rd = set().union(*R[1:]) if len(R) > 1 else set()
            if 'saveexec' in mn:
                self.wr |= set(EXEC)
            if mn in ('s_addk_i32', 's_mulk_i32', 's_cmov_b32', 's_cmov_b64'):
                self.rd |= R[0]
        else:
            raise ValueError('unknown instruction: ' + text)


class Pseudo:
    def __init__(self, what, arg=None):
        self.what, self.arg = what, arg


class Builder:
    def __init__(self):
        self.items = []
        self._stack = []
        self._lab = 0

    def __call__(self, text, tag=None):
        for line in text.split('\n'):
            line = line.strip()
            if not line or line.startswith(';'):
                continue
            self.items.append(Ins(line, tag))

    def newlabel(self, stem='L'):
        self._lab += 1
        return f'.L{stem}_{self._lab}'

    def label(self, name):
        self.items.append(Pseudo('label', name))

    def comment(self, s):
        self.items.append(Pseudo('comment', s))

    def wait_vm(self, tag):
        self.items.append(Pseudo('wait_vm', tag))

    def wait_vm_all(self):
        self.items.append(Pseudo('wait_vm', None))

    def wait_lgkm_all(self):
        self.items.append(Pseudo('wait_lgkm', None))

    def wait_lgkm(self, tag):
        self.items.append(Pseudo('wait_lgkm', tag))

    def barrier(self):
        self.wait_lgkm_all()
        self('s_barrier')

    def cond_begin(self):
        self.items.append(Pseudo('cond_begin'))

    def cond_end(self, certain=False):
        self.items.append(Pseudo('cond_end', certain))

    def fence_hazards(self):
        self.items.append(Pseudo('fence'))

    def assume_vm_empty(self):
        self.items.append(Pseudo('vm_empty'))

    def assume_vm(self, regs, n):
        self.items.append(Pseudo('vm_set', (set(regs), n)))

    def raw(self, s):
        self.items.append(Pseudo('raw', s))

    def begin(self):
        self._stack.append(self.items)
        self.items = []

    def end(self):
        out = self.items
        self.items = self._stack.pop()
        return out

    def put(self, items):
        self.items.extend(items)

    def finalize(self):
        out = []
        vmq, lgq = [], []
        cond_stack = []
        hist = []
        pos = [0]
        stats = dict(nops=0, waits=0)

        def emit(text, states=1, ins=None):
            out.append('    ' + text)
            if ins is not None:
                hist.append((ins, pos[0]))
                hist[:] = [(p, pp) for (p, pp) in hist if pos[0] - pp <= 24]
            pos[0] += states

        def do_wait(vm=None, lg=None):
            parts = []
            if vm is not None:
                parts.append(f'vmcnt({vm})')
            if lg is not None:
                parts.append(f'lgkmcnt({lg})')
            if parts:
                emit('s_waitcnt ' + ' '.join(parts))
                stats['waits'] += 1

        def need_count(q, idx, cap):
            n = sum(1 for e in q[idx + 1:] if e['certain'])
            return min(n, cap)

        def retire(q, n):
            keep, c = [], 0
            for e in reversed(q):
                if c >= n:
                    break
                keep.append(e)
                if e['certain']:
                    c += 1
            q[:] = list(reversed(keep))

        def hazard_need(ins):
            need = 0
            cur = pos[0]
            isvalu = ins.kind in ('valu', 'trans')
            base = ins.mn
            for p, ppos in hist:
                dist = cur - ppos - 1
                req = 0
                pv = p.kind in ('valu', 'trans')
                if p.kind == 'mfma':
                    big = {4: 8, 8: 12}[p.passes]
                    if ins.kind == 'mfma':
                        if p.D & (ins.A | ins.B):
                            req = max(req, big)
                        if p.D & ins.C:
                            if not (p.D == ins.C and p.passes == ins.passes):
                                req = max(req, {4: 6, 8: 10}[p.passes])
                        elif p.D & ins.D:
                            req = max(req, {4: 6, 8: 10}[p.passes])
                    elif isvalu or ins.kind in ('vmem', 'ds'):
                        if p.D & (ins.rd | ins.wr):
                            req = max(req, big)
                        if isvalu and (p.C & ins.wr):
                            req = max(req, {4: 3, 8: 7}[p.passes])
                if pv:
                    vw = {r for r in p.wr if r < S0}
                    sw = {r for r in p.wr if r >= S0}
                    if ins.kind == 'mfma' and (vw & ins.rd):
                        req = max(req, 2)
                    if ins.kind == 'mfma' and (set(EXEC) & sw):
                        req = max(req, 4)
                    if isvalu:
                        if p.kind == 'trans' and ins.kind != 'trans' and (vw & (ins.rd | ins.wr)):
                            req = max(req, 1)
                        if base.startswith('v_permlane') and (vw & ins.rd):
                            req = max(req, 2)
                        if ins.dpp and (vw & ins.rd):
                            req = max(req, 2)
                        if (base.startswith('v_readlane') or base.startswith('v_readfirstlane')) and (vw & ins.rd):
                            req = max(req, 1)
                        if sw & ins.rd:
                            req = max(req, 4 if (base.startswith('v_readlane') or base.startswith('v_writelane')) else 2)
                        if set(EXEC) & sw:
                            req = max(req, 5)
                        if ('op_sel' in p.mods or 'dst_sel' in p.mods) and not p.mn.startswith('v_pk') and not p.mn.startswith('v_fma_mix_f32') and (vw & (ins.rd | ins.wr)):
                            req = max(req, 1)
                    if p.kind == 'trans' and ins.kind in ('vmem', 'ds') and (vw & ins.rd):
                        req = max(req, 1)
                    if ins.kind == 'vmem' and (sw & ins.rd):
                        req = max(req, 5)
                    if ins.kind in ('salu', 'smem', 'ctl') and (sw & ins.rd):
                        req = max(req, 1)
                if p.kind == 'salu' and M0 in p.wr and ins.meta == 'dma':
                    req = max(req, 1)
                if p.kind == 'vmem' and p.sdata and (p.sdata & ins.wr):
                    req = max(req, 2 if (isvalu or ins.kind == 'mfma') else 1)
                if p.kind == 'ds' and not p.wr and len(p.rd) >= 4 and isvalu and (p.rd & ins.wr):
                    req = max(req, 1)
                if req > dist:
                    need = max(need, req - dist)
            return need

        def pad(n):
            while n > 0:
                k = min(n, 16)
                emit(f's_nop {k - 1}', states=k)
                stats['nops'] += 1
                n -= k

        for it in self.items:
            if isinstance(it, Pseudo):
                if it.what == 'label':
                    out.append(it.arg + ':')
                elif it.what == 'comment':
                    out.append('    ; ' + it.arg)
                elif it.what == 'raw':
                    out.append(it.arg)
                elif it.what == 'wait_vm':
                    idxs = [i for i, e in enumerate(vmq) if it.arg is None or e['tag'] == it.arg]
                    if idxs:
                        n = need_count(vmq, idxs[-1], 63)
                        do_wait(vm=n)
                        retire(vmq, n)
                elif it.what == 'wait_lgkm':
                    idxs = [i for i, e in enumerate(lgq) if it.arg is None or e['tag'] == it.arg]
                    if idxs:
                        n = 0 if any(e['smem'] for e in lgq) else need_count(lgq, idxs[-1], 15)
                        do_wait(lg=n)
                        retire(lgq, n)
                elif it.what == 'need':
                    vm = lg = None
                    idxs = [i for i, e in enumerate(vmq) if e['wr'] & it.arg]
                    if idxs:
                        vm = need_count(vmq, idxs[-1], 63)
                    idxs = [i for i, e in enumerate(lgq) if e['wr'] & it.arg]
                    if idxs:
                        lg = 0 if any(e['smem'] for e in lgq) else need_count(lgq, idxs[-1], 15)
                    do_wait(vm, lg)
                    if vm is not None:
                        retire(vmq, vm)
                    if lg is not None:
                        retire(lgq, lg)
                elif it.what == 'vm_set':
                    vmq[:] = [dict(wr=set(it.arg[0]), tag=None, certain=False, smem=False) for _ in range(it.arg[1])]
                elif it.what == 'vm_empty':
                    vmq[:] = []
                elif it.what == 'cond_begin':
                    cond_stack.append((list(vmq), list(lgq), list(hist), pos[0]))
                elif it.what == 'cond_end':
                    v0, l0, h0, p0 = cond_stack.pop()
                    delta = pos[0] - p0
                    inner = [(p, pp) for (p, pp) in hist if pp >= p0]
                    hist[:] = [(p, pp + delta) for (p, pp) in h0] + inner
                    for q, q0 in ((vmq, v0), (lgq, l0)):
                        new = [e for e in q if not any(e is x for x in q0)]
                        for e in new:
                            if not (it.arg and q is vmq):
                                e['certain'] = False
                        q[:] = q0 + new
                elif it.what == 'fence':
                    need = 0
                    for p, ppos in hist:
                        dist = pos[0] - ppos - 1
                        req = 0
                        if p.kind == 'mfma':
                            req = {4: 8, 8: 12}[p.passes]
                        elif p.kind in ('valu', 'trans'):
                            req = 5 if any(r >= S0 for r in p.wr) else 2
                        elif p.kind == 'vmem' and p.sdata:
                            req = 2
                        elif p.kind == 'salu' and M0 in p.wr:
                            req = 1
                        need = max(need, req - dist)
                    pad(need)
                continue
            ins = it
            touch = ins.rd | ins.wr
            vm = lg = None
            tv = ins.rd if ins.kind == 'vmem' else touch
            idxs = [i for i, e in enumerate(vmq) if e['wr'] & tv]
            if idxs:
                vm = need_count(vmq, idxs[-1], 63)
            tl = ins.rd if ins.kind == 'ds' else touch
            idxs = [i for i, e in enumerate(lgq) if e['wr'] & tl]
            if idxs:
                lg = 0 if any(e['smem'] for e in lgq) else need_count(lgq, idxs[-1], 15)
            do_wait(vm, lg)
            if vm is not None:
                retire(vmq, vm)
            if lg is not None:
                retire(lgq, lg)
            if ins.mn == 's_waitcnt':
                m = re.search(r'vmcnt\((\d+)\)', ins.text)
                if m:
                    retire(vmq, int(m.group(1)))
                m = re.search(r'lgkmcnt\((\d+)\)', ins.text)
                if m and (int(m.group(1)) == 0 or not any(e['smem'] for e in lgq)):
                    retire(lgq, int(m.group(1)))
            pad(hazard_need(ins))
            states = 1
            if ins.mn == 's_nop':
                states = int(ins.ops[0], 0) + 1
            emit(ins.text, states=states, ins=ins)
            if ins.kind == 'vmem':
                vmq.append(dict(wr=set(ins.wr), tag=ins.tag, certain=True, smem=False))
            elif ins.kind == 'ds':
                lgq.append(dict(wr=set(ins.wr), tag=ins.tag, certain=True, smem=False))
            elif ins.kind == 'smem':
                lgq.append(dict(wr=set(ins.wr), tag=ins.tag, certain=True, smem=True))
        self.stats = stats
        return '\n'.join(out)


def interleave(main, fill, start=0, every=1, per=1):
    out, fi, n = [], 0, 0
    for it in main:
        out.append(it)
        if isinstance(it, Ins) and it.kind == 'mfma':
            if n >= start and (n - start) % every == 0:
                c = 0
                while fi < len(fill) and c < per:
                    f = fill[fi]
                    out.append(f)
                    fi += 1
                    if isinstance(f, Ins):
                        c += 2 if f.kind == 'trans' else 1
            n += 1
    out.extend(fill[fi:])
    return out


def n_mfma(main):
    return sum(1 for it in main if isinstance(it, Ins) and it.kind == 'mfma')


class Weave:
    def __init__(self, main):
        self.main = main
        self.n = n_mfma(main)
        self.slots = [[] for _ in range(self.n)]
        self.tail = []

    def spread(self, units, first=0, last=None):
        if last is None:
            last = self.n - 1
        m = len(units)
        for i, u in enumerate(units):
            pos = first + (i * (last - first + 1)) // m
            self.slots[pos].extend(u)

    def at(self, pos, items):
        self.slots[pos].extend(items)

    def fill(self, items, first=0, budget=8):
        def cost(it):
            if not isinstance(it, Ins):
                return 0
            if it.kind == 'trans':
                return 8
            if it.kind == 'salu':
                return 1
            return 4
        fi, carry = 0, 0
        for pos in range(first, self.n):
            carry = min(carry + budget, budget + 4)
            while fi < len(items) and cost(items[fi]) <= carry:
                carry -= cost(items[fi])
                self.slots[pos].append(items[fi])
                fi += 1
        self.tail.extend(items[fi:])

    def result(self):
        out, n = [], 0
        for it in self.main:
            out.append(it)
            if isinstance(it, Ins) and it.kind == 'mfma':
                out.extend(self.slots[n])
                n += 1
        out.extend(self.tail)
        return out


def slots_of(it):
    if not isinstance(it, Ins):
        return 0
    if it.kind == 'trans' or it.mn.startswith('v_permlane'):
        return 2
    if it.mn.startswith('ds_write_b128'):
        return 5
    if it.mn.startswith('ds_write_b64'):
        return 3
    if it.kind == 'vmem' and '_store' in it.mn:
        return 3
    return 1


def is_mem(it):
    return isinstance(it, Ins) and it.kind in ('ds', 'vmem')


class Sched:
    def __init__(self, main):
        self.head = []
        self.mf, self.mem, self.val = [], [], []
        for it in main:
            if isinstance(it, Ins) and it.kind == 'mfma':
                self.mf.append(it)
                self.mem.append([])
                self.val.append([])
            elif not self.mf:
                self.head.append(it)
            elif is_mem(it):
                self.mem[-1].append(it)
            else:
                self.val[-1].append(it)
        self.n = len(self.mf)
        self.tail = []

    def cap(self, g):
        return 6 if self.mf[g].passes == 8 else 2

    def used(self, g):
        u = sum(slots_of(i) for i in self.mem[g]) + sum(slots_of(i) for i in self.val[g])
        if self.mem[g] and isinstance(self.mem[g][0], Ins) and self.mem[g][0].kind == 'salu':
            u -= 1
        return u

    def at(self, g, unit):
        self.mem[g].extend(unit)

    def pre(self, g, unit):
        self.mem[g][0:0] = unit

    def post(self, g, unit):
        self.val[g].extend(unit)

    def spread(self, units, first=0, last=None, mod=None):
        if last is None:
            last = self.n - 1
        gaps = [g for g in range(first, last + 1) if mod is None or g % mod[0] == mod[1]]
        m = len(units)
        for i, u in enumerate(units):
            lst = self.mem[gaps[(i * len(gaps)) // m]]
            if u and isinstance(u[0], Ins) and u[0].kind == 'salu' and len(lst) == 1 and is_mem(lst[0]) and lst[0].kind == 'ds':
                j = 0
                while isinstance(u[j], Ins) and u[j].kind == 'salu' and j + 1 < len(u):
                    j += 1
                lst[0:0] = u[:j]
                lst.extend(u[j:])
            else:
                lst.extend(u)

    def fill(self, items, first=0, window=24, last=None, over=0):
        items = [it for it in items]
        assert all(isinstance(it, Ins) for it in items)
        n = len(items)
        SCC = 1200
        def rw(it):
            rd, wr = set(it.rd), set(it.wr)
            if it.kind == 'salu':
                rd.add(SCC); wr.add(SCC)
            return rd, wr
        RW = [rw(it) for it in items]
        preds = []
        for i in range(n):
            p = set()
            for j in range(i):
                if (RW[j][1] & (RW[i][0] | RW[i][1])) or (RW[j][0] & RW[i][1]) or (is_mem(items[i]) and is_mem(items[j])):
                    p.add(j)
            preds.append(p)
        where = [None] * n
        left = list(range(n))
        g = first
        end = self.n if last is None else last + 1
        while g < end and left:
            free = self.cap(g) + over - self.used(g)
            best = None
            for i in left[:window]:
                if any(where[j] is None for j in preds[i]):
                    continue
                it = items[i]
                c = slots_of(it)
                if is_mem(it):
                    if any(where[j] == (g, 'v') for j in preds[i]) or (c > free and self.used(g) > 0):
                        continue
                    score = 3
                else:
                    if c > free:
                        continue
                    if self.val[g]:
                        prev = self.val[g][-1]
                        if isinstance(prev, Ins) and (prev.wr & it.rd) and (prev.kind == 'trans' or it.mn.startswith('v_permlane')):
                            continue
                    score = 2 if c == 2 else 1
                if best is None or score > best[0]:
                    best = (score, i)
            if best is None:
                g += 1
                continue
            i = best[1]
            left.remove(i)
            if is_mem(items[i]):
                self.mem[g].append(items[i]); where[i] = (g, 'm')
            else:
                self.val[g].append(items[i]); where[i] = (g, 'v')
        (self.tail if last is None else self.val[last]).extend(items[i] for i in left)
        self.ntail = len(left)
        self.lastgap = g

    def result(self):
        out = list(self.head)
        for g in range(self.n):
            out.append(self.mf[g])
            if g + 1 < self.n:
                out.append(Pseudo('need', self.mf[g + 1].A | self.mf[g + 1].B))
            out.extend(self.mem[g])
            out.extend(self.val[g])
        out.extend(self.tail)
        return out
```

```python
import os, sys, struct, argparse
sys.path.insert(0, 'dev')
from asmb import Builder, Sched, Ins

NAME = 'adaLN_cond__sliding_block__glu_gated_geglu__prompt'

WS_EPOCH = 0
WS_HELLO = 0x400
WS_PQ = 0x2000
WS_PR = 0x4000
WS_KVF = 0x8000
WS_FLAG = 0x40000
WS_XF = 0x60000
WS_MODG = 0x10000
WS_ST = 0x20000
WS_WQ = 0x100000
WS_WO = 0x3C0000
WS_WGU = 0x4C0000
WS_WD = 0x900000
PAD = int(os.environ.get('PAD', '1280'))
WQ_J = 163840 + 5 * PAD
WGU_S = 61440 + PAD
OD_W = PAD
WO_J = 20 * 5120 + 5 * PAD
WD_J = 48 * 5120 + 5 * PAD
WS_H = 0xB40000
WS_O = 0xDC0000
WS_Z = 0x1040000
WS_KV = 0x12C0000
WS_HH = 0x1840000
O_CL = 163840
if 'NOARENA' not in os.environ:
    WS_Z = WS_H
    WS_O = WS_HH
    O_CL = 393216
WS_DBG = 0x1E40000
WS_SIZE = 0x1F00000
WS_BASE = int(os.environ.get('WSBASE', '0'), 0)
OOB = 0x40000000
PH_H, PH_O, PH_Z, PH_HH = range(4)
SF = 52
VF_FAST, VF_SLOW = 4, 0

KVB = 5632
L_C = 0
L_KVOWN = 8 * KVB
L_Q = 12 * KVB
L_P = L_Q + 10240
L_A = 81920
L_B = 122880
LDS_BYTES = 163840
L_X = L_Q
L_MOD = L_C
L_WQS = L_C + 20480
L_MV = L_KVOWN + 16384
L_STAT = L_C + 40960
L_SC = L_C + 41472
L_GUS = L_KVOWN
L_ODS = [L_X, L_GUS]
KM_OFF = [0, 1024]
KT_OFF = 2048
V_OFF = [2560, 4096]
P_SB = L_P
P_G2 = L_P + 1280
P_GA = L_P + 2560
P_GB = L_P + 2720
P_DUMMY = L_P + 3072
L_RED = 0

sW = 's3'
WS = 's[4:7]'; XS = 's[8:11]'; WQS = 's[12:15]'; ODS = 's[16:19]'; WGS = 's[20:23]'; WUS = 's[24:27]'
CS = 's[28:31]'; WMS = 's[32:35]'; OUTS = 's[36:39]'
sCL, sJ, sTAG, sFAST = 's40', 's41', 's42', 's43'
sJC, sTH = 's46', 's47'

DUMMY = 47
QSCALE = 20 ** -0.5 * 1.4426950408889634 * float(os.environ.get('QERR', '1'))
NEG = -1.0e30


def f2u(x):
    return struct.unpack('<I', struct.pack('<f', x))[0]


def vr(a, n=1, t='v'):
    return f'{t}{a}' if n == 1 else f'{t}[{a}:{a + n - 1}]'


def ur(a, n=4):
    return vr(a, n, 'v') if a < 256 else vr(a - 256, n, 'a')


def zipper(a, b, lead):
    out = list(a[:lead])
    a = a[lead:]
    for i in range(max(len(a), len(b))):
        out += a[i:i + 1] + b[i:i + 1]
    return out


class TagBuilder(Builder):
    wt = ()
    plain = ()

    def is_wt(self, tag):
        return tag is not None and tag.rstrip('0123') in self.wt and tag not in self.plain

    def __call__(self, text, tag=None):
        if self.is_wt(tag) and text.startswith('buffer_store'):
            text += ' sc1'
        if tag in self.drop and text.startswith('buffer_'):
            return
        if tag in self.ntst and text.startswith('buffer_store'):
            text += ' nt'
        if text.startswith('buffer_'):
            cls = None
            t = (tag or '').rstrip('0123456')
            if text.startswith('buffer_store') and ' sc1' in text:
                cls = 'st'
            elif t in ('w', 'wgu', 'wo', 'wd', 'wdl'):
                cls = 'w'
            elif text.startswith('buffer_load_dwordx4') and 's[4:7]' in text:
                cls = 'a'
            elif text.startswith('buffer_load_dword ') and 's[4:7]' in text:
                cls = 'f'
            if cls in self.bits:
                text = text.replace(' sc1', self.bits[cls])
        super().__call__(text, tag)


class Gen:
    def __init__(self, opt):
        self.o = opt
        self.k = TagBuilder()
        self.k.wt = opt.wt.split(',')
        self.k.plain = opt.plain.split(',')
        self.k.drop = opt.drop.split(',')
        self.k.ntst = opt.ntst.split(',')
        self.k.bits = {kv.split('=')[0]: kv.split('=')[1].replace('_', ' ') for kv in opt.bits.split(',') if kv}
        self.nstamp = 0
        self.stampnames = []
        self.ool = []
        self.fmask = 0x18c if opt.wide else 60
        self.ntw = ' nt' if 'ntw' in opt.x else ''
        self.ntx = ' sc0 sc1'
        self.ntc = ' sc0 sc1'
        self.nt2 = {'x2sc': ' sc0 sc1', 'x2nt': ' nt'}.get(opt.x2b, '')
        self.ntm = '' if 'nont' in opt.x else (' sc0 sc1 nt' if 'allnt' in opt.x else ' sc1 nt')
        self.nt = 0
        self.D = 'h' in opt.order.split(',')
        self.X = 'xi0' in opt.order.split(',')
        self.RA = 24 if self.X else 240
        self.RT = 56 if self.X else 252
        self.MC = 64 if self.X else 200

    def stamp(self, name):
        if self.o.padto and self.o.padat == name:
            self.padspin(self.o.padto)
        if not self.o.stamps or (self.o.only and name not in self.o.only.split(',')):
            return
        k = self.k
        n = self.nstamp
        assert n < 60
        self.nstamp += 1
        self.stampnames.append(name)
        k('s_memtime s[100:101]' if self.o.cyc else 's_memrealtime s[100:101]')
        k(f'v_writelane_b32 v11, s100, {n + 1}')

    def rawstamps(self, w, gaps, prefix):
        k = self.k
        for gp in gaps:
            n = self.nstamp
            self.nstamp += 1
            self.stampnames.append(f'{prefix}{gp}')
            k.begin()
            k.raw('    s_memtime s[98:99]')
            w.pre(gp, k.end())
            k.begin()
            k.raw(f'    v_writelane_b32 v11, s98, {n + 1}')
            w.post(gp + (10 if w.cap(gp) == 2 else 5), k.end())

    def dma(self, srd, voff, soff, lds, imm=0, tag=None, sc1=False):
        k = self.k
        k(f's_mov_b32 m0, {lds}')
        k(f'buffer_load_dwordx4 {voff}, {srd}, {soff} offen offset:{imm}{" sc1" if sc1 else ""} lds', tag)

    def bf16_round_keep(self, regs, tmp):
        k = self.k
        for i in range(0, len(regs), 2):
            k(f'v_cvt_pk_bf16_f32 v{tmp}, v{regs[i]}, v{regs[i + 1]}')
            k(f'v_lshlrev_b32 v{regs[i]}, 16, v{tmp}')
            k(f'v_and_b32 v{regs[i + 1]}, 0xffff0000, v{tmp}')

    def flag_off(self, sdst, phase, scl=sCL):
        k = self.k
        k(f's_add_u32 {sdst}, s{SF + phase // 2}, {(phase % 2) * 2048}')

    def publish(self, phase, tag):
        k = self.k
        if k.is_wt(tag):
            k.wait_vm(tag)
            k(f'buffer_store_dword v5, v{VF_FAST}, {WS}, s{SF + phase // 2} offen offset:{(phase % 2) * 2048}')
            k(f'buffer_store_dword v5, v{VF_SLOW}, {WS}, s{SF + phase // 2} offen offset:{(phase % 2) * 2048} sc1')
            return
        k.wait_vm(tag)
        k(f'buffer_store_dword v5, v{VF_FAST}, {WS}, s{SF + phase // 2} offen offset:{(phase % 2) * 2048}')
        back, slow = k.newlabel('pubb'), k.newlabel('pubs')
        k(f's_cmp_eq_u32 {sFAST}, 0')
        k(f's_cbranch_scc1 {slow}')
        k.label(back)

        def ool():
            k.label(slow)
            k('buffer_wbl2 sc1')
            k('s_waitcnt vmcnt(0)')
            k(f'buffer_store_dword v5, v{VF_SLOW}, {WS}, s{SF + phase // 2} offen offset:{(phase % 2) * 2048} sc1')
            k(f's_branch {back}')
        self.ool.append(ool)

    def recheck(self, body):
        k = self.k
        back, slow = k.newlabel('rcb'), k.newlabel('rcs')
        k('s_cmp_lg_u64 vcc, 0')
        k(f's_cbranch_scc1 {slow}')
        k.label(back)

        def ool():
            k.label(slow)
            self.spin(body)
            k.fence_hazards()
            k(f's_branch {back}')
        self.ool.append(ool)

    def acquire(self, tag):
        k = self.k
        if k.is_wt(tag):
            return
        back, slow = k.newlabel('acb'), k.newlabel('acs')
        k(f's_cmp_eq_u32 {sFAST}, 0')
        k(f's_cbranch_scc1 {slow}')
        k.label(back)

        def ool():
            k.label(slow)
            k('buffer_inv sc1')
            k('s_waitcnt vmcnt(0)')
            k(f's_branch {back}')
        self.ool.append(ool)

    def spin(self, body, onmiss=None):
        k = self.k
        lab, out = k.newlabel('poll'), k.newlabel('pollx')
        k('s_mov_b32 s73, 0')
        k.fence_hazards()
        k.label(lab)
        k('s_add_u32 s73, s73, 1')
        body()
        k(f's_cmp_ge_u32 s73, {self.o.spin}')
        k(f's_cbranch_scc1 {out}')
        if onmiss is None:
            k('s_cmp_lg_u64 vcc, 0')
            k(f's_cbranch_scc1 {lab}')
        else:
            k('s_cmp_eq_u64 vcc, 0')
            k(f's_cbranch_scc1 {out}')
            k('s_cmp_lg_u32 s73, 1')
            k(f's_cbranch_scc1 {lab}')
            onmiss()
            k(f's_branch {lab}')
        k.label(out)
        k.assume_vm_empty()

    def spin2(self, load, check, A, B, first=True, drain=False):
        k = self.k
        n = len(A)
        lab, out = k.newlabel('pp'), k.newlabel('ppx')
        k('s_mov_b32 s73, 0')
        if first:
            load(A)
            k('s_waitcnt vmcnt(0)')
            check(A)
            k('s_cmp_eq_u64 vcc, 0')
            k(f's_cbranch_scc1 {out}')
        else:
            k('s_waitcnt vmcnt(0)')
        load(A)
        k('s_sleep 2')
        k.label(lab)
        load(B)
        k('s_add_u32 s73, s73, 1')
        k(f's_waitcnt vmcnt({n})')
        check(A)
        k('s_cmp_eq_u64 vcc, 0')
        k(f's_cbranch_scc1 {out}')
        load(A)
        k(f's_waitcnt vmcnt({n})')
        check(B)
        k(f's_cmp_ge_u32 s73, {self.o.spin}')
        k(f's_cbranch_scc1 {out}')
        k('s_cmp_lg_u64 vcc, 0')
        k(f's_cbranch_scc1 {lab}')
        k.label(out)
        if drain:
            k('s_waitcnt vmcnt(0)')
        else:
            k.assume_vm(A + B, n)

    def allcheck(self, regs, t):
        k = self.k
        if len(regs) == 1:
            k(f'v_cmp_ne_u32 vcc, {sTAG}, v{regs[0]}')
            return
        k(f'v_xor_b32 v{t}, {sTAG}, v{regs[0]}')
        rest = regs[1:]
        while rest:
            k(f'v_xor_b32 v{t + 1}, {sTAG}, v{rest[0]}')
            if len(rest) > 1:
                k(f'v_xor_b32 v{t + 2}, {sTAG}, v{rest[1]}')
                k(f'v_or3_b32 v{t}, v{t}, v{t + 1}, v{t + 2}')
            else:
                k(f'v_or_b32 v{t}, v{t}, v{t + 1}')
            rest = rest[2:]
        k(f'v_cmp_ne_u32 vcc, 0, v{t}')

    def poll(self, voff, soff, vt, local, vt2=None):
        k = self.k

        def body():
            k(f'buffer_load_dword v{vt}, {voff}, {WS}, {soff} offen sc1')
            k('s_waitcnt vmcnt(0)')
            self.allcheck([vt], vt)
        if vt2 is not None and self.o.pp:
            self.spin2(lambda r: k(f'buffer_load_dword v{r[0]}, {voff}, {WS}, {soff} offen sc1'),
                       lambda r: self.allcheck(r, 0), [vt], [vt2])
        else:
            self.spin(body)
        if local:
            self.acquire(local)

    def units_frags(self, regs, sbase, voff='v1', tag=None, first=0):
        k = self.k
        out = []
        for n, r in enumerate(regs):
            i = n + first
            k.begin()
            if i and i % 4 == 0:
                k(f's_add_u32 {sbase}, {sbase}, 4096')
            if not ('nobg' in self.o.x and tag in ('wgu', 'wo', 'wd')):
                k(f'buffer_load_dwordx4 {ur(r)}, {voff}, {WS}, {sbase} offen offset:{1024 * (i % 4)} sc1{self.ntw if tag in ("wgu", "wo", "wd") else ""}', tag)
            out.append(k.end())
        return out

    def units_dma(self, ssrc, srcadd, ldsbase, n, tag, voff='v1', woff=None):
        k = self.k
        c = (n + 3) // 4
        out = []
        for i in range(c):
            k.begin()
            if i == 0 and woff:
                k(f's_add_u32 s87, {ssrc}, {srcadd}')
                k(f's_add_u32 m0, {woff}, {ldsbase}')
            elif i == 0:
                k(f's_mul_i32 s88, {sW}, {c}')
                if c * 4 != n:
                    k(f's_min_u32 s88, s88, {n - c}')
                k('s_lshl_b32 s88, s88, 10')
                k(f's_add_u32 s87, {ssrc}, s88')
                if srcadd:
                    k(f's_add_u32 s87, s87, {srcadd}')
                k(f's_add_u32 m0, s88, {ldsbase}')
            elif i % 4 == 0:
                k('s_add_u32 s87, s87, 4096')
                k('s_add_u32 m0, m0, 4096')
            k(f'buffer_load_dwordx4 {voff}, {WS}, s87 offen offset:{1024 * (i % 4)} sc1 lds', tag)
            out.append(k.end())
        return out

    def take(self, n):
        out, self.bg = self.bg[:n], self.bg[n:]
        return out

    def put_units(self, units):
        for u in units:
            self.k.put(u)

    def rowsum(self, r, t):
        k = self.k
        k(f'v_mov_b32 v{t}, v{r}')
        k(f'v_permlane16_swap_b32 v{r}, v{t}')
        k(f'v_add_f32 v{r}, v{r}, v{t}')
        k(f'v_mov_b32 v{t}, v{r}')
        k(f'v_permlane32_swap_b32 v{r}, v{t}')
        k(f'v_add_f32 v{r}, v{r}, v{t}')

    def touch(self, soff, per, n, stride, t, dst=DUMMY):
        k = self.k
        if 'notouch' in self.o.x:
            return
        magic = (65536 + per - 1) // per
        assert all((l * magic) >> 16 == l // per for l in range(64))
        if per == 1:
            k(f'v_mul_u32_u24 v{t}, {stride}, v3')
        else:
            k(f'v_mul_u32_u24 v{t}, {magic}, v3')
            k(f'v_lshrrev_b32 v{t}, 16, v{t}')
            k(f'v_mul_u32_u24 v{t}, {stride - per * 128}, v{t}')
            k(f'v_lshl_add_u32 v{t}, v3, 7, v{t}')
        k(f'v_sub_u32 v{t + 1}, {n - 1}, v3')
        k(f'v_and_b32 v{t + 1}, {OOB}, v{t + 1}')
        k(f'v_or_b32 v{t}, v{t}, v{t + 1}')
        k(f'buffer_load_dword v{dst}, v{t}, {WS}, {soff} offen{" nt" if "ntt" in self.o.x else " sc1"}')


    def st_entry(self):
        k = self.k
        o = self.o
        k('s_load_dwordx8 s[64:71], s[0:1], 64')
        k('s_load_dwordx16 s[48:63], s[0:1], 0')
        k(f's_cmp_ge_u32 s2, {0 if "exit0" in o.x else 256}')
        k('s_cbranch_scc1 .Lend')
        if o.stamps:
            k('s_memrealtime s[100:101]')
            k('s_memtime s[98:99]')
        if o.padto:
            k('s_memrealtime s[98:99]')
        k('s_getpc_b64 s[44:45]')
        k.label('.Lpc0')
        k('v_mov_b32 v37, v0')
        k('s_bfe_u32 s72, s2, 0x30003')
        k('v_lshrrev_b32 v2, 2, v37')
        k('v_lshl_add_u32 v2, s72, 6, v2')
        k('v_lshlrev_b32 v2, 7, v2')
        k('v_min_u32 v2, .Lcode_end-.Lpc0-4, v2')
        k(f'global_load_dword v199, v2, s[44:45]{self.ntc}')
        k('v_lshrrev_b32 v2, 6, v37')
        k('v_and_b32 v3, 63, v37')
        k('v_readfirstlane_b32 s3, v2')
        k('s_mov_b32 s34, 4915200')
        k('s_mov_b32 s35, 0x20000')
        k('s_movk_i32 s30, 1280')
        k('s_mov_b32 s31, 0x20000')
        k('s_sub_u32 s74, s2, 16')
        k('s_cmp_lt_u32 s2, 240')
        k('s_cselect_b32 s74, s2, s74')
        k('s_lshr_b32 s75, s74, 2')
        k('s_and_b32 s76, s74, 3')
        k('v_lshrrev_b32 v6, 3, v3')
        k('v_and_b32 v7, 7, v3')
        k('v_lshlrev_b32 v7, 4, v7')
        k('s_movk_i32 s72, 7680')
        k('v_mad_u32_u24 v39, v6, s72, v7')
        k('s_mul_i32 s77, s76, 160')
        k(f's_lshl3_add_u32 s77, {sW}, s77')
        k('s_mul_i32 s77, s77, 7680')
        k('s_lshl_b32 s72, s75, 7')
        k('s_add_u32 s77, s77, s72')
        k('v_min_u32 v9, 79, v37')
        k('v_lshlrev_b32 v9, 2, v9')
        k('s_mul_i32 s79, s76, 320')
        k.wait_lgkm_all()
        if o.stamps:
            k('v_mov_b32 v11, s100')
            k('v_writelane_b32 v11, s98, 61')
        k('s_mov_b64 s[32:33], s[64:65]')
        k('s_mov_b64 s[28:29], s[62:63]')
        if WS_BASE:
            k(f's_add_u32 s70, s70, {WS_BASE}')
            k('s_addc_u32 s71, s71, 0')
        k('s_load_dword s42, s[70:71], 0')
        k(f'buffer_load_dword v10, v9, {CS}, s79 offen sc0 sc1')
        k('s_mov_b32 s95, s77')
        if o.xfirst:
            self.st_ids()
            k('s_mov_b64 s[8:9], s[48:49]')
            k('s_mov_b32 s10, 2621440')
            k('s_mov_b32 s11, 0x20000')
            self.xd_touch() if self.X else self.st_x_issue()
        if o.late >= 240:
            self.mod_issue('mod')
        else:
            lab = k.newlabel('me')
            k(f's_cmp_ge_u32 s2, {o.late}')
            k(f's_cbranch_scc1 {lab}')
            k.cond_begin()
            self.mod_issue('mod')
            k.cond_end()
            k.label(lab)
        self.stamp('modiss')
        for srd, size, p in ((4, WS_SIZE, 70), (8, 2621440, 48), (12, 2457600, 50), (20, 1966080, 56), (24, 1966080, 58), (36, 2621440, 66)):
            k(f's_mov_b64 s[{srd}:{srd + 1}], s[{p}:{p + 1}]')
            k(f's_mov_b32 s{srd + 2}, {size}')
            k(f's_mov_b32 s{srd + 3}, 0x20000')
        k('s_mov_b32 s19, 0x20000')
        if not o.xfirst:
            self.st_ids()
        k('s_mul_i32 s80, s74, 171')
        k('s_lshr_b32 s80, s80, 9')
        k('s_mul_i32 s81, s80, 3')
        k('s_sub_u32 s81, s74, s81')

    def st_ids(self):
        k = self.k
        o = self.o
        if o.split == 1:
            k('s_and_b32 s72, s2, 7')
            k('s_lshr_b32 s73, s2, 3')
            k(f's_and_b32 {sJ}, s73, 15')
            k('s_lshr_b32 s73, s73, 4')
            k(f's_lshl1_add_u32 {sCL}, s72, s73')
        else:
            k('s_bfe_u32 s72, s2, 0x20001')
            k('s_lshr_b32 s73, s2, 6')
            k(f's_lshl2_add_u32 {sCL}, s72, s73')
            k('s_bfe_u32 s72, s2, 0x30003')
            k('s_and_b32 s73, s2, 1')
            k(f's_lshl1_add_u32 {sJ}, s72, s73')
        k(f's_and_b32 {sJC}, {sJ}, 7')
        k(f's_lshr_b32 {sTH}, {sJ}, 3')
        k('v_lshlrev_b32 v1, 4, v3')
        k(f'v_mov_b32 v2, {OOB}')

    def mod_issue(self, tag):
        k = self.k
        k(f's_lshl_b32 s72, {sW}, 10')
        k(f's_add_u32 m0, s72, {L_MOD}')
        for t in range(5):
            k(f'buffer_load_dwordx4 v39, {WMS}, s95 offen{self.ntm} lds', tag)
            if t < 4:
                k(f's_add_u32 s95, s95, {32 * 7680}')
                k('s_add_u32 m0, m0, 4096')

    def mod_core(self, tag):
        k = self.k
        k('s_mov_b32 s73, 0x07060503')
        k('s_mov_b32 s77, 0x07060502')
        k('s_mov_b32 s78, 0x07060501')
        k.wait_vm(tag)
        k.barrier()
        for s in range(5):
            k(f'ds_read_b64_tr_b16 v[{200 + 4 * s}:{201 + 4 * s}], v17 offset:{L_MOD + 4096 * s}')
            k(f'ds_read_b64_tr_b16 v[{202 + 4 * s}:{203 + 4 * s}], v17 offset:{L_MOD + 4096 * s + 512}')
            k(f'ds_read_b128 v[{220 + 4 * s}:{223 + 4 * s}], v18 offset:{L_SC + 64 * s}')
        for s in range(5):
            k(f'v_mfma_f32_16x16x32_bf16 v[80:83], v[{200 + 4 * s}:{203 + 4 * s}], v[{220 + 4 * s}:{223 + 4 * s}], {"0" if s == 0 else "v[80:83]"}')
        k('v_perm_b32 v80, v80, v83, s73')
        k('v_perm_b32 v81, v81, v83, s77')
        k('v_perm_b32 v82, v82, v83, s78')
        k('v_mov_b32 v83, s42')
        k(f'buffer_store_dwordx4 v[80:83], v15, {WS}, s96 offen sc1')
        k.fence_hazards()

    def st_wq_issue(self):
        k = self.k
        k('s_movk_i32 s72, 3840')
        k('v_mad_u32_u24 v8, v6, s72, v7')
        k('s_mul_i32 s77, s80, 30720')
        k('s_mul_i32 s72, s81, 1280')
        k('s_add_u32 s77, s77, s72')
        k(f's_mul_i32 s78, {sW}, 3072')
        k(f's_add_u32 m0, s78, {L_WQS}')
        k(f's_add_u32 s82, {sW}, 8')
        k('s_min_u32 s82, s82, 9')
        k(f's_lshl_b32 s72, {sW}, 7')
        k('s_add_u32 s72, s72, s77')
        k(f'buffer_load_dwordx4 v8, {WQS}, s72 offen{self.ntm} lds', 'wq')
        k('s_add_u32 s72, s72, 512')
        k('s_add_u32 m0, m0, 1024')
        k(f'buffer_load_dwordx4 v8, {WQS}, s72 offen{self.ntm} lds', 'wq')
        k('s_lshl_b32 s72, s82, 7')
        k('s_add_u32 s72, s72, s77')
        k('s_add_u32 m0, m0, 1024')
        k(f'buffer_load_dwordx4 v8, {WQS}, s72 offen{self.ntm} lds', 'wq')

    def st_addr(self):
        k = self.k
        k('s_lshr_b32 s72, s80, 2')
        k('s_mul_i32 s97, s72, 5120')
        k('s_mul_i32 s72, s72, 3072')
        k('s_add_u32 s72, s72, 102400')
        k('s_cmp_eq_u32 s81, 0')
        k('s_cmov_b32 s97, s72')
        k('s_and_b32 s72, s80, 3')
        k('s_lshl_b32 s72, s72, 8')
        k('s_add_u32 s97, s97, s72')
        k(f's_add_u32 s97, s97, {WS_WQ}')
        k('s_cmp_eq_u32 s81, 2')
        k('s_cselect_b32 s77, 192, 0')
        k('s_movk_i32 s78, 112')
        k('s_cmov_b32 s78, 116')
        k(f's_mov_b32 s79, {WQ_J}')
        for t in range(3):
            if t < 2:
                k(f's_lshl_b32 s72, {sW}, 6')
                if t:
                    k('s_add_u32 s72, s72, 256')
            else:
                k('s_lshl_b32 s72, s82, 6')
            k('v_add_u32 v76, s72, v3')
            k('v_mul_u32_u24 v77, 205, v76')
            k('v_lshrrev_b32 v77, 12, v77')
            k('v_mul_u32_u24 v78, 20, v77')
            k('v_sub_u32 v76, v76, v78')
            k('v_and_b32 v78, 1, v77')
            k('v_lshrrev_b32 v77, 1, v77')
            k('v_lshl_add_u32 v79, v78, 6, s77')
            k('v_lshl_add_u32 v78, v78, 3, s78')
            k('v_cmp_gt_u32 vcc, 16, v76')
            k('v_cndmask_b32 v78, v78, v79, vcc')
            k('v_add_lshl_u32 v76, v76, v78, 4')
            k(f'v_mad_u32_u24 v{20 + t}, v77, s79, v76')
            k(f'v_cndmask_b32 v{160 + t}, 0, v2, vcc')
        k(f's_cmp_ge_u32 {sW}, 2')
        k(f's_cselect_b32 s72, {OOB}, 0')
        k('v_or_b32 v22, s72, v22')
        k('s_cmp_ge_u32 s2, 240')
        k(f's_cselect_b32 s72, {OOB}, 0')
        for t in range(3):
            k(f'v_or_b32 v{20 + t}, s72, v{20 + t}')
        k('s_cmp_lg_u32 s81, 0')
        k(f's_cselect_b32 s72, {OOB}, 0')
        for t in range(3):
            k(f'v_or3_b32 v{160 + t}, v{160 + t}, s72, v{20 + t}')

    def st_wq_process(self):
        k = self.k
        k(f's_mul_i32 s72, {sW}, 3072')
        k('v_add_u32 v76, s72, v19')
        k.wait_vm('wq')
        for t in range(3):
            k(f'ds_read_b64_tr_b16 v[{64 + 4 * t}:{65 + 4 * t}], v76 offset:{L_WQS + 1024 * t}')
            k(f'ds_read_b64_tr_b16 v[{66 + 4 * t}:{67 + 4 * t}], v76 offset:{L_WQS + 1024 * t + 512}')
        for t in range(3):
            k(f'buffer_store_dwordx4 v[{64 + 4 * t}:{67 + 4 * t}], v{20 + t}, {WS}, s97 offen sc1', 'wqst')
            k(f'buffer_store_dwordx4 v[{64 + 4 * t}:{67 + 4 * t}], v{160 + t}, {WS}, s97 offen offset:64 sc1', 'wqst')
        self.stamp('wqst')

    def st_x_issue(self):
        k = self.k
        k('v_mul_u32_u24 v36, 80, v7')
        k('v_lshl_add_u32 v36, v6, 4, v36')
        k('v_cmp_gt_u32 vcc, 32, v3')
        k('v_cndmask_b32 v38, v2, v36, vcc')
        k(f's_lshl4_add_u32 s72, {sCL}, {sJ}')
        k('s_mul_i32 s72, s72, 10240')
        k(f's_mul_i32 s73, {sW}, 320')
        k('s_add_u32 s72, s72, s73')
        k(f'buffer_load_dwordx4 v[24:27], v36, {XS}, s72 offen{self.ntx}', 'x')
        k(f'buffer_load_dwordx4 v[28:31], v36, {XS}, s72 offen offset:128{self.ntx}', 'x')
        k(f'buffer_load_dwordx4 v[32:35], v38, {XS}, s72 offen offset:256{self.ntx}', 'x')
        self.stamp('xiss')

    def st_lp(self):
        k = self.k
        self.jflag('s72')
        k(f's_lshl2_add_u32 s72, {sW}, s72')
        k('v_mov_b32 v4, s72')
        k('v_cmp_eq_u32 vcc, 0, v3')
        k('v_cndmask_b32 v4, v2, v4, vcc')
        k('v_cmp_eq_u32 vcc, 0, v37')
        k('v_cndmask_b32 v12, v2, 0, vcc')
        k('v_bfe_u32 v13, v3, 2, 2')
        k('v_lshlrev_b32 v13, 7, v13')
        k('v_and_b32 v14, 3, v3')
        k('v_lshl_add_u32 v15, v14, 3, v13')
        k('v_lshrrev_b32 v16, 4, v3')
        k('v_lshl_add_u32 v17, v16, 10, v15')
        k(f's_lshl_b32 s72, {sW}, 5')
        k('v_add_u32 v17, s72, v17')
        k('v_lshlrev_b32 v18, 4, v16')
        k('v_lshl_add_u32 v19, v16, 5, v15')
        k('v_lshlrev_b32 v15, 6, v16')
        k('v_and_b32 v76, 15, v3')
        k('v_cmp_eq_u32 vcc, 0, v76')
        k('v_cndmask_b32 v15, v2, v15, vcc')
        k('s_cmp_ge_u32 s2, 240')
        k(f's_cselect_b32 s72, {OOB}, 0')
        k('v_or_b32 v15, s72, v15')
        k(f's_lshl2_add_u32 s96, s75, {sW}')
        k('s_lshl_b32 s96, s96, 8')
        k('s_lshl4_add_u32 s96, s76, s96')
        k(f's_add_u32 s96, s96, {WS_MODG}')

    def st_mod(self):
        k = self.k
        k('s_getreg_b32 s49, hwreg(HW_REG_XCC_ID, 0, 3)')
        k('s_mul_i32 s42, s42, 0x9e3779b1')
        k('s_add_u32 s42, s42, 0x7f4a7c15')
        k('s_mov_b32 s50, s42')
        k('s_and_b32 s42, s42, -8')
        k('s_or_b32 s51, s42, s49')
        k('v_mov_b32 v5, s42')
        k('v_mov_b32 v80, s51')
        k(f's_lshl_b32 s72, {sCL}, 7')
        k(f's_lshl2_add_u32 s72, {sJ}, s72')
        k(f'buffer_store_dword v80, v12, {WS}, s72 offen offset:{WS_HELLO} sc1')
        k('v_lshlrev_b32 v76, 16, v10')
        k('v_and_b32 v77, 0xffff0000, v10')
        for r in (76, 77):
            k(f'v_mul_f32 v{r + 2}, {f2u(-1.4426950408889634):#x}, v{r}')
        for r in (76, 77):
            k(f'v_exp_f32 v{r + 2}, v{r + 2}')
        for r in (76, 77):
            k(f'v_add_f32 v{r + 2}, 1.0, v{r + 2}')
        for r in (76, 77):
            k(f'v_rcp_f32 v{r + 2}, v{r + 2}')
        for r in (76, 77):
            k(f'v_mul_f32 v{r}, v{r}, v{r + 2}')
        k('v_cvt_pk_bf16_f32 v76, v76, v77')
        k(f'ds_write_b32 v9, v76 offset:{L_SC}')

    def st_modc(self):
        k = self.k
        if self.o.late >= 240:
            self.mod_core('mod')
            self.stamp('modpub')
            return
        lab = k.newlabel('mc')
        k(f's_cmp_ge_u32 s2, {self.o.late}')
        k(f's_cbranch_scc1 {lab}')
        k.cond_begin()
        self.mod_core('mod')
        k.cond_end()
        k.label(lab)
        self.stamp('modpub')

    def st_addr2(self):
        k = self.k
        k('s_lshr_b32 s58, s80, 2')
        k('s_mul_i32 s58, s58, 3072')
        k('s_and_b32 s72, s80, 3')
        k('s_lshl_b32 s72, s72, 8')
        k('s_add_u32 s58, s58, s72')
        k(f's_add_u32 s58, s58, {WS_WGU}')
        k('s_lshl_b32 s64, s81, 6')
        k(f's_lshl3_add_u32 s64, {sW}, s64')
        k('s_cmp_ge_u32 s2, 240')
        k(f's_cselect_b32 s59, {OOB}, 0')
        k(f'v_lshrrev_b32 v{self.RA + 10}, 1, v14')
        k(f'v_lshl_add_u32 v{self.RA + 10}, v{self.RA + 10}, 3, v13')
        k(f'v_and_b32 v{self.RT + 0}, 1, v14')
        k(f'v_lshl_add_u32 v{self.RA + 10}, v{self.RT + 0}, 10, v{self.RA + 10}')
        k(f'v_add_u32 v{self.RA + 10}, v{self.RA + 10}, v18')
        k(f's_lshl_b32 s77, {sW}, 12')
        k(f's_add_u32 s77, s77, {L_GUS}')
        k(f'v_add_u32 v{self.RA + 10}, s77, v{self.RA + 10}')
        k(f's_sub_u32 s78, 3, {sW}')
        k('s_lshl_b32 s78, s78, 10')
        k(f's_add_u32 s78, s78, {L_GUS}')
        k(f'v_add_u32 v{self.RA + 11}, s78, v19')
        k(f'v_and_b32 v{self.RT + 0}, 9, v3')
        k(f'v_bfe_u32 v{self.RT + 1}, v3, 1, 1')
        k(f'v_lshl_add_u32 v{self.RT + 0}, v{self.RT + 1}, 2, v{self.RT + 0}')
        k(f'v_bfe_u32 v{self.RT + 1}, v3, 2, 1')
        k(f'v_lshl_add_u32 v{self.RT + 0}, v{self.RT + 1}, 1, v{self.RT + 0}')
        k(f'v_lshlrev_b32 v{self.RT + 0}, 4, v{self.RT + 0}')
        k(f'v_or_b32 v{self.RT + 0}, s59, v{self.RT + 0}')
        k(f's_mov_b32 s73, {WGU_S - 3072}')
        for t in range(2):
            for hf in range(2):
                d = self.RA + 2 * t + hf
                k(f's_add_u32 s77, s64, {32 * t + 4 * hf}')
                k(f'v_add_u32 v{self.RT + 1}, s77, v16')
                k(f'v_mul_u32_u24 v{self.RT + 2}, 171, v{self.RT + 1}')
                k(f'v_lshrrev_b32 v{self.RT + 2}, 9, v{self.RT + 2}')
                k(f'v_lshl_add_u32 v{self.RT + 1}, v{self.RT + 1}, 10, v{self.RT + 0}')
                k(f'v_mad_u32_u24 v{d}, v{self.RT + 2}, s73, v{self.RT + 1}')
        k(f's_cmp_lt_u32 {sW}, 2')
        k(f's_cselect_b32 s79, {OOB}, 0')
        for t in range(3):
            k(f's_sub_u32 s78, {3 + 4 * t}, {sW}')
            k('s_lshl_b32 s78, s78, 6')
            k(f'v_add_u32 v{self.RT + 0}, s78, v3')
            k(f'v_mul_u32_u24 v{self.RT + 1}, 205, v{self.RT + 0}')
            k(f'v_lshrrev_b32 v{self.RT + 1}, 14, v{self.RT + 1}')
            k(f'v_mul_u32_u24 v{self.RT + 2}, 80, v{self.RT + 1}')
            k(f'v_sub_u32 v{self.RT + 0}, v{self.RT + 0}, v{self.RT + 2}')
            k(f'v_bfe_u32 v{self.RT + 2}, v{self.RT + 0}, 3, 2')
            k(f'v_and_b32 v{self.RT + 3}, 3, v{self.RT + 0}')
            k(f'v_lshl_add_u32 v{self.RT + 2}, v{self.RT + 2}, 2, v{self.RT + 3}')
            k(f'v_bfe_u32 v{self.RT + 3}, v{self.RT + 0}, 2, 1')
            k(f'v_lshl_add_u32 v{self.RT + 2}, v{self.RT + 3}, 6, v{self.RT + 2}')
            k(f'v_cmp_gt_u32 vcc, 64, v{self.RT + 0}')
            k(f'v_and_b32 v{self.RT + 3}, 15, v{self.RT + 0}')
            k(f'v_lshrrev_b32 v{self.RT + 0}, 5, v{self.RT + 0}')
            k(f'v_cndmask_b32 v{self.RT + 2}, v{self.RT + 3}, v{self.RT + 2}, vcc')
            k(f'v_lshl_add_u32 v{self.RT + 2}, v{self.RT + 0}, 7, v{self.RT + 2}')
            k(f'v_lshlrev_b32 v{self.RT + 2}, 4, v{self.RT + 2}')
            if t == 2:
                k(f'v_or_b32 v{self.RT + 2}, s79, v{self.RT + 2}')
            k(f'v_mad_u32_u24 v{self.RA + 4 + t}, v{self.RT + 1}, s55, v{self.RT + 2}')
            k(f'v_mad_u32_u24 v{self.RA + 7 + t}, v{self.RT + 1}, s57, v{self.RT + 2}')

    def st_ones(self):
        k = self.k
        k('v_and_b32 v92, 32, v3')
        k('v_add_u32 v92, v92, v21')
        k('v_mov_b32 v94, 0x3f80')
        k('v_mov_b32 v95, 0')
        k(f'ds_write_b64 v92, v[94:95] offset:{L_KVOWN + V_OFF[0] + 40}')

    def st_norm(self):
        k = self.k
        X = list(range(40, 64))
        for i in range(12):
            k(f'v_lshlrev_b32 v{40 + 2 * i}, 16, v{24 + i}')
            k(f'v_and_b32 v{41 + 2 * i}, 0xffff0000, v{24 + i}')
        self.stamp('xin')
        k('v_pk_add_f32 v[76:77], v[40:41], v[42:43]')
        k('v_pk_mul_f32 v[78:79], v[40:41], v[40:41]')
        k('v_pk_fma_f32 v[78:79], v[42:43], v[42:43], v[78:79]')
        for i in range(2, 12):
            k(f'v_pk_add_f32 v[76:77], v[76:77], v[{40 + 2 * i}:{41 + 2 * i}]')
            k(f'v_pk_fma_f32 v[78:79], v[{40 + 2 * i}:{41 + 2 * i}], v[{40 + 2 * i}:{41 + 2 * i}], v[78:79]')
        k('v_add_f32 v76, v76, v77')
        k('v_add_f32 v77, v78, v79')
        k('v_add_f32_dpp v76, v76, v76 row_ror:8 row_mask:0xf bank_mask:0xf')
        k('v_add_f32_dpp v77, v77, v77 row_ror:8 row_mask:0xf bank_mask:0xf')
        self.rowsum(76, 78)
        self.rowsum(77, 79)
        k('v_lshlrev_b32 v78, 1, v7')
        k(f'v_add_u32 v78, {L_STAT}, v78')
        k(f's_lshl_b32 s72, {sW}, 3')
        k('v_add_u32 v79, s72, v78')
        k(f'ds_write_b64 v79, v[76:77]')
        k.barrier()
        k(f's_mul_i32 s86, {sCL}, 163840')
        k(f's_lshr_b32 s72, {sJ}, 2')
        k('s_mul_i32 s72, s72, 40960')
        k('s_add_u32 s86, s86, s72')
        k(f's_and_b32 s72, {sJ}, 1')
        k('s_lshl_b32 s72, s72, 7')
        k('s_add_u32 s86, s86, s72')
        k(f's_and_b32 s72, {sJ}, 2')
        k('s_lshl_b32 s72, s72, 9')
        k('s_add_u32 s86, s86, s72')
        k(f's_mul_i32 s72, {sW}, 10240')
        k('s_add_u32 s86, s86, s72')
        k(f's_add_u32 s86, s86, {WS_H}')
        k(f'ds_read_b128 v[88:91], v78')
        k(f'ds_read_b128 v[92:95], v78 offset:16')
        k('v_pk_add_f32 v[88:89], v[88:89], v[90:91]')
        k('v_pk_add_f32 v[92:93], v[92:93], v[94:95]')
        k('v_pk_add_f32 v[88:89], v[88:89], v[92:93]')
        k('v_and_b32 v92, 4, v6')
        k('v_add_u32 v92, v92, v6')
        k('v_lshl_add_u32 v92, v92, 8, v7')
        k('v_cmp_gt_u32 vcc, 32, v3')
        k('v_cndmask_b32 v93, v2, v92, vcc')
        k(f'v_mul_f32 v90, {f2u(1 / 640):#x}, v88')
        k(f'v_mul_f32 v89, {f2u(1 / 640):#x}, v89')
        k('v_fma_f32 v89, -v90, v90, v89')
        k('v_max_f32 v89, 0, v89')
        k(f'v_add_f32 v89, {f2u(1e-5):#x}, v89')
        k('v_rsq_f32 v88, v89')
        k('v_mul_f32 v89, -v90, v88')
        for i in range(3):
            for e in range(4):
                r = 40 + 8 * i + 2 * e
                k(f'v_pk_fma_f32 v[{r}:{r + 1}], v[{r}:{r + 1}], v[88:89], v[88:89] op_sel:[0,0,1] op_sel_hi:[1,0,1]')
            if self.D:
                continue
            for e in range(4):
                r = 40 + 8 * i + 2 * e
                k(f'v_cvt_pk_f16_f32 v{24 + 4 * i + e}, v{r}, v{r + 1}')
            k(f'buffer_store_dwordx4 v[{24 + 4 * i}:{27 + 4 * i}], {"v92" if i < 2 else "v93"}, {WS}, s86 offen sc1', 'xn')
            if i < 2:
                k('s_add_u32 s86, s86, 4096')
        if self.D:
            k('v_mov_b32 v15, v92')
            k('v_mov_b32 v10, v93')
        self.stamp('xst')

    def make_h(self):
        k = self.k
        for i in range(3):
            for h in range(2):
                k(f'ds_read_b128 v[{96 + 16 * i + 4 * h}:{99 + 16 * i + 4 * h}], v17 offset:{256 * i + 16 * h + 640}')
            for h in range(2):
                k(f'ds_read_b128 v[{104 + 16 * i + 4 * h}:{107 + 16 * i + 4 * h}], v17 offset:{256 * i + 16 * h}')
        for i in range(3):
            for e in range(0, 8, 2):
                x = 40 + 8 * i + e
                k(f'v_pk_fma_f32 v[{x}:{x + 1}], v[{x}:{x + 1}], v[{96 + 16 * i + e}:{97 + 16 * i + e}], v[{104 + 16 * i + e}:{105 + 16 * i + e}]')
                k(f'v_cvt_pk_bf16_f32 v{24 + 4 * i + e // 2}, v{x}, v{x + 1}')
            k(f'buffer_store_dwordx4 v[{24 + 4 * i}:{27 + 4 * i}], {"v15" if i < 2 else "v10"}, {WS}, s86 offen', 'h')
            if i < 2:
                k('s_add_u32 s86, s86, 4096')
        self.stamp('hst')
        k.put(self.fast_setup)
        self.nt = 20

    def h_poll(self):
        k = self.k
        self.poll_lanes(33, 40)
        self.flag_off('s74', PH_H)
        k(f's_lshl_b32 s72, {sW}, 7')
        k('s_add_u32 s74, s74, s72')
        self.quarter_addr(31, 40)

        def load(r):
            k(f'buffer_load_dword v{r[0]}, v31, {WS}, s75 offen sc1')
            k(f'buffer_load_dword v{r[1]}, v33, {WS}, s74 offen sc1')

        def body():
            load([14, 15])
            k('s_waitcnt vmcnt(0)')
            self.allcheck([14, 15], 45)
        if self.o.pp > 1:
            self.spin2(load, lambda r: self.allcheck(r, 45), [14, 15], [26, 27])
        else:
            self.spin(body)
        self.acquire('h')
        self.xn_loads(self.o.hpre)
        k('s_barrier')
        self.stamp('hflag')

    def xd_touch(self):
        k = self.k
        k('v_lshlrev_b32 v8, 7, v3')
        k('v_cmp_gt_u32 vcc, 20, v3')
        k('v_cndmask_b32 v8, v2, v8, vcc')
        k(f's_lshl4_add_u32 s72, {sCL}, {sJ}')
        k(f's_lshl2_add_u32 s72, s72, {sW}')
        k('s_mul_i32 s72, s72, 2560')
        k(f'buffer_load_dword v95, v8, {XS}, s72 offen')

    def xd_issue(self, tt):
        k = self.k
        if tt == 0:
            k('v_and_b32 v61, 7, v3')
            k('v_xor_b32 v61, v61, v6')
            k('v_lshlrev_b32 v61, 4, v61')
            k('s_movk_i32 s72, 1280')
            k('v_mad_u32_u24 v61, v6, s72, v61')
            k(f's_lshl2_add_u32 s86, {sCL}, {sW}')
            k('s_mul_i32 s86, s86, 40960')
            k(f's_mul_i32 s91, {sW}, 20480')
            k(f's_add_u32 s91, s91, {L_A}')
        for hb in range(2):
            k(f's_add_u32 m0, s91, {10240 * hb}')
            for cb in range(10):
                k(f'buffer_load_dwordx4 v61, {XS}, s86 offen offset:{128 * cb} lds', f'xd{tt}')
                if cb < 9:
                    k('s_add_u32 m0, m0, 896')
            k('s_add_u32 s86, s86, 10240')
        self.stamp(f'xi{tt}')

    def xd_read(self, tt):
        k = self.k
        if tt == 0:
            k('v_and_b32 v62, 7, v3')
            k('v_lshrrev_b32 v63, 4, v3')
            k('v_xor_b32 v63, v63, v62')
            k('v_lshlrev_b32 v63, 4, v63')
            k('v_lshl_add_u32 v62, v62, 7, v63')
            k('v_bfe_u32 v63, v3, 3, 1')
            k('s_movk_i32 s72, 10240')
            k('v_mad_u32_u24 v62, v63, s72, v62')
            k('v_add_u32 v62, s91, v62')
            k('v_xor_b32 v63, 64, v62')
        k.wait_vm(f'xd{tt}')
        for s in range(20):
            r = 96 + 8 * s + 4 * tt
            k(f'ds_read_b128 v[{r}:{r + 3}], v{62 + (s & 1)} offset:{1024 * (s >> 1)}')
        k.wait_lgkm_all()
        self.stamp(f'xr{tt}')

    def xd_norm(self, tt):
        k = self.k
        for i in range(4):
            k(f'v_mov_b32 v{40 + i}, 0x3f803f80')
        for s in range(20):
            r = 96 + 8 * s + 4 * tt
            k(f'v_mfma_f32_16x16x32_bf16 v[44:47], v[40:43], v[{r}:{r + 3}], {"0" if s == 0 else "v[44:47]"}')
            k(f'v_mfma_f32_16x16x32_bf16 v[48:51], v[{r}:{r + 3}], v[{r}:{r + 3}], {"0" if s == 0 else "v[48:51]"}')
        k('s_mov_b32 s60, 0xaaaaaaaa')
        k('s_mov_b32 s61, s60')
        k('s_mov_b32 s62, 0xcccccccc')
        k('s_mov_b32 s63, s62')
        k('s_mov_b32 s72, 0x00f0000f')
        k('s_mov_b32 s73, 0xf0000f00')
        k('v_cndmask_b32 v48, v48, v49, s[60:61]')
        k('v_cndmask_b32 v50, v50, v51, s[60:61]')
        k('v_cndmask_b32 v48, v48, v50, s[62:63]')
        k('v_cndmask_b32 v48, 0, v48, s[72:73]')
        self.rowsum(48, 49)
        k(f'v_mul_f32 v46, {f2u(1 / 640):#x}, v44')
        k(f'v_mul_f32 v45, {f2u(1 / 640):#x}, v48')
        k('v_fma_f32 v45, -v46, v46, v45')
        k('v_max_f32 v45, 0, v45')
        k(f'v_add_f32 v45, {f2u(1e-5):#x}, v45')
        k('v_rsq_f32 v44, v45')
        k('v_mul_f32 v45, -v46, v44')
        k('s_mov_b32 s72, 0xffff0000')
        for s in range(20):
            r = 96 + 8 * s + 4 * tt
            for d in range(4):
                k(f'v_lshlrev_b32 v{48 + 2 * d}, 16, v{r + d}')
                k(f'v_and_b32 v{49 + 2 * d}, s72, v{r + d}')
            for d in range(4):
                t = 48 + 2 * d
                k(f'v_pk_fma_f32 v[{t}:{t + 1}], v[{t}:{t + 1}], v[44:45], v[44:45] op_sel:[0,0,1] op_sel_hi:[1,0,1]')
            for d in range(4):
                k(f'v_cvt_pk_f16_f32 v{r + d}, v{48 + 2 * d}, v{49 + 2 * d}')
        self.hl0, self.nh = [], 40
        self.stamp(f'xn{tt}')

    def xn_flag(self):
        k = self.k
        k(f's_lshl4_add_u32 s72, {sCL}, {sJ}')
        k('s_lshl_b32 s72, s72, 7')
        self.jflag('s73')
        k('s_sub_u32 s72, s72, s73')
        k(f's_add_u32 s72, s72, {WS_XF}')
        k.wait_vm('xn')
        k(f'buffer_store_dword v5, v4, {WS}, s72 offen sc1')
        self.stamp('xf')

    def xn_addr(self):
        k = self.k
        k('v_bfe_u32 v32, v3, 2, 2')
        k('v_and_b32 v33, 3, v3')
        k('v_lshlrev_b32 v33, 2, v33')
        k('v_lshl_add_u32 v33, v32, 7, v33')
        k(f's_lshl2_add_u32 s93, {sCL}, {sW}')
        k('s_lshl_b32 s93, s93, 9')
        k(f's_add_u32 s93, s93, {WS_XF}')

    def xn_poll(self):
        self.xn_addr()
        self.poll('v33', 's93', 32, False)
        self.stamp('xp')

    def xn_loads(self, n):
        if not hasattr(self, 'hl0'):
            self.hl0 = self.units_frags([96 + 4 * i for i in range(40)], 's89')
            self.nh = 0
        self.put_units(self.hl0[self.nh:self.nh + n])
        self.nh += n

    def modulate(self, s, G, S, T):
        k = self.k
        off = (s // 5) * 1280 + (s % 5) * 128
        k.begin()
        for q in range(2):
            k(f'ds_read_b128 v[{G[q]}:{G[q] + 3}], v7 offset:{off + 640 + 16 * q}')
            k(f'ds_read_b128 v[{S[q]}:{S[q] + 3}], v7 offset:{off + 16 * q}')
        rd = k.end()
        k.begin()
        for d in range(4):
            g_, s_, t_ = G[d // 2] + 2 * (d % 2), S[d // 2] + 2 * (d % 2), T + (2 * (d % 2) if T != 20 else 0)
            x0, x1 = 96 + 8 * s + d, 100 + 8 * s + d
            k(f'v_fma_mix_f32 v{t_}, v{x0}, v{g_}, v{s_} op_sel_hi:[1,0,0]')
            k(f'v_fma_mix_f32 v{t_ + 1}, v{x0}, v{g_ + 1}, v{s_ + 1} op_sel:[1,0,0] op_sel_hi:[1,0,0]')
            k(f'v_fma_mix_f32 v{s_}, v{x1}, v{g_}, v{s_} op_sel_hi:[1,0,0]')
            k(f'v_fma_mix_f32 v{s_ + 1}, v{x1}, v{g_ + 1}, v{s_ + 1} op_sel:[1,0,0] op_sel_hi:[1,0,0]')
            k(f'v_cvt_pk_bf16_f32 v{x0}, v{t_}, v{t_ + 1}')
            k(f'v_cvt_pk_bf16_f32 v{x1}, v{s_}, v{s_ + 1}')
        return rd, k.end()

    def mod_run(self, lo, hi, sets):
        parts = [self.modulate(s, *sets[(s - lo) % len(sets)]) for s in range(lo, hi)]
        la = len(sets) - 1
        out = []
        for i in range(min(la, len(parts))):
            out += parts[i][0]
        for i in range(len(parts)):
            if i + la < len(parts):
                out += parts[i + la][0]
            out += parts[i][1]
        return out

    def pre_mod(self, n):
        sets = [([b, b + 4], [b + 8, b + 12], 56) for b in (24, 40)] if self.X else [([b, b + 4], [b + 8, b + 12], 16) for b in (32, 48)]
        self.k.put(self.mod_run(self.nt, self.nt + n, sets))
        self.nt += n

    def wg_flag(self, tag, base):
        k = self.k
        k.wait_vm(tag)
        k.barrier()
        self.wg_slot(base)
        k(f'buffer_store_dword v5, v12, {WS}, s72 offen sc1')

    def wg_slot(self, base):
        k = self.k
        k('s_and_b32 s72, s2, 0xfc')
        k('s_mul_i32 s72, s72, 28')
        k('s_lshl2_add_u32 s72, s2, s72')
        k(f's_add_u32 s72, s72, {base}')

    def jflag(self, s):
        k = self.k
        k(f's_and_b32 {s}, {sJ}, 12')
        k(f's_add_u32 {s}, {s}, {sJ}')
        k(f's_lshl_b32 {s}, {s}, 4')

    def poll_lanes(self, v, t):
        k = self.k
        k(f'v_and_b32 v{v}, 15, v3')
        k(f'v_lshlrev_b32 v{v}, 2, v{v}')

    def quarter_addr(self, v, t):
        k = self.k
        k(f'v_and_b32 v{t}, 0xfc, v3')
        k(f'v_mul_u32_u24 v{t}, 28, v{t}')
        k(f'v_lshl_add_u32 v{v}, v3, 2, v{t}')
        k(f's_lshl_b32 s75, {sW}, 11')
        k(f's_add_u32 s75, s75, {WS_PQ}')

    def late_mod(self, fn):
        k = self.k
        if self.o.late >= 240:
            return
        lab = k.newlabel('ml')
        k(f's_sub_u32 s72, s2, {self.o.late}')
        k(f's_cmp_ge_u32 s72, {240 - self.o.late}')
        k(f's_cbranch_scc1 {lab}')
        k.cond_begin()
        fn('modl')
        k.cond_end()
        k.label(lab)

    def st_rest_prep(self):
        k = self.k
        self.od_prep('s2', 0)
        k('s_add_u32 s48, s2, 16')
        self.od_prep('s48', 1)
        k('s_movk_i32 s72, 3072')
        k('v_mad_u32_u24 v36, v6, s72, v7')
        k('s_mul_i32 s65, s80, 24576')
        k('s_lshl_b32 s72, s81, 10')
        k('s_add_u32 s65, s65, s72')
        k(f's_lshl_b32 s72, {sW}, 7')
        k('s_add_u32 s65, s65, s72')

    def rest_units(self, vg, vo):
        k = self.k

        def od(which):
            so = f's{66 + which}'
            k(f's_sub_u32 s88, 3, {sW}')
            k('s_lshl_b32 s88, s88, 10')
            k(f's_add_u32 m0, s88, {L_ODS[which]}')
            k(f'buffer_load_dwordx4 v{vo + which}, {ODS}, {so} offen{self.ntm} lds', 'rest')
            k(f's_add_u32 {so}, {so}, 512')
            k('s_add_u32 m0, m0, 4096')
            k(f'buffer_load_dwordx4 v{vo + which}, {ODS}, {so} offen{self.ntm} lds', 'rest')
            k(f's_cmp_lt_u32 {sW}, 2')
            k('s_cselect_b32 s88, 0, 512')
            k(f's_add_u32 {so}, {so}, s88')
            k('s_lshl3_add_u32 m0, s88, m0')
            k(f'buffer_load_dwordx4 v{vo + which}, {ODS}, {so} offen{self.ntm} lds', 'rest')
            if which:
                k(f'buffer_load_dwordx4 v{vo + which}, {ODS}, {so} offen{self.ntm} lds', 'rest')
        k.begin()
        lab, done = k.newlabel('od2'), k.newlabel('rid')
        k('s_cmp_ge_u32 s2, 240')
        k(f's_cbranch_scc1 {lab}')
        k.cond_begin()
        k(f's_lshl_b32 s88, {sW}, 12')
        k(f's_add_u32 m0, s88, {L_GUS}')
        for t in range(2):
            k(f'buffer_load_dwordx4 v{vg}, {WGS}, s65 offen{self.ntm} lds', 'rest')
            k('s_add_u32 m0, m0, 1024')
            k(f'buffer_load_dwordx4 v{vg}, {WUS}, s65 offen{self.ntm} lds', 'rest')
            if t == 0:
                k('s_add_u32 m0, m0, 1024')
                k('s_add_u32 s65, s65, 512')
        k(f's_branch {done}')
        k.cond_end()
        k.label(lab)
        k.cond_begin()
        od(1)
        k.cond_end(certain=True)
        k.label(done)
        u0 = k.end()
        k.begin()
        od(0)
        return [u0, k.end()]


    def rest_reads(self):
        k = self.k
        k.wait_vm('rest')
        for t in range(2):
            for hf in range(2):
                b = 8 * t + 4 * hf
                k(f'ds_read_b64_tr_b16 a[{b}:{b + 1}], v{self.RA + 10} offset:{2048 * t + 64 * hf}')
                k(f'ds_read_b64_tr_b16 a[{b + 2}:{b + 3}], v{self.RA + 10} offset:{2048 * t + 64 * hf + 512}')
        for which in range(2):
            for t in range(3):
                b = 16 + 12 * which + 4 * t
                off = L_ODS[which] - L_GUS + 4096 * t
                k(f'ds_read_b64_tr_b16 a[{b}:{b + 1}], v{self.RA + 11} offset:{off}')
                k(f'ds_read_b64_tr_b16 a[{b + 2}:{b + 3}], v{self.RA + 11} offset:{off + 512}')

    def rest_stores(self):
        k = self.k
        us = []
        for i in range(4):
            k.begin()
            k(f'buffer_store_dwordx4 a[{4 * i}:{4 * i + 3}], v{self.RA + i}, {WS}, s58 offen sc1', 'pre')
            us.append(k.end())
        for t in range(3):
            k.begin()
            k(f'buffer_store_dwordx4 a[{16 + 4 * t}:{19 + 4 * t}], v{self.RA + 4 + t}, {WS}, s54 offen sc1', 'pre')
            us.append(k.end())
        k.begin()
        lab = k.newlabel('od2p')
        k('s_cmp_lt_u32 s2, 240')
        k(f's_cbranch_scc1 {lab}')
        k.cond_begin()
        for t in range(3):
            k(f'buffer_store_dwordx4 a[{28 + 4 * t}:{31 + 4 * t}], v{self.RA + 7 + t}, {WS}, s56 offen sc1', 'pre')
        k.cond_end()
        k.label(lab)
        us.append(k.end())
        return us

    def od_prep(self, sn, which):
        k = self.k
        sB, sJS = (f's{54 + 2 * which}', f's{55 + 2 * which}')
        if which == 0:
            k('s_mov_b32 s18, 819200')
        k(f's_mov_b32 {sJS}, {WO_J}')
        k('s_movk_i32 s73, 3277')
        k(f's_mov_b32 {sB}, {WS_WO}')
        k(f's_cmp_lt_u32 {sn}, 192')
        if which == 0:
            k('s_cselect_b64 s[16:17], s[60:61], s[52:53]')
            k('s_cmov_b32 s18, 1966080')
        k(f's_cmov_b32 {sJS}, {WD_J}')
        k('s_cmov_b32 s73, 1366')
        k(f's_cmov_b32 {sB}, {WS_WD}')
        k(f's_cselect_b32 s72, 0, 192')
        k(f's_sub_u32 s77, {sn}, s72')
        k('s_mul_i32 s73, s73, s77')
        k('s_lshr_b32 s73, s73, 16')
        k(f's_mul_i32 s73, s73, {OD_W}')
        k(f's_add_u32 {sB}, {sB}, s73')
        k('s_lshr_b32 s72, s77, 2')
        k('s_mul_i32 s72, s72, 5120')
        k(f's_add_u32 {sB}, {sB}, s72')
        k('s_and_b32 s72, s77, 3')
        k('s_lshl_b32 s72, s72, 8')
        k(f's_add_u32 {sB}, {sB}, s72')
        k('s_mul_i32 s72, s77, 205')
        k('s_lshr_b32 s72, s72, 10')
        k('s_mul_i32 s73, s72, 5')
        k('s_sub_u32 s73, s77, s73')
        k('s_mul_i32 s72, s72, 40')
        k('s_lshr_b32 s78, s73, 1')
        k('s_mul_i32 s78, s78, 20')
        k('s_and_b32 s79, s73, 1')
        k('s_lshl2_add_u32 s78, s79, s78')
        k('s_cmp_eq_u32 s73, 4')
        k('s_cselect_b32 s78, 16, s78')
        k('s_cselect_b32 s79, 20, 8')
        k('s_add_u32 s72, s72, s78')
        k('s_lshl_b32 s77, s77, 3')
        k(f's_cmp_lt_u32 {sn}, 192')
        k('s_cselect_b32 s77, s77, s72')
        k('s_cselect_b32 s79, 4, s79')
        k('s_mul_i32 s77, s77, 1280')
        k('v_lshrrev_b32 v76, 5, v3')
        k('v_and_b32 v77, 3, v6')
        k('v_mad_u32_u24 v76, v76, s79, v77')
        k('s_movk_i32 s72, 1280')
        k(f'v_mad_u32_u24 v{38 + which}, v76, s72, v7')
        k(f's_sub_u32 s72, 3, {sW}')
        k('s_lshl_b32 s72, s72, 7')
        k(f's_add_u32 s{66 + which}, s72, s77')

    def mod_pass(self, second, between=None, withpq=False, onmiss=None, split=False):
        k = self.k
        G = 64
        vecA = 3 if second else 0
        n = 6 if second else 5
        k(f's_mul_i32 s74, {sW}, 2560')
        k(f's_add_u32 s74, s74, {WS_MODG + vecA * 10240}')
        k(f's_add_u32 s75, s74, {7680 + 3072}')
        k('v_cmp_gt_u32 vcc, 32, v3')
        k('v_add_u32 v93, 7680, v1')
        k('v_cndmask_b32 v93, v93, v1, vcc')
        k('v_cndmask_b32 v94, 1.0, 0, vcc')
        if second:
            k('v_min_u32 v95, 624, v1')
            k(f's_lshr_b32 s76, {sW}, 1')
            k('s_mul_i32 s76, s76, 30720')
            k(f's_and_b32 s72, {sW}, 1')
            k(f's_lshl1_add_u32 s72, {sJC}, s72')
            k('s_mul_i32 s72, s72, 640')
            k('s_add_u32 s76, s76, s72')
            k(f's_add_u32 s76, s76, {WS_MODG + 2 * 10240}')
        else:
            k(f's_lshl_b32 s76, {sCL}, 7')
            k('v_and_b32 v95, 15, v3')
            k('v_lshlrev_b32 v95, 2, v95')
            k('s_mov_b32 s60, 0xaaaaaaaa')
            k('s_mov_b32 s61, s60')
            k('s_mov_b32 s62, 0xcccccccc')
            k('s_mov_b32 s63, s62')
            k(f's_mul_i32 s72, {sW}, 1280')
            k(f's_add_u32 s72, s72, {L_MV}')
            k('v_lshl_add_u32 v92, v3, 2, s72')
            TB = 144 if self.D else 40
            k(f'v_mov_b32 v{TB + 17}, 0')
            k('v_lshl_add_u32 v17, v6, 5, s72')
            if withpq:
                self.xn_addr()
        k(f's_movk_i32 s79, {WS_PQ}')
        k('s_mov_b32 s77, 0x04000c0c')
        k('s_mov_b32 s78, 0x0706000c')

        A, B, C = ('s60', 's61', 's62') if split else ('s74', 's75', 's76')
        if split:
            for d_, s_ in zip((A, B, C), ('s74', 's75', 's76')):
                k(f's_mov_b32 {d_}, {s_}')

        def loads():
            k(f'buffer_load_dwordx4 v[{G}:{G + 3}], v1, {WS}, {A} offen sc1')
            k(f'buffer_load_dwordx4 v[{G + 4}:{G + 7}], v1, {WS}, {A} offen offset:1024 sc1')
            k(f'buffer_load_dwordx4 v[{G + 8}:{G + 11}], v93, {WS}, {A} offen offset:2048 sc1')
            k(f'buffer_load_dwordx4 v[{G + 12}:{G + 15}], v1, {WS}, {B} offen sc1')
            k(f'buffer_load_dwordx4 v[{G + 16}:{G + 19}], v1, {WS}, {B} offen offset:1024 sc1')
            if second:
                k(f'buffer_load_dwordx4 v[{G + 20}:{G + 23}], v95, {WS}, {C} offen sc1')
            else:
                k(f'buffer_load_dword v{G + 22}, v95, {WS}, {C} offen offset:{WS_HELLO} sc1')
            if withpq:
                k(f'buffer_load_dword v32, v33, {WS}, s93 offen sc1')
            if withpq == 2:
                k(f'buffer_load_dwordx4 v[24:27], v1, {WS}, s79 offen sc1')

        def check():
            if not second:
                k(f'v_and_b32 v{G + 23}, -8, v{G + 22}')
            self.allcheck([G + 4 * i + 3 for i in range(6)] + ([32] if withpq else []) + ([24, 25, 26, 27] if withpq == 2 else []), 88)

        def body():
            loads()
            k('s_waitcnt vmcnt(0)')
            check()
            if second or self.o.psleep:
                k('s_cbranch_vccz 1')
                k(f's_sleep {self.o.psleep or 8}')
        if split:
            loads()
            k.begin()
            check()
            self.recheck(body)
        else:
            self.spin(body, onmiss)
        if onmiss is not None:
            k('s_mov_b32 s93, s73')
        if not second:
            self.stamp('modin')
        if between is not None:
            between()
        if not second:
            k.begin()
            k(f'v_cmp_ne_u32 vcc, s51, v{G + 22}')
            k('s_cmp_eq_u64 vcc, 0')
            k(f's_cselect_b32 {sFAST}, {0 if self.o.force_slow else 1}, 0')
            k(f's_cmp_lg_u32 {sFAST}, 0')
            k(f's_cselect_b32 s72, {OOB}, 0')
            k(f'v_or_b32 v{VF_SLOW}, s72, v4')
            k(f's_cselect_b32 s72, 0, {OOB}')
            k(f'v_or_b32 v{VF_FAST}, s72, v4')
            k(f's_lshl_b32 s{SF}, {sCL}, 13')
            k(f's_add_u32 s{SF}, s{SF}, {WS_FLAG}')
            k(f's_add_u32 s{SF + 1}, s{SF}, 4096')
            self.fast_setup = k.end()
        for i in range(n):
            b = G + 4 * i
            k(f'v_perm_b32 v{b + 3}, v{b}, v{b + 1}, s77')
        for i in range(n):
            b = G + 4 * i
            k(f'v_perm_b32 v{b + 3}, v{b + 3}, v{b + 2}, s78')
        if second:
            for qp in ('[1,0,3,2]', '[2,3,0,1]'):
                for r in range(G, G + 4 * n):
                    k(f'v_add_f32_dpp v{r}, v{r}, v{r} quad_perm:{qp} row_mask:0xf bank_mask:0xf')
            k('v_lshrrev_b32 v88, 2, v3')
        if not second:
            D = ' row_mask:0xf bank_mask:0xf'
            for i in range(5):
                b = G + 4 * i
                k(f'v_cndmask_b32 v{TB + 2 * i}, v{b + 1}, v{b}, s[60:61]')
                k(f'v_cndmask_b32 v{TB + 1 + 2 * i}, v{b + 3}, v{b + 2}, s[60:61]')
                k(f'v_cndmask_b32 v{b}, v{b}, v{b + 1}, s[60:61]')
                k(f'v_cndmask_b32 v{b + 2}, v{b + 2}, v{b + 3}, s[60:61]')
            for i in range(5):
                b = G + 4 * i
                k(f'v_add_f32_dpp v{b}, v{TB + 2 * i}, v{b} quad_perm:[1,0,3,2]{D}')
                k(f'v_add_f32_dpp v{b + 2}, v{TB + 1 + 2 * i}, v{b + 2} quad_perm:[1,0,3,2]{D}')
            for i in range(5):
                b = G + 4 * i
                k(f'v_cndmask_b32 v{b + 1}, v{b + 2}, v{b}, s[62:63]')
                k(f'v_cndmask_b32 v{b}, v{b}, v{b + 2}, s[62:63]')
            for i in range(5):
                b = G + 4 * i
                k(f'v_add_f32_dpp v{TB + 12 + i}, v{b + 1}, v{b} quad_perm:[2,3,0,1]{D}')
            self.bf16_round_keep([TB + 12 + e for e in range(6)], 89)
            k(f'v_add_f32 v{TB + 14}, v94, v{TB + 14}')
            k(f'v_add_f32 v{TB + 15}, 1.0, v{TB + 15}')
            k(f'v_add_f32 v{TB + 16}, 1.0, v{TB + 16}')
            self.bf16_round_keep([TB + 14 + e for e in range(4)], 89)
            for i in range(5):
                k(f'ds_write_b32 v92, v{TB + 12 + i} offset:{256 * i}')
            if self.D:
                return
            k.put(self.fast_setup)
            k('v_and_b32 v7, 48, v3')
            k('v_lshlrev_b32 v7, 1, v7')
            k(f'v_add_u32 v7, {L_MV}, v7')
            k.barrier()
            self.stamp('mv')
        else:
            k('v_lshlrev_b32 v88, 3, v88')
            k(f's_mul_i32 s72, {sW}, 80')
            k(f's_add_u32 s72, s72, {P_GA}')
            k('v_add_u32 v91, s72, v88')
            k(f'v_mov_b32 v92, {P_DUMMY}')
            k('v_cmp_gt_u32 vcc, 40, v3')
            k('v_cndmask_b32 v91, v92, v91, vcc')
            k(f's_mul_i32 s72, {sW}, 320')
            k(f's_add_u32 s72, s72, {L_P}')
            k('v_add_u32 v88, s72, v88')
            k('v_add_u32 v90, 960, v88')
            k('v_cmp_gt_u32 vcc, 32, v3')
            k('v_cndmask_b32 v90, v90, v88, vcc')
            for i in range(6):
                b = G + 4 * i
                if 2 <= i < 5:
                    self.bf16_round_keep([b, b + 1, b + 2, b + 3], 89)
                    for r in range(b, b + 4):
                        k(f'v_add_f32 v{r}, {"v94" if i == 2 else "1.0"}, v{r}')
                k(f'v_cvt_pk_bf16_f32 v{b}, v{b}, v{b + 1}')
                k(f'v_cvt_pk_bf16_f32 v{b + 1}, v{b + 2}, v{b + 3}')
                if i < 2:
                    k(f'ds_write_b64 v88, v[{b}:{b + 1}] offset:{128 * i}')
                elif i == 2:
                    k(f'ds_write_b64 v90, v[{b}:{b + 1}] offset:256')
                elif i < 5:
                    k(f'ds_write_b64 v88, v[{b}:{b + 1}] offset:{128 * i + 960}')
                else:
                    k(f'ds_write_b64 v91, v[{b}:{b + 1}]')
        if split:
            self.m2_rest = k.end()

    WO_W = [160 + 4 * i for i in range(24)] + [508]
    WGU_W = [256 + 4 * i for i in range(60)]

    def wq_chunk(self, c):
        return self.units_dma('s71', 20480 * c, L_A + 20480 * c if c < 4 else L_C, 20, f'w{c}', woff='s70')

    def st_bases(self):
        k = self.k
        k(f's_lshl2_add_u32 s84, {sJ}, {sW}')
        k(f's_mul_i32 s84, s84, {WGU_S}')
        k(f's_add_u32 s84, s84, {WS_WGU}')
        k(f's_mul_i32 s85, {sJC}, {WO_J}')
        k(f's_mul_i32 s72, {sW}, {25 * 1024 + OD_W}')
        k('s_add_u32 s85, s85, s72')
        k(f's_add_u32 s85, s85, {WS_WO}')
        k(f's_lshl2_add_u32 s89, {sCL}, {sW}')
        k(f's_lshl1_add_u32 s90, s89, {sTH}')
        k('s_mul_i32 s90, s90, 20480')
        k(f's_mul_i32 s72, {sJC}, 160')
        k('s_add_u32 s90, s90, s72')
        k('s_mul_i32 s89, s89, 40960')
        k(f's_add_u32 s89, s89, {WS_H}')
        k(f's_mul_i32 s92, {sJ}, {WQ_J}')
        k(f's_add_u32 s92, s92, {WS_WQ}')
        k(f's_mul_i32 s70, {sW}, 5120')
        k('s_add_u32 s71, s92, s70')

    def touch_arena(self):
        k = self.k
        k(f's_lshl4_add_u32 s72, {sCL}, {sJ}')
        k(f's_lshl2_add_u32 s72, s72, {sW}')
        k('s_mul_i32 s73, s72, 6144')
        k(f's_add_u32 s73, s73, {WS_HH}')
        self.touch('s73', 1, 48, 128, 8)
        k('s_lshl_b32 s72, s72, 7')
        k(f's_add_u32 s72, s72, {WS_ST}')
        self.touch('s72', 1, 1, 128, 8)

    def x2_issue(self, t=8):
        k = self.k
        k(f's_mul_i32 s72, {sW}, 2560')
        k(f's_add_u32 m0, s72, {L_X}')
        k('s_movk_i32 s72, 1120')
        for p in range(3):
            k(f'v_add_u32 v{t}, {64 * p}, v3')
            k(f'v_mul_u32_u24 v{t + 1}, 205, v{t}')
            k(f'v_lshrrev_b32 v{t + 1}, 11, v{t + 1}')
            k(f'v_mad_u32_u24 v{t}, v{t + 1}, s72, v1')
            if p == 2:
                k('s_mov_b32 exec_hi, 0')
            k(f'buffer_load_dwordx4 v{t}, {XS}, s90 offen offset:{1024 * p}{self.nt2} lds', 'x2')
        k('s_mov_b32 exec_hi, -1')

    def align_page(self):
        k = self.k
        k('s_branch .Lpage0')
        k.raw('.p2align 12')
        k.label('.Lpage0')

    def warm(self):
        k = self.k
        k.fence_hazards()
        k('s_mov_b64 exec, 0')
        for w in range(3):
            k(f's_cmp_eq_u32 {sW}, {w}')
            k(f's_cbranch_scc1 .Lchain{w}')
        k('s_branch .Lchain3')
        k.label('.Lwarm_ret')
        k('s_mov_b64 exec, -1')

    def touch_small(self):
        k = self.k
        k(f's_lshl_b32 s72, {sCL}, 13')
        k(f's_add_u32 s72, s72, {WS_FLAG}')
        k(f's_lshl_b32 s73, {sW}, 7')
        k('s_add_u32 s72, s72, s73')
        self.touch('s72', 1, 4, 2048, 78, dst=199)
        k(f's_lshl4_add_u32 s72, {sCL}, {sJ}')
        k(f's_lshl2_add_u32 s72, s72, {sW}')
        k('s_lshl_b32 s72, s72, 7')
        k(f's_add_u32 s72, s72, {WS_ST}')
        k(f'v_and_b32 v78, {OOB}, v4')
        k(f'buffer_load_dword v199, v78, {WS}, s72 offen sc1')

    def rr_rs(self):
        k = self.k
        self.rest_reads()
        self.put_units(self.rest_stores())
        k.wait_lgkm_all()

    def rr_rs_late(self):
        k = self.k
        lab = k.newlabel('rsl')
        k('s_cmp_lg_u32 s93, 1')
        k(f's_cbranch_scc1 {lab}')
        k.cond_begin()
        self.rr_rs()
        k.cond_end()
        k.label(lab)

    def pq_sample(self):
        k = self.k
        self.quarter_addr(31, 40)
        k(f's_movk_i32 s72, {WS_PQ}')
        k(f's_movk_i32 s73, {WS_PQ + 4096}')
        for i in range(4):
            k(f'buffer_load_dword v{164 + i}, v31, {WS}, s{72 + i // 2} offen offset:{2048 * (i % 2)} sc1')

    def pq_early(self):
        k = self.k
        lab = k.newlabel('pqe')
        self.allcheck([164, 165, 166, 167], 168)
        k('s_cmp_eq_u64 vcc, 0')
        k('s_cselect_b32 s94, 1, 0')
        k(f's_cbranch_scc0 {lab}')
        k.cond_begin()
        for c in range(self.o.nearly):
            self.put_units(self.wq_chunk(c))
        k.cond_end()
        k.label(lab)

    def pq_late(self):
        k = self.k
        lab = k.newlabel('pql')
        k('s_cmp_lg_u32 s94, 0')
        k(f's_cbranch_scc1 {lab}')
        k.cond_begin()
        for c in range(self.o.nearly):
            self.put_units(self.wq_chunk(c))
        k.cond_end()
        k.label(lab)

    def pq_poll(self):
        k = self.k
        self.quarter_addr(22, 21)
        self.poll('v22', 's75', 21, False)
        k('s_barrier')
        self.stamp('pqin')

    def qkv(self):
        k = self.k
        o = self.o
        order = o.order.replace('+', ',').split(',')
        HR = 96
        RING = 256 + 224
        self.poll_lanes(10, 21)
        k(f'v_add_u32 v8, {L_A}, v1')
        k(f'v_add_u32 v9, {L_A + 61440}, v1')
        self.quarter_addr(30, 21)
        k(f's_add_u32 s75, s75, {WS_PR - WS_PQ}')
        k(f's_mul_i32 s80, {sCL}, {O_CL}')
        k(f's_mul_i32 s72, {sW}, 40960')
        k('s_add_u32 s80, s80, s72')
        k(f's_mul_i32 s72, {sJ}, 1280')
        k('s_add_u32 s80, s80, s72')
        k(f's_add_u32 s80, s80, {WS_O}')
        k(f's_lshl4_add_u32 s96, {sCL}, {sJ}')
        k(f's_mul_i32 s97, s96, {4 * KVB}')
        k(f's_add_u32 s97, s97, {WS_KV}')
        k(f's_mul_i32 s81, {sW}, {KVB}')
        k('s_add_u32 s82, s97, s81')
        k('s_add_u32 s83, s82, 2560')
        self.halo_addr()
        hl, nh = self.hl0, self.nh
        wgu = self.units_frags(self.WGU_W, 's84', tag='wgu')
        issued = [c for c in range(5) if f'c{c}' in order or ('pql' in order and c < o.nearly)]
        done = []
        allw = sum((self.wq_chunk(c) for c in range(5) if c not in issued), [])
        lab = k.newlabel('ep')
        k('s_cmp_lg_u32 s2, 0')
        k(f's_cbranch_scc1 {lab}')
        k.cond_begin()
        k('v_mov_b32 v13, s50')
        k(f'buffer_store_dword v13, v12, {WS}, 0 offen sc1')
        k.cond_end()
        k.label(lab)
        k('v_mov_b32 v23, v12')

        def loc(t, s):
            if t < 5:
                b_ = 5120 * s + 1024 * t
                return ('v8', b_) if s < 12 else (('v9', b_ - 61440) if s < 16 else ('v1', b_ - 81920))
            b_ = 3072 * s + 1024 * (t - 5)
            return 'v8', b_
        seq = [(t, s) for s in range(20) for t in range(5)]
        XS_ = o.xs
        seq += [(t, s) for s in range(XS_) for t in (7, 5, 6)] + [(t, s) for t in (7, 5, 6) for s in range(XS_, 20)]
        D = 6
        k.wait_vm('w0')
        k.barrier()
        self.stamp('c0')
        k.begin()

        def rd(i):
            ad, off = loc(*seq[i])
            k(f'ds_read_b128 {ur(RING + 4 * (i % 8))}, {ad} offset:{off}')
        for i in range(D):
            rd(i)
        for i, (t, s) in enumerate(seq):
            for tt in range(2):
                a = 32 + 8 * t + 4 * tt
                x = HR + 8 * s + 4 * tt
                k(f'v_mfma_f32_16x16x32_bf16 v[{a}:{a + 3}], {ur(RING + 4 * (i % 8))}, v[{x}:{x + 3}], {"0" if s == 0 else f"v[{a}:{a + 3}]"}')
                if tt == 0 and i + D < len(seq):
                    rd(i + D)
        w = Sched(k.end())
        M = (2, 0)
        bars = [(40 * c - 2 * D, f'w{c}') for c in range(1, 6)] + ([] if 'pr' in order else [(o.prflag, 'pre')])
        YB = 200 + 6 * XS_ - 2 * D
        bars.append((YB, 'w6'))
        for gap, tag in sorted(bars):
            k.begin()
            k.wait_vm(tag)
            k('s_barrier')
            if o.fine:
                self.stamp(f'c{gap}')
            if tag == 'pre':
                self.wg_slot(WS_PR)
                k(f'buffer_store_dword v5, v23, {WS}, s72 offen sc1')
            u_ = k.end()
            if tag == 'w6' and not o.kvgap:
                k.begin()
                self.kv_flag()
                u_ = k.end() + u_
            w.pre(gap, u_)
        w.spread(allw, 0, o.wend, M)
        if nh < 40:
            w.spread(hl[nh:], 0, o.hend, M)
        assert XS_ % 4 == 0 and XS_ <= 12
        w.spread(self.units_dma('s92', 102400, L_A, 3 * XS_, 'w5'), max(110, o.wend + 2, o.t3start), o.t3end, M)
        yu = self.units_dma('s92', 102400 + 3072 * XS_, L_A + 3072 * XS_, 60 - 3 * XS_, 'w6')
        if 'rs' not in order and 'rl' not in order:
            k.begin()
            self.rest_reads()
            rr = k.end()
            if 'rr' not in order:
                w.pre(o.rsgap - 24, rr[:1])
                w.fill(rr[1:], first=o.rsgap - 24, last=o.rsgap - 1)
            w.spread(self.rest_stores(), o.rsgap, o.rsgap + 30, (2, 1))
        if 'x2' not in order:
            k.begin()
            self.x2_issue(28)
            w.post(o.x2gap, k.end())
        sets = [([72, 76], [80, 84], 20), ([12, 24], [88, 92], 20)]
        parts = [self.modulate(s, *sets[s % 2]) for s in range(self.nt, 20)]
        np_ = len(parts)
        step = (o.mend - o.mstart) / max(np_, 1)
        gp = [int(o.mstart + i * step) for i in range(np_ + 2)] if np_ else [0]
        for i, (rd_, va) in enumerate(parts):
            assert gp[i + 2] < 10 * (self.nt + i) - 1 and gp[i + 1] > gp[i], (i, gp)
            w.spread([[x] for x in rd_], gp[i], gp[i + 1] - 1, M)
        for i, (rd_, va) in enumerate(parts):
            n_ = gp[i + 2] - gp[i + 1]
            for e, it in enumerate(va):
                w.post(gp[i + 1] + (e * n_) // len(va), [it])
        k.begin()
        k(f'buffer_load_dword v31, v30, {WS}, s75 offen sc1')
        w.at(o.prgap - 36, k.end())
        k.begin()
        k('v_and_b32 v20, 31, v3')
        k('v_lshrrev_b32 v21, 5, v3')
        k('v_mul_u32_u24 v20, 48, v20')
        k('v_add_u32 v20, s81, v20')
        k('v_lshl_add_u32 v22, v21, 4, v20')
        k('v_mul_u32_u24 v21, 1536, v21')
        k('v_add_u32 v21, v20, v21')
        k('v_add_u32 v28, s81, v1')
        k('v_lshlrev_b32 v6, 3, v3')
        k('v_add_u32 v29, s81, v6')
        k('v_mov_b32 v12, 0x3f80')
        k('v_mov_b32 v13, 0')
        k(f'ds_write_b64 v21, v[12:13] offset:{L_KVOWN + V_OFF[0] + 40}')
        w.fill(k.end(), first=max(189, gp[-1] + 1), last=201)
        k.begin()
        OWN = L_KVOWN

        def pack(dst, src, scale=False):
            if scale:
                for i in range(8):
                    k(f'v_mul_f32 v{src + i}, {f2u(QSCALE):#x}, v{src + i}')
            for i in range(4):
                k(f'v_cvt_pk_bf16_f32 v{dst + i}, v{src + 2 * i}, v{src + 2 * i + 1}')
            k(f'v_permlane16_swap_b32 v{dst}, v{dst + 2}')
            k(f'v_permlane16_swap_b32 v{dst + 1}, v{dst + 3}')
        self.pack = pack
        VB_ = (52, 60, 68)
        pack(48, 48)
        k(f'ds_write_b64 v21, v[50:51] offset:{OWN + V_OFF[0] + 32}')
        for h, r in ((0, 56), (1, 64)):
            pack(r, r)
            k(f'ds_write_b128 v22, v[{r}:{r + 3}] offset:{OWN + V_OFF[h]}')
        for t in range(3):
            k(f'ds_read_b128 v[{VB_[t]}:{VB_[t] + 3}], v28 offset:{OWN + 2560 + 1024 * t}')
        k(f'buffer_store_dwordx2 v[48:49], v6, {WS}, s82 offen offset:{KT_OFF} sc1', 'kv')
        for h, r in ((0, 32), (1, 40)):
            pack(r, r)
            k(f'buffer_store_dwordx4 v[{r}:{r + 3}], v1, {WS}, s82 offen offset:{KM_OFF[h]} sc1', 'kv')
        for t in range(3):
            k(f'buffer_store_dwordx4 v[{VB_[t]}:{VB_[t] + 3}], v1, {WS}, s83 offen offset:{1024 * t} sc1', 'kv')
        epi0 = k.end()
        k.begin()
        k(f'ds_write_b64 v29, v[48:49] offset:{OWN + KT_OFF}')
        for h, r in ((0, 32), (1, 40)):
            k(f'ds_write_b128 v28, v[{r}:{r + 3}] offset:{OWN + KM_OFF[h]}')
        epi = k.end()
        k.begin()
        self.attn_setup()
        epi2 = k.end()
        k.begin()
        pack(88, 88, True)
        epi4 = k.end()
        k.begin()
        pack(self.QM[0], 72, True)
        epi3 = k.end()
        k.begin()
        self.allcheck([31], 16)

        def body2():
            k('s_sleep 4')
            k(f'buffer_load_dword v31, v30, {WS}, s75 offen sc1')
            k('s_waitcnt vmcnt(0)')
            self.allcheck([31], 16)
        self.recheck(body2)
        chk = k.end()
        self.nbg = [int(x) for x in o.bg.split(',')]
        w.post(o.prgap, chk)
        nb_ = min(gp_ for gp_, _ in bars if gp_ > o.prgap)
        assert o.prgap < 204
        self.bg = wgu
        w.fill(epi0, first=202, window=16, over=o.over)
        e0 = w.lastgap
        if o.yearly:
            w.spread(yu, max(o.t3end + 2, 150), 200, M)
        else:
            w.spread(yu, e0 + 1, min(e0 + 2 + 4 * len(yu), YB - 2), M)
        w.fill(epi, first=e0 + 1, window=12)
        e1 = w.lastgap
        if self.nbg[0]:
            w.spread(self.take(self.nbg[0]), nb_ + 1, 202, M)
        if self.nbg[1]:
            w.spread(self.take(self.nbg[1]), max(o.bg1, nb_ + 1), o.bg1end, M)
        self.bg = self.units_frags(self.WO_W, 's85', tag='wo') + self.bg
        if o.kvgap:
            k.begin()
            self.kv_flag()
            w.post(o.kvgap, k.end())
        w.fill(epi3, first=325 - 2 * (20 - XS_), window=12)
        w.fill(epi4, first=325 - 4 * (20 - XS_), window=12)
        w.fill(epi2, first=e1 + 1, window=12)
        print('qkv kv stores end', e0, 'YB', YB, 'epilogue ends', e1, 'tail', w.ntail, 'last gap', w.lastgap)
        if o.raw == 'qkv':
            self.rawstamps(w, range(0, 308, 12), 'r')
        k.put(w.result())
        self.stamp('qkv')

    def kv_flag(self):
        k = self.k
        k('s_lshl_b32 s72, s96, 7')
        self.jflag('s73')
        k('s_sub_u32 s72, s72, s73')
        k(f's_add_u32 s72, s72, {WS_KVF}')
        k(f'v_and_b32 v7, v{VF_FAST}, v{VF_SLOW}')
        k.wait_vm('kv')
        k(f'buffer_store_dword v5, v7, {WS}, s72 offen sc1')

    def halo_addr(self):
        k = self.k
        k(f's_min_u32 s93, {sCL}, 2')
        k('s_lshl_b32 s93, s93, 4')
        k('s_sub_u32 s93, s96, s93')
        k('s_lshl_b32 s93, s93, 7')
        k(f's_add_u32 s93, s93, {WS_KVF}')
        k(f's_cmp_ge_u32 {sCL}, 2')
        k('s_cselect_b32 s72, 2048, 0')
        k('v_and_b32 v19, 3, v3')
        k('v_lshlrev_b32 v19, 2, v19')
        k('v_bfe_u32 v18, v3, 2, 1')
        k('v_mad_u32_u24 v19, v18, s72, v19')
        for d in (1, 2):
            k(f's_cmp_ge_u32 {sCL}, {d}')
            k(f's_cselect_b32 s72, 0, {OOB}')
            k(f's_cselect_b32 s{93 + d}, {d * 16 * 4 * KVB}, 0')
            k(f'v_add_u32 v{16 + d}, s72, v1')
            k(f's_sub_u32 s{93 + d}, s97, s{93 + d}')

    def halo(self):
        k = self.k
        self.poll('v255', 's93', 252, False, 251)
        self.stamp('kvflag')
        hu = [self.units_dma(f's{93 + d}', 0, L_C + (2 - d) * 4 * KVB, 22, f'halo{d}', voff=f'v{252 + d}') for d in (1, 2)]
        self.put_units(hu[0])
        self.halo2 = hu[1]

    QM = [12, 16]; Q2 = [20, 24]
    CD, CO = 32, 48
    SS = [64, 80]
    OO = [96, 112]
    PP = 128
    KM = [136, 140]; K2 = [144, 148]
    VF = 152

    def attn_setup(self):
        k = self.k
        k('v_and_b32 v64, 31, v3')
        k('v_lshrrev_b32 v65, 5, v3')
        k('v_bfe_u32 v66, v3, 2, 2')
        k('v_lshl_add_u32 v66, v65, 2, v66')
        k('v_mul_u32_u24 v30, 48, v66')
        k('v_and_b32 v66, 3, v3')
        k('v_min_u32 v67, 1, v66')
        k('v_add_u32 v67, 4, v67')
        k('v_and_b32 v68, 16, v3')
        k('v_cmp_eq_u32 vcc, 0, v68')
        k('v_cmp_gt_u32 s[48:49], 32, v3')
        k('v_cndmask_b32 v66, v67, v66, vcc')
        k('v_lshl_add_u32 v30, v66, 3, v30')
        k('v_add_u32 v30, s81, v30')
        k('v_lshlrev_b32 v31, 2, v65')
        k('v_sub_u32 v31, v64, v31')
        k(f'v_mov_b32 v69, {f2u(NEG):#x}')
        self.masks(True, True)

    def masks(self, diag, old):
        k = self.k
        for i0 in range(0, 16, 4):
            for i in range(i0, i0 + 4):
                k(f'v_cmp_le_i32 s[{60 + 2 * (i % 4)}:{61 + 2 * (i % 4)}], {8 * (i >> 2) + (i & 3)}, v31')
            for i in range(i0, i0 + 4):
                m = f's[{60 + 2 * (i % 4)}:{61 + 2 * (i % 4)}]'
                if diag:
                    k(f'v_cndmask_b32 v{self.CD + i}, v69, 0, {m}')
                if old:
                    k(f'v_cndmask_b32 v{self.CO + i}, 0, v69, {m}')

    def ld_k(self, kset, i, head):
        k = self.k
        k(f'ds_read_b128 v[{self.KM[kset]}:{self.KM[kset] + 3}], v28 offset:{i * KVB + KM_OFF[head]}')
        if head == 0:
            r = self.K2[i & 1]
            k(f'ds_read_b64 v[{r}:{r + 1}], v29 offset:{i * KVB + KT_OFF}')

    def ld_v(self, half, i, head):
        k = self.k
        off = i * KVB + V_OFF[head] + 768 * half
        b = self.VF + 4 * half
        k(f'ds_read_b64_tr_b16 v[{b}:{b + 1}], v30 offset:{off}')
        k(f'ds_read_b64_tr_b16 v[{b + 2}:{b + 3}], v30 offset:{off + 384}')

    def m_sa(self, sset, kset, head, C):
        S = self.SS[sset]
        self.k(f'v_mfma_f32_32x32x16_bf16 v[{S}:{S + 15}], v[{self.KM[kset]}:{self.KM[kset] + 3}], v[{self.QM[head]}:{self.QM[head] + 3}], {C}')

    def m_sb(self, sset, i, head):
        S = self.SS[sset]
        r = self.K2[i & 1]
        self.k(f'v_mfma_f32_32x32x16_bf16 v[{S}:{S + 15}], v[{r}:{r + 3}], v[{self.Q2[head]}:{self.Q2[head] + 3}], v[{S}:{S + 15}]')

    def m_pv(self, half, head, first):
        O = self.OO[head]
        b, p = self.VF + 4 * half, self.PP + 4 * half
        self.k(f'v_mfma_f32_32x32x16_bf16 v[{O}:{O + 15}], v[{b}:{b + 3}], v[{p}:{p + 3}], {"0" if first else f"v[{O}:{O + 15}]"}')

    def cmask(self, i):
        return f'v[{self.CD}:{self.CD + 15}]' if i == 8 else (f'v[{self.CO}:{self.CO + 15}]' if i == 0 else '0')

    def attn_steps(self, seq, firsts):
        k = self.k
        n = len(seq)
        self.ld_v(0, *seq[0])
        self.ld_v(1, *seq[0])
        self.m_sa(0, 0, seq[0][1], self.cmask(seq[0][0]))
        self.m_sb(0, *seq[0])
        for t in range(n):
            i, h = seq[t]
            S = self.SS[t & 1]

            def e(*xs):
                for x in xs:
                    k(f'v_exp_f32 v{S + x}, v{S + x}')

            def c(x):
                k(f'v_cvt_pk_bf16_f32 v{self.PP + x}, v{S + 2 * x}, v{S + 2 * x + 1}')
            nx = t + 1 < n
            if nx:
                self.m_sa((t + 1) & 1, (t + 1) & 1, seq[t + 1][1], self.cmask(seq[t + 1][0]))
            if t + 2 < n:
                self.ld_k(t & 1, *seq[t + 2])
            e(0, 1, 2, 3)
            if t:
                self.m_pv(1, seq[t - 1][1], False)
                self.ld_v(1, i, h)
            c(0); e(4, 5); c(1); e(6, 7)
            if nx:
                self.m_sb((t + 1) & 1, *seq[t + 1])
            c(2); c(3); e(8, 9, 10, 11)
            self.m_pv(0, h, firsts and t < 2)
            if nx:
                self.ld_v(0, *seq[t + 1])
            c(4); e(12, 13); c(5); e(14, 15); c(6); c(7)
        self.m_pv(1, seq[n - 1][1], False)

    def attention(self):
        k = self.k
        for i in range(1, 4):
            k(f'v_mov_b32 v{252 + i}, v{16 + i}')
        if self.o.hpos == 0:
            self.halo()
        for h in range(2):
            self.ld_k(h, 8, h)
        for r in self.K2:
            k(f'v_mov_b32 v{r + 2}, 0x3f803f80')
            k(f'v_mov_b32 v{r + 3}, 0')
        for h in range(2):
            k(f'v_mov_b32 v{self.Q2[h] + 2}, 0')
            k(f'v_mov_b32 v{self.Q2[h] + 3}, 0')
        for i in range(2):
            k(f'v_cndmask_b32 v{self.Q2[0] + i}, 0, v{88 + i}, s[48:49]')
            k(f'v_cndmask_b32 v{self.Q2[1] + i}, v{88 + i}, 0, s[48:49]')
        self.m_sa(0, 0, 0, '0')
        self.m_sb(0, 8, 0)
        self.pack(self.QM[1], 80, True)
        self.m_sa(1, 1, 1, '0')
        self.m_sb(1, 8, 1)
        if self.o.hpos == 0:
            self.put_units(self.halo2)
        k('v_bfe_u32 v6, v3, 4, 1')
        k('v_mul_u32_u24 v6, 20480, v6')
        k('v_and_b32 v7, 15, v3')
        k('v_lshl_add_u32 v6, v7, 4, v6')
        k('v_lshrrev_b32 v7, 5, v3')
        k('v_lshl_add_u32 v8, v7, 8, v6')
        k('v_cndmask_b32 v9, v2, v6, s[48:49]')
        self.stamp('kvpub')
        self.put_units(self.take(self.nbg[2]))
        for h in range(2):
            S = self.SS[h]
            k(f'v_max3_f32 v{S}, v{S}, v{S + 1}, v{S + 2}')
            for i in range(3, 15, 2):
                k(f'v_max3_f32 v{S}, v{S}, v{S + i}, v{S + i + 1}')
            k(f'v_max_f32 v{S}, v{S}, v{S + 15}')
            k(f'v_mov_b32 v{S + 1}, v{S}')
        for h in range(2):
            S = self.SS[h]
            k(f'v_permlane32_swap_b32 v{S}, v{S + 1}')
        for h in range(2):
            S = self.SS[h]
            k(f'v_max_f32 v{S}, v{S}, v{S + 1}')
            k(f'v_and_b32 v{S + 1}, 0xffff0000, v{S}')
            k(f'v_sub_f32 v{S}, v{S + 1}, v{S}')
            k(f'v_cvt_pk_bf16_f32 v{S}, -v{S + 1}, v{S}')
            k(f'v_cndmask_b32 v{self.Q2[h] + 2}, 0, v{S}, s[48:49]')
        if self.o.hpos == 1:
            self.halo()
        k.begin()
        self.attn_steps([(8, 0), (8, 1)], True)
        w = Sched(k.end())
        if self.o.hpos == 1:
            w.spread(self.halo2, 1, 6)
        k.put(w.result())
        self.stamp('diag')
        self.wo_prep()
        self.put_units(self.early_units + self.take(self.nbg[3]))
        self.stamp('mod2')
        k.wait_vm('halo1')
        k.barrier()
        self.stamp('halo')
        seq = [(i, h) for i in range(7, -1, -1) for h in range(2)]
        k.begin()
        self.ld_k(0, *seq[0])
        self.ld_k(1, *seq[1])
        self.attn_steps(seq, False)
        w = Sched(k.end())
        k.begin()
        k.wait_vm('halo2')
        k('s_barrier')
        w.pre(2 + 3 + 4 * 5, k.end())
        assert sum(self.nbg[2:5]) >= 25
        w.spread(self.take(self.nbg[4]), self.o.bg_start, w.n - self.o.bg_quiet)
        k.put(w.result())
        self.stamp('steps')
        k(f's_mov_b32 s72, {f2u(2.0 ** -90):#x}')
        k(f's_mov_b32 s73, {f2u(2.0 ** 64):#x}')
        la, lb = self.OO[0] + 12, self.OO[1] + 12
        k(f'v_cmp_nlt_f32 vcc, s72, v{la}')
        k(f'v_cmp_ngt_f32 s[76:77], s73, v{la}')
        k(f'v_cmp_nlt_f32 s[74:75], s72, v{lb}')
        k(f'v_cmp_ngt_f32 s[78:79], s73, v{lb}')
        k('s_or_b64 vcc, vcc, s[74:75]')
        k('s_or_b64 s[76:77], s[76:77], s[78:79]')
        k('s_or_b64 vcc, vcc, s[76:77]')
        k.wait_lgkm_all()
        if self.o.force_fb:
            k('s_branch .Lfallback')
        else:
            k('s_cbranch_scc1 .Lfallback')
        k.label('.Lfb_ret')
        for h in range(2):
            k(f'v_rcp_f32 v{64 + h}, v{self.OO[h] + 12}')
        for h in range(2):
            O = self.OO[h]
            for i in range(0, 12, 2):
                k(f'v_pk_mul_f32 v[{O + i}:{O + i + 1}], v[{O + i}:{O + i + 1}], v[64:65] {"op_sel:[0,1]" if h else "op_sel_hi:[1,0]"}')
            for i in range(4):
                k(f'v_cvt_pk_bf16_f32 v{68 + 4 * h + i}, v{O + 2 * i}, v{O + 2 * i + 1}')
            for i in range(2):
                k(f'v_cvt_pk_bf16_f32 v{76 + 2 * h + i}, v{O + 8 + 2 * i}, v{O + 9 + 2 * i}')
            k(f'buffer_store_dwordx4 v[{68 + 4 * h}:{71 + 4 * h}], v8, {WS}, s80 offen offset:{512 * h}', 'o')
        k(f'buffer_store_dwordx4 v[76:79], v9, {WS}, s80 offen offset:1024', 'o')
        if self.o.fine:
            self.stamp('ost')
        self.put_units(self.take(self.nbg[7]))

    def fallback(self):
        k = self.k
        k.label('.Lfallback')
        k.fence_hazards()
        k('s_nop 15')
        k('s_waitcnt vmcnt(0)')
        k(f's_lshl2_add_u32 s74, {sCL}, {sW}')
        k('s_min_u32 s75, s74, 7')
        k(f'v_mov_b32 v69, {f2u(NEG):#x}')
        self.masks(True, False)
        S = self.SS[0]

        def run(body):
            k(f'v_add_u32 v80, {8 * KVB}, v28')
            k(f'v_add_u32 v81, {8 * KVB}, v29')
            k(f'v_add_u32 v82, {8 * KVB}, v30')

            def step():
                for r in (80, 81, 82):
                    k(f'v_add_u32 v{r}, {-KVB & 0xffffffff:#x}, v{r}')
            body(self.cmask(8))
            step()
            lab, out, done = k.newlabel('al'), k.newlabel('alx'), k.newlabel('ald')
            k('s_mov_b32 s77, s75')
            k('s_cmp_eq_u32 s77, 0')
            k.wait_lgkm_all()
            k.fence_hazards()
            k(f's_cbranch_scc1 {out}')
            k.label(lab)
            body('0')
            step()
            k('s_sub_u32 s77, s77, 1')
            k('s_cmp_lg_u32 s77, 0')
            k.wait_lgkm_all()
            k.fence_hazards()
            k(f's_cbranch_scc1 {lab}')
            k.label(out)
            k('s_cmp_lt_u32 s74, 8')
            k(f's_cbranch_scc1 {done}')
            body(self.cmask(0))
            k.wait_lgkm_all()
            k.fence_hazards()
            k.label(done)
        for h in range(2):
            k(f'v_mov_b32 v{self.Q2[h] + 2}, 0')
            k(f'v_mov_b32 v83, {f2u(-3.0e38):#x}')

            def score(C):
                k(f'ds_read_b128 v[{self.KM[0]}:{self.KM[0] + 3}], v80 offset:{KM_OFF[h]}')
                k(f'ds_read_b64 v[{self.K2[0]}:{self.K2[0] + 1}], v81 offset:{KT_OFF}')
                self.m_sa(0, 0, h, C)
                self.m_sb(0, 0, h)

            def p1(C):
                score(C)
                for i in range(0, 16, 2):
                    k(f'v_max3_f32 v83, v83, v{S + i}, v{S + i + 1}')
            run(p1)
            k('v_mov_b32 v84, v83')
            k('v_permlane32_swap_b32 v83, v84')
            k('v_max_f32 v83, v83, v84')
            k('v_and_b32 v84, 0xffff0000, v83')
            k('v_sub_f32 v83, v84, v83')
            k('v_cvt_pk_bf16_f32 v84, -v84, v83')
            k(f'v_cndmask_b32 v{self.Q2[h] + 2}, 0, v84, s[48:49]')
            for i in range(16):
                k(f'v_mov_b32 v{self.OO[h] + i}, 0')

            def p2(C):
                score(C)
                for t in range(4):
                    k(f'ds_read_b64_tr_b16 v[{self.VF + 2 * t}:{self.VF + 2 * t + 1}], v82 offset:{V_OFF[h] + 384 * t}')
                for i in range(16):
                    k(f'v_exp_f32 v{S + i}, v{S + i}')
                for i in range(8):
                    k(f'v_cvt_pk_bf16_f32 v{self.PP + i}, v{S + 2 * i}, v{S + 2 * i + 1}')
                self.m_pv(0, h, False)
                self.m_pv(1, h, False)
            run(p2)
        k.fence_hazards()
        k('s_branch .Lfb_ret')

    def unpack10(self, src, dst):
        k = self.k
        for i in range(10):
            k(f'v_lshlrev_b32 v{dst + 2 * i}, 16, v{src + i}')
            k(f'v_and_b32 v{dst + 2 * i + 1}, 0xffff0000, v{src + i}')

    def lds_cols(self, base, dst, vA, vB):
        k = self.k
        k(f'ds_read_b128 v[{dst}:{dst + 3}], {vA} offset:{base}')
        k(f'ds_read_b128 v[{dst + 4}:{dst + 7}], {vA} offset:{base + 64}')
        k(f'ds_read_b64 v[{dst + 8}:{dst + 9}], {vB} offset:{base + 128}')

    X1 = 22

    def rowmajor(self, a, b):
        k = self.k
        k(f'v_and_b32 v{a}, 15, v3')
        k(f'v_mul_u32_u24 v{a}, 1280, v{a}')
        k(f'v_lshrrev_b32 v{b}, 4, v3')
        k(f'v_lshl_add_u32 v{a}, v{b}, 4, v{a}')
        k(f'v_lshlrev_b32 v{b}, 3, v{b}')
        k(f'v_sub_u32 v{b}, v{a}, v{b}')

    def vec_addr(self):
        k = self.k
        k('v_lshrrev_b32 v19, 4, v3')
        k('v_lshlrev_b32 v18, 4, v19')
        k('v_lshlrev_b32 v19, 3, v19')
        k(f'v_add_u32 v18, {L_P}, v18')
        k(f'v_add_u32 v19, {L_P}, v19')

    def wo_prep(self):
        k = self.k
        o = self.o
        k(f's_lshl2_add_u32 s91, {sCL}, {sW}')
        k(f's_lshl1_add_u32 s91, s91, {sTH}')
        k('s_mul_i32 s92, s91, 20480')
        k(f's_mul_i32 s72, {sJC}, 2560')
        k('s_add_u32 s92, s92, s72')
        k(f's_add_u32 s92, s92, {WS_Z}')
        k('s_lshl_b32 s93, s91, 10')
        k(f's_lshr_b32 s72, {sJC}, 1')
        k('s_lshl_b32 s72, s72, 8')
        k('s_add_u32 s93, s93, s72')
        k(f's_and_b32 s72, {sJC}, 1')
        k('s_lshl3_add_u32 s93, s72, s93')
        k(f's_add_u32 s93, s93, {WS_ST}')
        k(f's_mul_i32 s82, {sCL}, 393216')
        k(f's_lshl2_add_u32 s72, {sJ}, {sW}')
        k('s_mul_i32 s72, s72, 768')
        k('s_add_u32 s82, s82, s72')
        k(f's_add_u32 s82, s82, {WS_HH + 98304}')
        k(f's_mul_i32 s94, {sCL}, {O_CL}')
        k(f's_mul_i32 s72, {sTH}, 20480')
        k('s_add_u32 s94, s94, s72')
        k(f's_mul_i32 s72, {sW}, 5120')
        k('s_add_u32 s94, s94, s72')
        k(f's_add_u32 s94, s94, {WS_O}')
        us = []
        tl = [('s92', 1, 20, 128, 42)] if o.touchz and 'z' not in k.wt else []
        if 'to' not in o.order.replace('+', ',').split(','):
            if 'z' not in k.wt and 'ts' not in o.order.split(','):
                tl += [('s93', 1, 2, 128, 44)]
            if 'hh' not in k.wt:
                tl += [('s82', 6, 48, 49152, 46)]
        for so, per, n, stride, t in tl:
            k.begin()
            self.touch(so, per, n, stride, t)
            it = k.end()
            k.put(it[:-1])
            us.append(it[-1:])
        self.early_units = us
        self.wd_setup()
        self.nwd = 0

    def mm5(self, a, wregs, B, NS, chain):
        k = self.k
        order = [(s, ft) for ft in range(5) for s in range(NS)] if chain else [(s, ft) for s in range(NS) for ft in range(5)]
        for s, ft in order:
            d = a + 4 * ft
            k(f'v_mfma_f32_16x16x32_bf16 v[{d}:{d + 3}], {ur(wregs[s * 5 + ft])}, {ur(B[s])}, {"0" if s == 0 else f"v[{d}:{d + 3}]"}')

    def wo(self):
        k = self.k
        X1 = self.X1
        self.vec_addr()
        k(f's_mul_i32 s72, {sJC}, 160')
        k('v_add_u32 v20, s72, v18')
        k('v_add_u32 v21, s72, v19')
        self.lds_cols(P_GA - L_P, 84, 'v18', 'v19')
        self.lds_cols(P_G2 - L_P, X1, 'v20', 'v21')
        k('v_and_b32 v20, 15, v3')
        k('v_mul_u32_u24 v20, 160, v20')
        k(f's_mul_i32 s72, {sW}, 2560')
        k(f's_sub_u32 s72, s72, {L_P - L_X}')
        k('v_add3_u32 v21, v20, s72, v19')
        k('v_add3_u32 v20, v20, s72, v18')
        self.lds_cols(0, 32, 'v20', 'v21')
        self.unpack10(32, 120)
        self.unpack10(84, 140)
        for i in range(10):
            r = [72, 76, 112, 116, 12][i // 2] + 2 * (i % 2)
            k(f'v_lshlrev_b32 v{r}, 16, v{X1 + i}')
            k(f'v_and_b32 v{r + 1}, 0xffff0000, v{X1 + i}')
        k('v_and_b32 v20, 15, v3')
        k('v_lshlrev_b32 v20, 4, v20')
        k('v_bfe_u32 v21, v3, 4, 1')
        k('v_lshl_add_u32 v21, v21, 3, v20')
        k('v_lshrrev_b32 v64, 5, v3')
        k('v_lshl_add_u32 v21, v64, 8, v21')
        k('v_bfe_u32 v64, v3, 4, 1')
        k('v_lshl_add_u32 v20, v64, 2, v20')
        k('v_cndmask_b32 v20, v2, v20, s[48:49]')
        k(f's_mul_i32 s76, {sW}, 15360')
        k('v_add_u32 v30, s76, v1')
        self.K0 = min(self.o.cs0, (60 - len(self.bg)) // 3)
        k.put(self.csbias(31, 64, 32, 0, self.K0))
        for t in range(4):
            k(f's_add_u32 s72, {sW}, {t + 1}')
            k('s_and_b32 s72, s72, 3')
            k(f's_mul_i32 s{60 + t}, s72, 40960')
            k(f's_add_u32 s{60 + t}, s{60 + t}, s94')
            if t < 3:
                k('s_mul_i32 s72, s72, 15360')
                k(f'v_add_u32 v{16 + t}, s72, v1')
        self.flag_off('s74', PH_O)
        k(f's_lshl_b32 s72, {sW}, 7')
        k('s_add_u32 s74, s74, s72')
        k('s_barrier')
        self.publish(PH_O, 'o')
        self.stamp('attn')
        self.poll('v10', 's74', 31, 'o', 19)
        self.stamp('oflag')
        AG = [480 + 4 * i for i in range(7)]
        B = [AG[:5], [80, 84, 88, 92, 96], AG[5:] + [100, 104, 108], AG[:5]]
        ol = sum((self.units_frags(B[t], f's{60 + t}') for t in range(4)), [])
        self.put_units(ol[:self.o.oup])
        for s in range(self.K0):
            self.cs_mm(s)
        acc = [32, 52]
        k.begin()
        for t in range(4):
            self.mm5(acc[t & 1], self.WO_W, B[t], 5, t > 0)
        w = Sched(k.end())
        wg = [[27, 30, 33, 36, 39], [42, 46, 50, 54, 58], [62, 66, 71, 76, 81]]
        for t in range(3):
            for ft in range(5):
                k.begin()
                a = acc[t & 1] + 4 * ft
                k(f'ds_write_b128 v{16 + t}, v[{a}:{a + 3}] offset:{L_RED + t * 5120 + ft * 1024}', f'red{t}')
                w.at(wg[t][ft], k.end())
        for gap, t in ((63, 1), (86, 2)):
            k.begin()
            k.wait_lgkm(f'red{t}')
            k('s_barrier')
            w.pre(gap, k.end())

        def rdp(t, dst):
            k.begin()
            for ft in range(5):
                k(f'ds_read_b128 v[{dst + 4 * ft}:{dst + 4 * ft + 3}], v30 offset:{L_RED + t * 5120 + ft * 1024}')
            return k.end()
        w.spread(ol[self.o.oup:15], 0, 14)
        w.spread(ol[15:], 25, 44, (3, 1))
        if self.o.raw == 'wo':
            self.rawstamps(w, range(0, 88, 12), 'r')
        assert len(self.bg) - self.nbg[5] >= 4
        self.nwd = self.nbg[6]
        if self.nbg[5] + self.nwd:
            w.spread(self.take(self.nbg[5]) + self.wd[:self.nwd], self.o.wo_start, self.o.wo_quiet)
        w.fill(rdp(0, 80), first=63, last=69)
        k.begin()
        for i in range(20):
            k(f'v_fmac_f32 v{120 + i}, v{140 + i}, v{80 + i}')
        w.fill(k.end() + rdp(1, 80), first=72, last=92)
        w.fill(rdp(2, 32), first=87, last=94)
        k.put(w.result())
        self.stamp('ks3')
        a = 52
        G2 = [72, 76, 112, 116, 12]
        for i in range(0, 20, 2):
            k(f'v_pk_add_f32 v[{80 + i}:{81 + i}], v[{80 + i}:{81 + i}], v[{32 + i}:{33 + i}]')
        for i in range(0, 20, 2):
            r = G2[i // 4] + i % 4
            k(f'v_pk_add_f32 v[{a + i}:{a + i + 1}], v[{a + i}:{a + i + 1}], v[{80 + i}:{81 + i}]')
            k(f'v_pk_fma_f32 v[{a + i}:{a + i + 1}], v[{a + i}:{a + i + 1}], v[{140 + i}:{141 + i}], v[{120 + i}:{121 + i}]')
            k(f'v_pk_mul_f32 v[{r}:{r + 1}], v[{r}:{r + 1}], v[{a + i}:{a + i + 1}]')
            k(f'v_cvt_pk_bf16_f32 v{100 + i // 2}, v{r}, v{r + 1}')
            if i == 6:
                k(f'buffer_store_dwordx4 v[100:103], v1, {WS}, s92 offen', 'z')
            if i == 14:
                k(f'buffer_store_dwordx4 v[104:107], v1, {WS}, s92 offen offset:1024', 'z')
        k(f'buffer_store_dwordx2 v[108:109], v21, {WS}, s92 offen offset:2048', 'z')
        k(f'v_pk_add_f32 v[84:85], v[{a}:{a + 1}], v[{a + 2}:{a + 3}]')
        k(f'v_pk_mul_f32 v[86:87], v[{a}:{a + 1}], v[{a}:{a + 1}]')
        k(f'v_pk_fma_f32 v[86:87], v[{a + 2}:{a + 3}], v[{a + 2}:{a + 3}], v[86:87]')
        for i in range(4, 20, 2):
            k(f'v_pk_add_f32 v[84:85], v[84:85], v[{a + i}:{a + i + 1}]')
            k(f'v_pk_fma_f32 v[86:87], v[{a + i}:{a + i + 1}], v[{a + i}:{a + i + 1}], v[86:87]')
        k('v_add_f32 v84, v84, v85')
        k('v_add_f32 v85, v86, v87')
        k('v_permlane16_swap_b32 v84, v85')
        k('v_add_f32 v84, v84, v85')
        k('v_mov_b32 v85, v84')
        k('v_permlane32_swap_b32 v84, v85')
        k('v_add_f32 v84, v84, v85')
        k(f'buffer_store_dword v84, v20, {WS}, s93 offen', 'z')
        if self.o.fine:
            self.stamp('wst')
        nz = self.nbg[8]
        us = self.take(nz)
        more = self.wd[self.nwd:self.nwd + nz - len(us)]
        assert self.nwd + len(more) <= 10
        self.nwd += len(more)
        self.put_units(us + more)

    def csbias(self, a, t, dst, lo, hi):
        k = self.k
        k.begin()
        k(f'v_and_b32 v{a}, 1, v3')
        k(f'v_mul_u32_u24 v{a}, 1280, v{a}')
        k(f'v_and_b32 v{t}, 48, v3')
        k(f'v_add_u32 v{t}, {P_G2}, v{t}')
        k(f'v_sub_u32 v{a}, v{t}, v{a}')
        for s in range(lo, hi):
            k(f'ds_read_b128 v[{dst + 4 * s}:{dst + 4 * s + 3}], v{a} offset:{64 * s}')
        return k.end()

    CSE = [22, 26, 6]
    CSA = 140
    EXA = 128
    EXB = 96
    L_TS = 73728

    def cs_mm(self, s):
        for ft in range(3):
            d = self.CSE[ft] if s < self.K0 else self.CSA + 4 * ft
            c = self.CSE[ft] if s <= self.K0 else d
            b = (32 if s < self.K0 else 160) + 4 * s
            self.k(f'v_mfma_f32_16x16x32_bf16 v[{d}:{d + 3}], v[{b}:{b + 3}], {ur(256 + 12 * s + 4 * ft)}, {"0" if s == 0 else f"v[{c}:{c + 3}]"}')

    def cs_fin(self):
        k = self.k
        k.begin()
        for ft in range(3):
            c, e = self.CSA + 4 * ft, self.EXA + 4 * ft
            k(f'v_cvt_pk_bf16_f32 v{e + 3}, v{c}, v{c + 1}')
            k(f'v_lshlrev_b32 v{c + 2}, 16, v{e + 3}')
            k(f'v_and_b32 v{c + 3}, 0xffff0000, v{e + 3}')
            k(f'v_sub_f32 v{c}, v{c}, v{c + 2}')
            k(f'v_sub_f32 v{c + 1}, v{c + 1}, v{c + 3}')
            k(f'v_cvt_pk_bf16_f32 v{e}, v{c + 2}, v{c + 2}')
            k(f'v_cvt_pk_bf16_f32 v{e + 1}, v{c}, v{c + 3}')
            k(f'v_cvt_pk_bf16_f32 v{e + 2}, v{c + 3}, v{c + 1}')
            for i in range(3):
                k(f'v_cndmask_b32 v{e + i}, 0, v{e + i}, s[50:51]')
            k(f'v_mov_b32 v{e + 3}, 0')
        return k.end()

    WD_REG = ([256 + 32 + 4 * i for i in range(10)] + [152 + 4 * i for i in range(26)] + [496, 500, 504, 508] +
              [124, 140, 144, 148] + [256 + 72 + 4 * i for i in range(8)] + [256 + 4 * i for i in range(8)])
    HH_B = [[256 + 104 + 4 * i for i in range(12)], [256 + 152 + 4 * i for i in range(12)],
            [256 + 200 + 4 * i for i in range(10)] + [112, 116]]

    def wd_setup(self):
        k = self.k
        k(f's_mul_i32 s86, {sJC}, {WD_J}')
        k(f's_mul_i32 s72, {sW}, {61440 + OD_W}')
        k('s_add_u32 s86, s86, s72')
        k(f's_add_u32 s86, s86, {WS_WD}')
        k(f's_lshl_b32 s95, {sW}, 13')
        k(f's_mul_i32 s81, {sW}, 10240')
        us = self.units_frags(self.WD_REG, 's86', tag='wd')
        for i in list(range(10)) + list(range(44, 52)):
            k.begin()
            if i and i % 4 == 0:
                k('s_add_u32 s86, s86, 4096')
            base = L_B + 1024 * i if i < 10 else 40960 + 1024 * (i - 44)
            if i % 4 == 0 or i < 10:
                k(f's_add_u32 m0, {"s81" if i < 10 else "s95"}, {base - 1024 * (i % 4)}')
            if 'nobg' not in self.o.x:
                k(f'buffer_load_dwordx4 v1, {WS}, s86 offen offset:{1024 * (i % 4)} sc1{self.ntw} lds', 'wdl')
            us[i] = k.end()
        self.wd = us

    def hh_publish(self, q):
        k = self.k
        k.begin()
        k('v_add_u32 v5, 1, v5')
        self.publish(PH_HH, f'hh{q}')
        return k.end()

    def hh_flagload(self):
        k = self.k
        k.begin()
        k(f'buffer_load_dword v12, v13, {WS}, s74 offen sc1')
        return k.end()

    def hh_check(self, need):
        k = self.k
        k.begin()
        k(f's_add_u32 s75, {sTAG}, {need}')

        def test():
            k('v_subrev_u32 v12, s75, v12')
            k(f'v_cmp_lt_u32 vcc, {7 - need}, v12')
        test()

        def body():
            k(f'buffer_load_dword v12, v13, {WS}, s74 offen sc1')
            k('s_waitcnt vmcnt(0)')
            test()
        self.recheck(body)
        self.acquire(f'hh{need - 1}')
        return k.end()

    def gu_epilogue(self, q, a, packed):
        k = self.k
        epi = []
        for tt in range(2):
            k.begin()
            c = self.EXB + 8 * tt + 4
            t0, t1 = 112 + 2 * tt, 113 + 2 * tt
            for ft in range(3):
                d = a + 12 * tt + 4 * ft
                if packed:
                    k(f'v_pk_mul_f32 v[{t0}:{t1}], v[{d}:{d + 1}], v[{d}:{d + 1}]')
                    k(f'v_pk_fma_f32 v[{t0}:{t1}], v[{t0}:{t1}], v[{c}:{c + 1}], v[{c}:{c + 1}] op_sel:[0,1,0] op_sel_hi:[1,1,0]')
                    k(f'v_pk_mul_f32 v[{t0}:{t1}], v[{t0}:{t1}], v[{d}:{d + 1}]')
                    k(f'v_exp_f32 v{t0}, v{t0}')
                    k(f'v_exp_f32 v{t1}, v{t1}')
                    k(f'v_pk_mul_f32 v[{d}:{d + 1}], v[{d}:{d + 1}], v[{d + 2}:{d + 3}]')
                    k(f'v_pk_fma_f32 v[{t0}:{t1}], v[{t0}:{t1}], v[{c + 2}:{c + 3}], v[{c + 2}:{c + 3}] op_sel_hi:[1,0,0]')
                    k(f'v_rcp_f32 v{t0}, v{t0}')
                    k(f'v_rcp_f32 v{t1}, v{t1}')
                    k(f'v_pk_mul_f32 v[{d}:{d + 1}], v[{d}:{d + 1}], v[{t0}:{t1}]')
                else:
                    k(f'v_mul_f32 v{t0}, v{d}, v{d}')
                    k(f'v_mul_f32 v{t1}, v{d + 1}, v{d + 1}')
                    k(f'v_fma_f32 v{t0}, v{t0}, v{c + 1}, v{c}')
                    k(f'v_fma_f32 v{t1}, v{t1}, v{c + 1}, v{c}')
                    k(f'v_mul_f32 v{t0}, v{t0}, v{d}')
                    k(f'v_mul_f32 v{t1}, v{t1}, v{d + 1}')
                    k(f'v_exp_f32 v{t0}, v{t0}')
                    k(f'v_exp_f32 v{t1}, v{t1}')
                    k(f'v_mul_f32 v{d}, v{d}, v{d + 2}')
                    k(f'v_fma_f32 v{t0}, v{t0}, v{c + 2}, v{c + 2}')
                    k(f'v_fma_f32 v{t1}, v{t1}, v{c + 2}, v{c + 2}')
                    k(f'v_rcp_f32 v{t0}, v{t0}')
                    k(f'v_rcp_f32 v{t1}, v{t1}')
                    k(f'v_mul_f32 v{d + 1}, v{d + 1}, v{d + 3}')
                    k(f'v_mul_f32 v{d}, v{d}, v{t0}')
                    k(f'v_mul_f32 v{d + 1}, v{d + 1}, v{t1}')
                dst = (16 + 2 * tt + ft) if ft < 2 else (6 + tt)
                k(f'v_cvt_pk_bf16_f32 v{dst}, v{d}, v{d + 1}')
            epi.append(k.end())
        k.begin()
        k('v_permlane32_swap_b32 v16, v18')
        k('v_permlane32_swap_b32 v17, v19')
        k('v_permlane16_swap_b32 v6, v7')
        k('v_permlane16_swap_b32 v16, v17')
        k('v_permlane16_swap_b32 v18, v19')
        k(f'buffer_store_dwordx2 v[6:7], v21, {WS}, s82 offen offset:512', f'hh{q}')
        k(f'buffer_store_dwordx4 v[16:19], v20, {WS}, s82 offen', f'hh{q}')
        if q < 2:
            k('s_add_u32 s82, s82, 98304')
        if q == 2:
            k(f's_sub_u32 s82, s82, {3 * 98304}')
        fin = k.end()
        return zipper(epi[0], epi[1], 0 if packed else 8), fin

    def gu(self):
        k = self.k
        o = self.o
        slots = [L_A, 0, L_A, 0]
        addr = ['v8', 'v1', 'v8', 'v1']
        K1 = (60 - len(self.bg)) // 3
        C1 = -2.0 * 0.7978845608028654 * 1.4426950408889634
        k.begin()
        k('v_and_b32 v20, 15, v3')
        k('v_lshlrev_b32 v14, 5, v20')
        k(f'v_add_u32 v14, {self.L_TS}, v14')
        k(f's_lshl_b32 s72, {sW}, 10')
        k('v_lshrrev_b32 v15, 4, v3')
        k('v_lshl_add_u32 v15, v15, 3, v14')
        k('v_add_u32 v15, s72, v15')
        k('s_mov_b32 s64, 0xffff')
        k('s_mov_b32 s65, 0xffff')
        k('v_lshlrev_b32 v20, 4, v20')
        k('v_lshrrev_b32 v12, 5, v3')
        k('v_bfe_u32 v13, v3, 4, 1')
        k('s_mov_b32 s72, 49152')
        k('v_mad_u32_u24 v21, v13, s72, v20')
        k('v_lshl_add_u32 v21, v12, 3, v21')
        k('v_mad_u32_u24 v20, v12, s72, v20')
        k('v_lshl_add_u32 v20, v13, 8, v20')
        k('v_mov_b32 v13, v10')
        k('s_mov_b64 s[50:51], 0xffff')
        k(f's_mul_i32 s94, {sCL}, 163840')
        k(f's_add_u32 s94, s94, {WS_Z}')
        k('s_add_u32 s94, s94, s81')
        k(f's_lshl2_add_u32 s76, {sCL}, {sW}')
        k('s_lshl_b32 s76, s76, 11')
        k(f's_add_u32 s76, s76, {WS_ST}')
        k(f's_mul_i32 s60, {sCL}, 393216')
        k(f's_mul_i32 s72, {sTH}, 49152')
        k('s_add_u32 s60, s60, s72')
        k(f's_mul_i32 s72, {sW}, 12288')
        k('s_add_u32 s60, s60, s72')
        k(f's_add_u32 s63, s60, {WS_HH}')
        for t in range(3):
            k(f's_add_u32 s{60 + t}, s63, {98304 * (t + 1)}')
        self.flag_off('s74', PH_Z)
        k(f's_lshl_b32 s72, {sW}, 7')
        k('s_add_u32 s74, s74, s72')
        setup = k.end()
        K0 = self.K0
        c1 = min(max(o.cs1, K0 + 1), K1)
        k.put(self.csbias(32, 33, 160, K0, 20))
        k.put(setup[:o.zpub])
        if o.fine:
            self.stamp('wset')
        self.publish(PH_Z, 'z')
        self.stamp('wo')
        k.begin()
        for s in range(K0, c1):
            self.cs_mm(s)
        w = Sched(k.end())
        for i, it in enumerate(setup[o.zpub:]):
            w.post(min(i // 2, w.n - 1), [it])
        k.put(w.result())
        k(f'v_add_u32 v8, {L_A}, v1')
        for i in range(10):
            k(f'v_cvt_pk_bf16_f32 v{self.X1 + i}, v{52 + 2 * i}, v{53 + 2 * i}')
        self.poll('v10', 's74', 6, False, 7)
        k('s_barrier')
        self.acquire('z')
        self.stamp('zflag')
        zd = [self.units_dma('s94', 40960 * q, slots[q], 40, f'z{q}', woff='s81') for q in range(4)]
        stu = self.units_frags([96, 104], 's76')
        if o.zsplit:
            k(f's_lshr_b32 s72, {sW}, 1')
            k('s_mul_i32 s72, s72, 10240')
            k(f's_mul_i32 s70, {sW}, 5120')
            k('s_add_u32 s70, s70, s72')
            k('s_sub_u32 s71, s94, s81')
            k('s_add_u32 s71, s71, s70')
            zd[0] = (self.units_dma('s71', 0, L_A, 20, 'z0', woff='s70') + self.units_dma('s71', 10240, L_A + 10240, 20, 'z0b', woff='s70'))
        if c1 < K1:
            self.put_units(zd[0][:6])
            k.begin()
            for s in range(c1, K1):
                self.cs_mm(s)
            w = Sched(k.end())
            w.spread(zd[0][6:] + stu, 0, min(18, w.n - 1))
            k.put(w.result())
        else:
            self.put_units(zd[0] + stu)
        self.flag_off('s74', PH_HH)
        k(f's_lshl_b32 s72, {sW}, 7')
        k('s_add_u32 s74, s74, s72')
        k('v_add_u32 v10, s95, v1')
        k(f's_add_u32 s72, s81, {L_B}')
        k('v_add_u32 v9, s72, v1')
        self.hl = [self.units_frags(self.HH_B[t % 3], f's{60 + t}') for t in range(4)]
        sts = []
        for T in range(2):
            k.begin()
            b = 96 + 8 * T
            k(f'v_add_f32 v{b}, v{b}, v{b + 2}')
            k(f'v_add_f32 v{b + 1}, v{b + 1}, v{b + 3}')
            k(f'v_permlane16_swap_b32 v{b}, v{b + 1}')
            k(f'v_add_f32 v{b}, v{b}, v{b + 1}')
            k(f'v_mov_b32 v{b + 1}, v{b}')
            k(f'v_permlane32_swap_b32 v{b}, v{b + 1}')
            k(f'v_add_f32 v{b}, v{b}, v{b + 1}')
            k(f'v_mul_f32 v{b + 2}, {f2u(-1 / 640):#x}, v{b}')
            k(f'v_mul_f32 v{b + 6}, {f2u(-1 / 640):#x}, v{b}')
            k(f'v_permlane16_swap_b32 v{b + 2}, v{b + 6}')
            k(f'v_fma_f32 v{b + 6}, -v{b + 2}, v{b + 2}, -v{b + 6}')
            k(f'v_max_f32 v{b + 6}, 0, v{b + 6}')
            k(f'v_add_f32 v{b + 6}, {f2u(1e-5):#x}, v{b + 6}')
            k(f'v_rsq_f32 v{b + 4}, v{b + 6}')
            k(f'v_mul_f32 v{b + 3}, v{b + 6}, v{b + 4}')
            k(f'v_mul_f32 v{b + 5}, v{b + 4}, v{b + 4}')
            k(f'v_mul_f32 v{b + 4}, {f2u(C1):#x}, v{b + 4}')
            k(f'v_mul_f32 v{b + 5}, v{b + 5}, v{b + 4}')
            k(f'v_mul_f32 v{b + 5}, {f2u(0.044715):#x}, v{b + 5}')
            k(f'v_cvt_pk_bf16_f32 v{b + 1}, v{b + 2}, v{b + 3}')
            k(f'v_lshlrev_b32 v{b}, 16, v{b + 1}')
            k(f'v_and_b32 v{b + 7}, 0xffff0000, v{b + 1}')
            k(f'v_sub_f32 v{b + 2}, v{b + 2}, v{b}')
            k(f'v_sub_f32 v{b + 3}, v{b + 3}, v{b + 7}')
            k(f'v_cvt_pk_bf16_f32 v{b}, v{b}, v{b + 2}')
            k(f'v_cvt_pk_bf16_f32 v{b + 2}, v{b + 3}, v{b + 7}')
            k(f'v_mov_b32 v{b + 3}, 0')
            for e in range(2):
                k(f'v_cndmask_b32 v{b + e}, v{b + 2 + e}, v{b + e}, s[64:65]')
                k(f'v_cndmask_b32 v{b + 4 + e}, v{b + 6 + e}, v{b + 4 + e}, s[64:65]')
            for e in range(2):
                k(f'v_cndmask_b32 v{b + e}, v{b + 4 + e}, v{b + e}, s[48:49]')
            k(f'ds_write_b64 v15, v[{b}:{b + 1}] offset:{512 * T}', 'ts')
            sts.append(k.end())
        acc = [32, 56]
        FRL = [80, 84, 88, 92, 116, 120]
        LA = o.gula
        k.wait_vm('z0')
        k.barrier()
        self.stamp('g0')
        seq = [(q, s, tt) for q in range(4) for s in range(20) for tt in range(2)]
        k.begin()

        def rd(i):
            q, s, tt = seq[i]
            k(f'ds_read_b128 {ur(FRL[i % 6])}, {addr[q]} offset:{20480 * tt + 1024 * s}')

        def extra(q):
            for tt in range(2):
                for ft in range(3):
                    d = acc[q & 1] + 12 * tt + 4 * ft
                    e, x = self.EXA + 4 * ft, self.EXB + 8 * tt
                    k(f'v_mfma_f32_16x16x32_bf16 v[{d}:{d + 3}], v[{e}:{e + 3}], v[{x}:{x + 3}], v[{d}:{d + 3}]')
        for i in range(LA):
            rd(i)
        gap_of, n, X = [], 0, {}
        for i, (q, s, tt) in enumerate(seq):
            gap_of.append(n)
            for ft in range(3):
                d = acc[q & 1] + 12 * tt + 4 * ft
                k(f'v_mfma_f32_16x16x32_bf16 v[{d}:{d + 3}], {ur(256 + 12 * s + 4 * ft)}, {ur(FRL[i % 6])}, {"0" if s == 0 else f"v[{d}:{d + 3}]"}')
                if ft == 0 and i + LA < len(seq):
                    rd(i + LA)
            n += 3
            if q == 0 and tt == 0 and s >= K1:
                self.cs_mm(s)
                n += 3
            x0 = 7 if K1 < 20 else 1
            if (q == 1 and i % 40 == x0) or (q >= 1 and i % 40 == 39):
                qq = 0 if i % 40 == x0 else q
                X[qq] = n
                extra(qq)
                n += 6
        Q = [gap_of[40 * q] for q in range(4)] + [n]
        w = Sched(k.end())
        for q in range(1, 4):
            k.begin()
            k.wait_vm(f'z{q}')
            if q == 1:
                k.wait_lgkm('ts')
            k('s_barrier')
            if o.fine:
                self.stamp(f'g{q}')
            w.pre(gap_of[40 * q - LA], k.end())
        if o.zsplit:
            k.begin()
            k.wait_vm('z0b')
            k('s_barrier')
            w.pre(gap_of[20 - LA], k.end())
        for q in (1, 2):
            k.begin()
            k('s_barrier')
            w.pre(Q[q] + 4, k.end())
        for q in range(4):
            for i in range(4):
                k.begin()
                r = self.EXB + 4 * i
                k(f'ds_read_b128 v[{r}:{r + 3}], v14 offset:{1024 * q + 512 * (i >> 1) + 16 * (i & 1)}')
                w.at(X[q] - 14 + 3 * i, k.end())
        M = (3, 0)
        wd = self.wd[self.nwd:]
        off = self.nwd
        rest = self.take(len(self.bg))
        n0 = o.wdq[0] - off
        n1 = o.wdq[1] - off
        w.spread(rest + zd[1] + wd[:n0], 0, Q[1] + 3, M)
        w.spread(zd[2] + wd[n0:n1], Q[1] + 5, Q[2] + 3, M)
        w.spread(zd[3] + wd[n1:52 - off], Q[2] + 5, Q[3] + 12, M)
        w.spread(wd[52 - off:], Q[3] + 18, Q[3] + 56, M)
        k.begin()
        k.wait_vm('wdl')
        w.pre(Q[3] + 57, k.end())
        lr = []
        for i in list(range(10)) + list(range(44, 52)):
            k.begin()
            if i < 10:
                k(f'ds_read_b128 {ur(self.WD_REG[i])}, v9 offset:{1024 * i}')
            else:
                k(f'ds_read_b128 {ur(self.WD_REG[i])}, v10 offset:{40960 + 1024 * (i - 44)}')
            lr.append(k.end())
        w.spread(lr[:7], Q[3] + 57, Q[3] + 78, M)
        w.spread(lr[7:], Q[3] + 88, Q[4] - 1, (3, 1))
        w.post(Q[2] + o.pubgap, self.hh_publish(0))
        w.post(Q[3] + o.pubgap, self.hh_publish(1))
        w.at(Q[3] + 8, self.hh_flagload())
        w.post(Q[3] + 77, self.hh_check(1))
        w.spread(self.hl[0][:10], Q[3] + 79, Q[4] - 1, M)
        w.at(Q[3] + 104, self.hh_flagload())
        w.fill(zipper(sts[0], sts[1], 4), first=30, last=Q[1] - 24)
        print('gu stats tail', w.ntail, 'K1', K1)
        w.fill(self.cs_fin(), first=Q[1] + 3 if K1 < 20 else 2, last=X[0] - 2)
        print('gu cs tail', w.ntail)
        for q in range(3):
            e, fin = self.gu_epilogue(q, acc[q & 1], False)
            w.fill(e + fin, first=X[q] + 8, last=X[q + 1] - 15)
            print('gu quarter', q, 'tail', w.ntail, 'ends', w.lastgap - Q[q + 1])
        if o.raw == 'gu':
            print('Q', Q, 'X', X)
            self.rawstamps(w, range(2, n - 12, 18), 'r')
        res = w.result()
        xs = o.x.split(',')

        def keep(it):
            if not isinstance(it, Ins):
                return True
            if 'g_noval' in xs and it.kind in ('valu', 'trans') and not it.mn.startswith('v_cmp') and 'v12' not in it.text and 'v5' not in it.text.split():
                return False
            if 'g_nobar' in xs and it.mn == 's_barrier':
                return False
            if 'g_nodma' in xs and it.meta == 'dma':
                return False
            if 'g_nost' in xs and it.kind == 'vmem' and '_store_dwordx' in it.mn:
                return False
            if 'g_nods' in xs and it.kind == 'ds':
                return False
            return True
        k.put([it for it in res if keep(it)])
        self.stamp('g4')
        self.put_units(self.hl[0][10:])
        if o.g5in:
            e, fin = self.gu_epilogue(3, acc[1], False)
            self.e3 = e + fin
        else:
            e, fin = self.gu_epilogue(3, acc[1], True)
            k.put(e[:len(e) // 3])
            k.put(self.hh_check(2))
            self.put_units(self.hl[1][:6])
            k.put(e[len(e) // 3:])
            k.put(fin)
        self.stamp('g5')

    def down(self):
        k = self.k
        X1 = self.X1
        W = self.WD_REG
        acc = [32, 52]
        k(f's_mul_i32 s76, {sW}, 5120')
        k(f's_add_u32 s76, s76, {L_A}')
        k('v_lshrrev_b32 v9, 2, v3')
        k('v_and_b32 v9, 12, v9')
        k('v_add_u32 v9, v9, v3')
        k('v_and_b32 v9, 15, v9')
        k('v_and_or_b32 v9, v3, 48, v9')
        k('v_lshl_add_u32 v8, v9, 4, s76')
        k(f's_mul_i32 s76, {sW}, 20480')
        k(f's_add_u32 s76, s76, {L_A}')
        k.begin()
        for t in range(4):
            self.mm5(acc[t & 1], W, self.HH_B[t % 3], 12, self.o.chain or (t == 3 and self.o.chain3))
        w = Sched(k.end())
        k.begin()
        k('s_barrier')
        w.pre(61, k.end())

        def wr(t):
            us = []
            for ft in range(5):
                k.begin()
                a = acc[t & 1] + 4 * ft
                off = t * 20480 + ft * 1024
                if off > 65535 - 16:
                    k(f'ds_write_b128 v6, v[{a}:{a + 3}] offset:{off - 40960}', f'dw{t}{ft}')
                else:
                    k(f'ds_write_b128 v8, v[{a}:{a + 3}] offset:{off}', f'dw{t}{ft}')
                us.append(k.end())
            return us
        o = self.o
        for t in range(3):
            w.spread(wr(t), 60 * (t + 1) + 8, 60 * (t + 1) + (50 if t < 2 else 16))
        d = o.dn
        if o.g5in:
            w.post(2, self.hh_check(2))
            w.spread(self.hl[1], 3, 46)
        else:
            w.spread(self.hl[1][6:], 0, 24)
        w.post(d[0], self.hh_publish(2))
        w.post(d[1], self.hh_publish(3))
        w.at(d[2], self.hh_flagload())
        w.post(d[3], self.hh_check(3))
        w.spread(self.hl[2], d[3] + 1, d[3] + d[6])
        w.at(d[4], self.hh_flagload())
        w.post(d[5], self.hh_check(4))
        w.spread(self.hl[3], d[5] + 1, d[5] + d[7])
        if o.g5in:
            w.fill(self.e3, first=3, last=58, over=o.g5in - 1)
            print('last epilogue ends', w.lastgap, 'tail', w.ntail)
            assert d[3] + d[6] * 10 // 12 > 58 and d[1] > w.lastgap
        k.begin()
        k('v_add_u32 v6, 40960, v8')
        k('v_lshrrev_b32 v16, 2, v3')
        k('v_and_b32 v19, 3, v3')
        k('v_lshl_add_u32 v9, v19, 2, v16')
        k('v_and_b32 v9, 15, v9')
        k('v_lshl_add_u32 v9, v19, 4, v9')
        k('v_lshl_add_u32 v9, v9, 4, s76')
        k('v_lshl_add_u32 v7, v19, 4, v16')
        k('v_lshlrev_b32 v7, 2, v7')
        for i in range(10):
            k(f'ds_bpermute_b32 v{X1 + i}, v7, v{X1 + i}')
        k('v_mul_u32_u24 v16, 1280, v16')
        k('v_lshlrev_b32 v18, 4, v19')
        k('v_lshlrev_b32 v19, 3, v19')
        k('v_add_u32 v17, v16, v19')
        k('v_add_u32 v16, v16, v18')
        k(f'v_add_u32 v18, {L_P}, v18')
        k(f'v_add_u32 v19, {L_P}, v19')
        self.lds_cols(P_GB - L_P, 128, 'v18', 'v19')
        self.unpack10(128, 92)
        self.unpack10(X1, 72)
        w.fill(k.end(), first=135, last=200)
        w3 = wr(3)
        for ft in range(4):
            w.at(180 + 12 * ft + 18, w3[ft])
        k.begin()
        k.wait_lgkm('dw31')
        k('s_barrier')
        w.pre(216, k.end())
        RD = [[32, 36, 40, 44], [48, 112, 116, 128], [160, 164, 168, 172], [176, 180, 184, 188], [192, 196, 200, 204]]

        def rdq(ft):
            for t in range(4):
                k(f'ds_read_b128 v[{RD[ft][t]}:{RD[ft][t] + 3}], v9 offset:{t * 5120 + ft * 1024}')
        k.begin()
        rdq(0)
        rdq(1)
        w.fill(k.end(), first=217, last=226)
        if o.raw == 'dn':
            self.rawstamps(w, range(0, 228, 12), 'r')
        k.put(w.result())
        self.stamp('ks3')
        k.put(w3[4])

        def fin(ft):
            r = RD[ft]
            for h in (0, 2):
                k(f'v_pk_add_f32 v[{r[0] + h}:{r[0] + h + 1}], v[{r[0] + h}:{r[0] + h + 1}], v[{r[1] + h}:{r[1] + h + 1}]')
                k(f'v_pk_add_f32 v[{r[2] + h}:{r[2] + h + 1}], v[{r[2] + h}:{r[2] + h + 1}], v[{r[3] + h}:{r[3] + h + 1}]')
            for h in (0, 2):
                k(f'v_pk_add_f32 v[{r[0] + h}:{r[0] + h + 1}], v[{r[0] + h}:{r[0] + h + 1}], v[{r[2] + h}:{r[2] + h + 1}]')
            for h in (0, 2):
                i = 4 * ft + h
                k(f'v_pk_fma_f32 v[{r[0] + h}:{r[0] + h + 1}], v[{r[0] + h}:{r[0] + h + 1}], v[{92 + i}:{93 + i}], v[{72 + i}:{73 + i}]')
            for h in (0, 2):
                k(f'v_cvt_pk_bf16_f32 v{X1 + 2 * ft + h // 2}, v{r[0] + h}, v{r[0] + h + 1}')
        k.barrier()
        if o.fine:
            self.stamp('dbar')
        rdq(2)
        rdq(3)
        rdq(4)
        fin(0)
        fin(1)
        k(f'buffer_store_dwordx4 v[{X1}:{X1 + 3}], v16, {OUTS}, s90 offen', 'out')
        fin(2)
        fin(3)
        k(f'buffer_store_dwordx4 v[{X1 + 4}:{X1 + 7}], v16, {OUTS}, s90 offen offset:64', 'out')
        fin(4)
        k(f'buffer_store_dwordx2 v[{X1 + 8}:{X1 + 9}], v17, {OUTS}, s90 offen offset:128', 'out')
        if o.fine:
            self.stamp('dst')

    def padspin(self, t):
        k = self.k
        lab = k.newlabel('pad')
        k.wait_lgkm_all()
        k.label(lab)
        k('s_memrealtime s[100:101]')
        k('s_sub_u32 s100, s100, s98')
        k(f's_cmp_lt_u32 s100, {t}')
        k(f's_cbranch_scc1 {lab}')

    def finish(self):
        k = self.k
        if self.o.padto and self.o.padat == 'end':
            self.padspin(self.o.padto)
        if self.o.stamps:
            k.wait_vm_all()
            self.stamp('end')
            k.wait_lgkm_all()
            k('s_memtime s[98:99]')
            k('v_writelane_b32 v11, s98, 62')
            k(f'v_writelane_b32 v11, {sFAST}, 63')
            k(f's_lshl2_add_u32 s72, s2, {sW}')
            k('s_lshl_b32 s72, s72, 8')
            k(f's_add_u32 s72, s72, {WS_DBG}')
            k('v_lshlrev_b32 v64, 2, v3')
            k(f'buffer_store_dword v11, v64, {WS}, s72 offen')
            if self.o.dbg:
                sel = [self.stampnames.index(n) + 1 for n in self.o.dbg.split(',')]
                k(f's_lshl2_add_u32 s72, s2, {sW}')
                k(f's_cmp_lg_u32 s72, {self.o.dbgwave}')
                k('s_cbranch_scc1 .Lend')
                k('s_mov_b64 s[28:29], s[68:69]')
                k('s_mov_b32 s30, 256')
                k('v_readlane_b32 s72, v11, 0')
                k('v_mov_b32 v64, 0')
                for i, n in enumerate(sel):
                    k(f'v_readlane_b32 s73, v11, {n}')
                    k('s_sub_u32 s73, s73, s72')
                    k('v_mov_b32 v65, s73')
                    k(f'buffer_store_dword v65, v64, {CS}, 0 offen offset:{4 * i}')
        k.label('.Lend')
        k('s_endpgm')

    def islands(self, body):
        import subprocess, re
        lines = body.split('\n')
        stub = '\n'.join(f'.Lchain{w}:' for w in range(4))
        src = '.amdgcn_target "amdgcn-amd-amdhsa--gfx950"\n.text\n' + body + '\n' + stub + '\n.Lcode_end:\n'
        open('isl.s', 'w').write(src)
        subprocess.check_call(['clang', '-x', 'assembler', '-target', 'amdgcn-amd-amdhsa', '-mcpu=gfx950', '-c', 'isl.s', '-o', 'isl.o'])
        dis = subprocess.check_output(['llvm-objdump', '-d', '-z', '--mcpu=gfx950', 'isl.o']).decode()
        sizes = [(int(m.group(1), 16), 4 * len(m.group(2).split())) for m in re.finditer(r'// ([0-9A-F]{12}): ((?:[0-9A-F]{8} ?)+)', dis)]
        p0 = lines.index('.Lpage0:')
        ret = lines.index('.Lwarm_ret:')
        end = lines.index('.Lend:')
        isins = lambda l: l.startswith('    ') and not l.strip().startswith(';')
        after = [i for i in range(p0, len(lines)) if isins(lines[i])]
        tail = sizes[-len(after):]
        assert tail[0][0] % 4096 == 0
        offs = [int(x) for x in self.o.isl.split(',')]
        pos, addr, nxt, out = [], 0, 0, lines[:p0 + 1]
        targets = [4096 * p + o_ for p in range(1, 20) for o_ in offs]
        sz = {i: s for i, (_, s) in zip(after, tail)}
        prev = ''
        oe = lines.index('.Lool_end:')
        lasti = -1000
        for i in range(p0 + 1, len(lines)):
            l = lines[i]
            if isins(l):
                if self.o.oolw and end + 1 < i < oe and addr >= lasti + self.o.oolw * 128 and lines[i - 1].startswith('.Lrcs'):
                    out.append(f'@ISL{len(pos)}')
                    pos.append(addr)
                    lasti = addr
                    addr += 4
                if i > ret and i < end and addr >= targets[nxt] and not prev.strip().startswith('s_cbranch_vccz'):
                    good = prev.strip().startswith('v_mfma') and not l.strip().startswith('s_')
                    if good or addr >= targets[nxt] + 40:
                        out.append(f'@ISL{len(pos)}')
                        pos.append(addr)
                        addr += 4
                        nxt += 1
                while i <= ret and addr >= targets[nxt]:
                    nxt += 1
                addr += sz[i]
                prev = l
            out.append(l)
        n = len(pos)
        per = (n + 3) // 4
        res = []
        for l in out:
            if l.startswith('@ISL'):
                j = int(l[4:])
                if j % per == 0:
                    res.append(f'.Lchain{j // per}:')
                res.append(f'.Lisl{j}:')
                last = (j + 1) % per == 0 or j + 1 == n
                res.append(f'    s_cbranch_execz {".Lwarm_ret" if last else f".Lisl{j + 1}"}')
            else:
                res.append(l)
                if l == '.Lwarm_ret:':
                    res += [f'.Lchain{w}:' for w in range(4) if w * per >= n]
        print('islands', [hex(p) for p in pos])
        return '\n'.join(res)

    def build(self):
        o = self.o
        def pre():
            fns = dict(wqi=self.st_wq_issue, xi=self.st_x_issue, mod=self.st_mod, lp=self.st_lp, xw=lambda: self.k.wait_vm('x'), mc=self.st_modc, a1=self.st_addr,
                       wqp=self.st_wq_process, pq=lambda: (self.wg_flag('wqst', WS_PQ), self.stamp('pq')),
                       norm=self.st_norm,
                       li=lambda: self.late_mod(self.mod_issue), lc=lambda: self.late_mod(self.mod_core),
                       rq=self.st_rest_prep, ri=lambda: (self.put_units(self.rest_units(36, 38)), self.stamp('ri')), a2=self.st_addr2,
                       rr=self.rest_reads, rs=lambda: (self.put_units(self.rest_stores()), self.stamp('rs')),
                       pr=lambda: (self.wg_flag('pre', WS_PR), self.stamp('pr')), bar=self.k.barrier,
                       to=self.touch_arena, x2=self.x2_issue, b=self.st_bases, pqp=self.pq_poll, rl=self.rr_rs_late, m2=lambda: self.mod_pass(True, split=True), al=self.align_page, wm=self.warm, ts=self.touch_small, pqs=self.pq_sample, pqe=self.pq_early, pql=self.pq_late,
                       h=self.make_h, hp=lambda: (self.publish(PH_H, 'h'), self.stamp('hpub')), hf=self.h_poll, xi0=lambda: self.xd_issue(0), xi1=lambda: self.xd_issue(1), xr0=lambda: self.xd_read(0), xr1=lambda: self.xd_read(1),
                       xn0=lambda: self.xd_norm(0), xn1=lambda: self.xd_norm(1), xf=self.xn_flag, xp=self.xn_poll, m2v=lambda: self.k.put(self.m2_rest))
            for n_ in range(1, 41):
                fns[f'l{n_}'] = lambda n_=n_: self.xn_loads(n_)
                fns[f't{n_}'] = lambda n_=n_: (self.pre_mod(n_), self.stamp(f't{self.nt}'))
            for c in range(5):
                fns[f'c{c}'] = lambda c=c: self.put_units(self.wq_chunk(c))
            self.st_entry()
            for n in o.order.split(','):
                if n.startswith('m1'):
                    sub = n.split('+')
                    self.mod_pass(False, between=lambda: [fns[x]() for x in sub[1:]], withpq={'m1x': 1, 'm1a': 2}.get(sub[0], 0),
                                  onmiss={'m1d': fns['ri'], 'm1e': self.rr_rs}.get(sub[0]))
                else:
                    fns[n]()
        steps = [
            ('pre', pre),
            ('qkv', self.qkv),
            ('attn', self.attention),
            ('wo', self.wo),
            ('gu', self.gu),
            ('down', self.down),
        ]
        for name, fn in steps:
            self.k.comment(f'==================== {name}')
            fn()
            if o.stop == name:
                break
        self.finish()
        for fn in self.ool:
            self.k.assume_vm_empty()
            self.k.fence_hazards()
            fn()
        self.k.label('.Lool_end')
        if o.stop not in ('pre', 'qkv'):
            self.k.assume_vm_empty()
            self.fallback()
        body = self.k.finalize()
        if 'wm' in o.order.split(','):
            body = self.islands(body)
        ref = 'cdna_kernels/' + NAME + '.s.ref'
        hdr = open(ref).read().split('\n') if os.path.exists(ref) else []
        top = [l for l in hdr if l.startswith(';') and '@launch' not in l]
        txt = '\n'.join(top) + f'''
; @launch grid=(256,1,1) block=(256,1,1) lds={LDS_BYTES}
.amdgcn_target "amdgcn-amd-amdhsa--gfx950"
.text
.globl {NAME}_kernel
.p2align 8
.type {NAME}_kernel,@function
{NAME}_kernel:
{body}
.Lcode_end:
.section .rodata,"a"
.p2align 6
.amdhsa_kernel {NAME}_kernel
  .amdhsa_next_free_vgpr 512
  .amdhsa_next_free_sgpr 102
  .amdhsa_accum_offset 256
  .amdhsa_group_segment_fixed_size 0
  .amdhsa_kernarg_size 96
  .amdhsa_user_sgpr_count 2
  .amdhsa_user_sgpr_kernarg_segment_ptr 1
  .amdhsa_system_sgpr_workgroup_id_x 1
.end_amdhsa_kernel
'''
        return txt


def parser():
    ap = argparse.ArgumentParser()
    ap.add_argument('--only', default='')
    ap.add_argument('-o', default='cdna_kernels/' + NAME + '.s')
    ap.add_argument('--stop', default=None)
    ap.add_argument('--stamps', action='store_true')
    ap.add_argument('--force-slow', dest='force_slow', action='store_true')
    ap.add_argument('--dbg', default=None)
    ap.add_argument('--dbgwave', type=int, default=401)
    ap.add_argument('--x', default='')
    ap.add_argument('--cyc', action='store_true')
    ap.add_argument('--order', default='wqi,xi,al,lp,rq,a1,b,a2,ts,mod,mc,ri,wqp,norm,wm,m1+pq+rr+rs,h,m2,bar,x2,hp,m2v,hf,c0,l2,c1,l4')
    ap.add_argument('--wqlook', type=int, default=14)
    ap.add_argument('--wgu-q', dest='wgu_q', type=int, default=8)
    ap.add_argument('--bg-quiet', dest='bg_quiet', type=int, default=6)
    ap.add_argument('--bg-attn', dest='bg_attn', type=int, default=45)
    ap.add_argument('--gubud', type=int, default=8)
    ap.add_argument('--dnlook', type=int, default=16)
    ap.add_argument('--force-fb', dest='force_fb', action='store_true')
    ap.add_argument('--fine', action='store_true')
    ap.add_argument('--chain', type=int, default=0)
    ap.add_argument('--pub3', type=int, default=36)
    ap.add_argument('--prgap', type=int, default=186)
    ap.add_argument('--wgu-q1', dest='wgu_q1', type=int, default=0)
    ap.add_argument('--wgu-q1end', dest='wgu_q1end', type=int, default=112)
    ap.add_argument('--prflag', type=int, default=1)
    ap.add_argument('--rsgap', type=int, default=60)
    ap.add_argument('--late', type=int, default=240)
    ap.add_argument('--rspos', type=int, default=20)
    ap.add_argument('--wlead', type=int, default=6)
    ap.add_argument('--remend', type=int, default=56)
    ap.add_argument('--rigap', type=int, default=58)
    ap.add_argument('--wend', type=int, default=116)
    ap.add_argument('--hend', type=int, default=170)
    ap.add_argument('--t3end', type=int, default=156)
    ap.add_argument('--bg', default='0,16,0,2,36,17,0,8,10')
    ap.add_argument('--bg-start', dest='bg_start', type=int, default=0)
    ap.add_argument('--wo-quiet', dest='wo_quiet', type=int, default=98)
    ap.add_argument('--cs1', type=int, default=14)
    ap.add_argument('--q0a', type=int, default=84)
    ap.add_argument('--touchz', type=int, default=0)
    ap.add_argument('--wt', default='hh,o,h')
    ap.add_argument('--split', type=int, default=1)
    ap.add_argument('--wdq', type=lambda s: [int(x) for x in s.split(',')], default=[16, 34])
    ap.add_argument('--pubgap', type=int, default=50)
    ap.add_argument('--chk4', type=int, default=100)
    ap.add_argument('--gula', type=int, default=5)
    ap.add_argument('--nearly', type=int, default=2)
    ap.add_argument('--x2gap', type=int, default=141)
    ap.add_argument('--drop', default='')
    ap.add_argument('--ntst', default='')
    ap.add_argument('--dn', type=lambda s: [int(x) for x in s.split(',')], default=[24, 60, 54, 76, 96, 118, 32, 32])
    ap.add_argument('--raw', default='')
    ap.add_argument('--isl', default='0')
    ap.add_argument('--padto', type=int, default=0)
    ap.add_argument('--padat', default='end')
    ap.add_argument('--m2pos', type=int, default=10)
    ap.add_argument('--kvgap', type=int, default=294)
    ap.add_argument('--wo-start', dest='wo_start', type=int, default=30)
    ap.add_argument('--oup', type=int, default=11)
    ap.add_argument('--zpub', type=int, default=6)
    ap.add_argument('--chain3', type=int, default=1)
    ap.add_argument('--up', type=lambda s: [int(x) for x in s.split(',')], default=[12, 8])
    ap.add_argument('--xfirst', type=int, default=0)
    ap.add_argument('--mstart', type=int, default=2)
    ap.add_argument('--mend', type=int, default=160)
    ap.add_argument('--bg1', type=int, default=230)
    ap.add_argument('--psleep', type=int, default=0)
    ap.add_argument('--ylate', type=int, default=1)
    ap.add_argument('--kvs', type=int, default=0)
    ap.add_argument('--bg1end', type=int, default=312)
    ap.add_argument('--bits', default='')
    ap.add_argument('--x2b', default='')
    ap.add_argument('--xs', type=int, default=8)
    ap.add_argument('--over', type=int, default=3)
    ap.add_argument('--hpos', type=int, default=1)
    ap.add_argument('--t3start', type=int, default=118)
    ap.add_argument('--yearly', type=int, default=1)
    ap.add_argument('--g5in', type=int, default=3)
    ap.add_argument('--fineflag', type=int, default=1)
    ap.add_argument('--plain', default='hh3')
    ap.add_argument('--hpre', type=int, default=4)
    ap.add_argument('--wide', type=int, default=0)
    ap.add_argument('--cs0', type=int, default=10)
    ap.add_argument('--pp', type=int, default=1)
    ap.add_argument('--oolw', type=int, default=1)
    ap.add_argument('--zsplit', type=int, default=0)
    ap.add_argument('--spin', type=int, default=20000)
    return ap


if __name__ == '__main__':
    opt = parser().parse_args()
    g = Gen(opt)
    txt = g.build()
    open(opt.o, 'w').write(txt)
    if opt.stamps:
        open(opt.o + '.stamps', 'w').write(' '.join(g.stampnames))
    print('written', opt.o, 'lines', txt.count('\n'), g.k.stats, g.stampnames)
```
